```python
import torch

def _softmax(x, axis=-1):
    return torch.softmax(x, dim=axis)
def _gelu(x):
    return torch.nn.functional.gelu(x, approximate="tanh")
def _silu(x):
    return torch.nn.functional.silu(x)
def _sigmoid(x):
    return torch.sigmoid(x)
def _layernorm(x, axis=-1, eps=1e-5):
    m = x.mean(dim=axis, keepdim=True)
    v = x.var(dim=axis, keepdim=True, unbiased=False)
    return (x - m) / torch.sqrt(v + eps)
def _scatter_add(tgt, idx, src, axis=0):
    return tgt.clone().index_add_(axis, idx, src)
def _segment_sum(src, seg, n):
    out = torch.zeros((n,) + src.shape[1:], dtype=src.dtype)
    return out.index_add_(0, seg, src)
def _pad(x, pw):
    flat = tuple(v for pair in reversed(pw) for v in pair)
    return torch.nn.functional.pad(x, flat)

kernel_name = 'sequential_preLN__sliding_local_dilated__mixer_s_mlp__prompt'

def setup_inputs():

    _w = (lambda a: (lambda t: t.to(torch.bfloat16) if t.is_floating_point() else t)(torch.as_tensor(a)))
    def _A_setup():
        B, S, D = 1, 2048, 512
        return {
            "x": _w((lambda *s: torch.randn(*s, dtype=torch.bfloat16) * 0.05)(B, S, D)),
            "wqkv": _w((lambda *s: torch.randn(*s, dtype=torch.bfloat16) * 0.05)(D, 3 * D)),
            "wo": _w((lambda *s: torch.randn(*s, dtype=torch.bfloat16) * 0.05)(D, D)),
        }
    _A_in = _A_setup()

    def _B_setup():
        B, S, D, F = 1, 2048, 512, 1792
        return {
            "x":  _w((lambda *s: torch.randn(*s, dtype=torch.bfloat16) * 0.05)(B, S, D)),
            "w1": _w((lambda *s: torch.randn(*s, dtype=torch.bfloat16) * 3.2)(D, D) * (D ** -0.5)),
            "w2": _w((lambda *s: torch.randn(*s, dtype=torch.bfloat16) * 3.2)(D, D) * (D ** -0.5)),
            "w3": _w((lambda *s: torch.randn(*s, dtype=torch.bfloat16) * 3.2)(D, F) * (D ** -0.5)),
            "w4": _w((lambda *s: torch.randn(*s, dtype=torch.bfloat16) * 3.2)(F, D) * (F ** -0.5)),
        }
    _B_in = _B_setup()

    return {
        "A_x": _A_in["x"],
        "A_wqkv": _A_in["wqkv"],
        "A_wo": _A_in["wo"],
        "B_x": _B_in["x"],
        "B_w1": _B_in["w1"],
        "B_w2": _B_in["w2"],
        "B_w3": _B_in["w3"],
        "B_w4": _B_in["w4"],
    }

def reference(A_x, A_wqkv, A_wo, B_x, B_w1, B_w2, B_w3, B_w4):
    def _A_ref(x, wqkv, wo):
        B, S, D = x.shape
        H = 32; Dh = D // H
        W, dil = 8, 2
        qkv = (lambda x, *d: x.permute(*d))((x @ wqkv).reshape(B, S, 3, H, Dh), 2, 0, 3, 1, 4)
        q, k, v = qkv[0], qkv[1], qkv[2]
        scale = Dh ** -0.5
        pos = torch.arange(S)
        off = torch.arange(W) * dil
        idx = pos[:, None] - off[None, :]
        mask = idx >= 0
        idx_c = torch.where(mask, idx, 0).reshape(-1)
        kg = k[:, :, idx_c, :].reshape(B, H, S, W, Dh)
        vg = v[:, :, idx_c, :].reshape(B, H, S, W, Dh)
        logits = torch.einsum("bhsd,bhswd->bhsw", q, kg) * scale
        logits = torch.where(mask[None, None, :, :], logits, -1e9)
        attn = _softmax(logits, axis=-1)
        o = torch.einsum("bhsw,bhswd->bhsd", attn, vg)
        return (lambda x, *d: x.permute(*d))(o, 0, 2, 1, 3).reshape(B, S, D) @ wo

    def _B_ref(x, w1, w2, w3, w4):
        B, S, D = x.shape
        h = _gelu(_layernorm(x, axis=-1) @ w1)
        c = D // 4
        g0 = _pad(h[:, :, 0*c:1*c], ((0, 0), (1, 0), (0, 0)))[:, :S, :]
        g1 = _pad(h[:, :, 1*c:2*c], ((0, 0), (0, 1), (0, 0)))[:, 1:, :]
        g2 = _pad(h[:, :, 2*c:3*c], ((0, 0), (2, 0), (0, 0)))[:, :S, :]
        g3 = _pad(h[:, :, 3*c:   ], ((0, 0), (0, 2), (0, 0)))[:, 2:, :]
        hs = torch.concatenate([g0, g1, g2, g3], axis=-1) @ w2
        x1 = x + hs
        h2 = _gelu(_layernorm(x1, axis=-1) @ w3) @ w4
        return x1 + h2

    x = A_x
    h = x + _A_ref(_layernorm(x, axis=-1), A_wqkv, A_wo)
    h2 = h + _B_ref(_layernorm(h, axis=-1), B_w1, B_w2, B_w3, B_w4)
    return h2
```

```python
import sys, math, struct

NAME = "sequential_preLN__sliding_local_dilated__mixer_s_mlp__prompt"
PROF = "--prof" in sys.argv
OPT = {}
for a in sys.argv:
    if a.startswith("--") and "=" in a:
        k, v = a[2:].split("="); OPT[k] = int(v)

out = []
def e(s): out.append("    " + s)
def lab(s): out.append(s + ":")
def cmt(s): out.append("    ; " + s)
def align(): out.append(".p2align 3")
def nop(n):
    while n > 0:
        k = min(n, 16); e(f"s_nop {k-1}"); n -= k
def f32(x): return "0x%08x" % struct.unpack("<I", struct.pack("<f", x))[0]
def vr(a, n): return f"v[{a}:{a+n-1}]"
def sr(a, n): return f"s[{a}:{a+n-1}]"
_uid = [0]
def uid(p):
    _uid[0] += 1
    return f"L_{p}_{_uid[0]}"

WS_O, WS_H, WS_H1, WS_X1, WS_G = 0, 2<<20, 4<<20, 6<<20, 8<<20
WS_HS = 15<<20
WS_X1S = WS_HS + (128<<10)
WS_FL = WS_HS + (256<<10)
WS_PROF = WS_HS + (512<<10)
WS_SIZE = 16<<20
GT = 56*1024
OOB = 0x40000000
NSLOT = 3
RING = 2*NSLOT*16384
XB = RING
XBH = XB + 4*8192
KA = XBH + 2*4096
VA = KA + 4*2048
SX = VA + 5*2048
CSA = SX + 6*256
CB = CSA + 512
C_LANDED, C_INITOK, C_CSF, C_ISSUED, C_KV, C_XF, C_SF, C_PROG = 0, 8, 16, 32, 48, 80, 112, 256
LDS_BYTES = CB + 256 + 6*256
assert LDS_BYTES <= 163840 and CB % 256 == 0 and SX % 512 == 0 and CSA % 512 == 0

sWAVE = 3
sX, sWS, sOUT = 4, 8, 12
sW = 12
pX, pWQKV, pWO, pBX, pW1, pW2, pW3, pW4, pOUT, pDBG, pWSP = 16, 18, 20, 22, 24, 26, 28, 30, 32, 34, 36
sJ, sG, sTILE, sITEM, sLANDED, sSLOT, sCSN, sBUD = 38, 39, 40, 41, 42, 43, 44, 45
sT0, sT1, sT2, sT3 = 46, 47, 60, 61
sRET, sRET2 = 48, 50
sFIRST, sAUTO, sONES, sCEXP = 52, 53, 54, 55
sFLW = 56
sODD = 58
sOFFA, sPUBV, sDST, sFLOFF, sLOW, sR32 = 62, 63, 64, 65, 66, 67
sM0, sM1 = 68, 70
sSTEP, sMID, sEND, sCNT, sSOFF, sXSEQ, sPUB = 72, 73, 74, 75, 76, 77, 78
sKH = 79
sPT = 80
sPIDX, sHALFCOL = 82, 83
sXOWN, sXPAR, sFLOFP, sHF = 84, 85, 86, 87
sFA, sFB = 88, 90
sXTOG = 92
sONE2 = 94
vLANE = 0
vT0, vT1, vT2, vT3, vT4, vT5, vCB, vT6, vT7 = 1, 2, 3, 4, 5, 6, 7, 8, 9
vPROGA, vL16 = 10, 11
vB, vW, vB32 = 12, 16, 20
vSC, vR1 = 22, 24
vFLO, vSTO, vXA, vRDY = 26, 27, 28, 29
vGA = 30
vLA = 32
vXR, vHP, vX1P = 36, 44, 52
vST = 60
vA = 64
vWB = 128
vACC, vACP = 160, 176
vE = 192
vPK, vK = 224, 232
vMS = 240
vXFP, vLND = 242, 243
vGB = 244
vNMH = 246
vSEL = 246
vOUTO, vCSR = 248, 249
vBIAS = 250
vCF = 250
vPRF, vLV = 254, 255
NVGPR = 256

def prof(idx):
    if not PROF: return
    e(f"s_memrealtime {sr(sPT,2)}")
    if OPT.get("clk"): e("s_memtime s[98:99]")
    e("s_waitcnt lgkmcnt(0)")
    e(f"v_writelane_b32 v{vPRF}, s{sPT}, {idx}")
    if OPT.get("clk"): e(f"v_writelane_b32 v{vPRF}, s98, {idx+32}")
def prof_flush():
    if not PROF: return
    e(f"v_lshlrev_b32 v{vT0}, 2, v{vLANE}")
    e(f"buffer_store_dword v{vPRF}, v{vT0}, {sr(sWS,4)}, s{sPIDX} offen")

tails = []
def spin(loop, done):
    tails.append((loop+"_s", loop, done))
    return loop+"_s"
def emit_tails():
    for s_, l, d in tails:
        lab(s_)
        e(f"s_sub_u32 s{sBUD}, s{sBUD}, 1")
        e(f"s_cbranch_scc0 {l}")
        e(f"s_mov_b32 s{sBUD}, 0")
        e(f"s_branch {d}")
    tails.clear()
def wait_lds(vaddr, off, need, tag):
    l = uid(tag); d = l+"_d"
    lab(l)
    e(f"ds_read_b32 v{vT7}, v{vaddr} offset:{off}")
    e("s_waitcnt lgkmcnt(0)")
    e(f"v_readfirstlane_b32 s{sT2}, v{vT7}")
    e(f"s_cmp_ge_u32 s{sT2}, {need}")
    e(f"s_cbranch_scc0 {spin(l, d)}")
    lab(d)

def red2x2(a, b, t, a2, b2, t2):
    e(f"v_permlane16_swap_b32 v{a}, v{b}")
    e(f"v_permlane16_swap_b32 v{a2}, v{b2}")
    e(f"v_add_f32 v{a}, v{a}, v{b}")
    e(f"v_add_f32 v{a2}, v{a2}, v{b2}")
    e(f"v_mov_b32 v{t}, v{a}")
    e(f"v_mov_b32 v{t2}, v{a2}")
    nop(1)
    e(f"v_permlane32_swap_b32 v{a}, v{t}")
    e(f"v_permlane32_swap_b32 v{a2}, v{t2}")
    e(f"v_add_f32 v{a}, v{a}, v{t}")
    e(f"v_add_f32 v{a2}, v{a2}, v{t2}")
    e(f"v_mov_b32 v{t}, v{a}")
    e(f"v_mov_b32 v{t2}, v{a2}")
    nop(1)
    e(f"v_permlane16_swap_b32 v{a}, v{t}")
    e(f"v_permlane16_swap_b32 v{a2}, v{t2}")
def red2(a, b, t):
    e(f"v_permlane16_swap_b32 v{a}, v{b}")
    e(f"v_add_f32 v{a}, v{a}, v{b}")
    e(f"v_mov_b32 v{t}, v{a}")
    nop(2)
    e(f"v_permlane32_swap_b32 v{a}, v{t}")
    e(f"v_add_f32 v{a}, v{a}, v{t}")
    e(f"v_mov_b32 v{t}, v{a}")
    nop(2)
    e(f"v_permlane16_swap_b32 v{a}, v{t}")
def mean_var(vs, vq, vnm, vvar):
    e(f"v_mul_f32 v{vnm}, {f32(-1.0/512)}, v{vs}")
    e(f"v_mul_f32 v{vvar}, {f32(1.0/512)}, v{vq}")
    e(f"v_fma_f32 v{vvar}, -v{vnm}, v{vnm}, v{vvar}")
    e(f"v_max_f32 v{vvar}, 0, v{vvar}")
def zero(base, n):
    for i in range(n): e(f"v_mov_b32 v{base+i}, 0")

slow_paths = []
def landed_check(tag):
    back = uid(tag+"_b"); slow = uid(tag+"_s")
    e(f"s_cmp_gt_u32 s{sLANDED}, s{sITEM}")
    e(f"s_cbranch_scc0 {slow}")
    lab(back)
    slow_paths.append((slow, back))
def emit_slow_paths():
    for slow, back in slow_paths:
        lab(slow)
        e(f"s_call_b64 {sr(sFA,2)}, L_landslow")
        e(f"s_branch {back}")
    slow_paths.clear()
    lab("L_landslow")
    e(f"ds_read_b32 v{vLV}, v{vLND}")
    e("s_waitcnt lgkmcnt(0)")
    e(f"v_readfirstlane_b32 s{sLANDED}, v{vLV}")
    e(f"s_sub_u32 s{sBUD}, s{sBUD}, 1")
    e(f"s_cbranch_scc1 L_landslow_x")
    e(f"s_cmp_gt_u32 s{sLANDED}, s{sITEM}")
    e(f"s_cbranch_scc0 L_landslow")
    e(f"s_setpc_b64 {sr(sFA,2)}")
    lab("L_landslow_x")
    e(f"s_mov_b32 s{sBUD}, 0")
    e(f"s_setpc_b64 {sr(sFA,2)}")

class LQ:
    def __init__(self, pend=()):
        self.q = list(pend)
    def op(self, id_, text):
        e(text); self.q.append(id_)
    def need(self, ids, vm=None):
        idx = max([i for i, x in enumerate(self.q) if x in ids], default=-1)
        n = len(self.q) - 1 - idx
        parts = []
        if vm is not None: parts.append(f"vmcnt({vm})")
        if idx >= 0:
            parts.append(f"lgkmcnt({min(n,15)})")
            self.q = self.q[idx+1:]
        if parts: e("s_waitcnt " + " ".join(parts))

def rd_text(buf, h, p, half_panel):
    if half_panel: ks, jj, st = (p >> 1) & 7, p & 1, 2048
    else: ks, jj, st = (p >> 2) & 3, p & 3, 4096
    return f"ds_read_b64_tr_b16 {vr(buf+2*h,2)}, v{vW+jj} offset:{ks*st+(st//2)*h}"
def mf_text(buf, areg, c, czero=False):
    return f"v_mfma_f32_16x16x32_bf16 {vr(c,4)}, {vr(buf,4)}, {vr(areg,4)}, {'0' if czero else vr(c,4)}"
def wadd(jj, src=None): e(f"v_add_u32 v{vW+jj}, s{sSLOT}, v{(vB if src is None else src)+jj}")
S_ITEM = lambda: e(f"s_add_u32 s{sITEM}, s{sITEM}, 2")
S_SLOT = lambda: e(f"s_add_u32 s{sSLOT}, s{sSLOT}, 32768")
S_CMP = lambda: e(f"s_cmp_lt_u32 s{sSLOT}, {RING}")
S_SEL = lambda: e(f"s_cselect_b32 s{sSLOT}, s{sSLOT}, s{sFIRST}")
def next_item(): S_ITEM(); S_SLOT(); S_CMP(); S_SEL()
V_PROGV = lambda: e(f"v_mov_b32 v{vT6}, s{sITEM}")
V_LAND = lambda: e(f"v_readfirstlane_b32 s{sLANDED}, v{vLV}")
X_OWN = lambda: e(f"v_add_u32 v{vXA}, s{sXOWN}, v{vL16}")
X_PAR = lambda: e(f"v_add_u32 v{vT5}, s{sXPAR}, v{vL16}")
X_SEQ = lambda: e(f"s_add_u32 s{sXSEQ}, s{sXSEQ}, 1")
X_SEQV = lambda: e(f"v_mov_b32 v{vT7}, s{sXSEQ}")
X_TOG1 = lambda: e(f"s_xor_b32 s{sXOWN}, s{sXOWN}, s{sXTOG}")
X_TOG2 = lambda: e(f"s_xor_b32 s{sXPAR}, s{sXPAR}, s{sXTOG}")

def pre(half_panel=False):
    V_LAND()
    landed_check("pre")
    for jj in range(2 if half_panel else 4): wadd(jj, vB32 if half_panel else None)
    for p in range(6):
        for h in range(2): e(rd_text(vWB+4*p, h, p, half_panel))

def recv_check(lq, n, extra_wait_ok, tag):
    l = uid(tag); d = l+"_d"
    lq.need(["F"] + [f"R{i}" for i in range(n)] + extra_wait_ok)
    e(f"v_readfirstlane_b32 s{sT0}, v{vT7}")
    e(f"s_cmp_ge_u32 s{sT0}, s{sXSEQ}")
    e(f"s_cbranch_scc0 {l}")
    lab(d)
    retries.append((l, d, n))
    for i in range(2*n): e(f"v_pk_add_f32 {vr(vACC+2*i,2)}, {vr(vACC+2*i,2)}, {vr(vE+2*i,2)}")
retries = []
def emit_retries():
    for l, d, n in retries:
        lab(l)
        e(f"ds_read_b32 v{vT7}, v{vXFP} offset:{C_XF}")
        for i in range(n): e(f"ds_read_b128 {vr(vE+4*i,4)}, v{vT5} offset:{1024*i}")
        e("s_waitcnt lgkmcnt(0)")
        e(f"v_readfirstlane_b32 s{sT0}, v{vT7}")
        e(f"s_cmp_ge_u32 s{sT0}, s{sXSEQ}")
        e(f"s_cbranch_scc1 {d}")
        e(f"s_sub_u32 s{sBUD}, s{sBUD}, 1")
        e(f"s_cbranch_scc0 {l}")
        e(f"s_mov_b32 s{sBUD}, 0")
        e(f"s_branch {d}")
    retries.clear()

def gen_pass64():
    buf = lambda q: (vE + 4*(q-16)) if 16 <= q < 24 else (vWB + 4*(q % 8))
    areg = lambda q, t: vA + 8*(q >> 2) + 4*t
    acc = lambda q, t: (vACP if t else vACC) + 4*(q & 3)
    lq = LQ([f"f{p}" for p in range(6) for h in range(2)])
    def RD(q, h, nxt=False):
        lq.op(("n" if nxt else "f")+str(q), rd_text(vWB+4*q if nxt else buf(q), h, q, False))
    SX_ = {(2,0): S_ITEM, (2,1): S_SLOT, (3,0): S_CMP, (3,1): S_SEL, (5,0): X_SEQ, (6,1): X_TOG1, (7,0): X_TOG2}
    VX_ = {(0,0): lambda: lq.op("lv", f"ds_read_b32 v{vLV}, v{vLND}"), (1,0): X_OWN, (2,0): X_PAR, (4,0): V_PROGV, (5,0): X_SEQV,
           (6,0): V_LAND, (7,0): lambda: wadd(0), (8,0): lambda: wadd(1), (8,1): lambda: landed_check("p64"), (9,0): lambda: wadd(2), (10,0): lambda: wadd(3)}
    order = list(range(16, 32))
    pend = [(q, h) for q in order for h in range(2)]
    def dual(q, czero=False):
        for t in range(2):
            e(mf_text(buf(q), areg(q, t), acc(q, t), czero))
            if (q, t) in SX_: SX_[(q, t)]()
            if q + 6 < 16: RD(q+6, t)
            else: RD(*pend.pop(0))
            if (q, t) in VX_: VX_[(q, t)]()
            elif q >= 10 and not (t == 1 and q % 2 == 1): RD(*pend.pop(0))
    def waitq(q, vm=None): lq.need([f"f{q}", f"f{q+1}"], vm)
    align(); lab("L_pass64b")
    save = list(lq.q)
    for q in range(4):
        if q % 2 == 0: waitq(q, 12 if q == 0 else None)
        dual(q)
    e("s_branch L_pass64_c")
    lq.q = save
    align(); lab("L_pass64")
    for q in range(4):
        if q % 2 == 0: waitq(q, 12 if q == 0 else None)
        dual(q, True)
    lab("L_pass64_c")
    for q in range(4, 16):
        if q % 2 == 0: waitq(q, 8 if q == 8 else None)
        dual(q)
    lq.need(["f15"])
    lq.op("pg", f"ds_write_b32 v{vPROGA}, v{vT6}")
    SP = {16: S_ITEM, 17: S_SLOT, 18: S_CMP, 19: S_SEL}
    for q in range(16, 32):
        if q % 2 == 0: waitq(q, {16: 4, 24: 0}.get(q))
        e(mf_text(buf(q), areg(q, 1), acc(q, 1)))
        if q in SP: SP[q]()
        k = 0
        while pend and k < 2: RD(*pend.pop(0)); k += 1
        if q == 24:
            e("s_cbranch_vccnz L_pubhook"); lab("L_pubret")
        if not pend and k < 2:
            if q == 25: lq.op("lv", f"ds_read_b32 v{vLV}, v{vLND}")
            if q == 26: V_PROGV()
            if q == 27: wadd(0)
            if q == 28: wadd(1)
            if q == 29: wadd(2)
            if q == 30: wadd(3); lq.op("pg", f"ds_write_b32 v{vPROGA}, v{vT6}")
    assert not pend
    lq.need(["lv"])
    V_LAND()
    e(f"s_bitcmp1_b32 s{sAUTO}, 0")
    e(f"s_cbranch_scc0 L_pass64_t0")
    def tail(cont):
        O = lambda q: e(mf_text(buf(q), areg(q, 0), acc(q, 0)))
        def n(q):
            if cont: RD(q, 0, True); RD(q, 1, True)
        W = lambda i: lq.op(f"W{i}", f"ds_write_b128 v{vXA}, {vr(vACP+4*i,4)} offset:{1024*i}")
        R = lambda i: lq.op(f"R{i}", f"ds_read_b128 {vr(vE+4*i,4)}, v{vT5} offset:{1024*i}")
        C = lambda i: lq.op(f"C{i}", f"ds_read_b128 {vr(vACP+4*i,4)}, v{vCSR} offset:{64*i}")
        if cont: landed_check("p64t")
        else: nop(2)
        O(24); O(25); n(0)
        if not cont: nop(2)
        O(26); W(0); O(27); n(1); O(28); W(1); O(29); n(2); O(16); W(2); O(17); n(3); O(18); W(3)
        lq.op("X", f"ds_write_b32 v{vRDY}, v{vT7} offset:{C_XF}")
        O(19); n(4); O(20)
        lq.op("F", f"ds_read_b32 v{vT7}, v{vXFP} offset:{C_XF}")
        R(0); O(21); R(1); R(2); O(22); R(3)
        lq.op("CF", f"ds_read_b64 {vr(vCF,2)}, v{vCB} offset:{C_CSF}")
        O(23); C(0); C(1); O(30); C(2); C(3); O(31); n(5)
        if not cont: nop(3)
        recv_check(lq, 4, ["C3"], "xr")
        e(f"s_setpc_b64 {sr(sRET,2)}")
    save = list(lq.q)
    tail(True)
    lq.q = save
    align(); lab("L_pass64_t0")
    tail(False)
    lab("L_pubhook")
    e(f"v_mov_b32 v{vST}, s{sPUBV}")
    e(f"buffer_atomic_add v{vST}, v{vFLO}, {sr(sWS,4)}, s{sFLOFF} offen offset:4 sc1")
    e("s_mov_b64 vcc, 0")
    e("s_branch L_pubret")

def gen_small(name, npos, half_panel, two):
    align(); lab(name)
    lq = LQ([f"f{p}" for p in range(6) for h in range(2)])
    nk = 2 if half_panel else 4
    buf = lambda q: vWB + 4*(q % 8)
    ksl = lambda q: (q >> 1) if half_panel else (q >> 2)
    X = {}
    if npos == 32:
        X = {0: [lambda: lq.op("lv", f"ds_read_b32 v{vLV}, v{vLND}")], 1: [S_ITEM], 2: [S_SLOT], 3: [S_CMP, S_SEL], 4: [V_PROGV], 6: [V_LAND],
             7: [lambda: wadd(0)], 8: [lambda: wadd(1), lambda: landed_check(name)], 9: [lambda: wadd(2)], 10: [lambda: wadd(3)],
             14: [lambda: lq.op("pg", f"ds_write_b32 v{vPROGA}, v{vT6}")]}
    o = npos - 16
    X.update({o: [lambda: lq.op("lv", f"ds_read_b32 v{vLV}, v{vLND}")], o+1: [S_ITEM], o+2: [S_SLOT], o+3: [S_CMP, S_SEL], o+4: [V_PROGV],
              o+5: [X_OWN], o+6: [X_SEQ], o+7: [X_PAR], o+8: [X_SEQV], o+9: [X_TOG1, X_TOG2],
              o+14: [lambda: lq.op("pg", f"ds_write_b32 v{vPROGA}, v{vT6}")]})
    for q in range(npos):
        if q % 2 == 0: lq.need([f"f{q}", f"f{q+1}"])
        for t in range(2):
            if t == 0 or two:
                e(mf_text(buf(q), vA + 8*ksl(q) + 4*t, (vACP if t else vACC) + 4*(q % nk), q < nk))
            if q+6 < npos: lq.op(f"f{q+6}", rd_text(buf(q+6), t, q+6, half_panel))
        for f in X.get(q, []): f()
    nsend = 1 if (half_panel and not two) else 2
    src = vACP if two else vACC + 4*nsend
    nop(8)
    for i in range(nsend): lq.op("W", f"ds_write_b128 v{vXA}, {vr(src+4*i,4)} offset:{1024*i}")
    lq.op("X", f"ds_write_b32 v{vRDY}, v{vT7} offset:{C_XF}")
    if two:
        lq.op("CF", f"ds_read_b64 {vr(vCF,2)}, v{vCB} offset:{C_CSF}")
        for i in range(2): lq.op(f"C{i}", f"ds_read_b128 {vr(vACP+4*i,4)}, v{vCSR} offset:{64*i}")
    lq.op("F", f"ds_read_b32 v{vT7}, v{vXFP} offset:{C_XF}")
    for i in range(nsend): lq.op(f"R{i}", f"ds_read_b128 {vr(vE+4*i,4)}, v{vT5} offset:{1024*i}")
    recv_check(lq, nsend, [], "xs")
    e(f"s_setpc_b64 {sr(sRET,2)}")

def cs_check(nq=4):
    l = uid("cs"); d = l+"_d"
    e(f"s_add_u32 s{sCSN}, s{sCSN}, 1")
    lab(l+"_c")
    e(f"v_min_u32 v{vCF}, v{vCF}, v{vCF+1}")
    nop(1)
    e(f"v_readfirstlane_b32 s{sT0}, v{vCF}")
    e(f"s_cmp_ge_u32 s{sT0}, s{sCSN}")
    e(f"s_cbranch_scc0 {l}")
    lab(d)
    cs_retries.append((l, d, nq))
    e(f"v_xor_b32 v{vCSR}, 0x100, v{vCSR}")
cs_retries = []
def emit_cs_retries():
    for l, d, nq in cs_retries:
        lab(l)
        e(f"ds_read_b64 {vr(vCF,2)}, v{vCB} offset:{C_CSF}")
        for i in range(nq): e(f"ds_read_b128 {vr(vACP+4*i,4)}, v{vCSR} offset:{64*i}")
        e("s_waitcnt lgkmcnt(0)")
        e(f"s_sub_u32 s{sBUD}, s{sBUD}, 1")
        e(f"s_cbranch_scc0 {l}_c")
        e(f"s_mov_b32 s{sBUD}, 0")
        e(f"s_branch {d}")
    cs_retries.clear()
def scalepack():
    for i in range(8): e(f"v_pk_mul_f32 {vr(vE+2*i,2)}, {vr(vACC+2*i,2)}, {vr(vSC,2)}")
    for i in range(8): e(f"v_pk_fma_f32 {vr(vE+2*i,2)}, {vr(vACP+2*i,2)}, {vr(vMS,2)}, {vr(vE+2*i,2)}")
    for i in range(8): e(f"v_cvt_pk_bf16_f32 v{vPK+i}, v{vE+2*i}, v{vE+2*i+1}")
def call_pass(auto=None, name="L_pass64"):
    if auto is not None: e(f"s_mov_b32 s{sAUTO}, {auto}")
    e(f"s_call_b64 {sr(sRET,2)}, {name}")

hdr = open("cdna_kernels/%s.s.ref" % NAME).read().split("\n")
for l in hdr:
    if l.startswith("; Override"): break
    out.append(l)
out.append(f"; @launch grid=(256,1,1) block=(512,1,1) lds={LDS_BYTES}")
out.append('.amdgcn_target "amdgcn-amd-amdhsa--gfx950"')
out.append(".text")
out.append(f".globl {NAME}_kernel")
out.append(".p2align 8")
out.append(f".type {NAME}_kernel,@function")
lab(f"{NAME}_kernel")
e("s_cmp_ge_u32 s2, 256")
e("s_cbranch_scc1 L_end")
e(f"s_load_dwordx16 {sr(16,16)}, s[0:1], 0")
e(f"s_load_dwordx4 {sr(32,4)}, s[0:1], 64")
e(f"s_load_dwordx2 {sr(36,2)}, s[0:1], 80")
e(f"v_lshrrev_b32 v1, 6, v0")
e(f"v_and_b32 v{vLANE}, 63, v0")
e(f"v_readfirstlane_b32 s{sWAVE}, v1")
e(f"s_and_b32 s{sHF}, s2, 1")
e(f"s_lshr_b32 s{sR32}, s2, 3")
e(f"s_and_b32 s{sJ}, s{sR32}, 3")
e(f"s_lshl_b32 s{sT0}, s{sHF}, 2")
e(f"s_add_u32 s{sJ}, s{sJ}, s{sT0}")
e(f"s_and_b32 s{sG}, s2, 6")
e(f"s_lshl_b32 s{sG}, s{sG}, 2")
e(f"s_lshr_b32 s{sT1}, s{sR32}, 2")
e(f"s_add_u32 s{sG}, s{sG}, s{sT1}")
e(f"s_mov_b32 s{sBUD}, 0x80000")
e(f"s_and_b32 s{sKH}, s{sWAVE}, 1")
e(f"s_mov_b32 s{sITEM}, s{sKH}")
e(f"s_lshl_b32 s{sSLOT}, s{sKH}, 14")
e(f"s_mov_b32 s{sFIRST}, s{sSLOT}")
e(f"v_mov_b32 v{vCB}, {CB}")
e(f"v_lshlrev_b32 v{vL16}, 4, v{vLANE}")
e(f"s_lshl_b32 s{sT0}, s{sKH}, 2")
e(f"v_add_u32 v{vLND}, s{sT0}, v{vCB}")
e(f"s_mov_b32 s{sWS+2}, {WS_SIZE}")
e(f"s_mov_b32 s{sWS+3}, 0x00020000")
e(f"s_mov_b32 s{sX+3}, 0x00020000")
e(f"s_mov_b32 s{sOUT+3}, 0x00020000")
if PROF:
    e(f"s_lshl_b32 s{sPIDX}, s2, 3")
    e(f"s_add_u32 s{sPIDX}, s{sPIDX}, s{sWAVE}")
    e(f"s_lshl_b32 s{sPIDX}, s{sPIDX}, 8")
    e(f"s_add_u32 s{sPIDX}, s{sPIDX}, {WS_PROF}")
    e(f"v_mov_b32 v{vPRF}, 0")
e(f"s_cmp_ge_u32 s{sWAVE}, 6")
e("s_cbranch_scc1 L_loader")

e(f"s_lshl_b32 s{sT0}, s{sG}, 2")
e(f"s_add_u32 s{sTILE}, s{sT0}, s{sWAVE}")
e(f"s_xor_b32 s{sT3}, s{sTILE}, 1")
e(f"s_andn2_b32 s{sLOW}, s{sTILE}, 1")
e(f"s_sub_u32 s{sT1}, s{sT0}, 1")
e(f"s_cmp_ge_u32 s{sWAVE}, 4")
e(f"s_cselect_b32 s{sTILE}, s{sT1}, s{sTILE}")
e(f"s_cmp_lt_i32 s{sTILE}, 0")
e(f"s_cselect_b32 s{sX+2}, 0, {2<<20}")
e(f"s_cselect_b32 s{sT2}, 0, s{sTILE}")
e(f"s_lshl_b32 s{sT2}, s{sT2}, 14")
e(f"s_lshl_b32 s{sT3}, s{sT3}, 14")
e(f"v_lshrrev_b32 v{vT0}, 4, v{vLANE}")
e(f"v_and_b32 v{vT1}, 15, v{vLANE}")
e(f"v_lshlrev_b32 v{vT2}, 10, v{vT0}")
e(f"v_lshl_add_u32 v{vT2}, v{vT1}, 4, v{vT2}")
e(f"s_lshl_b32 s{sT0}, s{sKH}, 8")
e(f"v_add_u32 v{vT2}, s{sT0}, v{vT2}")
e("s_waitcnt lgkmcnt(0)")
e(f"s_mov_b32 s{sX}, s{pX}")
e(f"s_mov_b32 s{sX+1}, s{pX+1}")
e(f"s_mov_b32 s{sWS}, s{pWSP}")
e(f"s_mov_b32 s{sWS+1}, s{pWSP+1}")
def xloads(tsel, sg):
    base = sT3 if tsel else sT2
    for a in range(4):
        if a: e(f"s_add_u32 s{sT0}, s{base}, {4096*a}")
        e(f"buffer_load_dwordx4 {vr(vA+8*(4*sg+a)+4*tsel,4)}, v{vT2}, {sr(sX,4)}, s{sT0 if a else base} offen offset:{512*sg}")
e(f"s_cmp_ge_u32 s{sWAVE}, 4")
e("s_cbranch_scc1 L_hx")
xloads(0, 0); xloads(1, 0); xloads(0, 1); xloads(1, 1)
e("s_branch L_hx_done")
lab("L_hx")
e(f"s_lshl_b32 s{sT0}, s{sJ}, 3")
e(f"s_add_u32 s{sT0}, s{sT0}, s{sWAVE}")
e(f"s_cmp_eq_u32 s{sT0}, 5")
e(f"s_cbranch_scc0 L_nozero")
e(f"v_mov_b32 v{vE}, 0")
e(f"v_mov_b32 v{vE+1}, 0")
e(f"v_lshlrev_b32 v{vT3}, 7, v{vLANE}")
e(f"s_lshl_b32 s{sT0}, s{sG}, 9")
e(f"s_add_u32 s{sT0}, s{sT0}, {WS_FL}")
e("s_mov_b64 exec, 15")
e(f"buffer_store_dwordx2 {vr(vE,2)}, v{vT3}, {sr(sWS,4)}, s{sT0} offen sc1")
e("s_mov_b64 exec, -1")
lab("L_nozero")
xloads(0, 0); xloads(0, 1)
lab("L_hx_done")
e("s_barrier")
prof(0)
e(f"s_mov_b32 s{sOUT}, s{pOUT}")
e(f"s_mov_b32 s{sOUT+1}, s{pOUT+1}")
e(f"s_mov_b32 s{sOUT+2}, {2<<20}")
e(f"s_mov_b32 s{sONES}, 0x3f803f80")
e(f"s_mov_b32 s{sCEXP}, {f32(0.25*math.log2(math.e))}")
e(f"s_mov_b32 s{sODD}, 0xaaaaaaaa")
e(f"s_mov_b32 s{sODD+1}, 0xaaaaaaaa")
e(f"s_mov_b64 {sr(sFLW,2)}, 0")
e(f"s_mov_b32 s{sXSEQ}, 0")
e(f"s_mov_b32 s{sCSN}, 0")
e(f"s_mov_b32 s{sONE2}, 1.0")
e(f"s_mov_b32 s{sONE2+1}, 1.0")
e("s_mov_b64 vcc, 0")
e(f"v_lshrrev_b32 v{vT3}, 2, v{vLANE}")
e(f"v_bfe_u32 v{vT4}, v{vT3}, 1, 2")
e(f"v_lshlrev_b32 v{vT4}, 5, v{vT4}")
e(f"v_and_b32 v{vT5}, 3, v{vLANE}")
e(f"v_lshl_add_u32 v{vT4}, v{vT5}, 3, v{vT4}")
e(f"v_lshl_add_u32 v{vB}, v{vT3}, 7, v{vT4}")
e(f"s_cmp_eq_u32 s{sWAVE}, 5")
e(f"s_cselect_b32 s{sT0}, 64, 0")
e(f"s_cselect_b32 s{sT1}, 32, 0")
e(f"v_xor_b32 v{vB}, s{sT0}, v{vB}")
for jj in range(1, 4): e(f"v_xor_b32 v{vB+jj}, {jj<<5}, v{vB}")
e(f"v_and_b32 v{vT4}, 1, v{vT0}")
e(f"v_lshlrev_b32 v{vT4}, 5, v{vT4}")
e(f"v_lshl_add_u32 v{vT4}, v{vT5}, 3, v{vT4}")
e(f"v_lshl_add_u32 v{vB32}, v{vT3}, 6, v{vT4}")
e(f"v_xor_b32 v{vB32}, s{sT1}, v{vB32}")
e(f"v_xor_b32 v{vB32+1}, 32, v{vB32}")
e(f"s_lshl_b32 s{sT0}, s{sWAVE}, 8")
e(f"s_add_u32 s{sT0}, s{sT0}, {CB+C_PROG}")
e(f"v_lshl_add_u32 v{vPROGA}, v{vLANE}, 2, s{sT0}")
e(f"s_lshl_b32 s{sT0}, s{sWAVE}, 2")
e(f"v_add_u32 v{vRDY}, s{sT0}, v{vCB}")
e(f"v_xor_b32 v{vXFP}, 4, v{vRDY}")
e(f"v_lshlrev_b32 v{vCSR}, 4, v{vT0}")
e(f"v_add_u32 v{vCSR}, {CSA}, v{vCSR}")
e(f"s_lshl_b32 s{sXOWN}, s{sWAVE}, 13")
e(f"s_add_u32 s{sXOWN}, s{sXOWN}, {XB}")
e(f"s_xor_b32 s{sXPAR}, s{sXOWN}, 8192")
e(f"s_lshl_b32 s{sT0}, s{sKH}, 12")
e(f"s_add_u32 s{sT0}, s{sT0}, {XBH}")
e(f"s_xor_b32 s{sT1}, s{sT0}, 4096")
e(f"s_cmp_ge_u32 s{sWAVE}, 4")
e(f"s_cselect_b32 s{sXOWN}, s{sT0}, s{sXOWN}")
e(f"s_cselect_b32 s{sXPAR}, s{sT1}, s{sXPAR}")
e(f"s_movk_i32 s{sXTOG}, 0x1000")
e(f"s_cselect_b32 s{sXTOG}, 0x800, s{sXTOG}")
assert XB % 16384 == 0 and XBH % 8192 == 0
e(f"v_xor_b32 v{vT3}, v{vT1}, v{vT0}")
e(f"v_lshlrev_b32 v{vT3}, 4, v{vT3}")
e(f"v_lshl_add_u32 v{vT3}, v{vT0}, 8, v{vT3}")
e(f"v_add_u32 v{vE+16}, s{sXOWN}, v{vT3}")
for a in range(1, 4): e(f"v_xor_b32 v{vE+16+a}, {a<<6}, v{vE+16}")
e(f"v_lshrrev_b32 v{vT3}, 1, v{vT0}")
e(f"v_xor_b32 v{vT3}, v{vT3}, v{vT1}")
e(f"v_lshlrev_b32 v{vT3}, 4, v{vT3}")
e(f"v_lshl_add_u32 v{vT3}, v{vT1}, 8, v{vT3}")
e(f"v_and_b32 v{vT4}, 1, v{vT0}")
e(f"v_lshl_add_u32 v{vT3}, v{vT4}, 3, v{vT3}")
e(f"v_add_u32 v{vE+20}, s{sXOWN}, v{vT3}")
for c in range(1, 8): e(f"v_xor_b32 v{vE+20+c}, {c<<5}, v{vE+20}")
for i in range(4): e(f"v_mov_b32 v{vST+i}, 0")
e(f"v_mov_b32 v{vLV}, 0")
def stage(tsel, sg, wait, off):
    e(f"s_waitcnt vmcnt({wait})")
    regs = [vA+8*(4*sg+a)+4*tsel for a in range(4)]
    for a in range(4):
        e(f"ds_write_b128 v{vE+16+a}, {vr(regs[a],4)} offset:{off+1024*a}")
    for s in range(4):
        for half in range(2):
            e(f"ds_read_b64 {vr(regs[s]+2*half,2)}, v{vE+20+2*s+half} offset:{off}")
def dots(tsel, sg):
    for a in range(4):
        for d in range(4):
            r = vA+8*(4*sg+a)+4*tsel+d
            e(f"v_dot2_f32_bf16 v{vST+2*tsel}, v{r}, s{sONES}, v{vST+2*tsel}")
            e(f"v_dot2_f32_bf16 v{vST+2*tsel+1}, v{r}, v{r}, v{vST+2*tsel+1}")
e(f"s_cmp_ge_u32 s{sWAVE}, 4")
e("s_cbranch_scc1 L_hstage")
stage(0, 0, 12, 0); stage(1, 0, 8, 4096)
e("s_waitcnt lgkmcnt(12)"); dots(0, 0)
stage(0, 1, 4, 0)
e("s_waitcnt lgkmcnt(12)"); dots(1, 0)
stage(1, 1, 0, 4096)
e("s_waitcnt lgkmcnt(12)"); dots(0, 1)
e("s_waitcnt lgkmcnt(0)"); dots(1, 1)
e("s_branch L_hstage_done")
lab("L_hstage")
stage(0, 0, 4, 0)
e("s_waitcnt lgkmcnt(0)"); dots(0, 0)
stage(0, 1, 0, 0)
e(f"s_lshl_b32 s{sT0}, s{sJ}, 3")
e(f"s_add_u32 s{sT0}, s{sT0}, s{sWAVE}")
e(f"s_cmp_eq_u32 s{sT0}, 5")
e(f"s_cbranch_scc0 L_noann")
e(f"s_lshl_b32 s{sT0}, s{sG}, 2")
e(f"v_mov_b32 v{vT5}, s{sT0}")
e(f"v_mov_b32 v{vT6}, 1")
e("s_mov_b64 exec, 1")
e(f"global_store_dword v{vT5}, v{vT6}, {sr(pDBG,2)} sc1")
e("s_mov_b64 exec, -1")
lab("L_noann")
e("s_waitcnt lgkmcnt(0)"); dots(0, 1)
e(f"v_mov_b32 v{vST+2}, v{vST}") if False else None
lab("L_hstage_done")
nop(3)
red2x2(vST, vST+1, vT4, vST+2, vST+3, vT5)
e(f"v_mov_b32 v{vST+1}, v{vT4}")
e(f"v_mov_b32 v{vST+3}, v{vT5}")
e(f"s_lshl_b32 s{sT0}, s{sWAVE}, 8")
e(f"s_add_u32 s{sT0}, s{sT0}, {SX}")
e(f"v_lshl_add_u32 v{vT2}, v{vT1}, 4, s{sT0}")
e(f"v_mov_b32 v{vT6}, 1")
e(f"ds_write_b128 v{vT2}, {vr(vST,4)}")
e(f"ds_write_b32 v{vRDY}, v{vT6} offset:{C_SF}")
e(f"v_xor_b32 v{vT3}, 0x100, v{vT2}")
def finish_stats(halo):
    l = uid("sx"); d = l+"_d"
    lab(l)
    e(f"ds_read_b32 v{vT7}, v{vXFP} offset:{C_SF}")
    e(f"ds_read_b64 {vr(vE+16,2)}, v{vT3} offset:{0 if halo else 8}")
    e("s_waitcnt lgkmcnt(0)")
    e(f"v_readfirstlane_b32 s{sT2}, v{vT7}")
    e(f"s_cmp_eq_u32 s{sT2}, 1")
    e(f"s_cbranch_scc0 {spin(l, d)}")
    lab(d)
    e(f"v_add_f32 v{vT2}, v{vE+16}, v{vST}")
    e(f"v_add_f32 v{vT3}, v{vE+17}, v{vST+1}")
    mean_var(vT2, vT3, vT4, vT2)
    e(f"v_add_f32 v{vT2}, {f32(1e-5)}, v{vT2}")
    e(f"v_rsq_f32 v{vSC}, v{vT2}")
    e(f"v_rsq_f32 v{vSC+1}, v{vT2}")
    e(f"v_mul_f32 v{vMS}, v{vT4}, v{vSC}")
    e(f"v_mul_f32 v{vMS+1}, v{vT4}, v{vSC}")
prof(1)
e(f"s_cmp_ge_u32 s{sWAVE}, 4")
e("s_cbranch_scc1 L_halo")
e(f"s_lshl_b32 s{sDST}, s{sWAVE}, 11")
pre()
call_pass(1)
finish_stats(False)
cs_check()
scalepack()
for i in range(8): e(f"v_mov_b32 v{vK+i}, v{vPK+i}")
e(f"s_cmp_eq_u32 s{sWAVE}, 3")
e("s_cbranch_scc1 L_nokw")
e(f"v_add_u32 v{vT2}, s{sDST}, v{vL16}")
e(f"v_add_u32 v{vT2}, {KA+2048}, v{vT2}")
e(f"ds_write_b128 v{vT2}, {vr(vPK,4)}")
e(f"ds_write_b128 v{vT2}, {vr(vPK+4,4)} offset:1024")
lab("L_nokw")
prof(2)
def vaddr():
    e(f"v_bfe_u32 v{vT2}, v{vT1}, 1, 2")
    e(f"v_lshlrev_b32 v{vT2}, 1, v{vT2}")
    e(f"v_lshrrev_b32 v{vT3}, 1, v{vT0}")
    e(f"v_xor_b32 v{vT2}, v{vT2}, v{vT3}")
    e(f"v_lshlrev_b32 v{vT2}, 4, v{vT2}")
    e(f"v_lshl_add_u32 v{vT2}, v{vT1}, 7, v{vT2}")
    e(f"v_and_b32 v{vT3}, 1, v{vT0}")
    e(f"v_lshl_add_u32 v{vT2}, v{vT3}, 3, v{vT2}")
vaddr()
e(f"s_add_u32 s{sT0}, s{sDST}, {VA+2048}")
e(f"v_add_u32 v{vT2}, s{sT0}, v{vT2}")
call_pass()
cs_check()
scalepack()
for h in range(4):
    if h: e(f"v_xor_b32 v{vT3}, {h<<5}, v{vT2}")
    e(f"ds_write_b64 v{vT3 if h else vT2}, {vr(vPK+2*h,2)}")
e(f"v_mov_b32 v{vT6}, 2")
e(f"ds_write_b32 v{vRDY}, v{vT6} offset:{C_KV+4}")
prof(3)
call_pass(0)
cs_check()
KP, VP, VO, SO, SP_ = vA, vA+8, vA+16, vA+24, vA+40
e(f"s_add_u32 s{sT0}, s{sDST}, {KA}")
e(f"v_add_u32 v{vT2}, s{sT0}, v{vL16}")
e(f"s_add_u32 s{sT0}, s{sDST}, {VA}")
for h in range(4): e(f"v_add_u32 v{vW+h}, s{sT0}, v{vB+h}")
l = uid("kv"); d = l+"_d"
lab(l)
e(f"ds_read_b32 v{vT7}, v{vRDY} offset:{C_KV}")
e(f"ds_read_b128 {vr(KP,4)}, v{vT2}")
e(f"ds_read_b128 {vr(KP+4,4)}, v{vT2} offset:1024")
for h in range(4):
    e(f"ds_read_b64_tr_b16 {vr(VP+2*h,2)}, v{vW+h}")
    e(f"ds_read_b64_tr_b16 {vr(VO+2*h,2)}, v{vW+h} offset:2048")
scalepack()
e("s_waitcnt lgkmcnt(0)")
e(f"v_readfirstlane_b32 s{sT2}, v{vT7}")
e(f"s_cmp_ge_u32 s{sT2}, 2")
e(f"s_cbranch_scc0 {spin(l, d)}")
lab(d)
prof(4)
for h in range(4):
    e(f"v_mfma_f32_16x16x16_bf16 {vr(SO+4*h,4)}, {vr(vK+2*h,2)}, {vr(vPK+2*h,2)}, 0")
for h in range(4):
    e(f"v_mfma_f32_16x16x16_bf16 {vr(SP_+4*h,4)}, {vr(KP+2*h,2)}, {vr(vPK+2*h,2)}, 0")
e(f"v_and_b32 v{vT2}, 1, v{vT1}")
e(f"v_lshl_add_u32 v{vT3}, v{vT0}, 2, v{vT2}")
e(f"v_sub_u32 v{vT3}, v{vT1}, v{vT3}")
e(f"v_mov_b32 v{vT5}, {f32(-1e30)}")
e(f"s_cmp_eq_u32 s{sTILE}, 0")
e(f"s_cselect_b32 s{sT0}, -64, 16")
e(f"v_add_u32 v{vT4}, -2, v{vT3}")
e(f"v_cmp_gt_u32 {sr(sM0,2)}, 15, v{vT3}")
e(f"v_cmp_gt_u32 {sr(sM1,2)}, 15, v{vT4}")
e(f"v_add_u32 v{vT3}, s{sT0}, v{vT3}")
e(f"v_add_u32 v{vT4}, -2, v{vT3}")
e(f"v_cndmask_b32 v{vBIAS}, v{vT5}, 0, {sr(sM0,2)}")
e(f"v_cndmask_b32 v{vBIAS+1}, v{vT5}, 0, {sr(sM1,2)}")
e(f"v_cmp_gt_u32 {sr(sM0,2)}, 15, v{vT3}")
e(f"v_cmp_gt_u32 {sr(sM1,2)}, 15, v{vT4}")
X = vE
for h in range(4):
    e(f"v_cndmask_b32 v{X+4*h}, v{SO+4*h}, v{SO+4*h+1}, {sr(sODD,2)}")
    e(f"v_cndmask_b32 v{X+4*h+1}, v{SO+4*h+2}, v{SO+4*h+3}, {sr(sODD,2)}")
e(f"v_cndmask_b32 v{vBIAS+2}, v{vT5}, 0, {sr(sM0,2)}")
e(f"v_cndmask_b32 v{vBIAS+3}, v{vT5}, 0, {sr(sM1,2)}")
for h in range(4):
    e(f"v_cndmask_b32 v{X+4*h+2}, v{SP_+4*h}, v{SP_+4*h+1}, {sr(sODD,2)}")
    e(f"v_cndmask_b32 v{X+4*h+3}, v{SP_+4*h+2}, v{SP_+4*h+3}, {sr(sODD,2)}")
for h in range(4):
    for i in range(4):
        e(f"v_fma_f32 v{X+4*h+i}, v{X+4*h+i}, s{sCEXP}, v{vBIAS+i}")
M = vE+16; M2 = vE+20
for h in range(4): e(f"v_max3_f32 v{M+h}, v{X+4*h}, v{X+4*h+1}, v{X+4*h+2}")
for h in range(4): e(f"v_max_f32 v{M+h}, v{M+h}, v{X+4*h+3}")
def allred(op):
    for h in range(4): e(f"v_mov_b32 v{M2+h}, v{M+h}")
    nop(1)
    for h in range(4): e(f"v_permlane16_swap_b32 v{M+h}, v{M2+h}")
    for h in range(4): e(f"{op} v{M+h}, v{M+h}, v{M2+h}")
    for h in range(4): e(f"v_mov_b32 v{M2+h}, v{M+h}")
    nop(1)
    for h in range(4): e(f"v_permlane32_swap_b32 v{M+h}, v{M2+h}")
    for h in range(4): e(f"{op} v{M+h}, v{M+h}, v{M2+h}")
allred("v_max_f32")
for h in range(4):
    for i in range(4): e(f"v_sub_f32 v{X+4*h+i}, v{X+4*h+i}, v{M+h}")
for i in range(16): e(f"v_exp_f32 v{X+i}, v{X+i}")
for h in range(4): e(f"v_add_f32 v{M+h}, v{X+4*h}, v{X+4*h+1}")
for h in range(4): e(f"v_add_f32 v{M2+h}, v{X+4*h+2}, v{X+4*h+3}")
for h in range(4): e(f"v_add_f32 v{M+h}, v{M+h}, v{M2+h}")
allred("v_add_f32")
for h in range(4): e(f"v_rcp_f32 v{M+h}, v{M+h}")
e(f"v_mov_b32 v{vT3}, 0x0c0c0100")
e(f"v_mov_b32 v{vT4}, 0x01000c0c")
e(f"v_cndmask_b32 v{vSEL}, v{vT3}, v{vT4}, {sr(sODD,2)}")
e(f"v_add_u32 v{vSEL+1}, 0x0202, v{vSEL}") if False else None
e(f"v_mov_b32 v{vT3}, 0x0c0c0302")
e(f"v_mov_b32 v{vT4}, 0x03020c0c")
e(f"v_cndmask_b32 v{vSEL+1}, v{vT3}, v{vT4}, {sr(sODD,2)}")
for h in range(4):
    for i in range(4): e(f"v_mul_f32 v{X+4*h+i}, v{X+4*h+i}, v{M+h}")
for h in range(4):
    e(f"v_cvt_pk_bf16_f32 v{M+h}, v{X+4*h}, v{X+4*h+1}")
    e(f"v_cvt_pk_bf16_f32 v{M2+h}, v{X+4*h+2}, v{X+4*h+3}")
for h in range(4):
    e(f"v_perm_b32 v{SO+2*h}, v{M+h}, v{M+h}, v{vSEL}")
    e(f"v_perm_b32 v{SO+2*h+1}, v{M+h}, v{M+h}, v{vSEL+1}")
    e(f"v_perm_b32 v{SP_+2*h}, v{M2+h}, v{M2+h}, v{vSEL}")
    e(f"v_perm_b32 v{SP_+2*h+1}, v{M2+h}, v{M2+h}, v{vSEL+1}")
e(f"s_lshl_b32 s{sDST}, s{sTILE}, 14")
e(f"s_lshl_b32 s{sT1}, s{sJ}, 11")
OA = vE
for h in range(4):
    e(f"v_mfma_f32_16x16x16_bf16 {vr(OA+4*h,4)}, {vr(VO+2*h,2)}, {vr(SO+2*h,2)}, 0")
for h in range(4):
    e(f"v_mfma_f32_16x16x16_bf16 {vr(OA+4*h,4)}, {vr(VP+2*h,2)}, {vr(SP_+2*h,2)}, {vr(OA+4*h,4)}")
e(f"s_add_u32 s{sDST}, s{sDST}, s{sT1}")
e(f"s_lshl_b32 s{sFLOFF}, s{sTILE}, 7")
e(f"s_add_u32 s{sFLOFF}, s{sFLOFF}, {WS_FL}")
e(f"s_xor_b32 s{sFLOFP}, s{sFLOFF}, 128")
e(f"v_mov_b32 v{vT2}, {OOB}")
e(f"v_cmp_eq_u32 {sr(sM0,2)}, 0, v{vLANE}")
e(f"v_cmp_gt_u32 {sr(sM1,2)}, 16, v{vLANE}")
nop(1)
for i in range(8):
    e(f"v_cvt_pk_bf16_f32 v{vPK+i}, v{OA+2*i}, v{OA+2*i+1}")
e(f"buffer_store_dwordx4 {vr(vPK,4)}, v{vL16}, {sr(sWS,4)}, s{sDST} offen sc1")
e(f"buffer_store_dwordx4 {vr(vPK+4,4)}, v{vL16}, {sr(sWS,4)}, s{sDST} offen offset:1024 sc1")
e(f"v_cndmask_b32 v{vFLO}, v{vT2}, 0, {sr(sM0,2)}")
e(f"s_lshl_b32 s{sT0}, s{sTILE}, 10")
e(f"s_lshr_b32 s{sT1}, s{sJ}, 1")
e(f"s_lshl_b32 s{sT1}, s{sT1}, 8")
e(f"s_add_u32 s{sT0}, s{sT0}, s{sT1}")
e(f"s_and_b32 s{sT1}, s{sJ}, 1")
e(f"s_lshl_b32 s{sT1}, s{sT1}, 3")
e(f"s_add_u32 s{sT0}, s{sT0}, s{sT1}")
e(f"v_add_u32 v{vT3}, s{sT0}, v{vL16}")
e(f"v_cndmask_b32 v{vSTO}, v{vT2}, v{vT3}, {sr(sM1,2)}")
def set_la(stride):
    e(f"s_mul_i32 s{sT0}, s{sKH}, {stride+4096}")
    e(f"s_mul_i32 s{sT1}, s{sKH}, {-stride+4096}")
    e(f"s_add_u32 s{sT1}, s{sT1}, {stride}")
    e(f"v_add_u32 v{vLA}, s{sT0}, v{vL16}")
    e(f"v_add_u32 v{vLA+1}, s{sT1}, v{vL16}")
    e(f"v_add_u32 v{vLA+2}, 0x2000, v{vLA}")
    e(f"v_add_u32 v{vLA+3}, 0x2000, v{vLA+1}")
set_la(16384)
e(f"v_lshlrev_b32 v{vT2}, 10, v{vT1}")
e(f"v_lshl_add_u32 v{vT2}, v{vT0}, 3, v{vT2}")
e(f"s_lshl_b32 s{sT1}, s{sJ}, 7")
e(f"s_lshl_b32 s{sT0}, s{sTILE}, 14")
e(f"s_add_u32 s{sT0}, s{sT0}, s{sT1}")
for jj in range(4):
    e(f"buffer_load_dwordx2 {vr(vXR+2*jj,2)}, v{vT2}, {sr(sX,4)}, s{sT0} offen offset:{32*jj}")
e(f"v_and_b32 v{vT3}, 1, v{vT0}")
e(f"v_lshlrev_b32 v{vT3}, 5, v{vT3}")
e(f"v_lshrrev_b32 v{vT4}, 1, v{vT0}")
e(f"v_lshl_add_u32 v{vT3}, v{vT4}, 4, v{vT3}")
e(f"v_lshl_add_u32 v{vOUTO}, v{vT1}, 10, v{vT3}")
e(f"v_add_u32 v{vOUTO}, s{sT0}, v{vOUTO}")
GA = -2.0*math.sqrt(2.0/math.pi)*math.log2(math.e)
for i in range(2):
    e(f"v_mov_b32 v{vGA+i}, {f32(GA)}")
    e(f"v_mov_b32 v{vGB+i}, {f32(GA*0.044715)}")
pre()
zero(vACP, 16)
wait_lds(vCB, C_INITOK, 1, "ini")
pubn = [0]
def publish():
    f = pubn[0]; pubn[0] += 1
    e(f"v_mov_b32 v{vT6}, {1 << (8*(f&3))}")
    if f in (1, 2): prof(21+f)
    e("s_waitcnt vmcnt(0)")
    e(f"buffer_atomic_add v{vT6}, v{vFLO}, {sr(sWS,4)}, s{sFLOFF} offen offset:{4*(f>>2)} sc1")
def defer_publish():
    f = pubn[0]; pubn[0] += 1
    e(f"s_mov_b32 s{sPUBV}, {1 << (8*(f&3))}")
    e("s_mov_b64 vcc, -1")
def loada():
    for ksl in range(8):
        for tsel in range(2):
            e(f"buffer_load_dwordx4 {vr(vA+8*ksl+4*tsel,4)}, v{vLA+2*(ksl>>2)+tsel}, {sr(sWS,4)}, s{sOFFA} offen offset:{1024*(ksl&3)} sc1")
def set_offa(base):
    e(f"s_lshl_b32 s{sOFFA}, s{sLOW}, 14")
    e(f"s_add_u32 s{sOFFA}, s{sOFFA}, {base}")
def set_stats_off(base):
    e(f"s_lshl_b32 s{sT3}, s{sTILE}, 10")
    e(f"s_add_u32 s{sT3}, s{sT3}, {base}")
def load_stats(): e(f"buffer_load_dwordx4 {vr(vST,4)}, v{vL16}, {sr(sWS,4)}, s{sT3} offen sc1")
def consume_stats():
    e(f"v_add_f32 v{vT2}, v{vST}, v{vST+2}")
    e(f"v_add_f32 v{vT3}, v{vST+1}, v{vST+3}")
    nop(2)
    red2(vT2, vT3, vT4)
    e(f"v_mov_b32 v{vT3}, v{vT4}")
    mean_var(vT2, vT3, vT4, vT3)
def store_stats(pk, base):
    e(f"v_mov_b32 v{vT2}, 0")
    e(f"v_mov_b32 v{vT3}, 0")
    for i in range(8):
        e(f"v_dot2_f32_bf16 v{vT2}, v{pk+i}, s{sONES}, v{vT2}")
        e(f"v_dot2_f32_bf16 v{vT3}, v{pk+i}, v{pk+i}, v{vT3}")
    nop(3)
    e(f"v_permlane16_swap_b32 v{vT2}, v{vT3}")
    e(f"v_add_f32 v{vST}, v{vT2}, v{vT3}")
    e(f"v_mov_b32 v{vST+1}, v{vST}")
    nop(2)
    e(f"v_permlane32_swap_b32 v{vST}, v{vST+1}")
    e(f"v_add_f32 v{vST}, v{vST}, v{vST+1}")
    e(f"v_mov_b32 v{vST+1}, v{vST}")
    e(f"s_mov_b32 s{sT0}, {base}")
    nop(1)
    e(f"v_permlane16_swap_b32 v{vST}, v{vST+1}")
    e(f"buffer_store_dwordx2 {vr(vST,2)}, v{vSTO}, {sr(sWS,4)}, s{sT0} offen sc1")
def unpack(dst, src, n):
    for i in range(n):
        e(f"v_lshlrev_b32 v{dst+2*i}, 16, v{src+i}")
        e(f"v_and_b32 v{dst+2*i+1}, 0xffff0000, v{src+i}")
def store_act(pk, base):
    e(f"s_add_u32 s{sT0}, s{sDST}, {base}")
    e(f"buffer_store_dwordx4 {vr(pk,4)}, v{vL16}, {sr(sWS,4)}, s{sT0} offen sc1")
    e(f"buffer_store_dwordx4 {vr(pk+4,4)}, v{vL16}, {sr(sWS,4)}, s{sT0} offen offset:1024 sc1")
def poll_words(extra=None):
    e(f"s_mov_b64 {sr(sFLW,2)}, 0")
    e(f"s_mov_b64 {sr(sFB,2)}, 0")
    if extra is not None: e(f"s_mov_b32 s{sM0}, 0")
    e(f"s_atomic_add_x2 {sr(sFLW,2)}, {sr(pWSP,2)}, s{sFLOFF} glc")
    e(f"s_atomic_add_x2 {sr(sFB,2)}, {sr(pWSP,2)}, s{sFLOFP} glc")
    if extra is not None: e(f"s_atomic_add s{sM0}, {sr(pWSP,2)}, s{extra} glc")
    e("s_waitcnt lgkmcnt(0)")
    e(f"s_and_b64 {sr(sFLW,2)}, {sr(sFLW,2)}, {sr(sFB,2)}")
def wait_ready(n, extra=None):
    l = uid("rdy"); d = l+"_d"
    lab(l)
    poll_words(extra)
    if extra is not None:
        e(f"s_and_b32 s{sM0}, s{sM0}, s{sFLW}")
        e(f"s_bitcmp1_b32 s{sM0}, {8*(n-1)+3}")
    else:
        e(f"s_bitcmp1_b64 {sr(sFLW,2)}, {8*(n-1)+3}")
    e(f"s_cbranch_scc0 {spin(l, d)}")
    lab(d)
def issued(n):
    e(f"v_mov_b32 v{vT6}, {n}")
    e(f"ds_write_b32 v{vRDY}, v{vT6} offset:{C_ISSUED}")
e(f"s_mov_b32 s{sAUTO}, 1")
set_offa(WS_O)
publish()
unpack(vACC, vXR, 8)
prof(5)
wait_ready(1)
prof(6)
loada()
issued(1)
call_pass(None, "L_pass64b")
prof(7)
for i in range(8):
    e(f"v_cvt_pk_bf16_f32 v{vHP+i}, v{vACC+2*i}, v{vACC+2*i+1}")
store_act(vHP, WS_H)
store_stats(vHP, WS_HS)
set_offa(WS_H)
set_stats_off(WS_HS)
publish()
prof(8)
wait_ready(2)
prof(9)
load_stats()
loada()
issued(2)
e("s_waitcnt vmcnt(16)")
consume_stats()
e(f"v_add_f32 v{vT2}, {f32(1e-5)}, v{vT3}")
e(f"v_rsq_f32 v{vR1}, v{vT2}")
e(f"v_mov_b32 v{vNMH}, v{vT4}")
e(f"v_mul_f32 v{vT3}, v{vT3}, v{vR1}")
e(f"v_fmaak_f32 v{vT3}, v{vT3}, v{vR1}, {f32(1e-5)}")
e(f"v_rsq_f32 v{vT3}, v{vT3}")
e(f"v_mov_b32 v{vNMH+1}, v{vT4}")
e(f"v_mul_f32 v{vSC}, v{vT3}, v{vR1}")
e(f"v_mul_f32 v{vSC+1}, v{vT3}, v{vR1}")
e(f"v_mov_b32 v{vR1+1}, v{vR1}")
e(f"v_mul_f32 v{vMS}, v{vT4}, v{vSC}")
e(f"v_mul_f32 v{vMS+1}, v{vT4}, v{vSC}")
e(f"s_mov_b32 s{sCNT}, 0")
call_pass()
prof(10)
cs_check()
e(f"s_call_b64 {sr(sRET2,2)}, L_gelu")
store_act(vPK, WS_H1)
e(f"v_lshrrev_b32 v{vT0}, 4, v{vLANE}")
e(f"v_and_b32 v{vT1}, 15, v{vLANE}")
e(f"v_lshlrev_b32 v{vT0}, 8, v{vT0}")
e(f"s_lshl_b32 s{sT0}, s{sKH}, 12")
e(f"v_add_u32 v{vT0}, s{sT0}, v{vT0}")
e(f"v_mov_b32 v{vT5}, {OOB}")
e(f"s_lshl_b32 s{sT2}, s{sKH}, 1")
e(f"s_sub_u32 s{sT2}, s{sT2}, 1")
e(f"s_movk_i32 s{sT3}, 0x800")
for sg in range(2):
    for tsel in range(2):
        if tsel: e(f"s_xor_b32 s{sT0}, s{sTILE}, 1")
        e(f"s_lshl_b32 s{sT0}, s{sT0 if tsel else sTILE}, 4")
        e(f"s_add_u32 s{sT0}, s{sT0}, s{sT2}")
        if sg: e(f"s_add_u32 s{sT0}, s{sT0}, s{sT2}")
        e(f"v_add_u32 v{vT2}, s{sT0}, v{vT1}")
        e(f"v_cmp_gt_u32 {sr(sM0,2)}, s{sT3}, v{vT2}")
        e(f"v_lshrrev_b32 v{vT3}, 4, v{vT2}")
        e(f"v_lshl_add_u32 v{vT3}, v{vT3}, 14, v{vT0}")
        e(f"v_and_b32 v{vT2}, 15, v{vT2}")
        e(f"v_lshl_add_u32 v{vT3}, v{vT2}, 4, v{vT3}")
        if sg: e(f"v_add_u32 v{vT3}, 0x2000, v{vT3}")
        e(f"v_cndmask_b32 v{vLA+2*sg+tsel}, v{vT5}, v{vT3}, {sr(sM0,2)}")
unpack(vE+16, vHP, 8)
for i in range(8):
    e(f"v_pk_add_f32 {vr(vE+16+2*i,2)}, {vr(vE+16+2*i,2)}, {vr(vNMH,2)}")
for i in range(8):
    e(f"v_pk_mul_f32 {vr(vACC+2*i,2)}, {vr(vE+16+2*i,2)}, {vr(vR1,2)}")
zero(vACP, 16)
e(f"s_lshl_b32 s{sT0}, s{sT2}, 7")
e(f"s_add_u32 s{sT3}, s{sFLOFF}, s{sT0}")
e(f"s_add_u32 s{sT0}, s{sTILE}, s{sT2}")
e(f"s_cmp_gt_u32 s{sT0}, 127")
e(f"s_cselect_b32 s{sT3}, s{sFLOFF}, s{sT3}")
e(f"s_mov_b32 s{sOFFA}, {WS_H1}")
publish()
prof(11)
wait_ready(3, sT3)
prof(12)
loada()
issued(3)
call_pass(None, "L_pass64b")
prof(13)
for i in range(8):
    e(f"v_cvt_pk_bf16_f32 v{vX1P+i}, v{vACC+2*i}, v{vACC+2*i+1}")
store_act(vX1P, WS_X1)
store_stats(vX1P, WS_X1S)
set_la(16384)
e(f"s_mul_i32 s{sDST}, s{sTILE}, {GT}")
e(f"s_lshl_b32 s{sT1}, s{sJ}, 11")
e(f"s_add_u32 s{sDST}, s{sDST}, s{sT1}")
set_offa(WS_X1)
set_stats_off(WS_X1S)
publish()
prof(14)
wait_ready(4)
prof(15)
load_stats()
loada()
e("s_waitcnt vmcnt(16)")
consume_stats()
e(f"v_add_f32 v{vT2}, {f32(1e-5)}, v{vT3}")
e(f"v_rsq_f32 v{vSC}, v{vT2}")
e(f"v_rsq_f32 v{vSC+1}, v{vT2}")
e(f"v_mul_f32 v{vMS}, v{vT4}, v{vSC}")
e(f"v_mul_f32 v{vMS+1}, v{vT4}, v{vSC}")
for p in range(3):
    call_pass(0 if p == 2 else None)
    prof(24+2*p)
    if p == 2: pre(True)
    cs_check()
    e(f"s_call_b64 {sr(sRET2,2)}, L_gelu")
    prof(25+2*p)
    store_act(vPK, WS_G + 16384*p)
    if p < 2: defer_publish()
    prof(16+p)
e(f"s_call_b64 {sr(sRET,2)}, L_pass32")
e(f"s_mov_b32 s{sCNT}, 1")
publish()
cs_check(2)
e(f"s_call_b64 {sr(sRET2,2)}, L_gelu")
e(f"s_lshl_b32 s{sT1}, s{sJ}, 10")
e(f"s_sub_u32 s{sT0}, s{sDST}, s{sT1}")
e(f"s_add_u32 s{sT0}, s{sT0}, {WS_G + 48*1024}")
e(f"buffer_store_dwordx4 {vr(vPK,4)}, v{vL16}, {sr(sWS,4)}, s{sT0} offen sc1")
pre()
unpack(vE, vHP, 8)
unpack(vE+16, vX1P, 8)
for i in range(8):
    e(f"v_pk_add_f32 {vr(vACC+2*i,2)}, {vr(vE+2*i,2)}, {vr(vE+16+2*i,2)}")
zero(vACP, 16)
set_la(GT)
e(f"s_mul_i32 s{sOFFA}, s{sLOW}, {GT}")
e(f"s_add_u32 s{sOFFA}, s{sOFFA}, {WS_G}")
X_OWN(); X_PAR(); X_SEQ(); X_SEQV()
wait_ready(6)
publish()
prof(19)
QUADS = [vA+4*i for i in range(16)] + [vXR+4*i for i in range(6)] + [vE+4*i for i in range(8)] + [vK, vK+4]
NQ = len(QUADS)
def gload(m):
    ks, t = m >> 1, m & 1
    if ks % 8 == 0 and t == 0:
        p = ks // 8
        if p >= 2:
            l = uid("g"); d = l+"_d"
            e(f"s_bitcmp1_b64 {sr(sFLW,2)}, {8*(4+p)+3}")
            e(f"s_cbranch_scc0 {l}")
            lab(d)
            gpolls.append((l, d, 8*(4+p)+3))
        if p: e(f"s_add_u32 s{sOFFA}, s{sOFFA}, 16384")
    e(f"buffer_load_dwordx4 {vr(QUADS[m % NQ],4)}, v{vLA+2*((ks>>2)&1)+t}, {sr(sWS,4)}, s{sOFFA} offen offset:{1024*(ks&3)} sc1")
gpolls = []
for m in range(NQ): gload(m)
lq = LQ([f"f{p}" for p in range(6) for h in range(2)])
nissued = NQ
NP = 112
for q in range(NP):
    ks = q >> 2; r = q & 15
    vm = None
    if q % 4 == 0: vm = nissued - (2*ks+2)
    if q % 2 == 0: lq.need([f"f{q}", f"f{q+1}"], vm)
    for t in range(2):
        e(mf_text(vWB+4*(q % 8), QUADS[(2*ks+t) % NQ], (vACP if t else vACC)+4*(q & 3)))
        last_item = q >= NP-16
        if not last_item:
            sx = {(2,0): S_ITEM, (2,1): S_SLOT, (3,0): S_CMP, (3,1): S_SEL}.get((r, t))
            if sx: sx()
        elif (r, t) == (2, 0): S_ITEM()
        if q+6 < NP: lq.op(f"f{q+6}", rd_text(vWB+4*((q+6) % 8), t, q+6, False))
        if t == 0:
            if r == 0 and not last_item: lq.op("lv", f"ds_read_b32 v{vLV}, v{vLND}")
            if r == 4: V_PROGV()
            if r == 14: lq.op("pg", f"ds_write_b32 v{vPROGA}, v{vT6}")
            if not last_item:
                if r == 6: V_LAND()
                if 7 <= r <= 10: wadd(r-7)
        if t == 1 and r == 8 and not last_item: landed_check("w4")
        if (q & 3) in (1, 2) and t == 0 and ks >= 1 and nissued < 56:
            gload(nissued); nissued += 1
nop(8)
for i in range(4): lq.op("W", f"ds_write_b128 v{vXA}, {vr(vACP+4*i,4)} offset:{1024*i}")
lq.op("X", f"ds_write_b32 v{vRDY}, v{vT7} offset:{C_XF}")
nop(4)
lq.op("F", f"ds_read_b32 v{vT7}, v{vXFP} offset:{C_XF}")
for i in range(4): lq.op(f"R{i}", f"ds_read_b128 {vr(vE+4*i,4)}, v{vT5} offset:{1024*i}")
recv_check(lq, 4, [], "x4")
prof(20)
for i in range(8):
    e(f"v_cvt_pk_bf16_f32 v{vPK+i}, v{vACC+2*i}, v{vACC+2*i+1}")
nop(2)
for s in range(2):
    e(f"v_permlane16_swap_b32 v{vPK+4*s}, v{vPK+4*s+2}")
    e(f"v_permlane16_swap_b32 v{vPK+4*s+1}, v{vPK+4*s+3}")
e(f"buffer_store_dwordx4 {vr(vPK,4)}, v{vOUTO}, {sr(sOUT,4)}, 0 offen")
e(f"buffer_store_dwordx4 {vr(vPK+4,4)}, v{vOUTO}, {sr(sOUT,4)}, 0 offen offset:64")
prof(21)
prof_flush()
e("s_endpgm")
for l, d, bit in gpolls:
    lab(l)
    poll_words()
    e(f"s_bitcmp1_b64 {sr(sFLW,2)}, {bit}")
    e(f"s_cbranch_scc1 {d}")
    e(f"s_sub_u32 s{sBUD}, s{sBUD}, 1")
    e(f"s_cbranch_scc0 {l}")
    e(f"s_mov_b32 s{sBUD}, 0")
    e(f"s_branch {d}")

gen_pass64()
gen_small("L_pass32", 16, True, True)
gen_small("L_passh", 32, False, False)
gen_small("L_passh32", 16, True, False)

align(); lab("L_gelu")
for half in range(2):
    a0 = vACC + 8*half; c0 = vACP + 8*half
    Xr, U = vE, vE+8
    for i in range(4): e(f"v_pk_mul_f32 {vr(Xr+2*i,2)}, {vr(a0+2*i,2)}, {vr(vSC,2)}")
    for i in range(4): e(f"v_pk_fma_f32 {vr(Xr+2*i,2)}, {vr(c0+2*i,2)}, {vr(vMS,2)}, {vr(Xr+2*i,2)}")
    for i in range(4): e(f"v_pk_mul_f32 {vr(U+2*i,2)}, {vr(Xr+2*i,2)}, {vr(Xr+2*i,2)}")
    for i in range(4): e(f"v_pk_fma_f32 {vr(U+2*i,2)}, {vr(U+2*i,2)}, {vr(vGB,2)}, {vr(vGA,2)}")
    for i in range(4): e(f"v_pk_mul_f32 {vr(U+2*i,2)}, {vr(U+2*i,2)}, {vr(Xr+2*i,2)}")
    for i in range(8): e(f"v_exp_f32 v{U+i}, v{U+i}")
    for i in range(4): e(f"v_pk_add_f32 {vr(U+2*i,2)}, {vr(U+2*i,2)}, {sr(sONE2,2)}")
    for i in range(8): e(f"v_rcp_f32 v{U+i}, v{U+i}")
    for i in range(4): e(f"v_pk_mul_f32 {vr(Xr+2*i,2)}, {vr(Xr+2*i,2)}, {vr(U+2*i,2)}")
    for i in range(4): e(f"v_cvt_pk_bf16_f32 v{vPK+4*half+i}, v{Xr+2*i}, v{Xr+2*i+1}")
    if half == 0:
        e(f"s_cmp_eq_u32 s{sCNT}, 1")
        e("s_cbranch_scc1 L_gelu_h")
lab("L_gelu_h")
e(f"s_setpc_b64 {sr(sRET2,2)}")

vCSW, vTL, vT3P, vISS = vXR, vXR+1, vXR+2, vXR+3
lab("L_halo")
e(f"s_mov_b32 s{sM1}, 0x00010001")
e(f"s_mov_b32 s{sM1+1}, 0x00010001")
e(f"v_mov_b32 v{vT6}, s{sONES}")
for k in range(8):
    for i in range(4): e(f"v_cndmask_b32 v{vA+8*k+i}, v{vA+8*k+i}, v{vT6}, {sr(sM1,2)}")
e(f"s_lshl_b32 s{sT0}, s{sKH}, 7")
e(f"v_add_u32 v{vCSW}, s{sT0}, v{vCSR}")
pre()
def cs_out(nq, half=False):
    e(f"s_add_u32 s{sCSN}, s{sCSN}, 1")
    e(f"v_mov_b32 v{vT6}, s{sCSN}")
    if half:
        e(f"s_lshl_b32 s{sT0}, s{sKH}, 6")
        e(f"v_sub_u32 v{vCSW}, v{vCSW}, s{sT0}") if False else e(f"v_subrev_u32 v{vCSW}, s{sT0}, v{vCSW}")
    e(f"s_mov_b64 exec, {sr(sM1,2)}")
    for i in range(nq): e(f"ds_write_b128 v{vCSW}, {vr(vACC+4*i,4)} offset:{64*i}")
    e("s_mov_b64 exec, -1")
    e(f"ds_write_b32 v{vLND}, v{vT6} offset:{C_CSF}")
    e(f"v_xor_b32 v{vCSW}, 0x100, v{vCSW}")
def halo_pack():
    for i in range(8): e(f"v_mov_b32_dpp v{vACP+i}, v{vACC+i} row_newbcast:0 row_mask:0xf bank_mask:0xf")
    for i in range(4): e(f"v_pk_mul_f32 {vr(vE+2*i,2)}, {vr(vACC+2*i,2)}, {vr(vSC,2)}")
    for i in range(4): e(f"v_pk_fma_f32 {vr(vE+2*i,2)}, {vr(vACP+2*i,2)}, {vr(vMS,2)}, {vr(vE+2*i,2)}")
    for i in range(4): e(f"v_cvt_pk_bf16_f32 v{vPK+i}, v{vE+2*i}, v{vE+2*i+1}")
e(f"s_call_b64 {sr(sRET,2)}, L_passh")
cs_out(2)
pre()
finish_stats(True)
halo_pack()
e(f"s_lshl_b32 s{sT0}, s{sKH}, 10")
e(f"s_add_u32 s{sT0}, s{sT0}, {KA}")
e(f"v_add_u32 v{vT2}, s{sT0}, v{vL16}")
e(f"ds_write_b128 v{vT2}, {vr(vPK,4)}")
prof(2)
vaddr()
e(f"s_lshl_b32 s{sT0}, s{sKH}, 6")
e(f"v_xor_b32 v{vT2}, s{sT0}, v{vT2}")
e(f"v_add_u32 v{vT2}, {VA}, v{vT2}")
e(f"v_xor_b32 v{vT3}, 32, v{vT2}")
e(f"s_call_b64 {sr(sRET,2)}, L_passh")
cs_out(2)
nop(2)
halo_pack()
e(f"ds_write_b64 v{vT2}, {vr(vPK,2)}")
e(f"ds_write_b64 v{vT3}, {vr(vPK+2,2)}")
e(f"v_mov_b32 v{vT6}, 1")
e("s_mov_b64 exec, 1")
e(f"ds_add_u32 v{vCB}, v{vT6} offset:{C_KV}")
e("s_mov_b64 exec, -1")
pre()
prof(3)
e(f"s_call_b64 {sr(sRET,2)}, L_passh")
cs_out(2)
def skip_panel():
    next_item(); next_item()
    V_PROGV()
    e(f"ds_write_b32 v{vPROGA}, v{vT6}")
skip_panel()
e(f"v_lshrrev_b32 v{vT0}, 2, v{vLANE}")
e(f"v_and_b32 v{vT1}, 3, v{vLANE}")
e(f"v_lshlrev_b32 v{vT2}, 7, v{vT1}")
e(f"v_lshl_add_u32 v{vTL}, v{vT0}, 10, v{vT2}")
e(f"v_lshl_add_u32 v{vISS}, v{vT1}, 2, v{vCB}")
e(f"v_lshrrev_b32 v{vT0}, 4, v{vLANE}")
e(f"v_and_b32 v{vT1}, 15, v{vLANE}")
e(f"v_min_u32 v{vT1}, 13, v{vT1}")
e(f"v_lshlrev_b32 v{vT1}, 7, v{vT1}")
e(f"v_mul_u32_u24 v{vT3P}, 3584, v{vT0}")
e(f"v_add_u32 v{vT3P}, v{vT3P}, v{vT1}")
e(f"s_lshl_b32 s{sT3}, s{sR32}, 14")
e(f"s_lshl_b32 s{sT0}, s{sHF}, 9")
e(f"s_add_u32 s{sT3}, s{sT3}, s{sT0}")
e(f"s_mul_i32 s{sSOFF}, s{sR32}, {4*3584}")
e(f"s_mul_i32 s{sT0}, s{sHF}, 1792")
e(f"s_add_u32 s{sSOFF}, s{sSOFF}, s{sT0}")
e(f"s_cmp_eq_u32 s{sWAVE}, 4")
e("s_cbranch_scc1 L_in_skip")
e(f"v_min_u32 v{vT2}, 2, v{vLANE}")
e(f"s_sub_u32 s{sT0}, s{sG}, 1")
e(f"v_add_u32 v{vT2}, s{sT0}, v{vT2}")
e(f"v_max_i32 v{vT2}, 0, v{vT2}")
e(f"v_min_u32 v{vT2}, 31, v{vT2}")
e(f"v_lshlrev_b32 v{vT2}, 2, v{vT2}")
lab("L_in_loop")
e(f"global_load_dword v{vT3}, v{vT2}, {sr(pDBG,2)} sc1")
e("s_waitcnt vmcnt(0)")
e(f"v_cmp_eq_u32 {sr(sM0,2)}, 1, v{vT3}")
e(f"s_cmp_eq_u64 {sr(sM0,2)}, -1")
e(f"s_cbranch_scc0 {spin('L_in_loop', 'L_in_d')}")
lab("L_in_d")
e(f"v_mov_b32 v{vT6}, 1")
e(f"ds_write_b32 v{vCB}, v{vT6} offset:{C_INITOK}")
lab("L_in_skip")
prof(4)
tv = [vHP]
def touches(lst, after):
    sk = uid("tsk")
    e(f"s_cmp_lg_u32 s{sWAVE}, 4")
    e(f"s_cbranch_scc1 {sk}")
    if after:
        l = uid("iss"); d = l+"_d"
        lab(l)
        e("s_sleep 1")
        e(f"ds_read_b32 v{vT7}, v{vISS} offset:{C_ISSUED}")
        e("s_waitcnt lgkmcnt(0)")
        e(f"v_cmp_le_u32 {sr(sM0,2)}, {after}, v{vT7}")
        e(f"s_cmp_eq_u64 {sr(sM0,2)}, -1")
        e(f"s_cbranch_scc0 {spin(l, d)}")
        lab(d)
    for ptr, size, pat, soff_s, c in lst:
        e(f"s_mov_b32 s{sW}, s{ptr}")
        e(f"s_mov_b32 s{sW+1}, s{ptr+1}")
        e(f"s_mov_b32 s{sW+2}, {size}")
        e(f"s_add_u32 s{sT0}, s{soff_s}, {c}")
        e(f"buffer_load_dword v{tv[0]}, v{pat}, {sr(sW,4)}, s{sT0} offen")
        tv[0] += 1
    lab(sk)
T1 = lambda p: (p, 512*1024, vTL, sT3, 0)
T3 = lambda i: (pW3, 512*3584, vT3P, sSOFF, i*32*4*3584)
T4 = lambda i: (pW4, 1792*1024, vTL, sT3, i*32*16384)
touches([T1(pW1), T1(pW2), T3(0)], 0)
touches([T3(1), T3(2)], 1)
def cs_panel(half=False):
    e(f"ds_read_b32 v{vLV}, v{vLND}")
    e("s_waitcnt lgkmcnt(0)")
    pre(half)
    e(f"s_call_b64 {sr(sRET,2)}, {'L_passh32' if half else 'L_passh'}")
    cs_out(1 if half else 2, half)
cs_panel()
prof(5)
skip_panel()
touches([T3(3), T4(0), T4(1)], 2)
touches([T4(2), T4(3)], 3)
e(f"s_mov_b32 s{sCNT}, 3")
lab("L_cs3")
cs_panel()
e(f"s_sub_u32 s{sCNT}, s{sCNT}, 1")
e(f"s_cmp_lg_u32 s{sCNT}, 0")
e("s_cbranch_scc1 L_cs3")
cs_panel(True)
e(f"v_mov_b32 v{vT6}, 0x7fffffff")
e(f"ds_write_b32 v{vPROGA}, v{vT6}")
prof(6)
prof_flush()
e("s_endpgm")

vPat, vP3072, vP1024, vP3584, vPH, vPRA = 12, 13, 14, 15, 16, 17
lab("L_loader")
e("s_setprio 2")
e(f"s_cmp_eq_u32 s{sWAVE}, 6")
e("s_cbranch_scc1 L_ld_noinit")
for i in range(4): e(f"v_mov_b32 v{20+i}, 0")
e(f"v_add_u32 v{vT0}, {CB}, v{vL16}")
e(f"ds_write_b128 v{vT0}, v[20:23]")
e(f"v_min_u32 v{vT1}, 47, v{vLANE}")
e(f"v_lshl_add_u32 v{vT1}, v{vT1}, 4, v{vCB}")
e(f"ds_write_b128 v{vT1}, v[20:23] offset:1024")
lab("L_ld_noinit")
e(f"v_lshrrev_b32 v{vT0}, 3, v{vLANE}")
e(f"v_bfe_u32 v{vT1}, v{vT0}, 1, 2")
e(f"v_lshlrev_b32 v{vT1}, 1, v{vT1}")
e(f"v_and_b32 v{vT2}, 7, v{vLANE}")
e(f"v_xor_b32 v{vT1}, v{vT1}, v{vT2}")
e(f"v_lshlrev_b32 v{vT1}, 4, v{vT1}")
e(f"v_mul_u32_u24 v{vP3072}, 3072, v{vT0}")
e(f"v_add_u32 v{vP3072}, v{vP3072}, v{vT1}")
e(f"v_lshl_add_u32 v{vP1024}, v{vT0}, 10, v{vT1}")
e(f"v_mul_u32_u24 v{vP3584}, 3584, v{vT0}")
e(f"v_add_u32 v{vP3584}, v{vP3584}, v{vT1}")
e(f"v_lshrrev_b32 v{vT0}, 2, v{vLANE}")
e(f"v_bfe_u32 v{vT1}, v{vT0}, 2, 1")
e(f"v_lshlrev_b32 v{vT1}, 1, v{vT1}")
e(f"v_and_b32 v{vT2}, 3, v{vLANE}")
e(f"v_xor_b32 v{vT1}, v{vT1}, v{vT2}")
e(f"v_mul_u32_u24 v{vPH}, 3584, v{vT0}")
e(f"v_lshl_add_u32 v{vPH}, v{vT1}, 4, v{vPH}")
e(f"v_mul_u32_u24 v{vT3}, 3072, v{vT0}")
e(f"v_lshl_add_u32 v{vT3}, v{vT2}, 7, v{vT3}")
e(f"v_lshlrev_b32 v{vT4}, 10, v{vT0}")
e(f"v_lshl_add_u32 v{vT4}, v{vT2}, 7, v{vT4}")
e(f"v_min_u32 v{vT0}, 2, v{vLANE}")
e(f"v_lshlrev_b32 v{vT0}, 9, v{vT0}")
e(f"s_lshl_b32 s{sT0}, s{sKH}, 8")
e(f"s_add_u32 s{sT0}, s{sT0}, {CB+C_PROG}")
e(f"v_add_u32 v{vPRA}, s{sT0}, v{vT0}")
e(f"s_mov_b32 s{sPUB}, s{sITEM}")
e(f"s_lshl_b32 s{sT2}, s{sJ}, 7")
e(f"s_mul_i32 s{sT3}, s{sJ}, 448")
e(f"s_and_b32 s{sT0}, s{sJ}, 1")
e(f"s_lshl_b32 s{sT1}, s{sT0}, 6")
e(f"s_xor_b32 s{sT0}, s{sT0}, 1")
e(f"s_mul_i32 s{sT0}, s{sT0}, 384")
e(f"s_add_u32 s{sHALFCOL}, s{sT3}, s{sT0}")
e(f"s_add_u32 s{sT3}, s{sT3}, s{sT1}")
e(f"s_mul_i32 s{sT0}, s{sR32}, {16*3072}")
e(f"s_lshl_b32 s{sT1}, s{sHF}, 9")
e(f"s_add_u32 s{sSOFF}, s{sT0}, s{sT1}")
e(f"s_xor_b32 s{sT0}, s{sKH}, 1")
e(f"s_lshl_b32 s{sT0}, s{sT0}, 11")
e(f"s_add_u32 s{sDST}, s{sSOFF}, s{sT0}")
e(f"s_lshl_b32 s{sLOW}, s{sR32}, 14")
e(f"s_add_u32 s{sLOW}, s{sLOW}, s{sT1}")
e("s_waitcnt lgkmcnt(0)")
e(f"s_mov_b32 s{sWS}, s{pWSP}")
e(f"s_mov_b32 s{sWS+1}, s{pWSP+1}")
e(f"s_mov_b32 s{sW}, s{pWQKV}")
e(f"s_mov_b32 s{sW+1}, s{pWQKV+1}")
e(f"s_mov_b32 s{sW+2}, {512*3072}")
e(f"s_mov_b32 s{sX}, s{pWO}")
e(f"s_mov_b32 s{sX+1}, s{pWO+1}")
e(f"s_mov_b32 s{sX+2}, {512*1024}")
lstamps = []
def run(ptr, size, pat, step, mid, istr, soff_s, soff_c, n):
    if ptr is not None:
        e(f"s_mov_b32 s{sW}, s{ptr}")
        e(f"s_mov_b32 s{sW+1}, s{ptr+1}")
        e(f"s_mov_b32 s{sW+2}, {size}")
    if pat is not None:
        e(f"v_mov_b32 v{vPat}, v{pat}")
        e(f"s_mov_b32 s{sSTEP}, {step}")
    e(f"s_mov_b32 s{sMID}, {mid}")
    e(f"s_mov_b32 s{sEND}, {2*istr - 16*step - mid}")
    e(f"s_mul_i32 s{sT0}, s{sKH}, {istr}")
    e(f"s_add_u32 s{sSOFF}, s{soff_s}, s{sT0}")
    if soff_c: e(f"s_add_u32 s{sSOFF}, s{sSOFF}, {soff_c}")
    e(f"s_mov_b32 s{sCNT}, {n//2}")
    e(f"s_call_b64 {sr(sRET,2)}, L_items")
    lstamps.append(1); prof(len(lstamps))
e("s_barrier")
run(None, 0, vP3072, 8*3072, 0, 128*3072, sT2, 1024, 4)
e(f"buffer_load_dword v24, v{vT3}, {sr(sW,4)}, s{sDST} offen")
e(f"s_cmp_eq_u32 s{sWAVE}, 6")
e("s_cbranch_scc1 L_ld_nowo")
e(f"buffer_load_dword v25, v{vT4}, {sr(sX,4)}, s{sLOW} offen")
lab("L_ld_nowo")
run(None, 0, None, 8*3072, 0, 128*3072, sT2, 2048, 4)
run(None, 0, None, 8*3072, 0, 128*3072, sT2, 0, 4)
run(pWO, 512*1024, vP1024, 8192, 0, 128*1024, sT2, 0, 4)
run(pW1, 512*1024, None, 8192, 0, 128*1024, sT2, 0, 4)
run(pW2, 512*1024, None, 8192, 0, 128*1024, sT2, 0, 4)
run(pW3, 512*3584, vP3584, 8*3584, 0, 128*3584, sT3, 0, 4)
run(None, 0, None, 8*3584, 0, 128*3584, sT3, 128, 4)
run(None, 0, None, 8*3584, 0, 128*3584, sT3, 256, 4)
run(None, 0, vPH, 16*3584, 128*3584, 128*3584, sHALFCOL, 0, 2)
for p in range(3):
    run(pW4 if p == 0 else None, 1792*1024, vP1024 if p == 0 else None, 8192, 192*1024, 448*1024, sT2, 64*1024*p, 4)
run(None, 0, None, 8192, 384*1024, 896*1024, sT2, 192*1024, 2)
e("s_waitcnt vmcnt(0)")
e(f"v_mov_b32 v{vT6}, 1000")
e(f"ds_write_b32 v{vLND}, v{vT6}")
prof_flush()
e("s_endpgm")

lab("L_items")
e(f"s_sub_u32 s{sT0}, s{sITEM}, {2*NSLOT-1}")
lab("L_it_check")
e(f"ds_read_b32 v{vT0}, v{vPRA}")
e("s_waitcnt lgkmcnt(0)")
e(f"v_cmp_le_i32 {sr(sM0,2)}, s{sT0}, v{vT0}")
e(f"s_cmp_eq_u64 {sr(sM0,2)}, -1")
e("s_cbranch_scc1 L_it_go")
e(f"s_sub_u32 s{sBUD}, s{sBUD}, 1")
e("s_cbranch_scc1 L_it_giveup")
e(f"s_cmp_ge_u32 s{sPUB}, s{sITEM}")
e("s_cbranch_scc1 L_it_check")
e("s_waitcnt vmcnt(16)")
e(f"s_sub_u32 s{sT1}, s{sITEM}, 2")
e(f"s_max_u32 s{sPUB}, s{sPUB}, s{sT1}")
e(f"v_mov_b32 v{vT6}, s{sPUB}")
e(f"ds_write_b32 v{vLND}, v{vT6}")
e("s_waitcnt vmcnt(0)")
e(f"s_mov_b32 s{sPUB}, s{sITEM}")
e(f"v_mov_b32 v{vT6}, s{sPUB}")
e(f"ds_write_b32 v{vLND}, v{vT6}")
e("s_branch L_it_check")
lab("L_it_giveup")
e(f"s_mov_b32 s{sBUD}, 0")
lab("L_it_go")
e(f"s_mov_b32 m0, s{sSLOT}")
for i in range(16):
    if i == 0: e("s_nop 0")
    e(f"buffer_load_dwordx4 v{vPat}, {sr(sW,4)}, s{sSOFF} offen lds")
    e("s_add_u32 m0, m0, 1024")
    e(f"s_add_u32 s{sSOFF}, s{sSOFF}, s{sSTEP}")
    if i == 7: e(f"s_add_u32 s{sSOFF}, s{sSOFF}, s{sMID}")
e(f"s_add_u32 s{sSOFF}, s{sSOFF}, s{sEND}")
next_item()
e("s_waitcnt vmcnt(32)")
e(f"s_sub_i32 s{sT1}, s{sITEM}, 4")
e(f"s_cmp_gt_i32 s{sT1}, s{sPUB}")
e("s_cbranch_scc0 L_it_nopub")
e(f"s_mov_b32 s{sPUB}, s{sT1}")
e(f"v_mov_b32 v{vT6}, s{sPUB}")
e(f"ds_write_b32 v{vLND}, v{vT6}")
lab("L_it_nopub")
e(f"s_sub_u32 s{sCNT}, s{sCNT}, 1")
e(f"s_cmp_lg_u32 s{sCNT}, 0")
e("s_cbranch_scc1 L_items")
e(f"s_setpc_b64 {sr(sRET,2)}")
emit_slow_paths()
emit_tails()
emit_retries()
emit_cs_retries()
lab("L_end")
e("s_endpgm")

out.append('.section .rodata,"a"')
out.append(".p2align 6")
out.append(f".amdhsa_kernel {NAME}_kernel")
out.append(f"  .amdhsa_next_free_vgpr {NVGPR}")
out.append("  .amdhsa_next_free_sgpr 100")
out.append(f"  .amdhsa_accum_offset {NVGPR}")
out.append("  .amdhsa_group_segment_fixed_size 0")
out.append("  .amdhsa_kernarg_size 88")
out.append("  .amdhsa_user_sgpr_count 2")
out.append("  .amdhsa_user_sgpr_kernarg_segment_ptr 1")
out.append("  .amdhsa_system_sgpr_workgroup_id_x 1")
out.append(".end_amdhsa_kernel")
dst = [a for a in sys.argv[1:] if not a.startswith("--")]
open(dst[0] if dst else "cdna_kernels/%s.s" % NAME, "w").write("\n".join(o for o in out if o is not None) + "\n")
```

```python
import sys, math, struct

NAME = "sequential_preLN__sliding_local_dilated__mixer_s_mlp__prompt"
PROF = "--prof" in sys.argv
OPT = {}
for a in sys.argv:
    if a.startswith("--") and "=" in a:
        k, v = a[2:].split("="); OPT[k] = int(v)

out = []
def e(s): out.append("    " + s)
def lab(s): out.append(s + ":")
def cmt(s): out.append("    ; " + s)
def align(): out.append(".p2align 3")
def nop(n):
    while n > 0:
        k = min(n, 16); e(f"s_nop {k-1}"); n -= k
def f32(x): return "0x%08x" % struct.unpack("<I", struct.pack("<f", x))[0]
def vr(a, n): return f"v[{a}:{a+n-1}]"
def sr(a, n): return f"s[{a}:{a+n-1}]"
_uid = [0]
def uid(p):
    _uid[0] += 1
    return f"L_{p}_{_uid[0]}"

WS_O, WS_H, WS_H1, WS_X1, WS_G = 0, 2<<20, 4<<20, 6<<20, 8<<20
WS_HS = 15<<20
WS_X1S = WS_HS + (128<<10)
WS_FL = WS_HS + (256<<10)
WS_FL2 = WS_FL + (8<<10)
WS_HK = 16<<20
WS_PROF = 17<<20
WS_SIZE = 18<<20
GT = 56*1024
OOB = 0x40000000
LOOB = 0x30000
XB = 131072
KA = XB + 16384
KSZ = 1792
VA = KA + 4*KSZ
CSA = VA + 4*2048
CB = CSA + 768
C_KV = 0
LDS_BYTES = 163840
assert CB + 64 <= LDS_BYTES and VA % 256 == 0

sWAVE = 3
sX, sWS, sOUT = 4, 8, 12
sW = 12
pX, pWQKV, pWO, pBX, pW1, pW2, pW3, pW4, pOUT, pDBG, pWSP = 16, 18, 20, 22, 24, 26, 28, 30, 32, 34, 36
sJ, sG, sUNIT, sTILE, sBUD, sCNT = 38, 39, 40, 41, 42, 43
sT0, sT1, sT2, sT3 = 44, 45, 46, 47
sRET, sRET2 = 48, 50
sONES, sCEXP, sPUBO, sPUBV = 52, 53, 54, 55
sFLW = 56
sODD = 58
sOFFA, sPAR, sDST, sFLOFF, sR32, sHF, sHKO, sKH = 60, 61, 62, 63, 64, 65, 66, 67
sM0, sM1 = 68, 70
sFB = 72
sONE2 = 76
sPT, sPIDX = 78, 80
sSO, sSTEP, sC3, sCQ, sTA, sTB, sTC, sMID = 81, 82, 83, 84, 85, 86, 87, 88
vLANE = 0
vT0, vT1, vT2, vT3, vT4, vP, vCB, vT6, vT7 = 1, 2, 3, 4, 5, 6, 7, 8, 9
vL16, vFLO = 10, 11
vB, vW, vB32 = 12, 16, 20
vSC, vR1 = 22, 24
vSTO, vOUTO, vXA, vXP = 26, 27, 28, 29
vGA = 30
vLA = 32
vXR, vHP, vX1P = 36, 44, 52
vST = 60
vA, vWB = 64, 128
vACC, vACP = 160, 176
vE = 192
vPK, vK = 224, 232
vMS, vGB, vNMH = 240, 242, 244
vCSR = 246
vP2 = 247
NVGPR = 256

def prof(idx):
    if not PROF: return
    e(f"s_memrealtime {sr(sPT,2)}")
    e("s_memtime s[98:99]")
    e("s_waitcnt lgkmcnt(0)")
    e(f"v_writelane_b32 v{vP}, s{sPT}, {idx}")
    e(f"v_writelane_b32 v{vP}, s98, {idx+32}")
def prof_flush():
    if not PROF: return
    e(f"v_lshlrev_b32 v{vT0}, 2, v{vLANE}")
    if OPT.get("dp") is not None: e(f"v_mov_b32 v{vP}, v{vP2}")
    e(f"buffer_store_dword v{vP}, v{vT0}, {sr(sWS,4)}, s{sPIDX} offen")
tails = []
def spin(loop, done):
    tails.append((loop+"_s", loop, done))
    return loop+"_s"
def emit_tails():
    for s_, l, d in tails:
        lab(s_)
        e(f"s_sub_u32 s{sBUD}, s{sBUD}, 1")
        e(f"s_cbranch_scc0 {l}")
        e(f"s_mov_b32 s{sBUD}, 0")
        e(f"s_branch {d}")
    tails.clear()
def red2x2(a, b, t, a2, b2, t2):
    e(f"v_permlane16_swap_b32 v{a}, v{b}")
    e(f"v_permlane16_swap_b32 v{a2}, v{b2}")
    e(f"v_add_f32 v{a}, v{a}, v{b}")
    e(f"v_add_f32 v{a2}, v{a2}, v{b2}")
    e(f"v_mov_b32 v{t}, v{a}")
    e(f"v_mov_b32 v{t2}, v{a2}")
    nop(1)
    e(f"v_permlane32_swap_b32 v{a}, v{t}")
    e(f"v_permlane32_swap_b32 v{a2}, v{t2}")
    e(f"v_add_f32 v{a}, v{a}, v{t}")
    e(f"v_add_f32 v{a2}, v{a2}, v{t2}")
    e(f"v_mov_b32 v{t}, v{a}")
    e(f"v_mov_b32 v{t2}, v{a2}")
    nop(1)
    e(f"v_permlane16_swap_b32 v{a}, v{t}")
    e(f"v_permlane16_swap_b32 v{a2}, v{t2}")
def red2(a, b, t):
    e(f"v_permlane16_swap_b32 v{a}, v{b}")
    e(f"v_add_f32 v{a}, v{a}, v{b}")
    e(f"v_mov_b32 v{t}, v{a}")
    nop(2)
    e(f"v_permlane32_swap_b32 v{a}, v{t}")
    e(f"v_add_f32 v{a}, v{a}, v{t}")
    e(f"v_mov_b32 v{t}, v{a}")
    nop(2)
    e(f"v_permlane16_swap_b32 v{a}, v{t}")
def mean_var(vs, vq):
    e(f"v_mul_f32 v{vs}, {f32(-1.0/512)}, v{vs}")
    e(f"v_mul_f32 v{vq}, {f32(1.0/512)}, v{vq}")
    e(f"v_fma_f32 v{vq}, -v{vs}, v{vs}, v{vq}")
    e(f"v_max_f32 v{vq}, 0, v{vq}")
def zero(base, n):
    for i in range(n): e(f"v_mov_b32 v{base+i}, 0")
class LQ:
    def __init__(self, pend=()): self.q = list(pend)
    def op(self, id_, text): e(text); self.q.append(id_)
    def need(self, ids, vm=None):
        idx = max([i for i, x in enumerate(self.q) if x in ids], default=-1)
        parts = []
        if vm is not None: parts.append(f"vmcnt({vm})")
        if idx >= 0:
            parts.append(f"lgkmcnt({min(len(self.q)-1-idx, 15)})")
            self.q = self.q[idx+1:]
        if parts: e("s_waitcnt " + " ".join(parts))
def rd_text(buf, h, p, half_panel=False, base=0):
    if half_panel: off = ((p >> 1) & 7)*2048 + 1024*h; jj = p & 1
    else: off = (p >> 2)*4096 + 2048*h; jj = p & 3
    return f"ds_read_b64_tr_b16 {vr(buf+2*h,2)}, v{vW+jj} offset:{base+off}"
def mf_text(buf, areg, c, czero=False):
    return f"v_mfma_f32_16x16x32_bf16 {vr(c,4)}, {vr(buf,4)}, {vr(areg,4)}, {'0' if czero else vr(c,4)}"
def wtog(jj): e(f"v_xor_b32 v{vW+jj}, 0x8000, v{vW+jj}")
T_W = lambda i: f"ds_write_b128 v{vXA}, {vr(vACP+4*i,4)} offset:{1024*i}"
T_R = lambda i: f"ds_read_b128 {vr(vE+4*i,4)}, v{vXP} offset:{1024*i}"
T_C = lambda i: f"ds_read_b128 {vr(vACP+4*i,4)}, v{vCSR} offset:{64*i}"
def pre(half_panel=False, base=0):
    for p in range(6):
        for h in range(2): e(rd_text(vWB+4*p, h, p, half_panel, base))
nbar = {"c": 0, "h": 0, "l": 0}
def barrier(role, n=1, emit=True):
    nbar[role] += n
    if emit: e("s_barrier")

DS = [74, 82, 86, 88, 90, 92, 94, 96]
def dst_(i):
    if OPT.get("dp") is not None: e(f"s_memtime {sr(DS[i],2)}")
ncall = [0]
def gen_pass64():
    buf = lambda q: (vE + 4*(q-16)) if 16 <= q < 24 else (vWB + 4*(q % 8))
    areg = lambda q, t: vA + 8*(q >> 2) + 4*t
    acc = lambda q, t: (vACP if t else vACC) + 4*(q & 3)
    lq = LQ([f"f{p}" for p in range(6) for h in range(2)])
    def RD(q, h, nxt=False):
        lq.op(("n" if nxt else "f")+str(q), rd_text(vWB+4*q if nxt else buf(q), h, q))
    pend = [(q, h) for q in range(4+6, 32) for h in range(2)]
    def dual(q, czero=False):
        for t in range(2):
            e(mf_text(buf(q), areg(q, t), acc(q, t), czero))
            if q < 4: RD(q+6, t)
            else:
                RD(*pend.pop(0))
                if q >= 10 and t == 0: RD(*pend.pop(0))
    def waitq(q, vm=None): lq.need([f"f{q}", f"f{q+1}"], vm)
    align(); lab("L_pass64b")
    save = list(lq.q)
    for q in range(4):
        if q % 2 == 0: waitq(q, 14 if q == 0 else None)
        dual(q)
    e("s_branch L_pass64_c")
    lq.q = save
    align(); lab("L_pass64")
    for q in range(4):
        if q % 2 == 0: waitq(q, 14 if q == 0 else None)
        dual(q, True)
    lab("L_pass64_c")
    dst_(1)
    for q in range(4, 16):
        if q % 2 == 0: waitq(q, 14-2*(q >> 2) if q % 4 == 0 else None)
        dual(q)
    dst_(2)
    todo = [lambda j=j: wtog(j) for j in range(4)]
    for q in range(16, 32):
        if q % 2 == 0: waitq(q, 14-2*(q >> 2) if q % 4 == 0 else None)
        e(mf_text(buf(q), areg(q, 1), acc(q, 1)))
        k = 0
        while pend and k < 2: RD(*pend.pop(0)); k += 1
        if q == OPT.get("ph", 24):
            e("s_cbranch_vccnz L_pubhook"); lab("L_pubret"); k += 1
        while not pend and todo and k < 1: todo.pop(0)(); k += 1
    assert not pend and not todo
    O = lambda q: e(mf_text(buf(q), areg(q, 0), acc(q, 0)))
    W = lambda i: lq.op(f"W{i}", T_W(i))
    dst_(3)
    O(16); O(17); O(18); O(19); W(0); O(20); O(21); W(1); O(22); O(23); W(2); O(24); O(25); W(3); O(26); O(27)
    dst_(4)
    lq.need(["W3"])
    dst_(5)
    e("s_barrier")
    dst_(6)
    O(28)
    for i in range(2): lq.op(f"R{i}", T_R(i))
    O(29)
    for i in range(2, 4): lq.op(f"R{i}", T_R(i))
    O(30); RD(0, 0, True); RD(0, 1, True)
    O(31); RD(1, 0, True); RD(1, 1, True)
    for i in range(4): lq.op(f"C{i}", T_C(i))
    for q in range(2, 6): RD(q, 0, True); RD(q, 1, True)
    lq.need(["R3"])
    for i in range(8): e(f"v_pk_add_f32 {vr(vE+2*i,2)}, {vr(vACC+2*i,2)}, {vr(vE+2*i,2)}")
    lq.need(["C3"])
    dst_(7)
    e(f"s_setpc_b64 {sr(sRET,2)}")
    lab("L_pubhook")
    e(f"v_mov_b32 v{vT6}, s{sPUBV}")
    e("s_waitcnt vmcnt(0)")
    e(f"buffer_atomic_add v{vT6}, v{vFLO}, {sr(sWS,4)}, s{sPUBO} offen sc1")
    e("s_mov_b64 vcc, 0")
    e("s_branch L_pubret")
def call_pass(name="L_pass64"):
    dst_(0)
    e(f"s_call_b64 {sr(sRET,2)}, {name}")
    if OPT.get("dp") == ncall[0]:
        e("s_waitcnt lgkmcnt(0)")
        for i in range(8): e(f"v_writelane_b32 v{vP2}, s{DS[i]}, {i}")
    ncall[0] += 1
    barrier("c", 1, False)
def scalepack(dst):
    for i in range(8): e(f"v_pk_mul_f32 {vr(vE+2*i,2)}, {vr(vE+2*i,2)}, {vr(vSC,2)}")
    for i in range(8): e(f"v_cvt_pk_bf16_f32 v{dst+i}, v{vE+2*i}, v{vE+2*i+1}")

hdr = open("cdna_kernels/%s.s.ref" % NAME).read().split("\n")
for l in hdr:
    if l.startswith("; Override"): break
    out.append(l)
out.append(f"; @launch grid=(256,1,1) block=(512,1,1) lds={LDS_BYTES}")
out.append('.amdgcn_target "amdgcn-amd-amdhsa--gfx950"')
out.append(".text")
out.append(f".globl {NAME}_kernel")
out.append(".p2align 8")
out.append(f".type {NAME}_kernel,@function")
lab(f"{NAME}_kernel")
e("s_cmp_ge_u32 s2, 256")
e("s_cbranch_scc1 L_end")
e(f"s_load_dwordx16 {sr(16,16)}, s[0:1], 0")
e(f"s_load_dwordx4 {sr(32,4)}, s[0:1], 64")
e(f"s_load_dwordx2 {sr(36,2)}, s[0:1], 80")
e(f"v_lshrrev_b32 v1, 6, v0")
e(f"v_and_b32 v{vLANE}, 63, v0")
e(f"v_readfirstlane_b32 s{sWAVE}, v1")
e(f"s_and_b32 s{sHF}, s2, 1")
e(f"s_lshr_b32 s{sR32}, s2, 3")
e(f"s_and_b32 s{sJ}, s{sR32}, 3")
e(f"s_lshl_b32 s{sT0}, s{sHF}, 2")
e(f"s_add_u32 s{sJ}, s{sJ}, s{sT0}")
e(f"s_and_b32 s{sG}, s2, 6")
e(f"s_lshl_b32 s{sG}, s{sG}, 2")
e(f"s_lshr_b32 s{sT1}, s{sR32}, 2")
e(f"s_add_u32 s{sG}, s{sG}, s{sT1}")
e(f"s_mov_b32 s{sBUD}, 0x80000")
e(f"s_and_b32 s{sKH}, s{sWAVE}, 1")
e(f"s_lshl_b32 s{sPAR}, s{sKH}, 16")
e(f"v_mov_b32 v{vCB}, {CB}")
e(f"v_lshlrev_b32 v{vL16}, 4, v{vLANE}")
e(f"v_lshrrev_b32 v{vT0}, 4, v{vLANE}")
e(f"v_and_b32 v{vT1}, 15, v{vLANE}")
e(f"s_mov_b32 s{sWS+2}, {WS_SIZE}")
e(f"s_mov_b32 s{sWS+3}, 0x00020000")
e(f"s_mov_b32 s{sX+3}, 0x00020000")
e(f"s_mov_b32 s{sOUT+3}, 0x00020000")
e(f"s_mov_b32 s{sONES}, 0x3f803f80")
if PROF:
    e(f"s_lshl_b32 s{sPIDX}, s2, 3")
    e(f"s_add_u32 s{sPIDX}, s{sPIDX}, s{sWAVE}")
    e(f"s_lshl_b32 s{sPIDX}, s{sPIDX}, 8")
    e(f"s_add_u32 s{sPIDX}, s{sPIDX}, {WS_PROF}")
    e(f"v_mov_b32 v{vP}, 0")
e(f"s_cmp_ge_u32 s{sWAVE}, 6")
e("s_cbranch_scc1 L_loader")
e(f"s_cmp_ge_u32 s{sWAVE}, 4")
e("s_cbranch_scc1 L_helper")

def tr_bases():
    e(f"v_lshrrev_b32 v{vT3}, 2, v{vLANE}")
    e(f"v_bfe_u32 v{vT4}, v{vT3}, 1, 2")
    e(f"v_lshlrev_b32 v{vT4}, 5, v{vT4}")
    e(f"v_and_b32 v{vT2}, 3, v{vLANE}")
    e(f"v_lshl_add_u32 v{vT4}, v{vT2}, 3, v{vT4}")
    e(f"v_lshl_add_u32 v{vB}, v{vT3}, 7, v{vT4}")
    for jj in range(1, 4): e(f"v_xor_b32 v{vB+jj}, {jj<<5}, v{vB}")
    e(f"v_and_b32 v{vT4}, 1, v{vT0}")
    e(f"v_lshlrev_b32 v{vT4}, 5, v{vT4}")
    e(f"v_lshl_add_u32 v{vT4}, v{vT2}, 3, v{vT4}")
    e(f"v_lshl_add_u32 v{vB32}, v{vT3}, 6, v{vT4}")
    e(f"v_xor_b32 v{vB32+1}, 32, v{vB32}")
e(f"s_lshl_b32 s{sTILE}, s{sG}, 2")
e(f"s_add_u32 s{sTILE}, s{sTILE}, s{sWAVE}")
e(f"s_lshr_b32 s{sUNIT}, s{sTILE}, 1")
e(f"s_mov_b32 s{sX+2}, {2<<20}")
e(f"s_lshl_b32 s{sT2}, s{sUNIT}, 15")
e(f"s_lshl_b32 s{sT0}, s{sKH}, 8")
e(f"s_add_u32 s{sT2}, s{sT2}, s{sT0}")
e(f"s_lshr_b32 s{sT3}, s{sWAVE}, 1")
e(f"s_lshl_b32 s{sT3}, s{sT3}, 14")
e(f"s_add_u32 s{sT3}, s{sT3}, s{sPAR}")
e(f"s_add_u32 s{sT3}, s{sT3}, 32768")
e(f"s_mov_b32 m0, s{sT3}")
e(f"v_lshrrev_b32 v{vT2}, 5, v{vLANE}")
e(f"v_xor_b32 v{vT3}, v{vT1}, v{vT2}")
e(f"v_lshlrev_b32 v{vT3}, 4, v{vT3}")
e(f"v_lshl_add_u32 v{vT3}, v{vT2}, 10, v{vT3}")
e(f"v_and_b32 v{vT4}, 1, v{vT0}")
e(f"v_lshl_add_u32 v{vWB}, v{vT4}, 9, v{vT3}")
for i in range(1, 8): e(f"v_xor_b32 v{vWB+i}, {i<<5}, v{vWB}")
e("s_waitcnt lgkmcnt(0)")
e(f"s_mov_b32 s{sX}, s{pX}")
e(f"s_mov_b32 s{sX+1}, s{pX+1}")
for i in range(16):
    e(f"buffer_load_dwordx4 v{vWB+(i&7)}, {sr(sX,4)}, s{sT2} offen lds")
    if i < 15:
        e("s_add_u32 m0, m0, 1024")
        e(f"s_add_u32 s{sT2}, s{sT2}, 2048")
barrier("c")
prof(0)
e(f"s_mov_b32 s{sWS}, s{pWSP}")
e(f"s_mov_b32 s{sWS+1}, s{pWSP+1}")
e(f"s_mov_b32 s{sOUT}, s{pOUT}")
e(f"s_mov_b32 s{sOUT+1}, s{pOUT+1}")
e(f"s_mov_b32 s{sOUT+2}, {2<<20}")
e(f"s_mov_b32 s{sCEXP}, {f32(0.25*math.log2(math.e))}")
e(f"s_mov_b32 s{sODD}, 0xaaaaaaaa")
e(f"s_mov_b32 s{sODD+1}, 0xaaaaaaaa")
e(f"s_mov_b32 s{sONE2}, 1.0")
e(f"s_mov_b32 s{sONE2+1}, 1.0")
e("s_mov_b64 vcc, 0")
tr_bases()
for jj in range(4): e(f"v_add_u32 v{vW+jj}, s{sPAR}, v{vB+jj}")
e(f"v_lshlrev_b32 v{vCSR}, 4, v{vT0}")
e(f"v_add_u32 v{vCSR}, {CSA}, v{vCSR}")
e(f"s_lshl_b32 s{sT2}, s{sWAVE}, 12")
e(f"s_add_u32 s{sT2}, s{sT2}, {XB}")
e(f"v_add_u32 v{vXA}, s{sT2}, v{vL16}")
e(f"v_xor_b32 v{vXP}, 0x1000, v{vXA}")
e(f"v_cmp_eq_u32 {sr(sM0,2)}, 0, v{vLANE}")
e(f"v_cmp_gt_u32 {sr(sM1,2)}, 16, v{vLANE}")
e(f"v_mov_b32 v{vT2}, {OOB}")
e(f"s_lshl_b32 s{sFLOFF}, s{sUNIT}, 7")
e(f"s_add_u32 s{sFLOFF}, s{sFLOFF}, {WS_FL}")
e(f"v_cndmask_b32 v{vFLO}, v{vT2}, 0, {sr(sM0,2)}")
e(f"s_lshl_b32 s{sT0}, s{sTILE}, 10")
e(f"s_lshr_b32 s{sT1}, s{sJ}, 1")
e(f"s_lshl_b32 s{sT1}, s{sT1}, 8")
e(f"s_add_u32 s{sT0}, s{sT0}, s{sT1}")
e(f"s_and_b32 s{sT1}, s{sJ}, 1")
e(f"s_lshl_b32 s{sT1}, s{sT1}, 3")
e(f"s_add_u32 s{sT0}, s{sT0}, s{sT1}")
e(f"v_add_u32 v{vT3}, s{sT0}, v{vL16}")
e(f"v_cndmask_b32 v{vSTO}, v{vT2}, v{vT3}, {sr(sM1,2)}")
e(f"s_lshl_b32 s{sT0}, s{sG}, 3")
e(f"s_add_u32 s{sT0}, s{sT0}, s{sJ}")
e(f"s_lshl_b32 s{sPUBO}, s{sT0}, 7")
e(f"s_add_u32 s{sPUBO}, s{sPUBO}, {WS_FL2}")
e(f"s_lshl_b32 s{sHKO}, s{sT0}, 12")
e(f"s_add_u32 s{sHKO}, s{sHKO}, {WS_HK}")
e(f"s_lshl_b32 s{sDST}, s{sTILE}, 14")
e(f"s_lshl_b32 s{sT1}, s{sJ}, 11")
e(f"s_add_u32 s{sDST}, s{sDST}, s{sT1}")
e(f"s_lshl_b32 s{sT1}, s{sJ}, 7")
e(f"s_lshl_b32 s{sCQ}, s{sTILE}, 14")
e(f"s_add_u32 s{sCQ}, s{sCQ}, s{sT1}")
e(f"v_and_b32 v{vT3}, 1, v{vT0}")
e(f"v_lshlrev_b32 v{vT3}, 5, v{vT3}")
e(f"v_lshrrev_b32 v{vT4}, 1, v{vT0}")
e(f"v_lshl_add_u32 v{vT3}, v{vT4}, 4, v{vT3}")
e(f"v_lshl_add_u32 v{vOUTO}, v{vT1}, 10, v{vT3}")
e(f"v_add_u32 v{vOUTO}, s{sCQ}, v{vOUTO}")
GA = -2.0*math.sqrt(2.0/math.pi)*math.log2(math.e)
for i in range(2):
    e(f"v_mov_b32 v{vGA+i}, {f32(GA)}")
    e(f"v_mov_b32 v{vGB+i}, {f32(GA*0.044715)}")
def set_la(stride):
    e(f"s_mul_i32 s{sT0}, s{sKH}, {stride+4096}")
    e(f"s_mul_i32 s{sT1}, s{sKH}, {-stride+4096}")
    e(f"s_add_u32 s{sT1}, s{sT1}, {stride}")
    e(f"v_add_u32 v{vLA}, s{sT0}, v{vL16}")
    e(f"v_add_u32 v{vLA+1}, s{sT1}, v{vL16}")
    e(f"v_add_u32 v{vLA+2}, 0x2000, v{vLA}")
    e(f"v_add_u32 v{vLA+3}, 0x2000, v{vLA+1}")
set_la(16384)
XA = vE
e(f"v_lshrrev_b32 v{vT3}, 1, v{vT0}")
e(f"v_xor_b32 v{vT3}, v{vT3}, v{vT1}")
e(f"v_lshlrev_b32 v{vT3}, 4, v{vT3}")
e(f"v_lshl_add_u32 v{vT3}, v{vT1}, 9, v{vT3}")
e(f"v_and_b32 v{vT4}, 1, v{vT0}")
e(f"v_lshl_add_u32 v{vT3}, v{vT4}, 3, v{vT3}")
e(f"s_lshl_b32 s{sT0}, s{sKH}, 13")
e(f"s_add_u32 s{sT0}, s{sT0}, s{sT3}")
e(f"v_add_u32 v{XA}, s{sT0}, v{vT3}")
for c in range(1, 8): e(f"v_xor_b32 v{XA+c}, {c<<5}, v{XA}")
for c in range(8): e(f"v_xor_b32 v{XA+8+c}, 0x2000, v{XA+c}")
for i in range(4): e(f"v_mov_b32 v{vST+i}, 0")
e(f"s_lshl_b32 s{sT0}, s{sWAVE}, 11")
e(f"s_add_u32 s{sT0}, s{sT0}, {VA}")
e(f"v_lshl_add_u32 v{vT2}, v{vT1}, 4, s{sT0}")
e(f"v_xor_b32 v{vT3}, 0x800, v{vT1}") if False else None
e("s_waitcnt vmcnt(0)")
for ksl in range(8):
    for t in range(2):
        for h in range(2):
            e(f"ds_read_b64 {vr(vA+8*ksl+4*t+2*h,2)}, v{XA+8*t+2*(ksl&3)+h} offset:{256*(ksl>>2)}")
for ksl in range(8):
    e(f"s_waitcnt lgkmcnt({min(15, 28-4*ksl)})")
    for d in range(4):
        for t in range(2):
            r = vA+8*ksl+4*t+d
            e(f"v_dot2_f32_bf16 v{vST+2*t}, v{r}, s{sONES}, v{vST+2*t}")
            e(f"v_dot2_f32_bf16 v{vST+2*t+1}, v{r}, v{r}, v{vST+2*t+1}")
nop(3)
red2x2(vST, vST+1, vST+1, vST+2, vST+3, vST+3)
e(f"ds_write_b128 v{vT2}, {vr(vST,4)}")
e(f"s_xor_b32 s{sT0}, s{sWAVE}, 1")
e(f"s_lshl_b32 s{sT0}, s{sT0}, 11")
e(f"s_add_u32 s{sT0}, s{sT0}, {VA}")
e(f"v_lshl_add_u32 v{vT3}, v{vT1}, 4, s{sT0}")
e("s_waitcnt lgkmcnt(0)")
prof(1)
barrier("c")
e(f"ds_read_b128 {vr(vE,4)}, v{vT3}")
pre()
e(f"s_mov_b32 s{sT0}, 0x3f80")
e(f"s_mov_b32 s{sT1}, 0x3f800000")
e("s_waitcnt lgkmcnt(12)")
e(f"v_add_f32 v{vT4}, v{vE+2}, v{vST}")
e(f"v_add_f32 v{vT3}, v{vE+3}, v{vST+1}")
e(f"v_add_f32 v{vT6}, v{vE}, v{vST+2}")
e(f"v_mul_f32 v{vT6}, {f32(-1.0/512)}, v{vT6}")
mean_var(vT4, vT3)
e(f"v_add_f32 v{vT3}, {f32(1e-5)}, v{vT3}")
e(f"v_rsq_f32 v{vSC}, v{vT3}")
e(f"v_rsq_f32 v{vSC+1}, v{vT3}")
for c in range(8):
    for i in range(8):
        m_ = vT6 if (i >> 2) & 1 else vT4
        e(f"v_dot2_f32_bf16 v{vE+2*i}, v{vA+8*c+i}, s{sT0}, v{m_}")
        e(f"v_dot2_f32_bf16 v{vE+2*i+1}, v{vA+8*c+i}, s{sT1}, v{m_}")
    nop(1)
    for i in range(8): e(f"v_cvt_pk_bf16_f32 v{vA+8*c+i}, v{vE+2*i}, v{vE+2*i+1}")
prof(30)
call_pass()
scalepack(vK)
e(f"v_lshlrev_b32 v{vT2}, 7, v{vT1}")
e(f"v_lshl_add_u32 v{vT2}, v{vT0}, 5, v{vT2}")
e(f"s_cmp_eq_u32 s{sWAVE}, 3")
e("s_cbranch_scc0 L_k3d")
e(f"buffer_store_dwordx4 {vr(vK,4)}, v{vT2}, {sr(sWS,4)}, s{sHKO} offen sc1")
e(f"buffer_store_dwordx4 {vr(vK+4,4)}, v{vT2}, {sr(sWS,4)}, s{sHKO} offen offset:16 sc1")
e(f"s_mov_b32 s{sPUBV}, 1")
e("s_mov_b64 vcc, -1")
lab("L_k3d")
e(f"s_cselect_b32 s{sT1}, 16, 1")
e(f"s_mul_i32 s{sT0}, s{sWAVE}, {KSZ}")
e(f"s_add_u32 s{sT0}, s{sT0}, {KA+KSZ-256}")
e(f"v_cmp_lt_u32 {sr(sM0,2)}, s{sT1}, v{vT1}")
e(f"v_add_u32 v{vT2}, s{sT0}, v{vT2}")
e(f"v_mov_b32 v{vT3}, {LOOB}")
e(f"v_cndmask_b32 v{vX1P}, v{vT3}, v{vT2}, {sr(sM0,2)}")
e(f"v_bfe_u32 v{vT2}, v{vT1}, 1, 2")
e(f"v_lshlrev_b32 v{vT2}, 1, v{vT2}")
e(f"v_lshrrev_b32 v{vT3}, 1, v{vT0}")
e(f"v_xor_b32 v{vT2}, v{vT2}, v{vT3}")
e(f"v_lshlrev_b32 v{vT2}, 4, v{vT2}")
e(f"v_lshl_add_u32 v{vT2}, v{vT1}, 7, v{vT2}")
e(f"v_and_b32 v{vT3}, 1, v{vT0}")
e(f"v_lshl_add_u32 v{vHP}, v{vT3}, 3, v{vT2}")
for h in range(1, 4): e(f"v_xor_b32 v{vHP+h}, {h<<5}, v{vHP}")
e(f"s_lshl_b32 s{sT0}, s{sWAVE}, 11")
e(f"s_add_u32 s{sT0}, s{sT0}, {VA}")
for h in range(4): e(f"v_add_u32 v{vHP+4+h}, s{sT0}, v{vHP+h}")
prof(2)
call_pass()
scalepack(vPK)
for h in range(4): e(f"ds_write_b64 v{vHP+4+h}, {vr(vPK+2*h,2)}")
e(f"ds_write_b128 v{vX1P}, {vr(vK,4)}")
e(f"ds_write_b128 v{vX1P}, {vr(vK+4,4)} offset:16")
e(f"s_cmp_eq_u32 s{sWAVE}, 3")
e("s_cbranch_scc0 L_v3d")
for h in range(4): e(f"buffer_store_dwordx2 {vr(vPK+2*h,2)}, v{vHP+h}, {sr(sWS,4)}, s{sHKO} offen offset:2048 sc1")
e(f"s_mov_b32 s{sPUBV}, 0x100")
e("s_mov_b64 vcc, -1")
lab("L_v3d")
e(f"v_max_u32 v{vT2}, 2, v{vT1}")
e(f"v_lshlrev_b32 v{vT2}, 7, v{vT2}")
e(f"v_lshl_add_u32 v{vT2}, v{vT0}, 5, v{vT2}")
e(f"s_mul_i32 s{sT1}, s{sWAVE}, {KSZ}")
e(f"s_add_u32 s{sT1}, s{sT1}, {KA-256}")
e(f"v_add_u32 v{vT2}, s{sT1}, v{vT2}")
e(f"s_sub_u32 s{sT1}, s{sT0}, 2048")
e(f"s_cmp_eq_u32 s{sWAVE}, 0")
e(f"s_cselect_b32 s{sT1}, {XB}, s{sT1}")
e(f"s_cselect_b32 s{sT3}, 1, 0")
for h in range(4):
    e(f"v_add_u32 v{vHP+h}, s{sT0}, v{vB+h}")
    e(f"v_add_u32 v{vHP+4+h}, s{sT1}, v{vB+h}")
e("s_waitcnt lgkmcnt(0)")
barrier("c")
prof(3)
call_pass()
KP, VP, VO, SO, SP_ = vA, vA+8, vA+16, vA+24, vA+40
for h in range(4): e(f"ds_read_b64_tr_b16 {vr(VO+2*h,2)}, v{vHP+h}")
scalepack(vPK)
l = uid("kv"); d = l+"_d"
lab(l)
e(f"ds_read_b32 v{vT7}, v{vCB} offset:{C_KV}")
e(f"ds_read_b128 {vr(KP,4)}, v{vT2}")
e(f"ds_read_b128 {vr(KP+4,4)}, v{vT2} offset:16")
for h in range(4):
    e(f"v_mfma_f32_16x16x16_bf16 {vr(SO+4*h,4)}, {vr(vK+2*h,2)}, {vr(vPK+2*h,2)}, 0")
e("s_waitcnt lgkmcnt(0)")
e(f"v_readfirstlane_b32 s{sT2}, v{vT7}")
e(f"s_cmp_ge_u32 s{sT2}, s{sT3}")
e(f"s_cbranch_scc0 {spin(l, d)}")
lab(d)
for h in range(4):
    e(f"v_mfma_f32_16x16x16_bf16 {vr(SP_+4*h,4)}, {vr(KP+2*h,2)}, {vr(vPK+2*h,2)}, 0")
prof(4)
BI = vA+56
e(f"v_and_b32 v{vT2}, 1, v{vT1}")
e(f"v_lshl_add_u32 v{vT3}, v{vT0}, 2, v{vT2}")
e(f"v_sub_u32 v{vT3}, v{vT1}, v{vT3}")
e(f"v_mov_b32 v{vT6}, {f32(-1e30)}")
e(f"s_cmp_eq_u32 s{sTILE}, 0")
e(f"s_cselect_b32 s{sT0}, -64, 16")
e(f"v_add_u32 v{vT4}, -2, v{vT3}")
e(f"v_cmp_gt_u32 {sr(sM0,2)}, 15, v{vT3}")
e(f"v_cmp_gt_u32 {sr(sM1,2)}, 15, v{vT4}")
e(f"v_add_u32 v{vT3}, s{sT0}, v{vT3}")
e(f"v_add_u32 v{vT4}, -2, v{vT3}")
e(f"v_cndmask_b32 v{BI}, v{vT6}, 0, {sr(sM0,2)}")
e(f"v_cndmask_b32 v{BI+1}, v{vT6}, 0, {sr(sM1,2)}")
e(f"v_cmp_gt_u32 {sr(sM0,2)}, 15, v{vT3}")
e(f"v_cmp_gt_u32 {sr(sM1,2)}, 15, v{vT4}")
X = vE
for h in range(4):
    e(f"v_cndmask_b32 v{X+4*h}, v{SO+4*h}, v{SO+4*h+1}, {sr(sODD,2)}")
    e(f"v_cndmask_b32 v{X+4*h+1}, v{SO+4*h+2}, v{SO+4*h+3}, {sr(sODD,2)}")
e(f"v_cndmask_b32 v{BI+2}, v{vT6}, 0, {sr(sM0,2)}")
e(f"v_cndmask_b32 v{BI+3}, v{vT6}, 0, {sr(sM1,2)}")
for h in range(4):
    e(f"v_cndmask_b32 v{X+4*h+2}, v{SP_+4*h}, v{SP_+4*h+1}, {sr(sODD,2)}")
    e(f"v_cndmask_b32 v{X+4*h+3}, v{SP_+4*h+2}, v{SP_+4*h+3}, {sr(sODD,2)}")
for h in range(4):
    for i in range(4): e(f"v_fma_f32 v{X+4*h+i}, v{X+4*h+i}, s{sCEXP}, v{BI+i}")
M = vE+16; M2 = vE+20
for h in range(4): e(f"v_max3_f32 v{M+h}, v{X+4*h}, v{X+4*h+1}, v{X+4*h+2}")
for h in range(4): e(f"v_max_f32 v{M+h}, v{M+h}, v{X+4*h+3}")
def allred(op):
    for h in range(4): e(f"v_mov_b32 v{M2+h}, v{M+h}")
    nop(1)
    for h in range(4): e(f"v_permlane16_swap_b32 v{M+h}, v{M2+h}")
    for h in range(4): e(f"{op} v{M+h}, v{M+h}, v{M2+h}")
    for h in range(4): e(f"v_mov_b32 v{M2+h}, v{M+h}")
    nop(1)
    for h in range(4): e(f"v_permlane32_swap_b32 v{M+h}, v{M2+h}")
    for h in range(4): e(f"{op} v{M+h}, v{M+h}, v{M2+h}")
allred("v_max_f32")
for h in range(4):
    for i in range(4): e(f"v_sub_f32 v{X+4*h+i}, v{X+4*h+i}, v{M+h}")
for i in range(16): e(f"v_exp_f32 v{X+i}, v{X+i}")
for h in range(4): e(f"v_add_f32 v{M+h}, v{X+4*h}, v{X+4*h+1}")
for h in range(4): e(f"v_add_f32 v{M2+h}, v{X+4*h+2}, v{X+4*h+3}")
for h in range(4): e(f"v_add_f32 v{M+h}, v{M+h}, v{M2+h}")
allred("v_add_f32")
for h in range(4): e(f"v_rcp_f32 v{M+h}, v{M+h}")
lv_ = uid("vv")
e(f"s_lshl_b32 s{sT3}, s{sT3}, 1")
lab(lv_)
e(f"ds_read_b32 v{vT7}, v{vCB} offset:{C_KV}")
for h in range(4): e(f"ds_read_b64_tr_b16 {vr(VP+2*h,2)}, v{vHP+4+h}")
e("s_cbranch_vccnz "+lv_+"_w")
SEL = vA+60
e(f"v_mov_b32 v{vT3}, 0x0c0c0100")
e(f"v_mov_b32 v{vT4}, 0x01000c0c")
e(f"v_cndmask_b32 v{SEL}, v{vT3}, v{vT4}, {sr(sODD,2)}")
e(f"v_mov_b32 v{vT3}, 0x0c0c0302")
e(f"v_mov_b32 v{vT4}, 0x03020c0c")
e(f"v_cndmask_b32 v{SEL+1}, v{vT3}, v{vT4}, {sr(sODD,2)}")
for h in range(4):
    for i in range(4): e(f"v_mul_f32 v{X+4*h+i}, v{X+4*h+i}, v{M+h}")
for h in range(4):
    e(f"v_cvt_pk_bf16_f32 v{M+h}, v{X+4*h}, v{X+4*h+1}")
    e(f"v_cvt_pk_bf16_f32 v{M2+h}, v{X+4*h+2}, v{X+4*h+3}")
for h in range(4):
    e(f"v_perm_b32 v{SO+2*h}, v{M+h}, v{M+h}, v{SEL}")
    e(f"v_perm_b32 v{SO+2*h+1}, v{M+h}, v{M+h}, v{SEL+1}")
    e(f"v_perm_b32 v{SP_+2*h}, v{M2+h}, v{M2+h}, v{SEL}")
    e(f"v_perm_b32 v{SP_+2*h+1}, v{M2+h}, v{M2+h}, v{SEL+1}")
nop(2)
OA = vE
for h in range(4):
    e(f"v_mfma_f32_16x16x16_bf16 {vr(OA+4*h,4)}, {vr(VO+2*h,2)}, {vr(SO+2*h,2)}, 0")
lab(lv_+"_w")
e("s_waitcnt lgkmcnt(0)")
e(f"v_readfirstlane_b32 s{sT2}, v{vT7}")
e("s_mov_b64 vcc, -1")
e(f"s_cmp_ge_u32 s{sT2}, s{sT3}")
e(f"s_cbranch_scc0 {spin(lv_, lv_+'_d')}")
lab(lv_+"_d")
e("s_mov_b64 vcc, 0")
for h in range(4):
    e(f"v_mfma_f32_16x16x16_bf16 {vr(OA+4*h,4)}, {vr(VP+2*h,2)}, {vr(SP_+2*h,2)}, {vr(OA+4*h,4)}")
e(f"v_lshlrev_b32 v{vT2}, 10, v{vT1}")
e(f"v_lshl_add_u32 v{vT2}, v{vT0}, 3, v{vT2}")
def pack(dst):
    for i in range(8): e(f"v_cvt_pk_bf16_f32 v{dst+i}, v{vE+2*i}, v{vE+2*i+1}")
def store_act(pk, base):
    e(f"s_add_u32 s{sT0}, s{sDST}, {base}")
    e(f"buffer_store_dwordx4 {vr(pk,4)}, v{vL16}, {sr(sWS,4)}, s{sT0} offen sc1")
    e(f"buffer_store_dwordx4 {vr(pk+4,4)}, v{vL16}, {sr(sWS,4)}, s{sT0} offen offset:1024 sc1")
nop(3)
pack(vPK)
store_act(vPK, WS_O)
for jj in range(4):
    e(f"buffer_load_dwordx2 {vr(vXR+2*jj,2)}, v{vT2}, {sr(sX,4)}, s{sCQ} offen offset:{32*jj}")
pubn = [0]
def publish():
    f = pubn[0]; pubn[0] += 1
    e(f"v_mov_b32 v{vT6}, {1 << (8*(f&3))}")
    if f in (1, 2): prof(21+f)
    e("s_waitcnt vmcnt(0)")
    e(f"buffer_atomic_add v{vT6}, v{vFLO}, {sr(sWS,4)}, s{sFLOFF} offen offset:{4*(f>>2)} sc1")
def loada():
    for ksl in range(8):
        for tsel in range(2):
            e(f"buffer_load_dwordx4 {vr(vA+8*ksl+4*tsel,4)}, v{vLA+2*(ksl>>2)+tsel}, {sr(sWS,4)}, s{sOFFA} offen offset:{1024*(ksl&3)} sc1")
def set_offa(base):
    e(f"s_lshl_b32 s{sOFFA}, s{sUNIT}, 15")
    e(f"s_add_u32 s{sOFFA}, s{sOFFA}, {base}")
def set_stats_off(base):
    e(f"s_lshl_b32 s{sT3}, s{sTILE}, 10")
    e(f"s_add_u32 s{sT3}, s{sT3}, {base}")
def load_stats(): e(f"buffer_load_dwordx4 {vr(vST,4)}, v{vL16}, {sr(sWS,4)}, s{sT3} offen sc1")
def consume_stats():
    e("s_waitcnt vmcnt(16)")
    e(f"v_add_f32 v{vT4}, v{vST}, v{vST+2}")
    e(f"v_add_f32 v{vT3}, v{vST+1}, v{vST+3}")
    nop(2)
    red2(vT4, vT3, vT3)
    mean_var(vT4, vT3)
def store_stats(pk, base):
    e(f"v_mov_b32 v{vST}, 0")
    e(f"v_mov_b32 v{vST+1}, 0")
    for i in range(8):
        e(f"v_dot2_f32_bf16 v{vST}, v{pk+i}, s{sONES}, v{vST}")
        e(f"v_dot2_f32_bf16 v{vST+1}, v{pk+i}, v{pk+i}, v{vST+1}")
    e(f"s_mov_b32 s{sT0}, {base}")
    nop(2)
    red2(vST, vST+1, vST+1)
    e(f"buffer_store_dwordx2 {vr(vST,2)}, v{vSTO}, {sr(sWS,4)}, s{sT0} offen sc1")
def unpack(dst, src, n):
    for i in range(n):
        e(f"v_lshlrev_b32 v{dst+2*i}, 16, v{src+i}")
        e(f"v_and_b32 v{dst+2*i+1}, 0xffff0000, v{src+i}")
def poll_words(nb=False):
    e(f"s_mov_b64 {sr(sFLW,2)}, 0")
    if nb: e(f"s_mov_b32 s{sFB}, 0")
    e(f"s_atomic_add_x2 {sr(sFLW,2)}, {sr(pWSP,2)}, s{sFLOFF} glc")
    if nb: e(f"s_atomic_add s{sFB}, {sr(pWSP,2)}, s{sT3} glc")
    e("s_waitcnt lgkmcnt(0)")
def wait_ready(n, nb=False):
    l = uid("rdy"); d = l+"_d"
    lab(l)
    poll_words(nb)
    if nb:
        e(f"s_and_b32 s{sFB}, s{sFB}, s{sFLW}")
        e(f"s_bitcmp1_b32 s{sFB}, {8*(n-1)+4}")
    else:
        e(f"s_bitcmp1_b64 {sr(sFLW,2)}, {8*(n-1)+4}")
    e(f"s_cbranch_scc0 {spin(l, d)}")
    lab(d)
zero(vACP, 16)
set_offa(WS_O)
publish()
unpack(vACC, vXR, 8)
barrier("c")
prof(5)
barrier("c")
prof(6)
loada()
call_pass("L_pass64b")
prof(7)
pack(vHP)
store_act(vHP, WS_H)
store_stats(vHP, WS_HS)
set_offa(WS_H)
set_stats_off(WS_HS)
publish()
barrier("c")
prof(8)
barrier("c")
prof(9)
load_stats()
loada()
consume_stats()
e(f"v_add_f32 v{vT2}, {f32(1e-5)}, v{vT3}")
e(f"v_rsq_f32 v{vR1}, v{vT2}")
e(f"v_mov_b32 v{vNMH}, v{vT4}")
e(f"v_mul_f32 v{vT3}, v{vT3}, v{vR1}")
e(f"v_fmaak_f32 v{vT3}, v{vT3}, v{vR1}, {f32(1e-5)}")
e(f"v_rsq_f32 v{vT3}, v{vT3}")
e(f"v_mov_b32 v{vNMH+1}, v{vT4}")
e(f"v_mul_f32 v{vSC}, v{vT3}, v{vR1}")
e(f"v_mul_f32 v{vSC+1}, v{vT3}, v{vR1}")
e(f"v_mov_b32 v{vR1+1}, v{vR1}")
e(f"v_mul_f32 v{vMS}, v{vT4}, v{vSC}")
e(f"v_mul_f32 v{vMS+1}, v{vT4}, v{vSC}")
e(f"s_mov_b32 s{sCNT}, 0")
call_pass()
prof(10)
e(f"s_call_b64 {sr(sRET2,2)}, L_gelu")
store_act(vPK, WS_H1)
e(f"v_lshlrev_b32 v{vT4}, 8, v{vT0}")
e(f"s_lshl_b32 s{sT0}, s{sKH}, 12")
e(f"v_add_u32 v{vT4}, s{sT0}, v{vT4}")
e(f"v_mov_b32 v{vT6}, {OOB}")
e(f"s_lshl_b32 s{sT2}, s{sKH}, 1")
e(f"s_sub_u32 s{sT2}, s{sT2}, 1")
e(f"s_movk_i32 s{sT3}, 0x800")
for sg in range(2):
    for tsel in range(2):
        if tsel: e(f"s_xor_b32 s{sT0}, s{sTILE}, 1")
        e(f"s_lshl_b32 s{sT0}, s{sT0 if tsel else sTILE}, 4")
        e(f"s_add_u32 s{sT0}, s{sT0}, s{sT2}")
        if sg: e(f"s_add_u32 s{sT0}, s{sT0}, s{sT2}")
        e(f"v_add_u32 v{vT2}, s{sT0}, v{vT1}")
        e(f"v_cmp_gt_u32 {sr(sM0,2)}, s{sT3}, v{vT2}")
        e(f"v_lshrrev_b32 v{vT3}, 4, v{vT2}")
        e(f"v_lshl_add_u32 v{vT3}, v{vT3}, 14, v{vT4}")
        e(f"v_and_b32 v{vT2}, 15, v{vT2}")
        e(f"v_lshl_add_u32 v{vT3}, v{vT2}, 4, v{vT3}")
        if sg: e(f"v_add_u32 v{vT3}, 0x2000, v{vT3}")
        e(f"v_cndmask_b32 v{vLA+2*sg+tsel}, v{vT6}, v{vT3}, {sr(sM0,2)}")
unpack(vACC, vHP, 8)
for i in range(8): e(f"v_pk_add_f32 {vr(vACC+2*i,2)}, {vr(vACC+2*i,2)}, {vr(vNMH,2)}")
for i in range(8): e(f"v_pk_mul_f32 {vr(vACC+2*i,2)}, {vr(vACC+2*i,2)}, {vr(vR1,2)}")
zero(vACP, 16)
e(f"s_mov_b32 s{sOFFA}, {WS_H1}")
e(f"v_add_u32 v{vCSR}, 256, v{vCSR}")
publish()
barrier("c")
prof(11)
barrier("c")
prof(12)
loada()
call_pass("L_pass64b")
prof(13)
pack(vX1P)
store_act(vX1P, WS_X1)
store_stats(vX1P, WS_X1S)
set_la(16384)
e(f"s_mul_i32 s{sDST}, s{sTILE}, {GT}")
e(f"s_lshl_b32 s{sT1}, s{sJ}, 11")
e(f"s_add_u32 s{sDST}, s{sDST}, s{sT1}")
set_offa(WS_X1)
set_stats_off(WS_X1S)
publish()
barrier("c")
prof(14)
barrier("c")
prof(15)
load_stats()
loada()
consume_stats()
e(f"v_add_f32 v{vT2}, {f32(1e-5)}, v{vT3}")
e(f"v_rsq_f32 v{vSC}, v{vT2}")
e(f"v_rsq_f32 v{vSC+1}, v{vT2}")
e(f"v_mul_f32 v{vMS}, v{vT4}, v{vSC}")
e(f"v_mul_f32 v{vMS+1}, v{vT4}, v{vSC}")
for p in range(3):
    call_pass()
    if p: publish()
    if not OPT.get('dl'): prof(24+2*p)
    if p == 2:
        for jj in range(2): e(f"v_add_u32 v{vW+jj}, s{sPAR}, v{vB32+jj}")
        pre(True, 32768)
    e(f"v_add_u32 v{vCSR}, {256 if p != 1 else -256}, v{vCSR}")
    e(f"s_call_b64 {sr(sRET2,2)}, L_gelu")
    if not OPT.get('dl'): prof(25+2*p)
    store_act(vPK, WS_G + 16384*p)
    prof(16+p)
lq = LQ([f"f{p}" for p in range(6) for h in range(2)])
for q in range(16):
    if q % 2 == 0: lq.need([f"f{q}", f"f{q+1}"])
    for t in (1, 0):
        e(mf_text(vWB+4*(q % 8), vA + 8*(q >> 1) + 4*t, (vACP if t else vACC) + 4*(q & 1), q < 2))
        if q+6 < 16: lq.op(f"f{q+6}", rd_text(vWB+4*((q+6) % 8), 1-t, q+6, True, 32768))
for jj in range(4): e(f"v_add_u32 v{vW+jj}, s{sPAR}, v{vB+jj}")
e(f"s_mov_b32 s{sCNT}, 1")
nop(2)
for i in range(2): e(T_W(i))
publish()
e("s_waitcnt lgkmcnt(0)")
barrier("c")
for i in range(2): e(T_R(i))
for i in range(2): e(T_C(i))
w4slot = lambda it: ((19 + it) & 3) * 16384
pre(False, w4slot(0))
e("s_waitcnt lgkmcnt(12)")
for i in range(4): e(f"v_pk_add_f32 {vr(vE+2*i,2)}, {vr(vACC+2*i,2)}, {vr(vE+2*i,2)}")
e(f"s_call_b64 {sr(sRET2,2)}, L_gelu")
e(f"s_lshl_b32 s{sT1}, s{sJ}, 10")
e(f"s_sub_u32 s{sT0}, s{sDST}, s{sT1}")
e(f"s_add_u32 s{sT0}, s{sT0}, {WS_G + 48*1024}")
e(f"buffer_store_dwordx4 {vr(vPK,4)}, v{vL16}, {sr(sWS,4)}, s{sT0} offen sc1")
unpack(vE, vHP, 8)
unpack(vE+16, vX1P, 8)
for i in range(8): e(f"v_pk_add_f32 {vr(vACC+2*i,2)}, {vr(vE+2*i,2)}, {vr(vE+16+2*i,2)}")
zero(vACP, 16)
set_la(GT)
e(f"s_mul_i32 s{sOFFA}, s{sUNIT}, {2*GT}")
e(f"s_add_u32 s{sOFFA}, s{sOFFA}, {WS_G}")
QUADS = ([vA+4*i for i in range(16)] + [vXR+4*i for i in range(6)] + [vE+16+4*i for i in range(4)] + [vK, vK+4] + [vE+4*i for i in range(4)])[:OPT.get("nq", 24)]
NQ = len(QUADS)
wait_ready(6 if NQ > 16 else 5)
publish()
prof(19)
gpolls = []
def gload(m):
    ks, t = m >> 1, m & 1
    if ks % 8 == 0 and t == 0:
        p = ks // 8
        if p >= (2 if NQ > 16 else 1):
            l = uid("g"); d = l+"_d"
            e(f"s_bitcmp1_b64 {sr(sFLW,2)}, {8*(4+p)+4}")
            e(f"s_cbranch_scc0 {l}")
            lab(d)
            gpolls.append((l, d, 8*(4+p)+4))
        if p: e(f"s_add_u32 s{sOFFA}, s{sOFFA}, 16384")
    e(f"buffer_load_dwordx4 {vr(QUADS[m % NQ],4)}, v{vLA+2*((ks>>2)&1)+t}, {sr(sWS,4)}, s{sOFFA} offen offset:{1024*(ks&3)} sc1")
for m in range(NQ): gload(m)
lq = LQ([f"f{p}" for p in range(6) for h in range(2)])
nissued = NQ
NP = 112
for q in range(NP):
    ks = q >> 2
    vm = None
    if q % 4 == 0: vm = nissued - (2*ks+2)
    if q % 2 == 0: lq.need([f"f{q}", f"f{q+1}"], vm)
    if (q+6) % 16 == 0 and q+6 < NP:
        barrier("c")
    for t in range(2):
        e(mf_text(vWB+4*(q % 8), QUADS[(2*ks+t) % NQ], (vACP if t else vACC)+4*(q & 3)))
        if q+6 < NP: lq.op(f"f{q+6}", rd_text(vWB+4*((q+6) % 8), t, (q+6) & 15, False, w4slot((q+6) >> 4)))
        if (q & 3) in (1, 3) and t == 0 and ks >= 1 and nissued < 56:
            gload(nissued); nissued += 1
nop(8)
for i in range(4): e(T_W(i))
e("s_waitcnt lgkmcnt(0)")
barrier("c")
for i in range(4): e(T_R(i))
e("s_waitcnt lgkmcnt(0)")
for i in range(8): e(f"v_pk_add_f32 {vr(vE+2*i,2)}, {vr(vACC+2*i,2)}, {vr(vE+2*i,2)}")
prof(20)
pack(vPK)
nop(2)
for s in range(2):
    e(f"v_permlane16_swap_b32 v{vPK+4*s}, v{vPK+4*s+2}")
    e(f"v_permlane16_swap_b32 v{vPK+4*s+1}, v{vPK+4*s+3}")
e(f"buffer_store_dwordx4 {vr(vPK,4)}, v{vOUTO}, {sr(sOUT,4)}, 0 offen")
e(f"buffer_store_dwordx4 {vr(vPK+4,4)}, v{vOUTO}, {sr(sOUT,4)}, 0 offen offset:64")
prof(21)
prof_flush()
e("s_endpgm")
for l, d, bit in gpolls:
    lab(l)
    poll_words()
    e(f"s_bitcmp1_b64 {sr(sFLW,2)}, {bit}")
    e(f"s_cbranch_scc1 {d}")
    e(f"s_sub_u32 s{sBUD}, s{sBUD}, 1")
    e(f"s_cbranch_scc0 {l}")
    e(f"s_mov_b32 s{sBUD}, 0")
    e(f"s_branch {d}")

gen_pass64()
align(); lab("L_gelu")
for half in range(2):
    Xr = vE + 8*half; c0 = vACP + 8*half; U = vE+16
    for i in range(4): e(f"v_pk_mul_f32 {vr(Xr+2*i,2)}, {vr(Xr+2*i,2)}, {vr(vSC,2)}")
    for i in range(4): e(f"v_pk_fma_f32 {vr(Xr+2*i,2)}, {vr(c0+2*i,2)}, {vr(vMS,2)}, {vr(Xr+2*i,2)}")
    for i in range(4): e(f"v_pk_mul_f32 {vr(U+2*i,2)}, {vr(Xr+2*i,2)}, {vr(Xr+2*i,2)}")
    for i in range(4): e(f"v_pk_fma_f32 {vr(U+2*i,2)}, {vr(U+2*i,2)}, {vr(vGB,2)}, {vr(vGA,2)}")
    for i in range(4): e(f"v_pk_mul_f32 {vr(U+2*i,2)}, {vr(U+2*i,2)}, {vr(Xr+2*i,2)}")
    for i in range(8): e(f"v_exp_f32 v{U+i}, v{U+i}")
    for i in range(4): e(f"v_pk_add_f32 {vr(U+2*i,2)}, {vr(U+2*i,2)}, {sr(sONE2,2)}")
    for i in range(8): e(f"v_rcp_f32 v{U+i}, v{U+i}")
    for i in range(4): e(f"v_pk_mul_f32 {vr(Xr+2*i,2)}, {vr(Xr+2*i,2)}, {vr(U+2*i,2)}")
    for i in range(4): e(f"v_cvt_pk_bf16_f32 v{vPK+4*half+i}, v{Xr+2*i}, v{Xr+2*i+1}")
    if half == 0:
        e(f"s_cmp_eq_u32 s{sCNT}, 1")
        e("s_cbranch_scc1 L_gelu_h")
lab("L_gelu_h")
e(f"s_setpc_b64 {sr(sRET2,2)}")

vCSW, vTL, vT3P, vTQ, vON, vIN = vXR, vXR+1, vXR+2, vXR+3, vXR+4, vHP
lab("L_helper")
tr_bases()
e(f"s_lshl_b32 s{sT0}, s{sKH}, 6")
e(f"v_xor_b32 v{vB}, s{sT0}, v{vB}")
e(f"v_xor_b32 v{vB+1}, s{sT0}, v{vB+1}")
e(f"s_lshl_b32 s{sT1}, s{sKH}, 5")
e(f"v_xor_b32 v{vB32}, s{sT1}, v{vB32}")
e(f"v_lshlrev_b32 v{vT2}, 4, v{vT0}")
e(f"v_add_u32 v{vCSW}, {CSA}, v{vT2}")
e(f"s_mov_b32 s{sM1}, 0x00010001")
e(f"s_mov_b32 s{sM1+1}, 0x00010001")
for i in range(4): e(f"v_mov_b32 v{vON+i}, s{sONES}")
e(f"v_lshrrev_b32 v{vT2}, 2, v{vLANE}")
e(f"v_and_b32 v{vT3}, 3, v{vLANE}")
e(f"v_lshlrev_b32 v{vT4}, 7, v{vT3}")
e(f"v_lshl_add_u32 v{vTL}, v{vT2}, 10, v{vT4}")
e(f"v_mul_u32_u24 v{vTQ}, 3072, v{vT2}")
e(f"v_add_u32 v{vTQ}, v{vTQ}, v{vT4}")
e(f"v_min_u32 v{vT2}, 13, v{vT1}")
e(f"v_lshlrev_b32 v{vT2}, 7, v{vT2}")
e(f"v_mul_u32_u24 v{vT3P}, 3584, v{vT0}")
e(f"v_add_u32 v{vT3P}, v{vT3P}, v{vT2}")
e(f"s_lshl_b32 s{sT0}, s{sHF}, 9")
e(f"s_lshl_b32 s{sTA}, s{sR32}, 14")
e(f"s_add_u32 s{sTA}, s{sTA}, s{sT0}")
e(f"s_mul_i32 s{sTC}, s{sR32}, {16*3072}")
e(f"s_add_u32 s{sTC}, s{sTC}, s{sT0}")
e(f"s_mul_i32 s{sTB}, s{sR32}, {4*3584}")
e(f"s_mul_i32 s{sT0}, s{sHF}, 1792")
e(f"s_add_u32 s{sTB}, s{sTB}, s{sT0}")
e(f"s_lshl_b32 s{sUNIT}, s{sG}, 1")
e(f"s_add_u32 s{sUNIT}, s{sUNIT}, s{sKH}")
e(f"s_lshl_b32 s{sFLOFF}, s{sUNIT}, 7")
e(f"s_add_u32 s{sFLOFF}, s{sFLOFF}, {WS_FL}")
e(f"s_lshl_b32 s{sT2}, s{sKH}, 1")
e(f"s_sub_u32 s{sT2}, s{sT2}, 1")
e(f"s_lshl_b32 s{sT0}, s{sT2}, 7")
e(f"s_add_u32 s{sT3}, s{sFLOFF}, s{sT0}")
e(f"s_add_u32 s{sT0}, s{sUNIT}, s{sT2}")
e(f"s_cmp_gt_u32 s{sT0}, 63")
e(f"s_cselect_b32 s{sT3}, s{sFLOFF}, s{sT3}")
e(f"v_min_u32 v{vT2}, 2, v{vLANE}")
e(f"s_sub_u32 s{sT0}, s{sG}, 1")
e(f"v_add_u32 v{vT2}, s{sT0}, v{vT2}")
e(f"v_max_i32 v{vT2}, 0, v{vT2}")
e(f"v_min_u32 v{vT2}, 31, v{vT2}")
e(f"v_lshlrev_b32 v{vIN}, 2, v{vT2}")
e(f"v_mov_b32 v{vT6}, 0")
e(f"ds_write_b32 v{vCB}, v{vT6} offset:{C_KV}")
e("s_waitcnt lgkmcnt(0)")
e(f"s_mov_b32 s{sWS}, s{pWSP}")
e(f"s_mov_b32 s{sWS+1}, s{pWSP+1}")
tv = [vA+64]
def touches(lst, after=0, wave=4):
    if not lst: return
    sk = uid("tsk")
    e(f"s_cmp_lg_u32 s{sWAVE}, {wave}")
    e(f"s_cbranch_scc1 {sk}")
    if after:
        wait_ready(after)
        e(f"s_sleep {OPT.get('tsl', 4)}")
    for ptr, size, pat, soff_s, c in lst:
        e(f"s_mov_b32 s{sW}, s{ptr}")
        e(f"s_mov_b32 s{sW+1}, s{ptr+1}")
        e(f"s_mov_b32 s{sW+2}, {size}")
        e(f"s_add_u32 s{sT0}, s{soff_s}, {c}")
        e(f"buffer_load_dword v{tv[0]}, v{pat}, {sr(sW,4)}, s{sT0} offen")
        tv[0] += 1
    lab(sk)
TQ = lambda c: (pWQKV, 512*3072, vTQ, sTC, c)
T1 = lambda p: (p, 512*1024, vTL, sTA, 0)
T3 = lambda i: (pW3, 512*3584, vT3P, sTB, i*32*4*3584)
T4 = lambda i: (pW4, 1792*1024, vTL, sTA, i*32*16384)
barrier("h")
e(f"s_lshl_b32 s{sT0}, s{sJ}, 3")
e(f"s_add_u32 s{sT0}, s{sT0}, s{sWAVE}")
e(f"s_cmp_lg_u32 s{sT0}, 4")
e(f"s_cbranch_scc1 L_nozero")
e(f"v_mov_b32 v{vA}, 0")
e(f"v_mov_b32 v{vA+1}, 0")
e(f"s_lshl_b32 s{sT0}, s{sG}, 8")
e(f"s_lshl_b32 s{sT1}, s{sG}, 10")
e(f"s_add_u32 s{sT1}, s{sT1}, {WS_FL2-WS_FL-256}")
e(f"v_mov_b32 v{vT3}, s{sT0}")
e(f"v_mov_b32 v{vT4}, s{sT1}")
e(f"v_cmp_gt_u32 {sr(sM0,2)}, 2, v{vLANE}")
e(f"s_mov_b32 s{sT0}, {WS_FL}")
nop(1)
e(f"v_cndmask_b32 v{vT3}, v{vT4}, v{vT3}, {sr(sM0,2)}")
e(f"v_lshl_add_u32 v{vT3}, v{vLANE}, 7, v{vT3}")
e("s_mov_b64 exec, 0x3ff")
e(f"buffer_store_dwordx2 {vr(vA,2)}, v{vT3}, {sr(sWS,4)}, s{sT0} offen sc1")
e(f"s_lshl_b32 s{sT0}, s{sG}, 2")
e(f"v_mov_b32 v{vT2}, s{sT0}")
e(f"v_mov_b32 v{vT6}, 1")
e("s_mov_b64 exec, 1")
e("s_waitcnt vmcnt(0)")
e(f"global_store_dword v{vT2}, v{vT6}, {sr(pDBG,2)} sc1")
e("s_mov_b64 exec, -1")
lab("L_nozero")
e(f"s_sleep {OPT.get('t0sl', 6)}")
touches([TQ(2048), TQ(0)], 0, 5)
def cs(base, slot, half=False):
    e(f"s_mov_b32 s{sT0}, {base}")
    e(f"s_call_b64 {sr(sRET,2)}, {'L_csh' if half else 'L_cs'}")
    e(f"s_lshl_b32 s{sT0}, s{sKH}, {6 if half else 7}")
    e(f"v_add_u32 v{vT2}, s{sT0}, v{vCSW}")
    e(f"s_mov_b64 exec, {sr(sM1,2)}")
    for i in range(1 if half else 2): e(f"ds_write_b128 v{vT2}, {vr(vACC+4*i,4)} offset:{256*slot+64*i}")
    e("s_mov_b64 exec, -1")
    e("s_waitcnt lgkmcnt(0)")
def halo_fetch(which):
    sk = uid("hf"); l = sk+"_l"; d = sk+"_d"
    e(f"s_cmp_lg_u32 s{sWAVE}, 5")
    e(f"s_cbranch_scc1 {sk}")
    e(f"s_lshl_b32 s{sT0}, s{sG}, 3")
    e(f"s_add_u32 s{sT0}, s{sT0}, s{sJ}")
    e(f"s_sub_u32 s{sT0}, s{sT0}, 8")
    e(f"s_lshl_b32 s{sHKO}, s{sT0}, 12")
    e(f"s_add_u32 s{sHKO}, s{sHKO}, {WS_HK + (2048 if which else 256)}")
    e(f"s_lshl_b32 s{sT0}, s{sT0}, 7")
    e(f"s_add_u32 s{sT0}, s{sT0}, {WS_FL2}")
    e(f"s_cmp_eq_u32 s{sG}, 0")
    e(f"s_cselect_b32 s{sHKO}, {OOB}, s{sHKO}")
    e(f"s_cbranch_scc1 {d}")
    lab(l)
    e(f"s_mov_b32 s{sM0}, 0")
    e(f"s_atomic_add s{sM0}, {sr(pWSP,2)}, s{sT0} glc")
    e("s_waitcnt lgkmcnt(0)")
    e(f"s_bitcmp1_b32 s{sM0}, {8*which}")
    e(f"s_cbranch_scc0 {spin(l, d)}")
    lab(d)
    e(f"buffer_load_dwordx4 {vr(vA,4)}, v{vL16}, {sr(sWS,4)}, s{sHKO} offen sc1")
    e(f"buffer_load_dwordx4 {vr(vA+4,4)}, v{vL16}, {sr(sWS,4)}, s{sHKO} offen offset:1024 sc1")
    e(f"v_add_u32 v{vT2}, {XB if which else KA}, v{vL16}")
    if not which:
        e(f"v_mov_b32 v{vT4}, {LOOB}")
        e(f"v_cmp_gt_u32 {sr(sM0,2)}, 48, v{vLANE}")
        nop(2)
        e(f"v_cndmask_b32 v{vT3}, v{vT4}, v{vT2}, {sr(sM0,2)}")
    e(f"v_mov_b32 v{vT6}, {1+which}")
    e("s_waitcnt vmcnt(0)")
    e(f"ds_write_b128 v{vT2}, {vr(vA,4)}")
    e(f"ds_write_b128 v{vT2 if which else vT3}, {vr(vA+4,4)} offset:1024")
    e(f"ds_write_b32 v{vCB}, v{vT6} offset:{C_KV}")
    lab(sk)
barrier("h")
SCH = {0: [[T1(pWO), T1(pW1), T1(pW2)], [T3(0), T3(1)], [T3(2)], [T3(3), T4(0)], [T4(1), T4(2)], [T4(3)]],
       1: [[T1(pWO), T1(pW1)], [T1(pW2)], [], [T3(0), T3(1), T3(2)], [T3(3), T4(0), T4(1)], [T4(2), T4(3)]],
       2: [[], [], [], [], [], []]}[OPT.get("sch", 0)]
e(f"s_sleep {OPT.get('tsl', 8)}")
touches(SCH[0])
e(f"s_cmp_eq_u32 s{sWAVE}, 4")
e("s_cbranch_scc1 L_in_d")
e(f"s_sleep {OPT.get('insl', 20)}")
e(f"global_load_dword v{vIN+1}, v{vIN}, {sr(pDBG,2)}")
e("s_branch L_in_chk")
lab("L_in_loop")
e("s_sleep 8")
e(f"global_load_dword v{vIN+1}, v{vIN}, {sr(pDBG,2)} sc1")
lab("L_in_chk")
e("s_waitcnt vmcnt(0)")
e(f"v_cmp_eq_u32 {sr(sM0,2)}, 1, v{vIN+1}")
e(f"s_cmp_eq_u64 {sr(sM0,2)}, -1")
e(f"s_cbranch_scc0 {spin('L_in_loop', 'L_in_d')}")
lab("L_in_d")
prof(1)
barrier("h")
e(f"s_sleep {OPT.get('tsl', 8)}")
touches(SCH[1])
barrier("h")
barrier("h")
touches(SCH[2])
halo_fetch(0)
prof(2)
barrier("h")
e("s_sleep 4")
halo_fetch(1)
prof(3)
barrier("h")
TSL = OPT.get("tsl2", 10)
wait_ready(1)
barrier("h")
e(f"s_sleep {TSL}")
touches(SCH[3])
barrier("h")
cs(0, 0)
barrier("h")
wait_ready(2)
barrier("h")
e(f"s_sleep {TSL}")
touches(SCH[4])
barrier("h")
barrier("h")
wait_ready(3, True)
barrier("h")
e(f"s_sleep {TSL}")
touches(SCH[5])
barrier("h")
cs(0, 1)
barrier("h")
wait_ready(4)
barrier("h")
barrier("h")
cs(32768, 2)
barrier("h")
cs(0, 1)
barrier("h")
cs(32768, 2, True)
prof_flush()
e("s_endpgm")
for half in (False, True):
    lab("L_csh" if half else "L_cs")
    blocks = [(par, it) for par in range(2) for it in range(1 if half else 2)]
    for bi, (par, it) in enumerate(blocks):
        if it == 0:
            e(f"v_add_u32 v{vW}, s{sT0}, v{vB32 if half else vB}")
            if not half: e(f"v_add_u32 v{vW+1}, s{sT0}, v{vB+1}")
            e(f"s_add_u32 s{sT0}, s{sT0}, 65536")
        for i in range(8):
            for h in range(2):
                off = (i*2048 + 1024*h) if half else (it*16384 + (i >> 1)*4096 + 2048*h)
                e(f"ds_read_b64_tr_b16 {vr(vA+4*i+2*h,2)}, v{vW if half else vW+(i&1)} offset:{off}")
        for i in range(8):
            e(f"s_waitcnt lgkmcnt({14-2*i})")
            e(mf_text(vA+4*i, vON, vACC if (half or i % 2 == 0) else vACC+4, bi == 0 and i < (1 if half else 2)))
    nop(4)
    e(f"s_setpc_b64 {sr(sRET,2)}")

vPat, vP3072, vP1024, vP3584, vPH = 12, 13, 14, 15, 16
lab("L_loader")
if OPT.get("lp"): e(f"s_setprio {OPT['lp']}")
e(f"v_lshrrev_b32 v{vT2}, 3, v{vLANE}")
e(f"v_bfe_u32 v{vT3}, v{vT2}, 1, 2")
e(f"v_lshlrev_b32 v{vT3}, 1, v{vT3}")
e(f"v_and_b32 v{vT4}, 7, v{vLANE}")
e(f"v_xor_b32 v{vT3}, v{vT3}, v{vT4}")
e(f"v_lshlrev_b32 v{vT3}, 4, v{vT3}")
e(f"v_mul_u32_u24 v{vP3072}, 3072, v{vT2}")
e(f"v_add_u32 v{vP3072}, v{vP3072}, v{vT3}")
e(f"v_lshl_add_u32 v{vP1024}, v{vT2}, 10, v{vT3}")
e(f"v_mul_u32_u24 v{vP3584}, 3584, v{vT2}")
e(f"v_add_u32 v{vP3584}, v{vP3584}, v{vT3}")
e(f"v_lshrrev_b32 v{vT2}, 2, v{vLANE}")
e(f"v_bfe_u32 v{vT3}, v{vT2}, 2, 1")
e(f"v_lshlrev_b32 v{vT3}, 1, v{vT3}")
e(f"v_and_b32 v{vT4}, 3, v{vLANE}")
e(f"v_xor_b32 v{vT3}, v{vT3}, v{vT4}")
e(f"v_mul_u32_u24 v{vPH}, 3584, v{vT2}")
e(f"v_lshl_add_u32 v{vPH}, v{vT3}, 4, v{vPH}")
e(f"s_lshl_b32 s{sT2}, s{sJ}, 7")
e(f"s_mul_i32 s{sC3}, s{sJ}, 448")
e(f"s_and_b32 s{sT0}, s{sJ}, 1")
e(f"s_lshl_b32 s{sT1}, s{sT0}, 6")
e(f"s_xor_b32 s{sT0}, s{sT0}, 1")
e(f"s_mul_i32 s{sT0}, s{sT0}, 384")
e(f"s_add_u32 s{sCQ}, s{sC3}, s{sT0}")
e(f"s_add_u32 s{sC3}, s{sC3}, s{sT1}")
e("s_waitcnt lgkmcnt(0)")
e(f"s_mov_b32 s{sWS}, s{pWSP}")
e(f"s_mov_b32 s{sWS+1}, s{pWSP+1}")
cur = {}
issued = []
def setif(key, val, emit):
    if cur.get(key) != val:
        emit(); cur[key] = val
def issue(li):
    P, s_ = li // 2, li % 2
    if li < 18:
        if P <= 2: ptr, size, pat, rs, col, cc = pWQKV, 512*3072, vP3072, 3072, sT2, (1024, 2048, 0)[P]
        elif P <= 5: ptr, size, pat, rs, col, cc = (pWO, pW1, pW2)[P-3], 512*1024, vP1024, 1024, sT2, 0
        else: ptr, size, pat, rs, col, cc = pW3, 512*3584, vP3584, 3584, sC3, 128*(P-6)
        step, mid, kstr, c0 = 8*rs, 0, 128*rs, cc + 256*rs*s_
    elif li == 18:
        ptr, size, pat, col = pW3, 512*3584, vPH, sCQ
        step, mid, kstr, c0 = 16*3584, 128*3584, 128*3584, 0
    else:
        c = li - 19
        ptr, size, pat, col = pW4, 1792*1024, vP1024, sT2
        if c < 6: step, mid, kstr, c0 = 8192, 192*1024, 448*1024, (64*(c//2) + 896*(c%2))*1024
        else: step, mid, kstr, c0 = 8192, 384*1024, 896*1024, 192*1024
    def esrc():
        e(f"s_mov_b32 s{sW}, s{ptr}"); e(f"s_mov_b32 s{sW+1}, s{ptr+1}"); e(f"s_mov_b32 s{sW+2}, {size}")
    setif("ptr", ptr, esrc)
    setif("pat", pat, lambda: e(f"v_mov_b32 v{vPat}, v{pat}"))
    setif("step", step, lambda: e(f"s_mov_b32 s{sSTEP}, {step}"))
    setif("mid", mid, lambda: e(f"s_mov_b32 s{sMID}, {mid}"))
    setif("kstr", kstr, lambda: e(f"s_mul_i32 s{sT1}, s{sKH}, {kstr}"))
    e(f"s_add_u32 m0, s{sPAR}, {(li & 3)*16384}")
    e(f"s_add_u32 s{sSO}, s{col}, s{sT1}")
    if c0: e(f"s_add_u32 s{sSO}, s{sSO}, {c0}")
    e(f"s_call_b64 {sr(sRET,2)}, L_iss")
    issued.append(li)
def land(li):
    idx = issued.index(li)
    e(f"s_waitcnt vmcnt({16*(len(issued)-1-idx)})")
barrier("l")
issue(0); issue(1)
sched = [(1, [2, 3]),
         (3, [4, 5]),
         (5, []),
         (None, [6, 7]),
         (7, []),
         (None, [8, 9]),
         (None, []),
         (9, []),
         (None, [10, 11]),
         (None, []),
         (11, []),
         (None, [12, 13]),
         (None, []),
         (13, []),
         (None, [14, 15]),
         (None, []),
         (15, [16, 17]),
         (17, [18, 19]),
         (18, [20, 21]),
         (19, [22]),
         (20, []), (21, [23]), (22, [24]), (23, [25]), (24, []), (25, [])]
for k, (nd, aft) in enumerate(sched):
    if nd is not None: land(nd)
    prof(k+1)
    barrier("l")
    for li in aft: issue(li)
prof_flush()
e("s_endpgm")
lab("L_iss")
for i in range(16):
    e(f"buffer_load_dwordx4 v{vPat}, {sr(sW,4)}, s{sSO} offen lds")
    if i < 15:
        e("s_add_u32 m0, m0, 1024")
        e(f"s_add_u32 s{sSO}, s{sSO}, s{sSTEP}")
    if i == 7: e(f"s_add_u32 s{sSO}, s{sSO}, s{sMID}")
e(f"s_setpc_b64 {sr(sRET,2)}")
emit_tails()
lab("L_end")
e("s_endpgm")
assert nbar["c"] == nbar["l"] + 1, nbar

out.append('.section .rodata,"a"')
out.append(".p2align 6")
out.append(f".amdhsa_kernel {NAME}_kernel")
out.append(f"  .amdhsa_next_free_vgpr {NVGPR}")
out.append("  .amdhsa_next_free_sgpr 100")
out.append(f"  .amdhsa_accum_offset {NVGPR}")
out.append("  .amdhsa_group_segment_fixed_size 0")
out.append("  .amdhsa_kernarg_size 88")
out.append("  .amdhsa_user_sgpr_count 2")
out.append("  .amdhsa_user_sgpr_kernarg_segment_ptr 1")
out.append("  .amdhsa_system_sgpr_workgroup_id_x 1")
out.append(".end_amdhsa_kernel")
dst = [a for a in sys.argv[1:] if not a.startswith("--")]
open(dst[0] if dst else "cdna_kernels/%s.s" % NAME, "w").write("\n".join(o for o in out if o is not None) + "\n")
```

```python
import sys, math, struct

NAME = "sequential_preLN__sliding_local_dilated__mixer_s_mlp__prompt"
PROF = "--prof" in sys.argv
OPT = {}
for a in sys.argv:
    if a.startswith("--") and "=" in a:
        k, v = a[2:].split("="); OPT[k] = int(v)

out = []
def e(s): out.append("    " + s)
def lab(s): out.append(s + ":")
def cmt(s): out.append("    ; " + s)
def align(): out.append(".p2align 3")
def nop(n):
    while n > 0:
        k = min(n, 16); e(f"s_nop {k-1}"); n -= k
def f32(x): return "0x%08x" % struct.unpack("<I", struct.pack("<f", x))[0]
def vr(a, n): return f"v[{a}:{a+n-1}]"
def sr(a, n): return f"s[{a}:{a+n-1}]"
_uid = [0]
def uid(p):
    _uid[0] += 1
    return f"L_{p}_{_uid[0]}"

WS_O, WS_H, WS_H1, WS_X1, WS_G = 0, 2<<20, 4<<20, 6<<20, 8<<20
WS_HS = 15<<20
WS_X1S = WS_HS + (128<<10)
WS_FL = WS_HS + (256<<10)
WS_FL2 = WS_FL + (8<<10)
WS_HK = 16<<20
WS_PROF = 17<<20
WS_SIZE = 18<<20
GT = 56*1024
OOB = 0x40000000
LOOB = 0x30000
XB = 131072
KA = XB + 16384
KSZ = 1792
VA = KA + 4*KSZ
CSA = VA + 4*2048
CB = CSA + 768
C_KV, C_CSF, C_XF = 0, 8, 16
LDS_BYTES = 163840
assert CB + 64 <= LDS_BYTES and VA % 256 == 0

sWAVE = 3
sX, sWS, sOUT = 4, 8, 12
sW = 12
pX, pWQKV, pWO, pBX, pW1, pW2, pW3, pW4, pOUT, pDBG, pWSP = 16, 18, 20, 22, 24, 26, 28, 30, 32, 34, 36
sJ, sG, sUNIT, sTILE, sBUD, sCNT = 38, 39, 40, 41, 42, 43
sT0, sT1, sT2, sT3 = 44, 45, 46, 47
sRET, sRET2 = 48, 50
sONES, sCEXP, sPUBO, sPUBV = 52, 53, 54, 55
sFLW = 56
sODD = 58
sOFFA, sPAR, sDST, sFLOFF, sR32, sHF, sHKO, sKH = 60, 61, 62, 63, 64, 65, 66, 67
sM0, sM1 = 68, 70
sFB, sFG = 72, 74
sTAIL, sXSEQ, sMK0, sNBO, sCSN = 89, 90, 91, 92, 93
sONE2 = 76
sPT, sPIDX = 78, 80
sSO, sSTEP, sC3, sCQ, sTA, sTB, sTC, sMID = 81, 82, 83, 84, 85, 86, 87, 88
vLANE = 0
vT0, vT1, vT2, vT3, vT4, vP, vCB, vT6, vT7 = 1, 2, 3, 4, 5, 6, 7, 8, 9
vL16, vFLO = 10, 11
vB, vW, vB32 = 12, 16, 20
vSC, vR1 = 22, 24
vSTO, vOUTO, vXA, vXP = 26, 27, 28, 29
vGA = 30
vLA = 32
vXR, vHP, vX1P = 36, 44, 52
vST = 60
vA, vWB = 64, 128
vACC, vACP = 160, 176
vE = 192
vPK, vK = 224, 232
vMS, vGB, vNMH = 240, 242, 244
vCSR = 246
vW1, vXFP, vBIT, vCF = 248, 249, 250, 252
vP2 = 247
NVGPR = 256

def prof(idx):
    if not PROF: return
    e(f"s_memrealtime {sr(sPT,2)}")
    e("s_memtime s[98:99]")
    e("s_waitcnt lgkmcnt(0)")
    e(f"v_writelane_b32 v{vP}, s{sPT}, {idx}")
    e(f"v_writelane_b32 v{vP}, s98, {idx+32}")
def prof_flush():
    if not PROF: return
    e(f"v_lshlrev_b32 v{vT0}, 2, v{vLANE}")
    if OPT.get("dp") is not None: e(f"v_mov_b32 v{vP}, v{vP2}")
    e(f"buffer_store_dword v{vP}, v{vT0}, {sr(sWS,4)}, s{sPIDX} offen")
tails = []
def spin(loop, done):
    tails.append((loop+"_s", loop, done))
    return loop+"_s"
def emit_tails():
    for s_, l, d in tails:
        lab(s_)
        e(f"s_sub_u32 s{sBUD}, s{sBUD}, 1")
        e(f"s_cbranch_scc0 {l}")
        e(f"s_mov_b32 s{sBUD}, 0")
        e(f"s_branch {d}")
    tails.clear()
def red2x2(a, b, t, a2, b2, t2):
    e(f"v_permlane16_swap_b32 v{a}, v{b}")
    e(f"v_permlane16_swap_b32 v{a2}, v{b2}")
    e(f"v_add_f32 v{a}, v{a}, v{b}")
    e(f"v_add_f32 v{a2}, v{a2}, v{b2}")
    e(f"v_mov_b32 v{t}, v{a}")
    e(f"v_mov_b32 v{t2}, v{a2}")
    nop(1)
    e(f"v_permlane32_swap_b32 v{a}, v{t}")
    e(f"v_permlane32_swap_b32 v{a2}, v{t2}")
    e(f"v_add_f32 v{a}, v{a}, v{t}")
    e(f"v_add_f32 v{a2}, v{a2}, v{t2}")
    e(f"v_mov_b32 v{t}, v{a}")
    e(f"v_mov_b32 v{t2}, v{a2}")
    nop(1)
    e(f"v_permlane16_swap_b32 v{a}, v{t}")
    e(f"v_permlane16_swap_b32 v{a2}, v{t2}")
def red2(a, b, t):
    e(f"v_permlane16_swap_b32 v{a}, v{b}")
    e(f"v_add_f32 v{a}, v{a}, v{b}")
    e(f"v_mov_b32 v{t}, v{a}")
    nop(2)
    e(f"v_permlane32_swap_b32 v{a}, v{t}")
    e(f"v_add_f32 v{a}, v{a}, v{t}")
    e(f"v_mov_b32 v{t}, v{a}")
    nop(2)
    e(f"v_permlane16_swap_b32 v{a}, v{t}")
def mean_var(vs, vq):
    e(f"v_mul_f32 v{vs}, {f32(-1.0/512)}, v{vs}")
    e(f"v_mul_f32 v{vq}, {f32(1.0/512)}, v{vq}")
    e(f"v_fma_f32 v{vq}, -v{vs}, v{vs}, v{vq}")
    e(f"v_max_f32 v{vq}, 0, v{vq}")
def zero(base, n):
    for i in range(n): e(f"v_mov_b32 v{base+i}, 0")
class LQ:
    def __init__(self, pend=()): self.q = list(pend)
    def op(self, id_, text): e(text); self.q.append(id_)
    def need(self, ids, vm=None):
        idx = max([i for i, x in enumerate(self.q) if x in ids], default=-1)
        parts = []
        if vm is not None: parts.append(f"vmcnt({vm})")
        if idx >= 0:
            parts.append(f"lgkmcnt({min(len(self.q)-1-idx, 15)})")
            self.q = self.q[idx+1:]
        if parts: e("s_waitcnt " + " ".join(parts))
def rd_text(buf, h, p, half_panel=False, base=0):
    if half_panel: off = ((p >> 1) & 7)*2048 + 1024*h; jj = p & 1
    else: off = (p >> 2)*4096 + 2048*h; jj = p & 3
    return f"ds_read_b64_tr_b16 {vr(buf+2*h,2)}, v{vW+jj} offset:{base+off}"
def mf_text(buf, areg, c, czero=False):
    return f"v_mfma_f32_16x16x32_bf16 {vr(c,4)}, {vr(buf,4)}, {vr(areg,4)}, {'0' if czero else vr(c,4)}"
def wtog(jj): e(f"v_xor_b32 v{vW+jj}, 0x8000, v{vW+jj}")
T_W = lambda i: f"ds_write_b128 v{vXA}, {vr(vACP+4*i,4)} offset:{1024*i}"
T_R = lambda i: f"ds_read_b128 {vr(vE+4*i,4)}, v{vXP} offset:{1024*i}"
T_C = lambda i: f"ds_read_b128 {vr(vACP+4*i,4)}, v{vCSR} offset:{64*i}"
def pre(half_panel=False, base=0):
    for p in range(6):
        for h in range(2): e(rd_text(vWB+4*p, h, p, half_panel, base))
nbar = {"c": 0, "h": 0, "l": 0}
def barrier(role, n=1, emit=True):
    if role == "h" and nbar[role] and nbar[role] < 32: prof(nbar[role])
    nbar[role] += n
    if emit: e("s_barrier")

DS = [14, 82, 86, 88, 94, 96, 98, 100]
def dst_(i):
    if OPT.get("dp") is not None: e(f"s_memtime {sr(DS[i],2)}")
ncall = [0]
def gen_pass64():
    buf = lambda q: (vE + 4*(q-16)) if 16 <= q < 24 else (vWB + 4*(q % 8))
    areg = lambda q, t: vA + 8*(q >> 2) + 4*t
    acc = lambda q, t: (vACP if t else vACC) + 4*(q & 3)
    lq = LQ([f"f{p}" for p in range(6) for h in range(2)])
    def RD(q, h, nxt=False):
        lq.op(("n" if nxt else "f")+str(q), rd_text(vWB+4*q if nxt else buf(q), h, q))
    pend = [(q, h) for q in range(4+6, 32) for h in range(2)]
    def dual(q, czero=False):
        for t in range(2):
            e(mf_text(buf(q), areg(q, t), acc(q, t), czero))
            if q < 4: RD(q+6, t)
            else:
                RD(*pend.pop(0))
                if q >= 10 and t == 0: RD(*pend.pop(0))
    def waitq(q, vm=None): lq.need([f"f{q}", f"f{q+1}"], vm)
    align(); lab("L_pass64b")
    save = list(lq.q)
    for q in range(4):
        if q % 2 == 0: waitq(q, 14 if q == 0 else None)
        dual(q)
    e("s_branch L_pass64_c")
    lq.q = save
    align(); lab("L_pass64")
    for q in range(4):
        if q % 2 == 0: waitq(q, 14 if q == 0 else None)
        dual(q, True)
    lab("L_pass64_c")
    dst_(1)
    for q in range(4, 16):
        if q % 2 == 0: waitq(q, 14-2*(q >> 2) if q % 4 == 0 else None)
        dual(q)
    dst_(2)
    todo = [lambda j=j: wtog(j) for j in range(4)]
    for q in range(16, 32):
        if q % 2 == 0: waitq(q, 14-2*(q >> 2) if q % 4 == 0 else None)
        e(mf_text(buf(q), areg(q, 1), acc(q, 1)))
        k = 0
        while pend and k < 2: RD(*pend.pop(0)); k += 1
        if q == OPT.get("ph", 30):
            e("s_cbranch_vccnz L_pubhook"); lab("L_pubret"); k += 1
        while not pend and todo and k < 1: todo.pop(0)(); k += 1
    assert not pend and not todo
    O = lambda q: e(mf_text(buf(q), areg(q, 0), acc(q, 0)))
    W = lambda i: lq.op(f"W{i}", T_W(i))
    dst_(3)
    e(f"s_bitcmp1_b32 s{sTAIL}, 0")
    e("s_cbranch_scc1 L_pass64_f")
    save = list(lq.q)
    O(16); O(17); O(18); O(19); W(0); O(20); O(21); W(1); O(22); O(23); W(2); O(24); O(25); W(3); O(26); O(27)
    dst_(4)
    lq.need(["W3"])
    dst_(5)
    e("s_barrier")
    dst_(6)
    O(28)
    for i in range(2): lq.op(f"R{i}", T_R(i))
    O(29)
    for i in range(2, 4): lq.op(f"R{i}", T_R(i))
    O(30); RD(0, 0, True); RD(0, 1, True)
    O(31); RD(1, 0, True); RD(1, 1, True)
    for i in range(4): lq.op(f"C{i}", T_C(i))
    for q in range(2, 6): RD(q, 0, True); RD(q, 1, True)
    lq.need(["R3"])
    for i in range(8): e(f"v_pk_add_f32 {vr(vE+2*i,2)}, {vr(vACC+2*i,2)}, {vr(vE+2*i,2)}")
    lq.need(["C3"])
    dst_(7)
    e(f"s_setpc_b64 {sr(sRET,2)}")
    lq.q = save
    align(); lab("L_pass64_f")
    O(16); e(f"s_add_u32 s{sXSEQ}, s{sXSEQ}, 1"); O(17); e(f"v_mov_b32 v{vT7}, s{sXSEQ}"); O(18); W(0); O(19); O(20); W(1); O(21); O(22); W(2); O(23); O(24); W(3)
    lq.op("X", f"ds_write_b32 v{vW1}, v{vT7} offset:{C_XF}")
    O(25); lq.op("CF", f"ds_read_b64 {vr(vCF,2)}, v{vCB} offset:{C_CSF}")
    O(26); lq.op("C0", T_C(0)); lq.op("C1", T_C(1)); O(27); lq.op("C2", T_C(2)); lq.op("C3", T_C(3))
    O(28); O(29)
    lq.op("F", f"ds_read_b32 v{vT6}, v{vXFP} offset:{C_XF}"); lq.op("R0", T_R(0))
    O(30); lq.op("R1", T_R(1)); lq.op("R2", T_R(2)); O(31); lq.op("R3", T_R(3))
    nop(2)
    lab("L_xf_w")
    e("s_waitcnt lgkmcnt(0)")
    e(f"v_readfirstlane_b32 s{sT0}, v{vT6}")
    for i in range(8): e(f"v_pk_add_f32 {vr(vE+2*i,2)}, {vr(vACC+2*i,2)}, {vr(vE+2*i,2)}")
    e(f"s_cmp_ge_u32 s{sT0}, s{sXSEQ}")
    e("s_cbranch_scc0 L_xf_r")
    lab("L_xf_d")
    e(f"s_setpc_b64 {sr(sRET,2)}")
    lab("L_xf_r")
    e(f"ds_read_b32 v{vT6}, v{vXFP} offset:{C_XF}")
    for i in range(4): e(T_R(i))
    e(f"s_sub_u32 s{sBUD}, s{sBUD}, 1")
    e("s_cbranch_scc0 L_xf_w")
    e(f"s_mov_b32 s{sBUD}, 0")
    e("s_branch L_xf_d")
    lab("L_pubhook")
    e(f"v_mov_b32 v{vT6}, s{sPUBV}")
    e("s_waitcnt vmcnt(0)")
    e(f"buffer_atomic_add v{vT6}, v{vFLO}, {sr(sWS,4)}, s{sPUBO} offen sc1")
    e("s_mov_b64 vcc, 0")
    e("s_branch L_pubret")
def call_pass(name="L_pass64", bar=True):
    dst_(0)
    e(f"s_call_b64 {sr(sRET,2)}, {name}")
    if OPT.get("dp") == ncall[0]:
        e("s_waitcnt lgkmcnt(0)")
        for i in range(8): e(f"v_writelane_b32 v{vP2}, s{DS[i]}, {i}")
    ncall[0] += 1
    if bar: barrier("c", 1, False)
def scalepack(dst):
    for i in range(8): e(f"v_pk_mul_f32 {vr(vE+2*i,2)}, {vr(vE+2*i,2)}, {vr(vSC,2)}")
    for i in range(8): e(f"v_cvt_pk_bf16_f32 v{dst+i}, v{vE+2*i}, v{vE+2*i+1}")

hdr = open("cdna_kernels/%s.s.ref" % NAME).read().split("\n")
for l in hdr:
    if l.startswith("; Override"): break
    out.append(l)
out.append(f"; @launch grid=(256,1,1) block=(512,1,1) lds={LDS_BYTES}")
out.append('.amdgcn_target "amdgcn-amd-amdhsa--gfx950"')
out.append(".text")
out.append(f".globl {NAME}_kernel")
out.append(".p2align 8")
out.append(f".type {NAME}_kernel,@function")
lab(f"{NAME}_kernel")
if PROF: e("s_memrealtime s[96:97]")
e("s_cmp_ge_u32 s2, 256")
e("s_cbranch_scc1 L_end")
e(f"s_load_dwordx16 {sr(16,16)}, s[0:1], 0")
e(f"s_load_dwordx4 {sr(32,4)}, s[0:1], 64")
e(f"s_load_dwordx2 {sr(36,2)}, s[0:1], 80")
e(f"v_lshrrev_b32 v1, 6, v0")
e(f"v_and_b32 v{vLANE}, 63, v0")
e(f"v_readfirstlane_b32 s{sWAVE}, v1")
e(f"s_and_b32 s{sHF}, s2, 1")
e(f"s_lshr_b32 s{sR32}, s2, 3")
e(f"s_and_b32 s{sJ}, s{sR32}, 3")
e(f"s_lshl_b32 s{sT0}, s{sHF}, 2")
e(f"s_add_u32 s{sJ}, s{sJ}, s{sT0}")
e(f"s_and_b32 s{sG}, s2, 6")
e(f"s_lshl_b32 s{sG}, s{sG}, 2")
e(f"s_lshr_b32 s{sT1}, s{sR32}, 2")
e(f"s_add_u32 s{sG}, s{sG}, s{sT1}")
e(f"s_mov_b32 s{sBUD}, 0x80000")
e(f"s_and_b32 s{sKH}, s{sWAVE}, 1")
e(f"s_lshl_b32 s{sPAR}, s{sKH}, 16")
e(f"v_mov_b32 v{vCB}, {CB}")
e(f"v_lshlrev_b32 v{vL16}, 4, v{vLANE}")
e(f"v_lshrrev_b32 v{vT0}, 4, v{vLANE}")
e(f"v_and_b32 v{vT1}, 15, v{vLANE}")
e(f"s_mov_b32 s{sWS+2}, {WS_SIZE}")
e(f"s_mov_b32 s{sWS+3}, 0x00020000")
e(f"s_mov_b32 s{sX+3}, 0x00020000")
e(f"s_mov_b32 s{sOUT+3}, 0x00020000")
e(f"s_mov_b32 s{sONES}, 0x3f803f80")
if PROF:
    e(f"s_lshl_b32 s{sPIDX}, s2, 3")
    e(f"s_add_u32 s{sPIDX}, s{sPIDX}, s{sWAVE}")
    e(f"s_lshl_b32 s{sPIDX}, s{sPIDX}, 8")
    e(f"s_add_u32 s{sPIDX}, s{sPIDX}, {WS_PROF}")
    e(f"v_mov_b32 v{vP}, 0")
    e("s_waitcnt lgkmcnt(0)")
    e(f"v_writelane_b32 v{vP}, s96, 63")
e(f"s_cmp_ge_u32 s{sWAVE}, 4")
e("s_cbranch_scc1 L_service")

def tr_bases():
    e(f"v_lshrrev_b32 v{vT3}, 2, v{vLANE}")
    e(f"v_bfe_u32 v{vT4}, v{vT3}, 1, 2")
    e(f"v_lshlrev_b32 v{vT4}, 5, v{vT4}")
    e(f"v_and_b32 v{vT2}, 3, v{vLANE}")
    e(f"v_lshl_add_u32 v{vT4}, v{vT2}, 3, v{vT4}")
    e(f"v_lshl_add_u32 v{vB}, v{vT3}, 7, v{vT4}")
    for jj in range(1, 4): e(f"v_xor_b32 v{vB+jj}, {jj<<5}, v{vB}")
    e(f"v_and_b32 v{vT4}, 1, v{vT0}")
    e(f"v_lshlrev_b32 v{vT4}, 5, v{vT4}")
    e(f"v_lshl_add_u32 v{vT4}, v{vT2}, 3, v{vT4}")
    e(f"v_lshl_add_u32 v{vB32}, v{vT3}, 6, v{vT4}")
    e(f"v_xor_b32 v{vB32+1}, 32, v{vB32}")
e(f"s_lshl_b32 s{sTILE}, s{sG}, 2")
e(f"s_add_u32 s{sTILE}, s{sTILE}, s{sWAVE}")
e(f"s_lshr_b32 s{sUNIT}, s{sTILE}, 1")
e(f"s_mov_b32 s{sX+2}, {2<<20}")
e(f"s_lshl_b32 s{sT2}, s{sUNIT}, 15")
e(f"s_lshl_b32 s{sT0}, s{sKH}, 8")
e(f"s_add_u32 s{sT2}, s{sT2}, s{sT0}")
e(f"s_lshr_b32 s{sT3}, s{sWAVE}, 1")
e(f"s_lshl_b32 s{sT3}, s{sT3}, 14")
e(f"s_add_u32 s{sT3}, s{sT3}, s{sPAR}")
e(f"s_add_u32 s{sT3}, s{sT3}, 32768")
e(f"s_mov_b32 m0, s{sT3}")
e(f"v_lshrrev_b32 v{vT2}, 5, v{vLANE}")
e(f"v_xor_b32 v{vT3}, v{vT1}, v{vT2}")
e(f"v_lshlrev_b32 v{vT3}, 4, v{vT3}")
e(f"v_lshl_add_u32 v{vT3}, v{vT2}, 10, v{vT3}")
e(f"v_and_b32 v{vT4}, 1, v{vT0}")
e(f"v_lshl_add_u32 v{vWB}, v{vT4}, 9, v{vT3}")
for i in range(1, 8): e(f"v_xor_b32 v{vWB+i}, {i<<5}, v{vWB}")
e("s_waitcnt lgkmcnt(0)")
e(f"s_mov_b32 s{sX}, s{pX}")
e(f"s_mov_b32 s{sX+1}, s{pX+1}")
for i in range(16):
    e(f"buffer_load_dwordx4 v{vWB+(i&7)}, {sr(sX,4)}, s{sT2} offen lds")
    if i < 15:
        e("s_add_u32 m0, m0, 1024")
        e(f"s_add_u32 s{sT2}, s{sT2}, 2048")
barrier("c")
prof(0)
e(f"s_mov_b32 s{sWS}, s{pWSP}")
e(f"s_mov_b32 s{sWS+1}, s{pWSP+1}")
e(f"s_mov_b32 s{sOUT}, s{pOUT}")
e(f"s_mov_b32 s{sOUT+1}, s{pOUT+1}")
e(f"s_mov_b32 s{sOUT+2}, {2<<20}")
e(f"s_mov_b32 s{sCEXP}, {f32(0.25*math.log2(math.e))}")
e(f"s_mov_b32 s{sODD}, 0xaaaaaaaa")
e(f"s_mov_b32 s{sODD+1}, 0xaaaaaaaa")
e(f"s_mov_b32 s{sONE2}, 1.0")
e(f"s_mov_b32 s{sONE2+1}, 1.0")
e("s_mov_b64 vcc, 0")
tr_bases()
for jj in range(4): e(f"v_add_u32 v{vW+jj}, s{sPAR}, v{vB+jj}")
e(f"v_lshlrev_b32 v{vCSR}, 4, v{vT0}")
e(f"v_add_u32 v{vCSR}, {CSA}, v{vCSR}")
e(f"s_lshl_b32 s{sT2}, s{sWAVE}, 12")
e(f"s_add_u32 s{sT2}, s{sT2}, {XB}")
e(f"v_add_u32 v{vXA}, s{sT2}, v{vL16}")
e(f"v_xor_b32 v{vXP}, 0x1000, v{vXA}")
e(f"v_cmp_eq_u32 {sr(sM0,2)}, 0, v{vLANE}")
e(f"v_cmp_gt_u32 {sr(sM1,2)}, 16, v{vLANE}")
e(f"v_mov_b32 v{vT2}, {OOB}")
e(f"s_lshl_b32 s{sFLOFF}, s{sUNIT}, 7")
e(f"s_add_u32 s{sFLOFF}, s{sFLOFF}, {WS_FL}")
e(f"v_cndmask_b32 v{vFLO}, v{vT2}, 0, {sr(sM0,2)}")
e(f"s_lshl_b32 s{sT0}, s{sTILE}, 10")
e(f"s_lshr_b32 s{sT1}, s{sJ}, 1")
e(f"s_lshl_b32 s{sT1}, s{sT1}, 8")
e(f"s_add_u32 s{sT0}, s{sT0}, s{sT1}")
e(f"s_and_b32 s{sT1}, s{sJ}, 1")
e(f"s_lshl_b32 s{sT1}, s{sT1}, 3")
e(f"s_add_u32 s{sT0}, s{sT0}, s{sT1}")
e(f"v_add_u32 v{vT3}, s{sT0}, v{vL16}")
e(f"v_cndmask_b32 v{vSTO}, v{vT2}, v{vT3}, {sr(sM1,2)}")
e(f"s_lshl_b32 s{sT0}, s{sG}, 3")
e(f"s_add_u32 s{sT0}, s{sT0}, s{sJ}")
e(f"s_lshl_b32 s{sPUBO}, s{sT0}, 7")
e(f"s_add_u32 s{sPUBO}, s{sPUBO}, {WS_FL2}")
e(f"s_lshl_b32 s{sHKO}, s{sT0}, 12")
e(f"s_add_u32 s{sHKO}, s{sHKO}, {WS_HK}")
e(f"s_lshl_b32 s{sDST}, s{sTILE}, 14")
e(f"s_lshl_b32 s{sT1}, s{sJ}, 11")
e(f"s_add_u32 s{sDST}, s{sDST}, s{sT1}")
e(f"s_lshl_b32 s{sT1}, s{sJ}, 7")
e(f"s_lshl_b32 s{sCQ}, s{sTILE}, 14")
e(f"s_add_u32 s{sCQ}, s{sCQ}, s{sT1}")
e(f"v_and_b32 v{vT3}, 1, v{vT0}")
e(f"v_lshlrev_b32 v{vT3}, 5, v{vT3}")
e(f"v_lshrrev_b32 v{vT4}, 1, v{vT0}")
e(f"v_lshl_add_u32 v{vT3}, v{vT4}, 4, v{vT3}")
e(f"v_lshl_add_u32 v{vOUTO}, v{vT1}, 10, v{vT3}")
e(f"v_add_u32 v{vOUTO}, s{sCQ}, v{vOUTO}")
GA = -2.0*math.sqrt(2.0/math.pi)*math.log2(math.e)
for i in range(2):
    e(f"v_mov_b32 v{vGA+i}, {f32(GA)}")
    e(f"v_mov_b32 v{vGB+i}, {f32(GA*0.044715)}")
def set_la(stride):
    e(f"s_mul_i32 s{sT0}, s{sKH}, {stride+4096}")
    e(f"s_mul_i32 s{sT1}, s{sKH}, {-stride+4096}")
    e(f"s_add_u32 s{sT1}, s{sT1}, {stride}")
    e(f"v_add_u32 v{vLA}, s{sT0}, v{vL16}")
    e(f"v_add_u32 v{vLA+1}, s{sT1}, v{vL16}")
    e(f"v_add_u32 v{vLA+2}, 0x2000, v{vLA}")
    e(f"v_add_u32 v{vLA+3}, 0x2000, v{vLA+1}")
set_la(16384)
XA = vE
e(f"v_lshrrev_b32 v{vT3}, 1, v{vT0}")
e(f"v_xor_b32 v{vT3}, v{vT3}, v{vT1}")
e(f"v_lshlrev_b32 v{vT3}, 4, v{vT3}")
e(f"v_lshl_add_u32 v{vT3}, v{vT1}, 9, v{vT3}")
e(f"v_and_b32 v{vT4}, 1, v{vT0}")
e(f"v_lshl_add_u32 v{vT3}, v{vT4}, 3, v{vT3}")
e(f"s_lshl_b32 s{sT0}, s{sKH}, 13")
e(f"s_add_u32 s{sT0}, s{sT0}, s{sT3}")
e(f"v_add_u32 v{XA}, s{sT0}, v{vT3}")
for c in range(1, 8): e(f"v_xor_b32 v{XA+c}, {c<<5}, v{XA}")
for c in range(8): e(f"v_xor_b32 v{XA+8+c}, 0x2000, v{XA+c}")
for i in range(4): e(f"v_mov_b32 v{vST+i}, 0")
e(f"s_lshl_b32 s{sT0}, s{sWAVE}, 11")
e(f"s_add_u32 s{sT0}, s{sT0}, {VA}")
e(f"v_lshl_add_u32 v{vT2}, v{vT1}, 4, s{sT0}")
e(f"v_xor_b32 v{vT3}, 0x800, v{vT1}") if False else None
e(f"s_lshl_b32 s{sT0}, s{sWAVE}, 2")
e(f"v_add_u32 v{vXFP}, s{sT0}, v{vCB}")
e(f"v_mov_b32 v{vT4}, {LOOB}")
e(f"v_cndmask_b32 v{vW1}, v{vT4}, v{vXFP}, {sr(sM0,2)}")
e(f"v_xor_b32 v{vXFP}, 4, v{vXFP}")
e(f"s_lshl_b32 s{sT0}, s{sJ}, 1")
e(f"s_add_u32 s{sT0}, s{sT0}, s{sKH}")
e(f"s_lshl_b32 s{sT0}, 1, s{sT0}")
e(f"v_mov_b32 v{vBIT}, s{sT0}")
e(f"s_lshl_b32 s{sT0}, s{sT0}, 16")
e(f"v_mov_b32 v{vBIT+1}, s{sT0}")
e(f"s_lshl_b32 s{sT0}, s{sKH}, 2")
e(f"s_lshl_b32 s{sMK0}, 15, s{sT0}")
e(f"s_mov_b32 s{sTAIL}, 0")
e(f"s_mov_b32 s{sXSEQ}, 0")
BI, SEL = vXR, vXR+4
e(f"v_and_b32 v{vT3}, 1, v{vT1}")
e(f"v_lshl_add_u32 v{vT3}, v{vT0}, 2, v{vT3}")
e(f"v_sub_u32 v{vT3}, v{vT1}, v{vT3}")
e(f"v_mov_b32 v{vT6}, {f32(-1e30)}")
e(f"s_cmp_eq_u32 s{sTILE}, 0")
e(f"s_cselect_b32 s{sT0}, -64, 16")
e(f"v_add_u32 v{vT4}, -2, v{vT3}")
e(f"v_cmp_gt_u32 {sr(sM0,2)}, 15, v{vT3}")
e(f"v_cmp_gt_u32 {sr(sM1,2)}, 15, v{vT4}")
e(f"v_add_u32 v{vT3}, s{sT0}, v{vT3}")
e(f"v_add_u32 v{vT4}, -2, v{vT3}")
e(f"v_cndmask_b32 v{BI}, v{vT6}, 0, {sr(sM0,2)}")
e(f"v_cndmask_b32 v{BI+1}, v{vT6}, 0, {sr(sM1,2)}")
e(f"v_cmp_gt_u32 {sr(sM0,2)}, 15, v{vT3}")
e(f"v_cmp_gt_u32 {sr(sM1,2)}, 15, v{vT4}")
e(f"v_mov_b32 v{vT3}, 0x0c0c0100")
e(f"v_mov_b32 v{vT4}, 0x01000c0c")
e(f"v_cndmask_b32 v{BI+2}, v{vT6}, 0, {sr(sM0,2)}")
e(f"v_cndmask_b32 v{BI+3}, v{vT6}, 0, {sr(sM1,2)}")
e(f"v_cndmask_b32 v{SEL}, v{vT3}, v{vT4}, {sr(sODD,2)}")
e(f"v_mov_b32 v{vT3}, 0x0c0c0302")
e(f"v_mov_b32 v{vT4}, 0x03020c0c")
e(f"v_cndmask_b32 v{SEL+1}, v{vT3}, v{vT4}, {sr(sODD,2)}")
e("s_waitcnt vmcnt(0)")
for ksl in range(8):
    for t in range(2):
        for h in range(2):
            e(f"ds_read_b64 {vr(vA+8*ksl+4*t+2*h,2)}, v{XA+8*t+2*(ksl&3)+h} offset:{256*(ksl>>2)}")
for ksl in range(8):
    e(f"s_waitcnt lgkmcnt({min(15, 28-4*ksl)})")
    for d in range(4):
        for t in range(2):
            r = vA+8*ksl+4*t+d
            e(f"v_dot2_f32_bf16 v{vST+2*t}, v{r}, s{sONES}, v{vST+2*t}")
            e(f"v_dot2_f32_bf16 v{vST+2*t+1}, v{r}, v{r}, v{vST+2*t+1}")
nop(3)
red2x2(vST, vST+1, vST+1, vST+2, vST+3, vST+3)
e(f"ds_write_b128 v{vT2}, {vr(vST,4)}")
e(f"s_xor_b32 s{sT0}, s{sWAVE}, 1")
e(f"s_lshl_b32 s{sT0}, s{sT0}, 11")
e(f"s_add_u32 s{sT0}, s{sT0}, {VA}")
e(f"v_lshl_add_u32 v{vT3}, v{vT1}, 4, s{sT0}")
e("s_waitcnt lgkmcnt(0)")
prof(1)
barrier("c")
e(f"ds_read_b128 {vr(vE,4)}, v{vT3}")
e(f"s_mov_b32 s{sT0}, 0x3f80")
e(f"s_mov_b32 s{sT1}, 0x3f800000")
e("s_waitcnt lgkmcnt(0)")
e(f"v_add_f32 v{vT4}, v{vE+2}, v{vST}")
e(f"v_add_f32 v{vT3}, v{vE+3}, v{vST+1}")
e(f"v_add_f32 v{vT6}, v{vE}, v{vST+2}")
e(f"v_mul_f32 v{vT6}, {f32(-1.0/512)}, v{vT6}")
mean_var(vT4, vT3)
e(f"v_add_f32 v{vT3}, {f32(1e-5)}, v{vT3}")
e(f"v_rsq_f32 v{vSC}, v{vT3}")
e(f"v_rsq_f32 v{vSC+1}, v{vT3}")
for c in range(8):
    for i in range(8):
        m_ = vT6 if (i >> 2) & 1 else vT4
        e(f"v_dot2_f32_bf16 v{vE+2*i}, v{vA+8*c+i}, s{sT0}, v{m_}")
        e(f"v_dot2_f32_bf16 v{vE+2*i+1}, v{vA+8*c+i}, s{sT1}, v{m_}")
    nop(1)
    for i in range(8): e(f"v_cvt_pk_bf16_f32 v{vA+8*c+i}, v{vE+2*i}, v{vE+2*i+1}")
    if c == 6:
        barrier("c")
        pre()
prof(30)
call_pass()
scalepack(vK)
e(f"v_lshlrev_b32 v{vT2}, 7, v{vT1}")
e(f"v_lshl_add_u32 v{vT2}, v{vT0}, 5, v{vT2}")
e(f"s_cmp_eq_u32 s{sWAVE}, 3")
e("s_cbranch_scc0 L_k3d")
e(f"buffer_store_dwordx4 {vr(vK,4)}, v{vT2}, {sr(sWS,4)}, s{sHKO} offen sc1")
e(f"buffer_store_dwordx4 {vr(vK+4,4)}, v{vT2}, {sr(sWS,4)}, s{sHKO} offen offset:16 sc1")
e(f"s_mov_b32 s{sPUBV}, 1")
e("s_mov_b64 vcc, -1")
lab("L_k3d")
e(f"s_cselect_b32 s{sT1}, 16, 1")
e(f"s_mul_i32 s{sT0}, s{sWAVE}, {KSZ}")
e(f"s_add_u32 s{sT0}, s{sT0}, {KA+KSZ-256}")
e(f"v_cmp_lt_u32 {sr(sM0,2)}, s{sT1}, v{vT1}")
e(f"v_add_u32 v{vT2}, s{sT0}, v{vT2}")
e(f"v_mov_b32 v{vT3}, {LOOB}")
e(f"v_cndmask_b32 v{vX1P}, v{vT3}, v{vT2}, {sr(sM0,2)}")
e(f"v_bfe_u32 v{vT2}, v{vT1}, 1, 2")
e(f"v_lshlrev_b32 v{vT2}, 1, v{vT2}")
e(f"v_lshrrev_b32 v{vT3}, 1, v{vT0}")
e(f"v_xor_b32 v{vT2}, v{vT2}, v{vT3}")
e(f"v_lshlrev_b32 v{vT2}, 4, v{vT2}")
e(f"v_lshl_add_u32 v{vT2}, v{vT1}, 7, v{vT2}")
e(f"v_and_b32 v{vT3}, 1, v{vT0}")
e(f"v_lshl_add_u32 v{vHP}, v{vT3}, 3, v{vT2}")
for h in range(1, 4): e(f"v_xor_b32 v{vHP+h}, {h<<5}, v{vHP}")
e(f"s_lshl_b32 s{sT0}, s{sWAVE}, 11")
e(f"s_add_u32 s{sT0}, s{sT0}, {VA}")
for h in range(4): e(f"v_add_u32 v{vHP+4+h}, s{sT0}, v{vHP+h}")
prof(2)
call_pass()
scalepack(vPK)
for h in range(4): e(f"ds_write_b64 v{vHP+4+h}, {vr(vPK+2*h,2)}")
e(f"ds_write_b128 v{vX1P}, {vr(vK,4)}")
e(f"ds_write_b128 v{vX1P}, {vr(vK+4,4)} offset:16")
e(f"s_cmp_eq_u32 s{sWAVE}, 3")
e("s_cbranch_scc0 L_v3d")
for h in range(4): e(f"buffer_store_dwordx2 {vr(vPK+2*h,2)}, v{vHP+h}, {sr(sWS,4)}, s{sHKO} offen offset:2048 sc1")
e(f"s_mov_b32 s{sPUBV}, 0x100")
e("s_mov_b64 vcc, -1")
lab("L_v3d")
e(f"v_max_u32 v{vT2}, 2, v{vT1}")
e(f"v_lshlrev_b32 v{vT2}, 7, v{vT2}")
e(f"v_lshl_add_u32 v{vT2}, v{vT0}, 5, v{vT2}")
e(f"s_mul_i32 s{sT1}, s{sWAVE}, {KSZ}")
e(f"s_add_u32 s{sT1}, s{sT1}, {KA-256}")
e(f"v_add_u32 v{vT2}, s{sT1}, v{vT2}")
e(f"s_sub_u32 s{sT1}, s{sT0}, 2048")
e(f"s_cmp_eq_u32 s{sWAVE}, 0")
e(f"s_cselect_b32 s{sT1}, {XB}, s{sT1}")
e(f"s_cselect_b32 s{sT3}, 1, 0")
for h in range(4):
    e(f"v_add_u32 v{vHP+h}, s{sT0}, v{vB+h}")
    e(f"v_add_u32 v{vHP+4+h}, s{sT1}, v{vB+h}")
e("s_waitcnt lgkmcnt(0)")
barrier("c")
prof(3)
call_pass()
KP, VP, VO, SO, SP_ = vA, vA+8, vA+16, vA+24, vA+40
for h in range(4): e(f"ds_read_b64_tr_b16 {vr(VO+2*h,2)}, v{vHP+h}")
scalepack(vPK)
l = uid("kv"); d = l+"_d"
lab(l)
e(f"ds_read_b32 v{vT7}, v{vCB} offset:{C_KV}")
e(f"ds_read_b128 {vr(KP,4)}, v{vT2}")
e(f"ds_read_b128 {vr(KP+4,4)}, v{vT2} offset:16")
for h in range(4):
    e(f"v_mfma_f32_16x16x16_bf16 {vr(SO+4*h,4)}, {vr(vK+2*h,2)}, {vr(vPK+2*h,2)}, 0")
e("s_waitcnt lgkmcnt(0)")
e(f"v_readfirstlane_b32 s{sT2}, v{vT7}")
e(f"s_cmp_ge_u32 s{sT2}, s{sT3}")
e(f"s_cbranch_scc0 {spin(l, d)}")
lab(d)
for h in range(4):
    e(f"v_mfma_f32_16x16x16_bf16 {vr(SP_+4*h,4)}, {vr(KP+2*h,2)}, {vr(vPK+2*h,2)}, 0")
prof(4)
nop(4)
X = vE
for h in range(4):
    e(f"v_cndmask_b32 v{X+4*h}, v{SO+4*h}, v{SO+4*h+1}, {sr(sODD,2)}")
    e(f"v_cndmask_b32 v{X+4*h+1}, v{SO+4*h+2}, v{SO+4*h+3}, {sr(sODD,2)}")
for h in range(4):
    e(f"v_cndmask_b32 v{X+4*h+2}, v{SP_+4*h}, v{SP_+4*h+1}, {sr(sODD,2)}")
    e(f"v_cndmask_b32 v{X+4*h+3}, v{SP_+4*h+2}, v{SP_+4*h+3}, {sr(sODD,2)}")
for h in range(4):
    for i in range(4): e(f"v_fma_f32 v{X+4*h+i}, v{X+4*h+i}, s{sCEXP}, v{BI+i}")
M = vE+16; M2 = vE+20
for h in range(4): e(f"v_max3_f32 v{M+h}, v{X+4*h}, v{X+4*h+1}, v{X+4*h+2}")
for h in range(4): e(f"v_max_f32 v{M+h}, v{M+h}, v{X+4*h+3}")
def allred(op):
    for h in range(4): e(f"v_mov_b32 v{M2+h}, v{M+h}")
    nop(1)
    for h in range(4): e(f"v_permlane16_swap_b32 v{M+h}, v{M2+h}")
    for h in range(4): e(f"{op} v{M+h}, v{M+h}, v{M2+h}")
    for h in range(4): e(f"v_mov_b32 v{M2+h}, v{M+h}")
    nop(1)
    for h in range(4): e(f"v_permlane32_swap_b32 v{M+h}, v{M2+h}")
    for h in range(4): e(f"{op} v{M+h}, v{M+h}, v{M2+h}")
allred("v_max_f32")
for h in range(4):
    for i in range(4): e(f"v_sub_f32 v{X+4*h+i}, v{X+4*h+i}, v{M+h}")
for i in range(16): e(f"v_exp_f32 v{X+i}, v{X+i}")
for h in range(4): e(f"v_add_f32 v{M+h}, v{X+4*h}, v{X+4*h+1}")
for h in range(4): e(f"v_add_f32 v{M2+h}, v{X+4*h+2}, v{X+4*h+3}")
for h in range(4): e(f"v_add_f32 v{M+h}, v{M+h}, v{M2+h}")
allred("v_add_f32")
for h in range(4): e(f"v_rcp_f32 v{M+h}, v{M+h}")
lv_ = uid("vv")
e(f"s_lshl_b32 s{sT3}, s{sT3}, 1")
lab(lv_)
e(f"ds_read_b32 v{vT7}, v{vCB} offset:{C_KV}")
for h in range(4): e(f"ds_read_b64_tr_b16 {vr(VP+2*h,2)}, v{vHP+4+h}")
e("s_cbranch_vccnz "+lv_+"_w")
for h in range(4):
    for i in range(4): e(f"v_mul_f32 v{X+4*h+i}, v{X+4*h+i}, v{M+h}")
for h in range(4):
    e(f"v_cvt_pk_bf16_f32 v{M+h}, v{X+4*h}, v{X+4*h+1}")
    e(f"v_cvt_pk_bf16_f32 v{M2+h}, v{X+4*h+2}, v{X+4*h+3}")
for h in range(4):
    e(f"v_perm_b32 v{SO+2*h}, v{M+h}, v{M+h}, v{SEL}")
    e(f"v_perm_b32 v{SO+2*h+1}, v{M+h}, v{M+h}, v{SEL+1}")
    e(f"v_perm_b32 v{SP_+2*h}, v{M2+h}, v{M2+h}, v{SEL}")
    e(f"v_perm_b32 v{SP_+2*h+1}, v{M2+h}, v{M2+h}, v{SEL+1}")
nop(2)
OA = vE
for h in range(4):
    e(f"v_mfma_f32_16x16x16_bf16 {vr(OA+4*h,4)}, {vr(VO+2*h,2)}, {vr(SO+2*h,2)}, 0")
lab(lv_+"_w")
e("s_waitcnt lgkmcnt(0)")
e(f"v_readfirstlane_b32 s{sT2}, v{vT7}")
e("s_mov_b64 vcc, -1")
e(f"s_cmp_ge_u32 s{sT2}, s{sT3}")
e(f"s_cbranch_scc0 {spin(lv_, lv_+'_d')}")
lab(lv_+"_d")
e("s_mov_b64 vcc, 0")
for h in range(4):
    e(f"v_mfma_f32_16x16x16_bf16 {vr(OA+4*h,4)}, {vr(VP+2*h,2)}, {vr(SP_+2*h,2)}, {vr(OA+4*h,4)}")
e(f"v_lshlrev_b32 v{vT2}, 10, v{vT1}")
e(f"v_lshl_add_u32 v{vT2}, v{vT0}, 3, v{vT2}")
def pack(dst):
    for i in range(8): e(f"v_cvt_pk_bf16_f32 v{dst+i}, v{vE+2*i}, v{vE+2*i+1}")
def store_act(pk, base):
    e(f"s_add_u32 s{sT0}, s{sDST}, {base}")
    e(f"buffer_store_dwordx4 {vr(pk,4)}, v{vL16}, {sr(sWS,4)}, s{sT0} offen sc1")
    e(f"buffer_store_dwordx4 {vr(pk+4,4)}, v{vL16}, {sr(sWS,4)}, s{sT0} offen offset:1024 sc1")
nop(3)
pack(vPK)
store_act(vPK, WS_O)
for jj in range(4):
    e(f"buffer_load_dwordx2 {vr(vXR+2*jj,2)}, v{vT2}, {sr(sX,4)}, s{sCQ} offen offset:{32*jj}")
pubn = [0]
def publish(younger=0):
    f = pubn[0]; pubn[0] += 1
    if f in (1, 2): prof(21+f)
    e(f"s_waitcnt vmcnt({younger})")
    e(f"buffer_atomic_add v{vBIT+(f&1)}, v{vFLO}, {sr(sWS,4)}, s{sFLOFF} offen offset:{4*(f>>1)} sc1")
def loada(sgs=(0, 1)):
    for ksl in range(8):
        if ksl >> 2 not in sgs: continue
        for tsel in range(2):
            e(f"buffer_load_dwordx4 {vr(vA+8*ksl+4*tsel,4)}, v{vLA+2*(ksl>>2)+tsel}, {sr(sWS,4)}, s{sOFFA} offen offset:{1024*(ksl&3)} sc1")
def set_offa(base):
    e(f"s_lshl_b32 s{sOFFA}, s{sUNIT}, 15")
    e(f"s_add_u32 s{sOFFA}, s{sOFFA}, {base}")
def set_stats_off(base):
    e(f"s_lshl_b32 s{sT3}, s{sTILE}, 10")
    e(f"s_add_u32 s{sT3}, s{sT3}, {base}")
def load_stats(): e(f"buffer_load_dwordx4 {vr(vST,4)}, v{vL16}, {sr(sWS,4)}, s{sT3} offen sc1")
def consume_stats():
    e("s_waitcnt vmcnt(8)")
    e(f"v_add_f32 v{vT4}, v{vST}, v{vST+2}")
    e(f"v_add_f32 v{vT3}, v{vST+1}, v{vST+3}")
    nop(2)
    red2(vT4, vT3, vT3)
    mean_var(vT4, vT3)
def store_stats(pk, base):
    e(f"v_mov_b32 v{vST}, 0")
    e(f"v_mov_b32 v{vST+1}, 0")
    for i in range(8):
        e(f"v_dot2_f32_bf16 v{vST}, v{pk+i}, s{sONES}, v{vST}")
        e(f"v_dot2_f32_bf16 v{vST+1}, v{pk+i}, v{pk+i}, v{vST+1}")
    e(f"s_mov_b32 s{sT0}, {base}")
    nop(2)
    red2(vST, vST+1, vST+1)
    e(f"buffer_store_dwordx2 {vr(vST,2)}, v{vSTO}, {sr(sWS,4)}, s{sT0} offen sc1")
def unpack(dst, src, n):
    for i in range(n):
        e(f"v_lshlrev_b32 v{dst+2*i}, 16, v{src+i}")
        e(f"v_and_b32 v{dst+2*i+1}, 0xffff0000, v{src+i}")
def wait_bits(f, mask_s, shift, nb=None, first=True):
    l = uid("rdy"); d = l+"_d"; c = l+"_c"
    sh = 16*(f & 1) + shift
    if isinstance(mask_s, int): e(f"s_mov_b32 s{sT0}, {mask_s << sh}")
    else: e(f"s_lshl_b32 s{sT0}, s{mask_s}, {sh}")
    if nb is not None: e(f"s_lshl_b32 s{sT1}, s{nb}, {sh}")
    if not first: e(f"s_branch {c}")
    lab(l)
    e(f"s_mov_b32 s{sFLW}, 0")
    if nb is not None: e(f"s_mov_b32 s{sFB}, 0")
    e(f"s_atomic_add s{sFLW}, {sr(pWSP,2)}, s{sFLW+1} glc")
    if nb is not None: e(f"s_atomic_add s{sFB}, {sr(pWSP,2)}, s{sNBO} glc")
    e("s_waitcnt lgkmcnt(0)")
    lab(c)
    e(f"s_andn2_b32 s{sT2}, s{sT0}, s{sFLW}")
    if nb is not None:
        e(f"s_andn2_b32 s{sFB+1}, s{sT1}, s{sFB}")
        e(f"s_or_b32 s{sT2}, s{sT2}, s{sFB+1}")
    e(f"s_cbranch_scc1 {spin(l, d)}")
    lab(d)
def set_word(f): e(f"s_add_u32 s{sFLW+1}, s{sFLOFF}, {4*(f>>1)}")
def cs_check():
    l = uid("cs"); d = l+"_d"
    lab(l+"_c")
    e(f"v_min_u32 v{vCF}, v{vCF}, v{vCF+1}")
    nop(1)
    e(f"v_readfirstlane_b32 s{sT0}, v{vCF}")
    e(f"s_cmp_ge_u32 s{sT0}, 1")
    e(f"s_cbranch_scc0 {l}")
    lab(d)
    cs_retries.append((l, d))
cs_retries = []
zero(vACP, 16)
set_offa(WS_O)
set_word(0)
e(f"s_mov_b32 s{sTAIL}, 1")
publish(4)
barrier("c")
e("s_waitcnt vmcnt(1)")
unpack(vACC, vXR, 8)
prof(5)
wait_bits(0, sMK0, 0)
prof(6)
loada((0,))
wait_bits(0, sMK0, 8, None, False)
loada((1,))
call_pass("L_pass64b", False)
prof(7)
pack(vHP)
store_act(vHP, WS_H)
store_stats(vHP, WS_HS)
set_offa(WS_H)
set_stats_off(WS_HS)
publish()
barrier("c")
pre()
prof(8)
wait_bits(1, sMK0, 0)
prof(9)
loada((0,))
wait_bits(1, 0xffff, 0, None, False)
load_stats()
loada((1,))
consume_stats()
e(f"v_add_f32 v{vT2}, {f32(1e-5)}, v{vT3}")
e(f"v_rsq_f32 v{vR1}, v{vT2}")
e(f"v_mov_b32 v{vNMH}, v{vT4}")
e(f"v_mul_f32 v{vT3}, v{vT3}, v{vR1}")
e(f"v_fmaak_f32 v{vT3}, v{vT3}, v{vR1}, {f32(1e-5)}")
e(f"v_rsq_f32 v{vT3}, v{vT3}")
e(f"v_mov_b32 v{vNMH+1}, v{vT4}")
e(f"v_mul_f32 v{vSC}, v{vT3}, v{vR1}")
e(f"v_mul_f32 v{vSC+1}, v{vT3}, v{vR1}")
e(f"v_mov_b32 v{vR1+1}, v{vR1}")
e(f"v_mul_f32 v{vMS}, v{vT4}, v{vSC}")
e(f"v_mul_f32 v{vMS+1}, v{vT4}, v{vSC}")
e(f"s_mov_b32 s{sCNT}, 0")
call_pass("L_pass64", False)
prof(10)
cs_check()
e(f"s_call_b64 {sr(sRET2,2)}, L_gelu")
store_act(vPK, WS_H1)
e(f"v_lshlrev_b32 v{vT4}, 8, v{vT0}")
e(f"s_lshl_b32 s{sT0}, s{sKH}, 12")
e(f"v_add_u32 v{vT4}, s{sT0}, v{vT4}")
e(f"v_mov_b32 v{vT6}, {OOB}")
e(f"s_lshl_b32 s{sT2}, s{sKH}, 1")
e(f"s_sub_u32 s{sT2}, s{sT2}, 1")
e(f"s_movk_i32 s{sT3}, 0x800")
for sg in range(2):
    for tsel in range(2):
        if tsel: e(f"s_xor_b32 s{sT0}, s{sTILE}, 1")
        e(f"s_lshl_b32 s{sT0}, s{sT0 if tsel else sTILE}, 4")
        e(f"s_add_u32 s{sT0}, s{sT0}, s{sT2}")
        if sg: e(f"s_add_u32 s{sT0}, s{sT0}, s{sT2}")
        e(f"v_add_u32 v{vT2}, s{sT0}, v{vT1}")
        e(f"v_cmp_gt_u32 {sr(sM0,2)}, s{sT3}, v{vT2}")
        e(f"v_lshrrev_b32 v{vT3}, 4, v{vT2}")
        e(f"v_lshl_add_u32 v{vT3}, v{vT3}, 14, v{vT4}")
        e(f"v_and_b32 v{vT2}, 15, v{vT2}")
        e(f"v_lshl_add_u32 v{vT3}, v{vT2}, 4, v{vT3}")
        if sg: e(f"v_add_u32 v{vT3}, 0x2000, v{vT3}")
        e(f"v_cndmask_b32 v{vLA+2*sg+tsel}, v{vT6}, v{vT3}, {sr(sM0,2)}")
unpack(vACC, vHP, 8)
for i in range(8): e(f"v_pk_add_f32 {vr(vACC+2*i,2)}, {vr(vACC+2*i,2)}, {vr(vNMH,2)}")
for i in range(8): e(f"v_pk_mul_f32 {vr(vACC+2*i,2)}, {vr(vACC+2*i,2)}, {vr(vR1,2)}")
zero(vACP, 16)
e(f"s_lshl_b32 s{sT0}, s{sT2}, 7")
e(f"s_add_u32 s{sNBO}, s{sFLOFF}, s{sT0}")
e(f"s_add_u32 s{sT0}, s{sUNIT}, s{sT2}")
e(f"s_cmp_gt_u32 s{sT0}, 63")
e(f"s_cselect_b32 s{sNBO}, s{sFLOFF}, s{sNBO}")
e(f"s_add_u32 s{sNBO}, s{sNBO}, 4")
e(f"s_cmp_eq_u32 s{sKH}, 0")
e(f"s_cselect_b32 s{sCSN}, 0x0a, 0x50")
set_word(2)
e(f"s_mov_b32 s{sOFFA}, {WS_H1}")
e(f"v_add_u32 v{vCSR}, 256, v{vCSR}")
publish()
barrier("c")
pre()
prof(11)
wait_bits(2, sMK0, 0, sCSN)
prof(12)
loada((0,))
wait_bits(2, sMK0, 8, sCSN, False)
loada((1,))
call_pass("L_pass64b", False)
prof(13)
pack(vX1P)
store_act(vX1P, WS_X1)
store_stats(vX1P, WS_X1S)
e(f"s_mov_b32 s{sTAIL}, 0")
set_la(16384)
e(f"s_mul_i32 s{sDST}, s{sTILE}, {GT}")
e(f"s_lshl_b32 s{sT1}, s{sJ}, 11")
e(f"s_add_u32 s{sDST}, s{sDST}, s{sT1}")
set_offa(WS_X1)
set_stats_off(WS_X1S)
publish()
barrier("c")
pre()
prof(14)
wait_bits(3, sMK0, 0)
prof(15)
loada((0,))
wait_bits(3, 0xffff, 0, None, False)
load_stats()
loada((1,))
consume_stats()
e(f"v_add_f32 v{vT2}, {f32(1e-5)}, v{vT3}")
e(f"v_rsq_f32 v{vSC}, v{vT2}")
e(f"v_rsq_f32 v{vSC+1}, v{vT2}")
e(f"v_mul_f32 v{vMS}, v{vT4}, v{vSC}")
e(f"v_mul_f32 v{vMS+1}, v{vT4}, v{vSC}")
for p in range(3):
    call_pass()
    if p: publish()
    if not OPT.get('dl'): prof(24+2*p)
    if p == 2:
        for jj in range(2): e(f"v_add_u32 v{vW+jj}, s{sPAR}, v{vB32+jj}")
        pre(True, 32768)
    e(f"v_add_u32 v{vCSR}, {256 if p != 1 else -256}, v{vCSR}")
    e(f"s_call_b64 {sr(sRET2,2)}, L_gelu")
    if not OPT.get('dl'): prof(25+2*p)
    store_act(vPK, WS_G + 16384*p)
    prof(16+p)
lq = LQ([f"f{p}" for p in range(6) for h in range(2)])
for q in range(16):
    if q % 2 == 0: lq.need([f"f{q}", f"f{q+1}"])
    for t in (1, 0):
        e(mf_text(vWB+4*(q % 8), vA + 8*(q >> 1) + 4*t, (vACP if t else vACC) + 4*(q & 1), q < 2))
        if q+6 < 16: lq.op(f"f{q+6}", rd_text(vWB+4*((q+6) % 8), 1-t, q+6, True, 32768))
for jj in range(4): e(f"v_add_u32 v{vW+jj}, s{sPAR}, v{vB+jj}")
e(f"s_mov_b32 s{sCNT}, 1")
nop(2)
for i in range(2): e(T_W(i))
publish()
set_la(GT)
e(f"s_mul_i32 s{sOFFA}, s{sUNIT}, {2*GT}")
e(f"s_add_u32 s{sOFFA}, s{sOFFA}, {WS_G}")
QUADS = ([vA+4*i for i in range(16)] + [vXR+4*i for i in range(6)] + [vE+16+4*i for i in range(4)] + [vK, vK+4] + [vE+4*i for i in range(4)])[:OPT.get("nq", 24)]
NQ = len(QUADS)
gpolls = []
def gpoll():
    e(f"s_mov_b64 {sr(sFG,2)}, 0")
    e(f"s_atomic_add_x2 {sr(sFG,2)}, {sr(pWSP,2)}, s{sFLW+1} glc")
    e("s_waitcnt lgkmcnt(0)")
def gcheck(p):
    l = uid("g"); d = l+"_d"
    lab(d+"c")
    e(f"s_lshr_b32 s{sT0}, s{sFG+(p>>1)}, {16*(p&1)}")
    e(f"s_andn2_b32 s{sT0}, 0xffff, s{sT0}")
    e(f"s_cbranch_scc1 {l}")
    lab(d)
    gpolls.append((l, d))
def gload(m):
    ks, t = m >> 1, m & 1
    if ks % 8 == 0 and t == 0:
        p = ks // 8
        gcheck(p)
        if p: e(f"s_add_u32 s{sOFFA}, s{sOFFA}, 16384")
    e(f"buffer_load_dwordx4 {vr(QUADS[m % NQ],4)}, v{vLA+2*((ks>>2)&1)+t}, {sr(sWS,4)}, s{sOFFA} offen offset:{1024*(ks&3)} sc1")
set_word(4)
gpoll()
for m in range(16): gload(m)
barrier("c")
for i in range(2): e(T_R(i))
for i in range(2): e(T_C(i))
w4slot = lambda it: ((19 + it) & 3) * 16384
pre(False, w4slot(0))
e("s_waitcnt lgkmcnt(12)")
for i in range(4): e(f"v_pk_add_f32 {vr(vE+2*i,2)}, {vr(vACC+2*i,2)}, {vr(vE+2*i,2)}")
e(f"s_call_b64 {sr(sRET2,2)}, L_gelu")
e(f"s_lshl_b32 s{sT1}, s{sJ}, 10")
e(f"s_sub_u32 s{sT0}, s{sDST}, s{sT1}")
e(f"s_add_u32 s{sT0}, s{sT0}, {WS_G + 48*1024}")
e(f"buffer_store_dwordx4 {vr(vPK,4)}, v{vL16}, {sr(sWS,4)}, s{sT0} offen sc1")
unpack(vE, vHP, 8)
unpack(vE+16, vX1P, 8)
for i in range(8): e(f"v_pk_add_f32 {vr(vACC+2*i,2)}, {vr(vE+2*i,2)}, {vr(vE+16+2*i,2)}")
zero(vACP, 16)
prof(19)
for m in range(16, NQ): gload(m)
lq = LQ([f"f{p}" for p in range(6) for h in range(2)])
nissued = NQ
NP = 112
g3pub = [None]
for q in range(NP):
    ks = q >> 2
    vm = None
    extra = (1 if 2*ks+1 < 16 else 0) + (1 if g3pub[0] is not None and 2*ks+1 < g3pub[0] else 0)
    if q % 4 == 0: vm = nissued - (2*ks+2) + extra
    if q == 32:
        cmt("the last G store is older than everything waited for from here on")
        lq.need([f"f{q}", f"f{q+1}"], vm); vm = None
        publish(nissued - 16)
        g3pub[0] = nissued
    if q % 2 == 0: lq.need([f"f{q}", f"f{q+1}"], vm)
    if (q+6) % 16 == 0 and q+6 < NP:
        barrier("c")
    for t in range(2):
        e(mf_text(vWB+4*(q % 8), QUADS[(2*ks+t) % NQ], (vACP if t else vACC)+4*(q & 3)))
        if q+6 < NP: lq.op(f"f{q+6}", rd_text(vWB+4*((q+6) % 8), t, (q+6) & 15, False, w4slot((q+6) >> 4)))
        if (q & 3) in (1, 3) and t == 0 and ks >= 1 and nissued < 56:
            gload(nissued); nissued += 1
nop(8)
for i in range(4): e(T_W(i))
e("s_waitcnt lgkmcnt(0)")
barrier("c")
for i in range(4): e(T_R(i))
e("s_waitcnt lgkmcnt(0)")
for i in range(8): e(f"v_pk_add_f32 {vr(vE+2*i,2)}, {vr(vACC+2*i,2)}, {vr(vE+2*i,2)}")
prof(20)
pack(vPK)
nop(2)
for s in range(2):
    e(f"v_permlane16_swap_b32 v{vPK+4*s}, v{vPK+4*s+2}")
    e(f"v_permlane16_swap_b32 v{vPK+4*s+1}, v{vPK+4*s+3}")
e(f"buffer_store_dwordx4 {vr(vPK,4)}, v{vOUTO}, {sr(sOUT,4)}, 0 offen")
e(f"buffer_store_dwordx4 {vr(vPK+4,4)}, v{vOUTO}, {sr(sOUT,4)}, 0 offen offset:64")
prof(21)
prof_flush()
e("s_endpgm")
for l, d in gpolls:
    lab(l)
    gpoll()
    e(f"s_sub_u32 s{sBUD}, s{sBUD}, 1")
    e(f"s_cbranch_scc0 {d}c")
    e(f"s_mov_b32 s{sBUD}, 0")
    e(f"s_branch {d}")
for l, d in cs_retries:
    lab(l)
    e(f"ds_read_b64 {vr(vCF,2)}, v{vCB} offset:{C_CSF}")
    for i in range(4): e(T_C(i))
    e("s_waitcnt lgkmcnt(0)")
    e(f"s_sub_u32 s{sBUD}, s{sBUD}, 1")
    e(f"s_cbranch_scc0 {l}_c")
    e(f"s_mov_b32 s{sBUD}, 0")
    e(f"s_branch {d}")

gen_pass64()
align(); lab("L_gelu")
for half in range(2):
    Xr = vE + 8*half; c0 = vACP + 8*half; U = vE+16
    for i in range(4): e(f"v_pk_mul_f32 {vr(Xr+2*i,2)}, {vr(Xr+2*i,2)}, {vr(vSC,2)}")
    for i in range(4): e(f"v_pk_fma_f32 {vr(Xr+2*i,2)}, {vr(c0+2*i,2)}, {vr(vMS,2)}, {vr(Xr+2*i,2)}")
    for i in range(4): e(f"v_pk_mul_f32 {vr(U+2*i,2)}, {vr(Xr+2*i,2)}, {vr(Xr+2*i,2)}")
    for i in range(4): e(f"v_pk_fma_f32 {vr(U+2*i,2)}, {vr(U+2*i,2)}, {vr(vGB,2)}, {vr(vGA,2)}")
    for i in range(4): e(f"v_pk_mul_f32 {vr(U+2*i,2)}, {vr(U+2*i,2)}, {vr(Xr+2*i,2)}")
    for i in range(8): e(f"v_exp_f32 v{U+i}, v{U+i}")
    for i in range(4): e(f"v_pk_add_f32 {vr(U+2*i,2)}, {vr(U+2*i,2)}, {sr(sONE2,2)}")
    for i in range(8): e(f"v_rcp_f32 v{U+i}, v{U+i}")
    for i in range(4): e(f"v_pk_mul_f32 {vr(Xr+2*i,2)}, {vr(Xr+2*i,2)}, {vr(U+2*i,2)}")
    for i in range(4): e(f"v_cvt_pk_bf16_f32 v{vPK+4*half+i}, v{Xr+2*i}, v{Xr+2*i+1}")
    if half == 0:
        e(f"s_cmp_eq_u32 s{sCNT}, 1")
        e("s_cbranch_scc1 L_gelu_h")
lab("L_gelu_h")
e(f"s_setpc_b64 {sr(sRET2,2)}")

vCSW, vTL, vT3P, vTQ, vON, vIN = vXR, vXR+1, vXR+2, vXR+3, vXR+4, vHP
lab("L_service")
e(f"v_lshrrev_b32 v{vT2}, 2, v{vLANE}")
e(f"v_and_b32 v{vT3}, 3, v{vLANE}")
e(f"v_lshlrev_b32 v{vT4}, 7, v{vT3}")
e(f"v_lshl_add_u32 v{vTL}, v{vT2}, 10, v{vT4}")
e(f"v_mul_u32_u24 v{vTQ}, 3072, v{vT2}")
e(f"v_add_u32 v{vTQ}, v{vTQ}, v{vT4}")
e(f"v_min_u32 v{vT2}, 13, v{vT1}")
e(f"v_lshlrev_b32 v{vT2}, 7, v{vT2}")
e(f"v_mul_u32_u24 v{vT3P}, 3584, v{vT0}")
e(f"v_add_u32 v{vT3P}, v{vT3P}, v{vT2}")
e(f"s_lshl_b32 s{sT0}, s{sHF}, 9")
e(f"s_lshl_b32 s{sTA}, s{sR32}, 14")
e(f"s_add_u32 s{sTA}, s{sTA}, s{sT0}")
e(f"s_mul_i32 s{sTC}, s{sR32}, {16*3072}")
e(f"s_add_u32 s{sTC}, s{sTC}, s{sT0}")
e(f"s_mul_i32 s{sTB}, s{sR32}, {4*3584}")
e(f"s_mul_i32 s{sT0}, s{sHF}, 1792")
e(f"s_add_u32 s{sTB}, s{sTB}, s{sT0}")
e(f"s_cmp_ge_u32 s{sWAVE}, 6")
e("s_cbranch_scc1 L_loader")
lab("L_helper")
tr_bases()
e(f"s_lshl_b32 s{sT0}, s{sKH}, 6")
e(f"v_xor_b32 v{vB}, s{sT0}, v{vB}")
e(f"v_xor_b32 v{vB+1}, s{sT0}, v{vB+1}")
e(f"s_lshl_b32 s{sT1}, s{sKH}, 5")
e(f"v_xor_b32 v{vB32}, s{sT1}, v{vB32}")
e(f"v_lshlrev_b32 v{vT2}, 4, v{vT0}")
e(f"v_add_u32 v{vCSW}, {CSA}, v{vT2}")
e(f"s_mov_b32 s{sM1}, 0x00010001")
e(f"s_mov_b32 s{sM1+1}, 0x00010001")
for i in range(4): e(f"v_mov_b32 v{vON+i}, s{sONES}")
e(f"v_min_u32 v{vT2}, 2, v{vLANE}")
e(f"s_sub_u32 s{sT0}, s{sG}, 1")
e(f"v_add_u32 v{vT2}, s{sT0}, v{vT2}")
e(f"v_max_i32 v{vT2}, 0, v{vT2}")
e(f"v_min_u32 v{vT2}, 31, v{vT2}")
e(f"v_lshlrev_b32 v{vIN}, 2, v{vT2}")
e("s_waitcnt lgkmcnt(0)")
e(f"s_mov_b32 s{sWS}, s{pWSP}")
e(f"s_mov_b32 s{sWS+1}, s{pWSP+1}")
tv = [vA+64]
def touch1(t):
    ptr, size, pat, soff_s, c = t
    e(f"s_mov_b32 s{sX}, s{ptr}")
    e(f"s_mov_b32 s{sX+1}, s{ptr+1}")
    e(f"s_mov_b32 s{sX+2}, {size}")
    e(f"s_add_u32 s{sT0}, s{soff_s}, {c}")
    e(f"buffer_load_dword v{tv[0]}, v{pat}, {sr(sX,4)}, s{sT0} offen")
    tv[0] += 1
def touches(lst, role, sleep):
    if role == "h" or not lst: return 0
    lst = list(lst)
    if len(lst) % 2: lst.append((lst[0][0], 0, lst[0][2], lst[0][3], 0))
    if sleep: e(f"s_sleep {sleep}")
    a_ = uid("ta"); b_ = uid("tb")
    e(f"s_cmp_lg_u32 s{sKH}, 0")
    e(f"s_cbranch_scc1 {a_}")
    for t in lst[0::2]: touch1(t)
    e(f"s_branch {b_}")
    lab(a_)
    for t in lst[1::2]: touch1(t)
    lab(b_)
    return len(lst)//2
TQ = lambda c: (pWQKV, 512*3072, vTQ, sTC, c)
T1 = lambda p: (p, 512*1024, vTL, sTA, 0)
T3 = lambda i: (pW3, 512*3584, vT3P, sTB, i*32*4*3584)
T4 = lambda i: (pW4, 1792*1024, vTL, sTA, i*32*16384)
barrier("h")
e(f"s_lshl_b32 s{sT0}, s{sJ}, 3")
e(f"s_add_u32 s{sT0}, s{sT0}, s{sWAVE}")
e(f"s_cmp_lg_u32 s{sT0}, 4")
e(f"s_cbranch_scc1 L_nozero")
for i in range(4): e(f"v_mov_b32 v{vA+i}, 0")
e(f"s_lshl_b32 s{sT0}, s{sG}, 8")
e(f"s_lshl_b32 s{sT1}, s{sG}, 10")
e(f"s_add_u32 s{sT1}, s{sT1}, {WS_FL2-WS_FL-256}")
e(f"v_mov_b32 v{vT3}, s{sT0}")
e(f"v_mov_b32 v{vT4}, s{sT1}")
e(f"v_cmp_gt_u32 {sr(sM0,2)}, 2, v{vLANE}")
e(f"s_mov_b32 s{sT0}, {WS_FL}")
nop(1)
e(f"v_cndmask_b32 v{vT3}, v{vT4}, v{vT3}, {sr(sM0,2)}")
e(f"v_lshl_add_u32 v{vT3}, v{vLANE}, 7, v{vT3}")
e("s_mov_b64 exec, 0x3ff")
e(f"buffer_store_dwordx4 {vr(vA,4)}, v{vT3}, {sr(sWS,4)}, s{sT0} offen sc1")
e(f"s_lshl_b32 s{sT0}, s{sG}, 2")
e(f"v_mov_b32 v{vT2}, s{sT0}")
e(f"v_mov_b32 v{vT6}, 1")
e("s_mov_b64 exec, 1")
e("s_waitcnt vmcnt(0)")
e(f"global_store_dword v{vT2}, v{vT6}, {sr(pDBG,2)} sc1")
e("s_mov_b64 exec, -1")
lab("L_nozero")
V_, Q_, WO_, W1_, W2_ = TQ(2048), TQ(0), T1(pWO), T1(pW1), T1(pW2)
K_ = TQ(1024)
REST = dict(r1=[T3(0), T3(1)], r2=[T3(2), T3(3)], r3=[T4(0), T4(1), T4(2), T4(3)])
SCH = {0: dict(s=[K_, V_], x=[Q_], b0=[WO_, W1_], b1=[W2_], **REST),
       1: dict(s=[K_], x=[V_, Q_], b0=[WO_, W1_], b1=[W2_], **REST),
       2: dict(s=[], x=[V_, Q_], b0=[WO_, W1_], b1=[W2_], **REST),
       3: dict(s=[K_, V_], x=[Q_, WO_], b0=[W1_, W2_], **REST),
       4: dict(s=[K_, V_, Q_, WO_], x=[W1_, W2_], b0=[T3(0), T3(1)], r1=[T3(2), T3(3)], r2=[T4(0), T4(1)], r3=[T4(2), T4(3)]),
       5: dict(s=[K_, V_], x=[Q_, WO_, W1_, W2_], **REST),
       6: dict(s=[K_, V_, Q_], x=[WO_, W1_, W2_], **REST),
       7: dict(s=[K_, V_], x=[Q_, WO_], r1=[W2_, T3(0), T3(1)], r2=[T3(2), T3(3)], r3=[T4(0), T4(1), T4(2), T4(3)], b3=[W1_]),
       8: dict(s=[K_, V_], x=[Q_, WO_, W1_, W2_], r1=[T3(0), T3(1), T3(2), T3(3)], r2=[T4(0), T4(1)], r3=[T4(2), T4(3)]),
       }[OPT.get("sch", 0)]
for k_ in ("s", "x", "b0", "b1", "b3", "r1", "r2", "r3", "b9"): SCH.setdefault(k_, [])
TS0, TSL, TSL2 = OPT.get("t0sl", 6), OPT.get("tsl", 8), OPT.get("tsl2", 14)
touches(SCH["x"], "h", TS0)
def cs(base, slot, half=False):
    e(f"s_mov_b32 s{sT0}, {base}")
    e(f"s_call_b64 {sr(sRET,2)}, {'L_csh' if half else 'L_cs'}")
    e(f"s_lshl_b32 s{sT0}, s{sKH}, {6 if half else 7}")
    e(f"v_add_u32 v{vT2}, s{sT0}, v{vCSW}")
    e(f"s_mov_b64 exec, {sr(sM1,2)}")
    for i in range(1 if half else 2): e(f"ds_write_b128 v{vT2}, {vr(vACC+4*i,4)} offset:{256*slot+64*i}")
    e("s_mov_b64 exec, -1")
    e("s_waitcnt lgkmcnt(0)")
def halo_fetch(which):
    sk = uid("hf"); l = sk+"_l"; d = sk+"_d"
    e(f"s_cmp_lg_u32 s{sWAVE}, 5")
    e(f"s_cbranch_scc1 {sk}")
    e(f"s_lshl_b32 s{sT0}, s{sG}, 3")
    e(f"s_add_u32 s{sT0}, s{sT0}, s{sJ}")
    e(f"s_sub_u32 s{sT0}, s{sT0}, 8")
    e(f"s_lshl_b32 s{sHKO}, s{sT0}, 12")
    e(f"s_add_u32 s{sHKO}, s{sHKO}, {WS_HK + (2048 if which else 256)}")
    e(f"s_lshl_b32 s{sT0}, s{sT0}, 7")
    e(f"s_add_u32 s{sT0}, s{sT0}, {WS_FL2}")
    e(f"s_cmp_eq_u32 s{sG}, 0")
    e(f"s_cselect_b32 s{sHKO}, {OOB}, s{sHKO}")
    e(f"s_cbranch_scc1 {d}")
    lab(l)
    e(f"s_mov_b32 s{sM0}, 0")
    e(f"s_atomic_add s{sM0}, {sr(pWSP,2)}, s{sT0} glc")
    e("s_waitcnt lgkmcnt(0)")
    e(f"s_bitcmp1_b32 s{sM0}, {8*which}")
    e(f"s_cbranch_scc0 {spin(l, d)}")
    lab(d)
    e(f"buffer_load_dwordx4 {vr(vA,4)}, v{vL16}, {sr(sWS,4)}, s{sHKO} offen sc1")
    e(f"buffer_load_dwordx4 {vr(vA+4,4)}, v{vL16}, {sr(sWS,4)}, s{sHKO} offen offset:1024 sc1")
    e(f"v_add_u32 v{vT2}, {XB if which else KA}, v{vL16}")
    if not which:
        e(f"v_mov_b32 v{vT4}, {LOOB}")
        e(f"v_cmp_gt_u32 {sr(sM0,2)}, 48, v{vLANE}")
        nop(2)
        e(f"v_cndmask_b32 v{vT3}, v{vT4}, v{vT2}, {sr(sM0,2)}")
    e(f"v_mov_b32 v{vT6}, {1+which}")
    e("s_waitcnt vmcnt(0)")
    e(f"ds_write_b128 v{vT2}, {vr(vA,4)}")
    e(f"ds_write_b128 v{vT2 if which else vT3}, {vr(vA+4,4)} offset:1024")
    e(f"ds_write_b32 v{vCB}, v{vT6} offset:{C_KV}")
    lab(sk)
e(f"v_mov_b32 v{vT6}, 0")
e(f"v_min_u32 v{vT2}, 15, v{vLANE}")
e(f"v_lshl_add_u32 v{vT2}, v{vT2}, 2, v{vCB}")
e(f"ds_write_b32 v{vT2}, v{vT6}")
e("s_waitcnt lgkmcnt(0)")
barrier("h")
e(f"s_cmp_eq_u32 s{sWAVE}, 4")
e("s_cbranch_scc1 L_in_n")
e(f"global_load_dword v{vIN+1}, v{vIN}, {sr(pDBG,2)}")
lab("L_in_n")
barrier("h")
e(f"s_cmp_eq_u32 s{sWAVE}, 4")
e("s_cbranch_scc1 L_in_d")
e("s_branch L_in_chk")
lab("L_in_loop")
e("s_sleep 8")
e(f"global_load_dword v{vIN+1}, v{vIN}, {sr(pDBG,2)} sc1")
lab("L_in_chk")
e("s_waitcnt vmcnt(0)")
e(f"v_cmp_eq_u32 {sr(sM0,2)}, 1, v{vIN+1}")
e(f"s_cmp_eq_u64 {sr(sM0,2)}, -1")
e(f"s_cbranch_scc0 {spin('L_in_loop', 'L_in_d')}")
lab("L_in_d")
barrier("h")
barrier("h")
barrier("h")
touches(SCH["b3"], "h", TSL)
halo_fetch(0)
barrier("h")
e("s_sleep 4")
halo_fetch(1)
barrier("h")
barrier("h")
cs(0, 0)
e(f"s_lshl_b32 s{sT0}, s{sKH}, 2")
e(f"v_add_u32 v{vT2}, s{sT0}, v{vCB}")
e(f"v_mov_b32 v{vT6}, 1")
e(f"ds_write_b32 v{vT2}, v{vT6} offset:{C_CSF}")
barrier("h")
barrier("h")
cs(0, 1)
barrier("h")
cs(32768, 2)
barrier("h")
cs(0, 1)
barrier("h")
cs(32768, 2, True)
prof_flush()
e("s_endpgm")
for half in (False, True):
    lab("L_csh" if half else "L_cs")
    blocks = [(par, it) for par in range(2) for it in range(1 if half else 2)]
    for bi, (par, it) in enumerate(blocks):
        if it == 0:
            e(f"v_add_u32 v{vW}, s{sT0}, v{vB32 if half else vB}")
            if not half: e(f"v_add_u32 v{vW+1}, s{sT0}, v{vB+1}")
            e(f"s_add_u32 s{sT0}, s{sT0}, 65536")
        for i in range(8):
            for h in range(2):
                off = (i*2048 + 1024*h) if half else (it*16384 + (i >> 1)*4096 + 2048*h)
                e(f"ds_read_b64_tr_b16 {vr(vA+4*i+2*h,2)}, v{vW if half else vW+(i&1)} offset:{off}")
        for i in range(8):
            e(f"s_waitcnt lgkmcnt({14-2*i})")
            e(mf_text(vA+4*i, vON, vACC if (half or i % 2 == 0) else vACC+4, bi == 0 and i < (1 if half else 2)))
    nop(4)
    e(f"s_setpc_b64 {sr(sRET,2)}")

vPat, vP3072, vP1024, vP3584, vPH = 12, 13, 14, 15, 16
lab("L_loader")
e(f"s_setprio {OPT.get('lp', 2)}")
e(f"v_lshrrev_b32 v{vT2}, 3, v{vLANE}")
e(f"v_bfe_u32 v{vT3}, v{vT2}, 1, 2")
e(f"v_lshlrev_b32 v{vT3}, 1, v{vT3}")
e(f"v_and_b32 v{vT4}, 7, v{vLANE}")
e(f"v_xor_b32 v{vT3}, v{vT3}, v{vT4}")
e(f"v_lshlrev_b32 v{vT3}, 4, v{vT3}")
e(f"v_mul_u32_u24 v{vP3072}, 3072, v{vT2}")
e(f"v_add_u32 v{vP3072}, v{vP3072}, v{vT3}")
e(f"v_lshl_add_u32 v{vP1024}, v{vT2}, 10, v{vT3}")
e(f"v_mul_u32_u24 v{vP3584}, 3584, v{vT2}")
e(f"v_add_u32 v{vP3584}, v{vP3584}, v{vT3}")
e(f"v_lshrrev_b32 v{vT2}, 2, v{vLANE}")
e(f"v_bfe_u32 v{vT3}, v{vT2}, 2, 1")
e(f"v_lshlrev_b32 v{vT3}, 1, v{vT3}")
e(f"v_and_b32 v{vT4}, 3, v{vLANE}")
e(f"v_xor_b32 v{vT3}, v{vT3}, v{vT4}")
e(f"v_mul_u32_u24 v{vPH}, 3584, v{vT2}")
e(f"v_lshl_add_u32 v{vPH}, v{vT3}, 4, v{vPH}")
e(f"s_lshl_b32 s{sT2}, s{sJ}, 7")
e(f"s_mul_i32 s{sC3}, s{sJ}, 448")
e(f"s_and_b32 s{sT0}, s{sJ}, 1")
e(f"s_lshl_b32 s{sT1}, s{sT0}, 6")
e(f"s_xor_b32 s{sT0}, s{sT0}, 1")
e(f"s_mul_i32 s{sT0}, s{sT0}, 384")
e(f"s_add_u32 s{sCQ}, s{sC3}, s{sT0}")
e(f"s_add_u32 s{sC3}, s{sC3}, s{sT1}")
e("s_waitcnt lgkmcnt(0)")
e(f"s_mov_b32 s{sWS}, s{pWSP}")
e(f"s_mov_b32 s{sWS+1}, s{pWSP+1}")
cur = {}
issued = []
def setif(key, val, emit):
    if cur.get(key) != val:
        emit(); cur[key] = val
def issue(li):
    P, s_ = li // 2, li % 2
    if li < 18:
        if P <= 2: ptr, size, pat, rs, col, cc = pWQKV, 512*3072, vP3072, 3072, sT2, (1024, 2048, 0)[P]
        elif P <= 5: ptr, size, pat, rs, col, cc = (pWO, pW1, pW2)[P-3], 512*1024, vP1024, 1024, sT2, 0
        else: ptr, size, pat, rs, col, cc = pW3, 512*3584, vP3584, 3584, sC3, 128*(P-6)
        step, mid, kstr, c0 = 8*rs, 0, 128*rs, cc + 256*rs*s_
    elif li == 18:
        ptr, size, pat, col = pW3, 512*3584, vPH, sCQ
        step, mid, kstr, c0 = 16*3584, 128*3584, 128*3584, 0
    else:
        c = li - 19
        ptr, size, pat, col = pW4, 1792*1024, vP1024, sT2
        if c < 6: step, mid, kstr, c0 = 8192, 192*1024, 448*1024, (64*(c//2) + 896*(c%2))*1024
        else: step, mid, kstr, c0 = 8192, 384*1024, 896*1024, 192*1024
    def esrc():
        e(f"s_mov_b32 s{sW}, s{ptr}"); e(f"s_mov_b32 s{sW+1}, s{ptr+1}"); e(f"s_mov_b32 s{sW+2}, {size}")
    setif("ptr", ptr, esrc)
    setif("pat", pat, lambda: e(f"v_mov_b32 v{vPat}, v{pat}"))
    setif("step", step, lambda: e(f"s_mov_b32 s{sSTEP}, {step}"))
    setif("mid", mid, lambda: e(f"s_mov_b32 s{sMID}, {mid}"))
    setif("kstr", kstr, lambda: e(f"s_mul_i32 s{sT1}, s{sKH}, {kstr}"))
    e(f"s_add_u32 m0, s{sPAR}, {(li & 3)*16384}")
    e(f"s_add_u32 s{sSO}, s{col}, s{sT1}")
    if c0: e(f"s_add_u32 s{sSO}, s{sSO}, {c0}")
    e(f"s_call_b64 {sr(sRET,2)}, L_iss")
    issued.append(li)
def land(li):
    idx = issued.index(li)
    e(f"s_waitcnt vmcnt({sum(1 if x == 't' else 16 for x in issued[idx+1:])})")
def ltouch(key, sleep):
    issued.extend(["t"]*touches(SCH[key], "l", sleep))
ltouch("s", 0)
barrier("l")
issue(0); issue(1)
ltouch("x", OPT.get("tsd", 6))
sched = [(None, [], None),
         (1, [2, 3], "b0"),
         (3, [4, 5], "b1"),
         (5, [], None),
         (None, [6, 7], "b3"),
         (7, [], None),
         (None, [8, 9], "r1"),
         (9, [10, 11], "r2"),
         (11, [12, 13], "r3"),
         (13, [14, 15], None),
         (15, [16, 17], "b9"),
         (17, [18, 19], None),
         (18, [20, 21], None),
         (19, [22], None),
         (20, [], None), (21, [23], None), (22, [24], None), (23, [25], None), (24, [], None), (25, [], None)]
for k, (nd, aft, tk) in enumerate(sched):
    if nd is not None: land(nd)
    prof(k+1)
    barrier("l")
    for li in aft: issue(li)
    if tk: ltouch(tk, OPT.get("tsr", 30) if tk[0] == "r" else OPT.get("tsd", 6))
prof_flush()
e("s_endpgm")
lab("L_iss")
for i in range(16):
    e(f"buffer_load_dwordx4 v{vPat}, {sr(sW,4)}, s{sSO} offen lds")
    if i < 15:
        e("s_add_u32 m0, m0, 1024")
        e(f"s_add_u32 s{sSO}, s{sSO}, s{sSTEP}")
    if i == 7: e(f"s_add_u32 s{sSO}, s{sSO}, s{sMID}")
e(f"s_setpc_b64 {sr(sRET,2)}")
emit_tails()
lab("L_end")
e("s_endpgm")
assert nbar["c"] == nbar["l"] + 1, nbar

out.append('.section .rodata,"a"')
out.append(".p2align 6")
out.append(f".amdhsa_kernel {NAME}_kernel")
out.append(f"  .amdhsa_next_free_vgpr {NVGPR}")
out.append("  .amdhsa_next_free_sgpr 100")
out.append(f"  .amdhsa_accum_offset {NVGPR}")
out.append("  .amdhsa_group_segment_fixed_size 0")
out.append("  .amdhsa_kernarg_size 88")
out.append("  .amdhsa_user_sgpr_count 2")
out.append("  .amdhsa_user_sgpr_kernarg_segment_ptr 1")
out.append("  .amdhsa_system_sgpr_workgroup_id_x 1")
out.append(".end_amdhsa_kernel")
dst = [a for a in sys.argv[1:] if not a.startswith("--")]
open(dst[0] if dst else "cdna_kernels/%s.s" % NAME, "w").write("\n".join(o for o in out if o is not None) + "\n")
```

```python
import sys, math, struct

NAME = "sequential_preLN__sliding_local_dilated__mixer_s_mlp__prompt"
PROF = "--prof" in sys.argv
OPT = {}
for a in sys.argv:
    if a.startswith("--") and "=" in a:
        k, v = a[2:].split("="); OPT[k] = int(v)

out = []
def e(s): out.append("    " + s)
def lab(s): out.append(s + ":")
def cmt(s): out.append("    ; " + s)
def align(): out.append(".p2align 3")
def nop(n):
    while n > 0:
        k = min(n, 16); e(f"s_nop {k-1}"); n -= k
def f32(x): return "0x%08x" % struct.unpack("<I", struct.pack("<f", x))[0]
def vr(a, n): return f"v[{a}:{a+n-1}]"
def sr(a, n): return f"s[{a}:{a+n-1}]"
_uid = [0]
def uid(p):
    _uid[0] += 1
    return f"L_{p}_{_uid[0]}"

WS_O, WS_H, WS_H1, WS_X1, WS_G = 0, 2<<20, 4<<20, 6<<20, 8<<20
WS_HS = 15<<20
WS_X1S = WS_HS + (128<<10)
WS_FL = WS_HS + (256<<10)
WS_FL2 = WS_FL + (8<<10)
WS_HK = 16<<20
WS_PROF = 17<<20
WS_SIZE = 18<<20
GT = 56*1024
OOB = 0x40000000
LOOB = 0x30000
XB = 131072
KA = XB + 16384
KSZ = 1792
VA = KA + 4*KSZ
CSA = VA + 4*2048
CB = CSA + 768
C_KV, C_CSF, C_XF = 0, 8, 16
LDS_BYTES = 163840
assert CB + 64 <= LDS_BYTES and VA % 256 == 0

sWAVE = 3
sX, sWS, sOUT = 4, 8, 12
sW = 12
pX, pWQKV, pWO, pBX, pW1, pW2, pW3, pW4, pOUT, pDBG, pWSP = 16, 18, 20, 22, 24, 26, 28, 30, 32, 34, 36
sJ, sG, sUNIT, sTILE, sBUD, sCNT = 38, 39, 40, 41, 42, 43
sT0, sT1, sT2, sT3 = 44, 45, 46, 47
sRET, sRET2 = 48, 50
sONES, sCEXP, sPUBO, sPUBV = 52, 53, 54, 55
sFLW = 56
sODD = 58
sOFFA, sPAR, sDST, sFLOFF, sR32, sHF, sHKO, sKH = 60, 61, 62, 63, 64, 65, 66, 67
sM0, sM1 = 68, 70
sFB, sFG = 72, 74
sTAIL, sXSEQ, sMK0, sNBO, sCSN = 89, 90, 91, 92, 93
sONE2 = 76
sPT, sPIDX = 78, 80
sSO, sSTEP, sC3, sCQ, sTA, sTB, sTC, sMID = 81, 82, 83, 84, 85, 86, 87, 88
vLANE = 0
vT0, vT1, vT2, vT3, vT4, vP, vCB, vT6, vT7 = 1, 2, 3, 4, 5, 6, 7, 8, 9
vL16, vFLO = 10, 11
vB, vW, vB32 = 12, 16, 20
vSC, vR1 = 22, 24
vSTO, vOUTO, vXA, vXP = 26, 27, 28, 29
vGA = 30
vLA = 32
vXR, vHP, vX1P = 36, 44, 52
vST = 60
vA, vWB = 64, 128
vACC, vACP = 160, 176
vE = 192
vPK, vK = 224, 232
vMS, vGB, vNMH = 240, 242, 244
vCSR = 246
vW1, vXFP, vBIT, vCF = 248, 249, 250, 252
vHS = 254
vP2 = 247
NVGPR = 256

def prof(idx):
    if not PROF: return
    e(f"s_memrealtime {sr(sPT,2)}")
    e("s_memtime s[98:99]")
    e("s_waitcnt lgkmcnt(0)")
    e(f"v_writelane_b32 v{vP}, s{sPT}, {idx}")
    e(f"v_writelane_b32 v{vP}, s98, {idx+32}")
def prof_flush():
    if not PROF: return
    e(f"v_lshlrev_b32 v{vT0}, 2, v{vLANE}")
    if OPT.get("dp") is not None: e(f"v_mov_b32 v{vP}, v{vP2}")
    e(f"buffer_store_dword v{vP}, v{vT0}, {sr(sWS,4)}, s{sPIDX} offen")
tails = []
def spin(loop, done):
    tails.append((loop+"_s", loop, done))
    return loop+"_s"
def emit_tails():
    for s_, l, d in tails:
        lab(s_)
        e(f"s_sub_u32 s{sBUD}, s{sBUD}, 1")
        e(f"s_cbranch_scc0 {l}")
        e(f"s_mov_b32 s{sBUD}, 0")
        e(f"s_branch {d}")
    tails.clear()
def red2x2(a, b, t, a2, b2, t2):
    e(f"v_permlane16_swap_b32 v{a}, v{b}")
    e(f"v_permlane16_swap_b32 v{a2}, v{b2}")
    e(f"v_add_f32 v{a}, v{a}, v{b}")
    e(f"v_add_f32 v{a2}, v{a2}, v{b2}")
    e(f"v_mov_b32 v{t}, v{a}")
    e(f"v_mov_b32 v{t2}, v{a2}")
    nop(1)
    e(f"v_permlane32_swap_b32 v{a}, v{t}")
    e(f"v_permlane32_swap_b32 v{a2}, v{t2}")
    e(f"v_add_f32 v{a}, v{a}, v{t}")
    e(f"v_add_f32 v{a2}, v{a2}, v{t2}")
    e(f"v_mov_b32 v{t}, v{a}")
    e(f"v_mov_b32 v{t2}, v{a2}")
    nop(1)
    e(f"v_permlane16_swap_b32 v{a}, v{t}")
    e(f"v_permlane16_swap_b32 v{a2}, v{t2}")
def red2(a, b, t):
    e(f"v_permlane16_swap_b32 v{a}, v{b}")
    e(f"v_add_f32 v{a}, v{a}, v{b}")
    e(f"v_mov_b32 v{t}, v{a}")
    nop(2)
    e(f"v_permlane32_swap_b32 v{a}, v{t}")
    e(f"v_add_f32 v{a}, v{a}, v{t}")
    e(f"v_mov_b32 v{t}, v{a}")
    nop(2)
    e(f"v_permlane16_swap_b32 v{a}, v{t}")
def mean_var(vs, vq):
    e(f"v_mul_f32 v{vs}, {f32(-1.0/512)}, v{vs}")
    e(f"v_mul_f32 v{vq}, {f32(1.0/512)}, v{vq}")
    e(f"v_fma_f32 v{vq}, -v{vs}, v{vs}, v{vq}")
    e(f"v_max_f32 v{vq}, 0, v{vq}")
def zero(base, n):
    for i in range(n): e(f"v_mov_b32 v{base+i}, 0")
class LQ:
    def __init__(self, pend=()): self.q = list(pend)
    def op(self, id_, text): e(text); self.q.append(id_)
    def need(self, ids, vm=None):
        idx = max([i for i, x in enumerate(self.q) if x in ids], default=-1)
        parts = []
        if vm is not None: parts.append(f"vmcnt({vm})")
        if idx >= 0:
            parts.append(f"lgkmcnt({min(len(self.q)-1-idx, 15)})")
            self.q = self.q[idx+1:]
        if parts: e("s_waitcnt " + " ".join(parts))
def rd_text(buf, h, p, half_panel=False, base=0):
    if half_panel: off = ((p >> 1) & 7)*2048 + 1024*h; jj = p & 1
    else: off = (p >> 2)*4096 + 2048*h; jj = p & 3
    return f"ds_read_b64_tr_b16 {vr(buf+2*h,2)}, v{vW+jj} offset:{base+off}"
def mf_text(buf, areg, c, czero=False):
    return f"v_mfma_f32_16x16x32_bf16 {vr(c,4)}, {vr(buf,4)}, {vr(areg,4)}, {'0' if czero else vr(c,4)}"
def wtog(jj): e(f"v_xor_b32 v{vW+jj}, 0x8000, v{vW+jj}")
T_W = lambda i: f"ds_write_b128 v{vXA}, {vr(vACP+4*i,4)} offset:{1024*i}"
T_R = lambda i: f"ds_read_b128 {vr(vE+4*i,4)}, v{vXP} offset:{1024*i}"
T_C = lambda i: f"ds_read_b128 {vr(vACP+4*i,4)}, v{vCSR} offset:{64*i}"
def pre(half_panel=False, base=0):
    for p in range(6):
        for h in range(2): e(rd_text(vWB+4*p, h, p, half_panel, base))
nbar = {"c": 0, "h": 0, "l": 0}
def barrier(role, n=1, emit=True):
    if role == "h" and nbar[role] and nbar[role] < 32: prof(nbar[role])
    nbar[role] += n
    if emit: e("s_barrier")

DS = [14, 82, 86, 88, 94, 96, 98, 100]
def dst_(i):
    if OPT.get("dp") is not None: e(f"s_memtime {sr(DS[i],2)}")
ncall = [0]
def gen_pass64():
    buf = lambda q: (vE + 4*(q-16)) if 16 <= q < 24 else (vWB + 4*(q % 8))
    areg = lambda q, t: vA + 8*(q >> 2) + 4*t
    acc = lambda q, t: (vACP if t else vACC) + 4*(q & 3)
    lq = LQ([f"f{p}" for p in range(6) for h in range(2)])
    def RD(q, h, nxt=False):
        lq.op(("n" if nxt else "f")+str(q), rd_text(vWB+4*q if nxt else buf(q), h, q))
    pend = [(q, h) for q in range(4+6, 32) for h in range(2)]
    def dual(q, czero=False):
        for t in range(2):
            e(mf_text(buf(q), areg(q, t), acc(q, t), czero))
            if q < 4: RD(q+6, t)
            else:
                RD(*pend.pop(0))
                if q >= 10 and t == 0: RD(*pend.pop(0))
    def waitq(q, vm=None): lq.need([f"f{q}", f"f{q+1}"], vm)
    align(); lab("L_pass64b")
    save = list(lq.q)
    for q in range(4):
        if q % 2 == 0: waitq(q, 14 if q == 0 else None)
        dual(q)
    e("s_branch L_pass64_c")
    lq.q = save
    align(); lab("L_pass64")
    for q in range(4):
        if q % 2 == 0: waitq(q, 14 if q == 0 else None)
        dual(q, True)
    lab("L_pass64_c")
    dst_(1)
    for q in range(4, 16):
        if q % 2 == 0: waitq(q, 14-2*(q >> 2) if q % 4 == 0 else None)
        dual(q)
    dst_(2)
    todo = [lambda j=j: wtog(j) for j in range(4)]
    for q in range(16, 32):
        if q % 2 == 0: waitq(q, 14-2*(q >> 2) if q % 4 == 0 else None)
        e(mf_text(buf(q), areg(q, 1), acc(q, 1)))
        k = 0
        while pend and k < 2: RD(*pend.pop(0)); k += 1
        if q == OPT.get("ph", 30):
            e("s_cbranch_vccnz L_pubhook"); lab("L_pubret"); k += 1
        while not pend and todo and k < 1: todo.pop(0)(); k += 1
    assert not pend and not todo
    O = lambda q: e(mf_text(buf(q), areg(q, 0), acc(q, 0)))
    W = lambda i: lq.op(f"W{i}", T_W(i))
    dst_(3)
    e(f"s_bitcmp1_b32 s{sTAIL}, 0")
    e("s_cbranch_scc1 L_pass64_f")
    save = list(lq.q)
    O(16); O(17); O(18); O(19); W(0); O(20); O(21); W(1); O(22); O(23); W(2); O(24); O(25); W(3); O(26); O(27)
    dst_(4)
    lq.need(["W3"])
    dst_(5)
    e("s_barrier")
    dst_(6)
    O(28)
    for i in range(2): lq.op(f"R{i}", T_R(i))
    O(29)
    for i in range(2, 4): lq.op(f"R{i}", T_R(i))
    O(30); RD(0, 0, True); RD(0, 1, True)
    O(31); RD(1, 0, True); RD(1, 1, True)
    for i in range(4): lq.op(f"C{i}", T_C(i))
    for q in range(2, 6): RD(q, 0, True); RD(q, 1, True)
    lq.need(["R3"])
    for i in range(8): e(f"v_pk_add_f32 {vr(vE+2*i,2)}, {vr(vACC+2*i,2)}, {vr(vE+2*i,2)}")
    lq.need(["C3"])
    dst_(7)
    e(f"s_setpc_b64 {sr(sRET,2)}")
    lq.q = save
    align(); lab("L_pass64_f")
    O(16); e(f"s_add_u32 s{sXSEQ}, s{sXSEQ}, 1"); O(17); e(f"v_mov_b32 v{vT7}, s{sXSEQ}"); O(18); W(0); O(19); O(20); W(1); O(21); O(22); W(2); O(23); O(24); W(3)
    lq.op("X", f"ds_write_b32 v{vW1}, v{vT7} offset:{C_XF}")
    O(25); lq.op("CF", f"ds_read_b64 {vr(vCF,2)}, v{vCB} offset:{C_CSF}")
    O(26); lq.op("C0", T_C(0)); lq.op("C1", T_C(1)); O(27); lq.op("C2", T_C(2)); lq.op("C3", T_C(3))
    O(28); O(29)
    lq.op("F", f"ds_read_b32 v{vT6}, v{vXFP} offset:{C_XF}"); lq.op("R0", T_R(0))
    O(30); lq.op("R1", T_R(1)); lq.op("R2", T_R(2)); O(31); lq.op("R3", T_R(3))
    nop(2)
    lab("L_xf_w")
    e("s_waitcnt lgkmcnt(0)")
    e(f"v_readfirstlane_b32 s{sT0}, v{vT6}")
    for i in range(8): e(f"v_pk_add_f32 {vr(vE+2*i,2)}, {vr(vACC+2*i,2)}, {vr(vE+2*i,2)}")
    e(f"s_cmp_ge_u32 s{sT0}, s{sXSEQ}")
    e("s_cbranch_scc0 L_xf_r")
    lab("L_xf_d")
    e(f"s_setpc_b64 {sr(sRET,2)}")
    lab("L_xf_r")
    e(f"ds_read_b32 v{vT6}, v{vXFP} offset:{C_XF}")
    for i in range(4): e(T_R(i))
    e(f"s_sub_u32 s{sBUD}, s{sBUD}, 1")
    e("s_cbranch_scc0 L_xf_w")
    e(f"s_mov_b32 s{sBUD}, 0")
    e("s_branch L_xf_d")
    lab("L_pubhook")
    e(f"v_mov_b32 v{vT6}, s{sPUBV}")
    e("s_waitcnt vmcnt(0)")
    e(f"buffer_atomic_add v{vT6}, v{vFLO}, {sr(sWS,4)}, s{sPUBO} offen sc1")
    e("s_mov_b64 vcc, 0")
    e("s_branch L_pubret")
def call_pass(name="L_pass64", bar=True):
    dst_(0)
    e(f"s_call_b64 {sr(sRET,2)}, {name}")
    if OPT.get("dp") == ncall[0]:
        e("s_waitcnt lgkmcnt(0)")
        for i in range(8): e(f"v_writelane_b32 v{vP2}, s{DS[i]}, {i}")
    ncall[0] += 1
    if bar: barrier("c", 1, False)
def scalepack(dst):
    for i in range(8): e(f"v_pk_mul_f32 {vr(vE+2*i,2)}, {vr(vE+2*i,2)}, {vr(vSC,2)}")
    for i in range(8): e(f"v_cvt_pk_bf16_f32 v{dst+i}, v{vE+2*i}, v{vE+2*i+1}")

hdr = open("cdna_kernels/%s.s.ref" % NAME).read().split("\n")
for l in hdr:
    if l.startswith("; Override"): break
    out.append(l)
out.append(f"; @launch grid=(256,1,1) block=(512,1,1) lds={LDS_BYTES}")
out.append('.amdgcn_target "amdgcn-amd-amdhsa--gfx950"')
out.append(".text")
out.append(f".globl {NAME}_kernel")
out.append(".p2align 8")
out.append(f".type {NAME}_kernel,@function")
lab(f"{NAME}_kernel")
if PROF: e("s_memrealtime s[96:97]")
e("s_cmp_ge_u32 s2, 256")
e("s_cbranch_scc1 L_end")
e(f"s_load_dwordx16 {sr(16,16)}, s[0:1], 0")
e(f"s_load_dwordx4 {sr(32,4)}, s[0:1], 64")
e(f"s_load_dwordx2 {sr(36,2)}, s[0:1], 80")
e(f"v_lshrrev_b32 v1, 6, v0")
e(f"v_and_b32 v{vLANE}, 63, v0")
e(f"v_readfirstlane_b32 s{sWAVE}, v1")
MAP42 = OPT.get("map", 42) == 42
if MAP42:
    e(f"s_and_b32 s{sHF}, s2, 1")
    e(f"s_lshr_b32 s{sR32}, s2, 3")
    e(f"s_and_b32 s{sJ}, s{sR32}, 3")
    e(f"s_lshl_b32 s{sT0}, s{sHF}, 2")
    e(f"s_add_u32 s{sJ}, s{sJ}, s{sT0}")
    e(f"s_and_b32 s{sG}, s2, 6")
    e(f"s_lshl_b32 s{sG}, s{sG}, 2")
    e(f"s_lshr_b32 s{sT1}, s{sR32}, 2")
    e(f"s_add_u32 s{sG}, s{sG}, s{sT1}")
else:
    e(f"s_lshr_b32 s{sR32}, s2, 3")
    e(f"s_and_b32 s{sJ}, s{sR32}, 7")
    e(f"s_and_b32 s{sG}, s2, 7")
    e(f"s_lshl_b32 s{sG}, s{sG}, 2")
    e(f"s_lshr_b32 s{sT1}, s{sR32}, 3")
    e(f"s_add_u32 s{sG}, s{sG}, s{sT1}")
e(f"s_mov_b32 s{sBUD}, 0x80000")
e(f"s_and_b32 s{sKH}, s{sWAVE}, 1")
e(f"s_lshl_b32 s{sPAR}, s{sKH}, 16")
e(f"v_mov_b32 v{vCB}, {CB}")
e(f"v_lshlrev_b32 v{vL16}, 4, v{vLANE}")
e(f"v_lshrrev_b32 v{vT0}, 4, v{vLANE}")
e(f"v_and_b32 v{vT1}, 15, v{vLANE}")
e(f"s_mov_b32 s{sWS+2}, {WS_SIZE}")
e(f"s_mov_b32 s{sWS+3}, 0x00020000")
e(f"s_mov_b32 s{sX+3}, 0x00020000")
e(f"s_mov_b32 s{sOUT+3}, 0x00020000")
e(f"s_mov_b32 s{sONES}, 0x3f803f80")
if PROF:
    e(f"s_lshl_b32 s{sPIDX}, s2, 3")
    e(f"s_add_u32 s{sPIDX}, s{sPIDX}, s{sWAVE}")
    e(f"s_lshl_b32 s{sPIDX}, s{sPIDX}, 8")
    e(f"s_add_u32 s{sPIDX}, s{sPIDX}, {WS_PROF}")
    e(f"v_mov_b32 v{vP}, 0")
    e("s_waitcnt lgkmcnt(0)")
    e(f"v_writelane_b32 v{vP}, s96, 63")
e(f"s_cmp_ge_u32 s{sWAVE}, 4")
e("s_cbranch_scc1 L_service")

def tr_bases():
    e(f"v_lshrrev_b32 v{vT3}, 2, v{vLANE}")
    e(f"v_bfe_u32 v{vT4}, v{vT3}, 1, 2")
    e(f"v_lshlrev_b32 v{vT4}, 5, v{vT4}")
    e(f"v_and_b32 v{vT2}, 3, v{vLANE}")
    e(f"v_lshl_add_u32 v{vT4}, v{vT2}, 3, v{vT4}")
    e(f"v_lshl_add_u32 v{vB}, v{vT3}, 7, v{vT4}")
    for jj in range(1, 4): e(f"v_xor_b32 v{vB+jj}, {jj<<5}, v{vB}")
    e(f"v_and_b32 v{vT4}, 1, v{vT0}")
    e(f"v_lshlrev_b32 v{vT4}, 5, v{vT4}")
    e(f"v_lshl_add_u32 v{vT4}, v{vT2}, 3, v{vT4}")
    e(f"v_lshl_add_u32 v{vB32}, v{vT3}, 6, v{vT4}")
    e(f"v_xor_b32 v{vB32+1}, 32, v{vB32}")
e(f"s_lshl_b32 s{sTILE}, s{sG}, 2")
e(f"s_add_u32 s{sTILE}, s{sTILE}, s{sWAVE}")
e(f"s_lshr_b32 s{sUNIT}, s{sTILE}, 1")
e(f"s_mov_b32 s{sX+2}, {2<<20}")
e(f"s_lshl_b32 s{sT2}, s{sUNIT}, 15")
e(f"s_lshl_b32 s{sT0}, s{sKH}, 8")
e(f"s_add_u32 s{sT2}, s{sT2}, s{sT0}")
e(f"s_lshr_b32 s{sT3}, s{sWAVE}, 1")
e(f"s_lshl_b32 s{sT3}, s{sT3}, 14")
e(f"s_add_u32 s{sT3}, s{sT3}, s{sPAR}")
e(f"s_add_u32 s{sT3}, s{sT3}, 32768")
e(f"s_mov_b32 m0, s{sT3}")
e(f"v_lshrrev_b32 v{vT2}, 5, v{vLANE}")
e(f"v_xor_b32 v{vT3}, v{vT1}, v{vT2}")
e(f"v_lshlrev_b32 v{vT3}, 4, v{vT3}")
e(f"v_lshl_add_u32 v{vT3}, v{vT2}, 10, v{vT3}")
e(f"v_and_b32 v{vT4}, 1, v{vT0}")
e(f"v_lshl_add_u32 v{vWB}, v{vT4}, 9, v{vT3}")
for i in range(1, 8): e(f"v_xor_b32 v{vWB+i}, {i<<5}, v{vWB}")
e("s_waitcnt lgkmcnt(0)")
e(f"s_mov_b32 s{sX}, s{pX}")
e(f"s_mov_b32 s{sX+1}, s{pX+1}")
for i in range(16):
    e(f"buffer_load_dwordx4 v{vWB+(i&7)}, {sr(sX,4)}, s{sT2} offen lds")
    if i < 15:
        e("s_add_u32 m0, m0, 1024")
        e(f"s_add_u32 s{sT2}, s{sT2}, 2048")
barrier("c")
prof(0)
e(f"s_mov_b32 s{sWS}, s{pWSP}")
e(f"s_mov_b32 s{sWS+1}, s{pWSP+1}")
e(f"s_mov_b32 s{sOUT}, s{pOUT}")
e(f"s_mov_b32 s{sOUT+1}, s{pOUT+1}")
e(f"s_mov_b32 s{sOUT+2}, {2<<20}")
e(f"s_mov_b32 s{sCEXP}, {f32(0.25*math.log2(math.e))}")
e(f"s_mov_b32 s{sODD}, 0xaaaaaaaa")
e(f"s_mov_b32 s{sODD+1}, 0xaaaaaaaa")
e(f"s_mov_b32 s{sONE2}, 1.0")
e(f"s_mov_b32 s{sONE2+1}, 1.0")
e("s_mov_b64 vcc, 0")
tr_bases()
for jj in range(4): e(f"v_add_u32 v{vW+jj}, s{sPAR}, v{vB+jj}")
e(f"v_lshlrev_b32 v{vCSR}, 4, v{vT0}")
e(f"v_add_u32 v{vCSR}, {CSA}, v{vCSR}")
e(f"s_lshl_b32 s{sT2}, s{sWAVE}, 12")
e(f"s_add_u32 s{sT2}, s{sT2}, {XB}")
e(f"v_add_u32 v{vXA}, s{sT2}, v{vL16}")
e(f"v_xor_b32 v{vXP}, 0x1000, v{vXA}")
e(f"v_cmp_eq_u32 {sr(sM0,2)}, 0, v{vLANE}")
e(f"v_cmp_gt_u32 {sr(sM1,2)}, 16, v{vLANE}")
e(f"v_mov_b32 v{vT2}, {OOB}")
e(f"s_lshl_b32 s{sFLOFF}, s{sUNIT}, 7")
e(f"s_add_u32 s{sFLOFF}, s{sFLOFF}, {WS_FL}")
e(f"v_cndmask_b32 v{vFLO}, v{vT2}, 0, {sr(sM0,2)}")
e(f"s_lshl_b32 s{sT0}, s{sTILE}, 10")
e(f"s_lshr_b32 s{sT1}, s{sJ}, 1")
e(f"s_lshl_b32 s{sT1}, s{sT1}, 8")
e(f"s_add_u32 s{sT0}, s{sT0}, s{sT1}")
e(f"s_and_b32 s{sT1}, s{sJ}, 1")
e(f"s_lshl_b32 s{sT1}, s{sT1}, 3")
e(f"s_add_u32 s{sT0}, s{sT0}, s{sT1}")
e(f"v_add_u32 v{vT3}, s{sT0}, v{vL16}")
e(f"v_cndmask_b32 v{vSTO}, v{vT2}, v{vT3}, {sr(sM1,2)}")
e(f"s_lshl_b32 s{sT0}, s{sG}, 3")
e(f"s_add_u32 s{sT0}, s{sT0}, s{sJ}")
e(f"s_lshl_b32 s{sPUBO}, s{sT0}, 7")
e(f"s_add_u32 s{sPUBO}, s{sPUBO}, {WS_FL2}")
e(f"s_lshl_b32 s{sHKO}, s{sT0}, 12")
e(f"s_add_u32 s{sHKO}, s{sHKO}, {WS_HK}")
e(f"s_lshl_b32 s{sDST}, s{sTILE}, 14")
e(f"s_lshl_b32 s{sT1}, s{sJ}, 11")
e(f"s_add_u32 s{sDST}, s{sDST}, s{sT1}")
e(f"s_lshl_b32 s{sT1}, s{sJ}, 7")
e(f"s_lshl_b32 s{sCQ}, s{sTILE}, 14")
e(f"s_add_u32 s{sCQ}, s{sCQ}, s{sT1}")
e(f"v_and_b32 v{vT3}, 1, v{vT0}")
e(f"v_lshlrev_b32 v{vT3}, 5, v{vT3}")
e(f"v_lshrrev_b32 v{vT4}, 1, v{vT0}")
e(f"v_lshl_add_u32 v{vT3}, v{vT4}, 4, v{vT3}")
e(f"v_lshl_add_u32 v{vOUTO}, v{vT1}, 10, v{vT3}")
e(f"v_add_u32 v{vOUTO}, s{sCQ}, v{vOUTO}")
GA = -2.0*math.sqrt(2.0/math.pi)*math.log2(math.e)
for i in range(2):
    e(f"v_mov_b32 v{vGA+i}, {f32(GA)}")
    e(f"v_mov_b32 v{vGB+i}, {f32(GA*0.044715)}")
def set_la(stride):
    e(f"s_mul_i32 s{sT0}, s{sKH}, {stride+4096}")
    e(f"s_mul_i32 s{sT1}, s{sKH}, {-stride+4096}")
    e(f"s_add_u32 s{sT1}, s{sT1}, {stride}")
    e(f"v_add_u32 v{vLA}, s{sT0}, v{vL16}")
    e(f"v_add_u32 v{vLA+1}, s{sT1}, v{vL16}")
    e(f"v_add_u32 v{vLA+2}, 0x2000, v{vLA}")
    e(f"v_add_u32 v{vLA+3}, 0x2000, v{vLA+1}")
set_la(16384)
XA = vE
e(f"v_lshrrev_b32 v{vT3}, 1, v{vT0}")
e(f"v_xor_b32 v{vT3}, v{vT3}, v{vT1}")
e(f"v_lshlrev_b32 v{vT3}, 4, v{vT3}")
e(f"v_lshl_add_u32 v{vT3}, v{vT1}, 9, v{vT3}")
e(f"v_and_b32 v{vT4}, 1, v{vT0}")
e(f"v_lshl_add_u32 v{vT3}, v{vT4}, 3, v{vT3}")
e(f"s_lshl_b32 s{sT0}, s{sKH}, 13")
e(f"s_add_u32 s{sT0}, s{sT0}, s{sT3}")
e(f"v_add_u32 v{XA}, s{sT0}, v{vT3}")
for c in range(1, 8): e(f"v_xor_b32 v{XA+c}, {c<<5}, v{XA}")
for c in range(8): e(f"v_xor_b32 v{XA+8+c}, 0x2000, v{XA+c}")
for i in range(4): e(f"v_mov_b32 v{vST+i}, 0")
e(f"s_lshl_b32 s{sT0}, s{sWAVE}, 11")
e(f"s_add_u32 s{sT0}, s{sT0}, {VA}")
e(f"v_lshl_add_u32 v{vT2}, v{vT1}, 4, s{sT0}")
e(f"v_xor_b32 v{vT3}, 0x800, v{vT1}") if False else None
e(f"s_lshl_b32 s{sT0}, s{sWAVE}, 2")
e(f"v_add_u32 v{vXFP}, s{sT0}, v{vCB}")
e(f"v_mov_b32 v{vT4}, {LOOB}")
e(f"v_cndmask_b32 v{vW1}, v{vT4}, v{vXFP}, {sr(sM0,2)}")
e(f"v_xor_b32 v{vXFP}, 4, v{vXFP}")
e(f"s_lshl_b32 s{sT0}, s{sJ}, 1")
e(f"s_add_u32 s{sT0}, s{sT0}, s{sKH}")
e(f"s_lshl_b32 s{sT0}, 1, s{sT0}")
e(f"v_mov_b32 v{vBIT}, s{sT0}")
e(f"s_lshl_b32 s{sT0}, s{sT0}, 16")
e(f"v_mov_b32 v{vBIT+1}, s{sT0}")
e(f"s_lshl_b32 s{sT0}, s{sKH}, 2")
e(f"s_lshl_b32 s{sMK0}, 15, s{sT0}")
e(f"s_mov_b32 s{sTAIL}, 0")
e(f"s_mov_b32 s{sXSEQ}, 0")
e(f"s_bfe_u32 s{sT0}, s{sJ}, 0x10001")
e(f"s_xor_b32 s{sT0}, s{sT0}, s{sKH}")
e(f"s_lshl_b32 s{sT0}, s{sT0}, 16")
e(f"s_and_b32 s{sT1}, s{sJ}, 1")
e(f"s_lshl_b32 s{sT1}, s{sT1}, 7")
e(f"s_or_b32 s{sT0}, s{sT0}, s{sT1}")
e(f"s_lshr_b32 s{sT1}, s{sJ}, 2")
e(f"s_lshl_b32 s{sT1}, s{sT1}, 8")
e(f"v_xor_b32 v{vK}, s{sT0}, v{XA}")
e(f"v_add_u32 v{vK}, s{sT1}, v{vK}")
for jj in range(1, 4): e(f"v_xor_b32 v{vK+jj}, {jj<<5}, v{vK}")
e(f"s_lshr_b32 s{sT0}, s{sJ}, 2")
e(f"s_add_u32 s{sT0}, s{sT0}, 1")
e(f"s_sub_u32 s{sT1}, 0, s{sT0}")
e(f"s_bitcmp1_b32 s{sJ}, 1")
e(f"s_cselect_b32 s{sT0}, s{sT1}, s{sT0}")
e(f"s_lshl_b32 s{sT1}, s{sTILE}, 4")
e(f"s_add_u32 s{sT0}, s{sT0}, s{sT1}")
e(f"s_movk_i32 s{sT1}, 0x800")
e(f"v_add_u32 v{vT3}, s{sT0}, v{vT1}")
e(f"v_cmp_gt_u32 {sr(sM1,2)}, s{sT1}, v{vT3}")
e(f"v_lshrrev_b32 v{vT4}, 4, v{vT3}")
e(f"v_lshlrev_b32 v{vT4}, 14, v{vT4}")
e(f"v_lshl_add_u32 v{vT4}, v{vT0}, 8, v{vT4}")
e(f"v_and_b32 v{vT3}, 15, v{vT3}")
e(f"v_lshl_add_u32 v{vT4}, v{vT3}, 4, v{vT4}")
e(f"v_mov_b32 v{vT3}, {OOB}")
e(f"v_cndmask_b32 v{vHS}, v{vT3}, v{vT4}, {sr(sM1,2)}")
BI, SEL = vX1P+2, vX1P+6
e(f"v_and_b32 v{vT3}, 1, v{vT1}")
e(f"v_lshl_add_u32 v{vT3}, v{vT0}, 2, v{vT3}")
e(f"v_sub_u32 v{vT3}, v{vT1}, v{vT3}")
e(f"v_mov_b32 v{vT6}, {f32(-1e30)}")
e(f"s_cmp_eq_u32 s{sTILE}, 0")
e(f"s_cselect_b32 s{sT0}, -64, 16")
e(f"v_add_u32 v{vT4}, -2, v{vT3}")
e(f"v_cmp_gt_u32 {sr(sM0,2)}, 15, v{vT3}")
e(f"v_cmp_gt_u32 {sr(sM1,2)}, 15, v{vT4}")
e(f"v_add_u32 v{vT3}, s{sT0}, v{vT3}")
e(f"v_add_u32 v{vT4}, -2, v{vT3}")
e(f"v_cndmask_b32 v{BI}, v{vT6}, 0, {sr(sM0,2)}")
e(f"v_cndmask_b32 v{BI+1}, v{vT6}, 0, {sr(sM1,2)}")
e(f"v_cmp_gt_u32 {sr(sM0,2)}, 15, v{vT3}")
e(f"v_cmp_gt_u32 {sr(sM1,2)}, 15, v{vT4}")
e(f"v_mov_b32 v{vT3}, 0x0c0c0100")
e(f"v_mov_b32 v{vT4}, 0x01000c0c")
e(f"v_cndmask_b32 v{BI+2}, v{vT6}, 0, {sr(sM0,2)}")
e(f"v_cndmask_b32 v{BI+3}, v{vT6}, 0, {sr(sM1,2)}")
e(f"v_cndmask_b32 v{SEL}, v{vT3}, v{vT4}, {sr(sODD,2)}")
e(f"v_mov_b32 v{vT3}, 0x0c0c0302")
e(f"v_mov_b32 v{vT4}, 0x03020c0c")
e(f"v_cndmask_b32 v{SEL+1}, v{vT3}, v{vT4}, {sr(sODD,2)}")
e("s_waitcnt vmcnt(0)")
for ksl in range(8):
    for t in range(2):
        for h in range(2):
            e(f"ds_read_b64 {vr(vA+8*ksl+4*t+2*h,2)}, v{XA+8*t+2*(ksl&3)+h} offset:{256*(ksl>>2)}")
for ksl in range(8):
    e(f"s_waitcnt lgkmcnt({min(15, 28-4*ksl)})")
    for d in range(4):
        for t in range(2):
            r = vA+8*ksl+4*t+d
            e(f"v_dot2_f32_bf16 v{vST+2*t}, v{r}, s{sONES}, v{vST+2*t}")
            e(f"v_dot2_f32_bf16 v{vST+2*t+1}, v{r}, v{r}, v{vST+2*t+1}")
nop(3)
red2x2(vST, vST+1, vST+1, vST+2, vST+3, vST+3)
e(f"ds_write_b128 v{vT2}, {vr(vST,4)}")
e(f"s_xor_b32 s{sT0}, s{sWAVE}, 1")
e(f"s_lshl_b32 s{sT0}, s{sT0}, 11")
e(f"s_add_u32 s{sT0}, s{sT0}, {VA}")
e(f"v_lshl_add_u32 v{vT3}, v{vT1}, 4, s{sT0}")
e("s_waitcnt lgkmcnt(0)")
prof(1)
barrier("c")
e(f"ds_read_b128 {vr(vE,4)}, v{vT3}")
for jj in range(4): e(f"ds_read_b64 {vr(vXR+2*jj,2)}, v{vK+jj}")
e(f"s_mov_b32 s{sT0}, 0x3f80")
e(f"s_mov_b32 s{sT1}, 0x3f800000")
e("s_waitcnt lgkmcnt(0)")
e(f"v_add_f32 v{vT4}, v{vE+2}, v{vST}")
e(f"v_add_f32 v{vT3}, v{vE+3}, v{vST+1}")
e(f"v_add_f32 v{vT6}, v{vE}, v{vST+2}")
e(f"v_mul_f32 v{vT6}, {f32(-1.0/512)}, v{vT6}")
mean_var(vT4, vT3)
e(f"v_add_f32 v{vT3}, {f32(1e-5)}, v{vT3}")
e(f"v_rsq_f32 v{vSC}, v{vT3}")
e(f"v_rsq_f32 v{vSC+1}, v{vT3}")
for c in range(8):
    for i in range(8):
        m_ = vT6 if (i >> 2) & 1 else vT4
        e(f"v_dot2_f32_bf16 v{vE+2*i}, v{vA+8*c+i}, s{sT0}, v{m_}")
        e(f"v_dot2_f32_bf16 v{vE+2*i+1}, v{vA+8*c+i}, s{sT1}, v{m_}")
    nop(1)
    for i in range(8): e(f"v_cvt_pk_bf16_f32 v{vA+8*c+i}, v{vE+2*i}, v{vE+2*i+1}")
    if c == 6:
        barrier("c")
        pre()
prof(30)
call_pass()
scalepack(vK)
e(f"v_lshlrev_b32 v{vT2}, 7, v{vT1}")
e(f"v_lshl_add_u32 v{vT2}, v{vT0}, 5, v{vT2}")
e(f"s_cmp_eq_u32 s{sWAVE}, 3")
e("s_cbranch_scc0 L_k3d")
e(f"buffer_store_dwordx4 {vr(vK,4)}, v{vL16}, {sr(sWS,4)}, s{sHKO} offen sc1")
e(f"buffer_store_dwordx4 {vr(vK+4,4)}, v{vL16}, {sr(sWS,4)}, s{sHKO} offen offset:1024 sc1")
e(f"s_mov_b32 s{sPUBV}, 1")
e("s_mov_b64 vcc, -1")
lab("L_k3d")
e(f"s_cselect_b32 s{sT1}, 16, 1")
e(f"s_mul_i32 s{sT0}, s{sWAVE}, {KSZ}")
e(f"s_add_u32 s{sT0}, s{sT0}, {KA+KSZ-256}")
e(f"v_cmp_lt_u32 {sr(sM0,2)}, s{sT1}, v{vT1}")
e(f"v_add_u32 v{vT2}, s{sT0}, v{vT2}")
e(f"v_mov_b32 v{vT3}, {LOOB}")
e(f"v_cndmask_b32 v{vX1P}, v{vT3}, v{vT2}, {sr(sM0,2)}")
e(f"v_bfe_u32 v{vT2}, v{vT1}, 1, 2")
e(f"v_lshlrev_b32 v{vT2}, 1, v{vT2}")
e(f"v_lshrrev_b32 v{vT3}, 1, v{vT0}")
e(f"v_xor_b32 v{vT2}, v{vT2}, v{vT3}")
e(f"v_lshlrev_b32 v{vT2}, 4, v{vT2}")
e(f"v_lshl_add_u32 v{vT2}, v{vT1}, 7, v{vT2}")
e(f"v_and_b32 v{vT3}, 1, v{vT0}")
e(f"v_lshl_add_u32 v{vHP}, v{vT3}, 3, v{vT2}")
for h in range(1, 4): e(f"v_xor_b32 v{vHP+h}, {h<<5}, v{vHP}")
e(f"s_lshl_b32 s{sT0}, s{sWAVE}, 11")
e(f"s_add_u32 s{sT0}, s{sT0}, {VA}")
for h in range(4): e(f"v_add_u32 v{vHP+4+h}, s{sT0}, v{vHP+h}")
prof(2)
call_pass()
scalepack(vPK)
for h in range(4): e(f"ds_write_b64 v{vHP+4+h}, {vr(vPK+2*h,2)}")
e(f"ds_write_b128 v{vX1P}, {vr(vK,4)}")
e(f"ds_write_b128 v{vX1P}, {vr(vK+4,4)} offset:16")
e(f"s_cmp_eq_u32 s{sWAVE}, 3")
e("s_cbranch_scc0 L_v3d")
for i in range(2): e(f"buffer_store_dwordx4 {vr(vPK+4*i,4)}, v{vL16}, {sr(sWS,4)}, s{sHKO} offen offset:{2048+1024*i} sc1")
e(f"s_mov_b32 s{sPUBV}, 0x100")
e("s_mov_b64 vcc, -1")
lab("L_v3d")
e(f"v_max_u32 v{vT2}, 2, v{vT1}")
e(f"v_lshlrev_b32 v{vT2}, 7, v{vT2}")
e(f"v_lshl_add_u32 v{vT2}, v{vT0}, 5, v{vT2}")
e(f"s_mul_i32 s{sT1}, s{sWAVE}, {KSZ}")
e(f"s_add_u32 s{sT1}, s{sT1}, {KA-256}")
e(f"v_add_u32 v{vT2}, s{sT1}, v{vT2}")
e(f"s_sub_u32 s{sT1}, s{sT0}, 2048")
e(f"s_cmp_eq_u32 s{sWAVE}, 0")
e(f"s_cselect_b32 s{sT1}, {XB}, s{sT1}")
e(f"s_cselect_b32 s{sT3}, 1, 0")
for h in range(4):
    e(f"v_add_u32 v{vHP+h}, s{sT0}, v{vB+h}")
    e(f"v_add_u32 v{vHP+4+h}, s{sT1}, v{vB+h}")
e("s_waitcnt lgkmcnt(0)")
barrier("c")
prof(3)
call_pass()
KP, VP, VO, SO, SP_ = vA, vA+8, vA+16, vA+24, vA+40
for h in range(4): e(f"ds_read_b64_tr_b16 {vr(VO+2*h,2)}, v{vHP+h}")
scalepack(vPK)
l = uid("kv"); d = l+"_d"
lab(l)
e(f"ds_read_b32 v{vT7}, v{vCB} offset:{C_KV}")
e(f"ds_read_b128 {vr(KP,4)}, v{vT2}")
e(f"ds_read_b128 {vr(KP+4,4)}, v{vT2} offset:16")
for h in range(4):
    e(f"v_mfma_f32_16x16x16_bf16 {vr(SO+4*h,4)}, {vr(vK+2*h,2)}, {vr(vPK+2*h,2)}, 0")
e("s_waitcnt lgkmcnt(0)")
e(f"v_readfirstlane_b32 s{sT2}, v{vT7}")
e(f"s_cmp_ge_u32 s{sT2}, s{sT3}")
e(f"s_cbranch_scc0 {spin(l, d)}")
lab(d)
for h in range(4):
    e(f"v_mfma_f32_16x16x16_bf16 {vr(SP_+4*h,4)}, {vr(KP+2*h,2)}, {vr(vPK+2*h,2)}, 0")
prof(4)
nop(4)
X = vE
for h in range(4):
    e(f"v_cndmask_b32 v{X+4*h}, v{SO+4*h}, v{SO+4*h+1}, {sr(sODD,2)}")
    e(f"v_cndmask_b32 v{X+4*h+1}, v{SO+4*h+2}, v{SO+4*h+3}, {sr(sODD,2)}")
for h in range(4):
    e(f"v_cndmask_b32 v{X+4*h+2}, v{SP_+4*h}, v{SP_+4*h+1}, {sr(sODD,2)}")
    e(f"v_cndmask_b32 v{X+4*h+3}, v{SP_+4*h+2}, v{SP_+4*h+3}, {sr(sODD,2)}")
for h in range(4):
    for i in range(4): e(f"v_fma_f32 v{X+4*h+i}, v{X+4*h+i}, s{sCEXP}, v{BI+i}")
M = vE+16; M2 = vE+20
for h in range(4): e(f"v_max3_f32 v{M+h}, v{X+4*h}, v{X+4*h+1}, v{X+4*h+2}")
for h in range(4): e(f"v_max_f32 v{M+h}, v{M+h}, v{X+4*h+3}")
def allred(op):
    for h in range(4): e(f"v_mov_b32 v{M2+h}, v{M+h}")
    nop(1)
    for h in range(4): e(f"v_permlane16_swap_b32 v{M+h}, v{M2+h}")
    for h in range(4): e(f"{op} v{M+h}, v{M+h}, v{M2+h}")
    for h in range(4): e(f"v_mov_b32 v{M2+h}, v{M+h}")
    nop(1)
    for h in range(4): e(f"v_permlane32_swap_b32 v{M+h}, v{M2+h}")
    for h in range(4): e(f"{op} v{M+h}, v{M+h}, v{M2+h}")
allred("v_max_f32")
for h in range(4):
    for i in range(4): e(f"v_sub_f32 v{X+4*h+i}, v{X+4*h+i}, v{M+h}")
for i in range(16): e(f"v_exp_f32 v{X+i}, v{X+i}")
for h in range(4): e(f"v_add_f32 v{M+h}, v{X+4*h}, v{X+4*h+1}")
for h in range(4): e(f"v_add_f32 v{M2+h}, v{X+4*h+2}, v{X+4*h+3}")
for h in range(4): e(f"v_add_f32 v{M+h}, v{M+h}, v{M2+h}")
allred("v_add_f32")
for h in range(4): e(f"v_rcp_f32 v{M+h}, v{M+h}")
lv_ = uid("vv")
e(f"s_lshl_b32 s{sT3}, s{sT3}, 1")
lab(lv_)
e(f"ds_read_b32 v{vT7}, v{vCB} offset:{C_KV}")
for h in range(4): e(f"ds_read_b64_tr_b16 {vr(VP+2*h,2)}, v{vHP+4+h}")
e("s_cbranch_vccnz "+lv_+"_w")
for h in range(4):
    for i in range(4): e(f"v_mul_f32 v{X+4*h+i}, v{X+4*h+i}, v{M+h}")
for h in range(4):
    e(f"v_cvt_pk_bf16_f32 v{M+h}, v{X+4*h}, v{X+4*h+1}")
    e(f"v_cvt_pk_bf16_f32 v{M2+h}, v{X+4*h+2}, v{X+4*h+3}")
for h in range(4):
    e(f"v_perm_b32 v{SO+2*h}, v{M+h}, v{M+h}, v{SEL}")
    e(f"v_perm_b32 v{SO+2*h+1}, v{M+h}, v{M+h}, v{SEL+1}")
    e(f"v_perm_b32 v{SP_+2*h}, v{M2+h}, v{M2+h}, v{SEL}")
    e(f"v_perm_b32 v{SP_+2*h+1}, v{M2+h}, v{M2+h}, v{SEL+1}")
nop(2)
OA = vE
for h in range(4):
    e(f"v_mfma_f32_16x16x16_bf16 {vr(OA+4*h,4)}, {vr(VO+2*h,2)}, {vr(SO+2*h,2)}, 0")
lab(lv_+"_w")
e("s_waitcnt lgkmcnt(0)")
e(f"v_readfirstlane_b32 s{sT2}, v{vT7}")
e("s_mov_b64 vcc, -1")
e(f"s_cmp_ge_u32 s{sT2}, s{sT3}")
e(f"s_cbranch_scc0 {spin(lv_, lv_+'_d')}")
lab(lv_+"_d")
e("s_mov_b64 vcc, 0")
for h in range(4):
    e(f"v_mfma_f32_16x16x16_bf16 {vr(OA+4*h,4)}, {vr(VP+2*h,2)}, {vr(SP_+2*h,2)}, {vr(OA+4*h,4)}")
nop(2)
def pack(dst):
    for i in range(8): e(f"v_cvt_pk_bf16_f32 v{dst+i}, v{vE+2*i}, v{vE+2*i+1}")
def store_act(pk, base):
    e(f"s_add_u32 s{sT0}, s{sDST}, {base}")
    e(f"buffer_store_dwordx4 {vr(pk,4)}, v{vL16}, {sr(sWS,4)}, s{sT0} offen sc1")
    e(f"buffer_store_dwordx4 {vr(pk+4,4)}, v{vL16}, {sr(sWS,4)}, s{sT0} offen offset:1024 sc1")
nop(3)
pack(vPK)
store_act(vPK, WS_O)
pubn = [0]
def publish(younger=0):
    f = pubn[0]; pubn[0] += 1
    if f in (1, 2): prof(21+f)
    e(f"s_waitcnt vmcnt({younger})")
    e(f"buffer_atomic_add v{vBIT+(f&1)}, v{vFLO}, {sr(sWS,4)}, s{sFLOFF} offen offset:{4*(f>>1)} sc1")
def loada(sgs=(0, 1)):
    for ksl in range(8):
        if ksl >> 2 not in sgs: continue
        for tsel in range(2):
            e(f"buffer_load_dwordx4 {vr(vA+8*ksl+4*tsel,4)}, v{vLA+2*(ksl>>2)+tsel}, {sr(sWS,4)}, s{sOFFA} offen offset:{1024*(ksl&3)} sc1")
def set_offa(base):
    e(f"s_lshl_b32 s{sOFFA}, s{sUNIT}, 15")
    e(f"s_add_u32 s{sOFFA}, s{sOFFA}, {base}")
def set_stats_off(base):
    e(f"s_lshl_b32 s{sT3}, s{sTILE}, 10")
    e(f"s_add_u32 s{sT3}, s{sT3}, {base}")
def load_stats(): e(f"buffer_load_dwordx4 {vr(vST,4)}, v{vL16}, {sr(sWS,4)}, s{sT3} offen sc1")
def consume_stats():
    e("s_waitcnt vmcnt(8)")
    e(f"v_add_f32 v{vT4}, v{vST}, v{vST+2}")
    e(f"v_add_f32 v{vT3}, v{vST+1}, v{vST+3}")
    nop(2)
    red2(vT4, vT3, vT3)
    mean_var(vT4, vT3)
def store_stats(pk, base):
    e(f"v_mov_b32 v{vST}, 0")
    e(f"v_mov_b32 v{vST+1}, 0")
    for i in range(8):
        e(f"v_dot2_f32_bf16 v{vST}, v{pk+i}, s{sONES}, v{vST}")
        e(f"v_dot2_f32_bf16 v{vST+1}, v{pk+i}, v{pk+i}, v{vST+1}")
    e(f"s_mov_b32 s{sT0}, {base}")
    nop(2)
    red2(vST, vST+1, vST+1)
    e(f"buffer_store_dwordx2 {vr(vST,2)}, v{vSTO}, {sr(sWS,4)}, s{sT0} offen sc1")
def unpack(dst, src, n):
    for i in range(n):
        e(f"v_lshlrev_b32 v{dst+2*i}, 16, v{src+i}")
        e(f"v_and_b32 v{dst+2*i+1}, 0xffff0000, v{src+i}")
def wait_bits(f, mask_s, shift, nb=None, first=True):
    l = uid("rdy"); d = l+"_d"; c = l+"_c"
    sh = 16*(f & 1) + shift
    if isinstance(mask_s, int): e(f"s_mov_b32 s{sT0}, {mask_s << sh}")
    else: e(f"s_lshl_b32 s{sT0}, s{mask_s}, {sh}")
    if nb is not None: e(f"s_lshl_b32 s{sT1}, s{nb}, {sh}")
    if not first: e(f"s_branch {c}")
    lab(l)
    e(f"s_mov_b32 s{sFLW}, 0")
    if nb is not None: e(f"s_mov_b32 s{sFB}, 0")
    e(f"s_atomic_add s{sFLW}, {sr(pWSP,2)}, s{sFLW+1} glc")
    if nb is not None: e(f"s_atomic_add s{sFB}, {sr(pWSP,2)}, s{sNBO} glc")
    e("s_waitcnt lgkmcnt(0)")
    lab(c)
    e(f"s_andn2_b32 s{sT2}, s{sT0}, s{sFLW}")
    if nb is not None:
        e(f"s_andn2_b32 s{sFB+1}, s{sT1}, s{sFB}")
        e(f"s_or_b32 s{sT2}, s{sT2}, s{sFB+1}")
    e(f"s_cbranch_scc1 {spin(l, d)}")
    lab(d)
def set_word(f): e(f"s_add_u32 s{sFLW+1}, s{sFLOFF}, {4*(f>>1)}")
def cs_check():
    l = uid("cs"); d = l+"_d"
    lab(l+"_c")
    e(f"v_min_u32 v{vCF}, v{vCF}, v{vCF+1}")
    nop(1)
    e(f"v_readfirstlane_b32 s{sT0}, v{vCF}")
    e(f"s_cmp_ge_u32 s{sT0}, 1")
    e(f"s_cbranch_scc0 {l}")
    lab(d)
    cs_retries.append((l, d))
cs_retries = []
zero(vACP, 16)
set_offa(WS_O)
set_word(0)
e(f"s_mov_b32 s{sTAIL}, 1")
unpack(vACC, vXR, 8)
publish()
barrier("c")
prof(5)
wait_bits(0, sMK0, 0)
prof(6)
loada((0,))
wait_bits(0, sMK0, 8, None, False)
loada((1,))
call_pass("L_pass64b", False)
prof(7)
pack(vHP)
store_act(vHP, WS_H)
store_stats(vHP, WS_HS)
set_offa(WS_H)
set_stats_off(WS_HS)
publish()
barrier("c")
pre()
prof(8)
wait_bits(1, sMK0, 0)
prof(9)
loada((0,))
wait_bits(1, 0xffff, 0, None, False)
load_stats()
loada((1,))
consume_stats()
e(f"v_add_f32 v{vT2}, {f32(1e-5)}, v{vT3}")
e(f"v_rsq_f32 v{vR1}, v{vT2}")
e(f"v_mov_b32 v{vNMH}, v{vT4}")
e(f"v_mul_f32 v{vT3}, v{vT3}, v{vR1}")
e(f"v_fmaak_f32 v{vT3}, v{vT3}, v{vR1}, {f32(1e-5)}")
e(f"v_rsq_f32 v{vT3}, v{vT3}")
e(f"v_mov_b32 v{vNMH+1}, v{vT4}")
e(f"v_mul_f32 v{vSC}, v{vT3}, v{vR1}")
e(f"v_mul_f32 v{vSC+1}, v{vT3}, v{vR1}")
e(f"v_mov_b32 v{vR1+1}, v{vR1}")
e(f"v_mul_f32 v{vMS}, v{vT4}, v{vSC}")
e(f"v_mul_f32 v{vMS+1}, v{vT4}, v{vSC}")
e(f"s_mov_b32 s{sCNT}, 0")
call_pass("L_pass64", False)
prof(10)
cs_check()
e(f"s_call_b64 {sr(sRET2,2)}, L_gelu")
e(f"s_lshl_b32 s{sT0}, s{sJ}, 11")
e(f"s_add_u32 s{sT0}, s{sT0}, {WS_H1}")
e(f"buffer_store_dwordx4 {vr(vPK,4)}, v{vHS}, {sr(sWS,4)}, s{sT0} offen sc1")
e(f"buffer_store_dwordx4 {vr(vPK+4,4)}, v{vHS}, {sr(sWS,4)}, s{sT0} offen offset:1024 sc1")
e(f"v_mov_b32 v{vT6}, {OOB}")
e(f"s_lshl_b32 s{sT2}, s{sKH}, 1")
e(f"s_sub_u32 s{sT2}, s{sT2}, 1")
e(f"s_movk_i32 s{sT3}, 0x800")
for sg in range(2):
    for tsel in range(2):
        if tsel: e(f"s_xor_b32 s{sT0}, s{sTILE}, 1")
        e(f"s_lshl_b32 s{sT0}, s{sT0 if tsel else sTILE}, 4")
        e(f"s_add_u32 s{sT0}, s{sT0}, s{sT2}")
        if sg: e(f"s_add_u32 s{sT0}, s{sT0}, s{sT2}")
        e(f"v_add_u32 v{vT2}, s{sT0}, v{vT1}")
        e(f"v_cmp_gt_u32 {sr(sM0,2)}, s{sT3}, v{vT2}")
        nop(2)
        e(f"v_cndmask_b32 v{vLA+2*sg+tsel}, v{vT6}, v{vLA+2*sg+tsel}, {sr(sM0,2)}")
unpack(vACC, vHP, 8)
for i in range(8): e(f"v_pk_add_f32 {vr(vACC+2*i,2)}, {vr(vACC+2*i,2)}, {vr(vNMH,2)}")
for i in range(8): e(f"v_pk_mul_f32 {vr(vACC+2*i,2)}, {vr(vACC+2*i,2)}, {vr(vR1,2)}")
zero(vACP, 16)
e(f"s_lshl_b32 s{sT0}, s{sT2}, 7")
e(f"s_add_u32 s{sNBO}, s{sFLOFF}, s{sT0}")
e(f"s_add_u32 s{sT0}, s{sUNIT}, s{sT2}")
e(f"s_cmp_gt_u32 s{sT0}, 63")
e(f"s_cselect_b32 s{sNBO}, s{sFLOFF}, s{sNBO}")
e(f"s_add_u32 s{sNBO}, s{sNBO}, 4")
e(f"s_cmp_eq_u32 s{sKH}, 0")
e(f"s_cselect_b32 s{sCSN}, 0x0a, 0x50")
set_word(2)
set_offa(WS_H1)
e(f"v_add_u32 v{vCSR}, 256, v{vCSR}")
publish()
barrier("c")
pre()
prof(11)
wait_bits(2, sMK0, 0, sCSN)
prof(12)
loada((0,))
wait_bits(2, sMK0, 8, sCSN, False)
loada((1,))
call_pass("L_pass64b", False)
prof(13)
pack(vX1P)
store_act(vX1P, WS_X1)
store_stats(vX1P, WS_X1S)
e(f"s_mov_b32 s{sTAIL}, 0")
set_la(16384)
e(f"s_mul_i32 s{sDST}, s{sTILE}, {GT}")
e(f"s_lshl_b32 s{sT1}, s{sJ}, 11")
e(f"s_add_u32 s{sDST}, s{sDST}, s{sT1}")
set_offa(WS_X1)
set_stats_off(WS_X1S)
publish()
barrier("c")
pre()
prof(14)
wait_bits(3, sMK0, 0)
prof(15)
loada((0,))
wait_bits(3, 0xffff, 0, None, False)
load_stats()
loada((1,))
consume_stats()
e(f"v_add_f32 v{vT2}, {f32(1e-5)}, v{vT3}")
e(f"v_rsq_f32 v{vSC}, v{vT2}")
e(f"v_rsq_f32 v{vSC+1}, v{vT2}")
e(f"v_mul_f32 v{vMS}, v{vT4}, v{vSC}")
e(f"v_mul_f32 v{vMS+1}, v{vT4}, v{vSC}")
for p in range(3):
    call_pass()
    if p: publish()
    if not OPT.get('dl'): prof(24+2*p)
    if p == 2:
        for jj in range(2): e(f"v_add_u32 v{vW+jj}, s{sPAR}, v{vB32+jj}")
        pre(True, 32768)
    e(f"v_add_u32 v{vCSR}, {256 if p != 1 else -256}, v{vCSR}")
    e(f"s_call_b64 {sr(sRET2,2)}, L_gelu")
    if not OPT.get('dl'): prof(25+2*p)
    store_act(vPK, WS_G + 16384*p)
    prof(16+p)
lq = LQ([f"f{p}" for p in range(6) for h in range(2)])
for q in range(16):
    if q % 2 == 0: lq.need([f"f{q}", f"f{q+1}"])
    for t in (1, 0):
        e(mf_text(vWB+4*(q % 8), vA + 8*(q >> 1) + 4*t, (vACP if t else vACC) + 4*(q & 1), q < 2))
        if q+6 < 16: lq.op(f"f{q+6}", rd_text(vWB+4*((q+6) % 8), 1-t, q+6, True, 32768))
for jj in range(4): e(f"v_add_u32 v{vW+jj}, s{sPAR}, v{vB+jj}")
e(f"s_mov_b32 s{sCNT}, 1")
nop(2)
for i in range(2): e(T_W(i))
publish()
set_la(GT)
e(f"s_mul_i32 s{sOFFA}, s{sUNIT}, {2*GT}")
e(f"s_add_u32 s{sOFFA}, s{sOFFA}, {WS_G}")
QUADS = ([vA+4*i for i in range(16)] + [vXR+4*i for i in range(6)] + [vE+16+4*i for i in range(4)] + [vK, vK+4] + [vE+4*i for i in range(4)])[:OPT.get("nq", 24)]
NQ = len(QUADS)
gpolls = []
def gpoll():
    e(f"s_mov_b64 {sr(sFG,2)}, 0")
    e(f"s_atomic_add_x2 {sr(sFG,2)}, {sr(pWSP,2)}, s{sFLW+1} glc")
    e("s_waitcnt lgkmcnt(0)")
def gcheck(p):
    l = uid("g"); d = l+"_d"
    lab(d+"c")
    e(f"s_lshr_b32 s{sT0}, s{sFG+(p>>1)}, {16*(p&1)}")
    e(f"s_andn2_b32 s{sT0}, 0xffff, s{sT0}")
    e(f"s_cbranch_scc1 {l}")
    lab(d)
    gpolls.append((l, d))
def gload(m):
    ks, t = m >> 1, m & 1
    if ks % 8 == 0 and t == 0:
        p = ks // 8
        gcheck(p)
        if p: e(f"s_add_u32 s{sOFFA}, s{sOFFA}, 16384")
    e(f"buffer_load_dwordx4 {vr(QUADS[m % NQ],4)}, v{vLA+2*((ks>>2)&1)+t}, {sr(sWS,4)}, s{sOFFA} offen offset:{1024*(ks&3)} sc1")
set_word(4)
gpoll()
for m in range(16): gload(m)
barrier("c")
for i in range(2): e(T_R(i))
for i in range(2): e(T_C(i))
w4slot = lambda it: ((19 + it) & 3) * 16384
pre(False, w4slot(0))
e("s_waitcnt lgkmcnt(12)")
for i in range(4): e(f"v_pk_add_f32 {vr(vE+2*i,2)}, {vr(vACC+2*i,2)}, {vr(vE+2*i,2)}")
e(f"s_call_b64 {sr(sRET2,2)}, L_gelu")
e(f"s_lshl_b32 s{sT1}, s{sJ}, 10")
e(f"s_sub_u32 s{sT0}, s{sDST}, s{sT1}")
e(f"s_add_u32 s{sT0}, s{sT0}, {WS_G + 48*1024}")
e(f"buffer_store_dwordx4 {vr(vPK,4)}, v{vL16}, {sr(sWS,4)}, s{sT0} offen sc1")
unpack(vE, vHP, 8)
unpack(vE+16, vX1P, 8)
for i in range(8): e(f"v_pk_add_f32 {vr(vACC+2*i,2)}, {vr(vE+2*i,2)}, {vr(vE+16+2*i,2)}")
zero(vACP, 16)
prof(19)
for m in range(16, NQ): gload(m)
lq = LQ([f"f{p}" for p in range(6) for h in range(2)])
nissued = NQ
NP = 112
g3pub = [None]
for q in range(NP):
    ks = q >> 2
    vm = None
    extra = (1 if 2*ks+1 < 16 else 0) + (1 if g3pub[0] is not None and 2*ks+1 < g3pub[0] else 0)
    if q % 4 == 0: vm = nissued - (2*ks+2) + extra
    if q == 32:
        cmt("the last G store is older than everything waited for from here on")
        lq.need([f"f{q}", f"f{q+1}"], vm); vm = None
        publish(nissued - 16)
        g3pub[0] = nissued
    if q % 2 == 0: lq.need([f"f{q}", f"f{q+1}"], vm)
    if (q+6) % 16 == 0 and q+6 < NP:
        barrier("c")
    for t in range(2):
        e(mf_text(vWB+4*(q % 8), QUADS[(2*ks+t) % NQ], (vACP if t else vACC)+4*(q & 3)))
        if q+6 < NP: lq.op(f"f{q+6}", rd_text(vWB+4*((q+6) % 8), t, (q+6) & 15, False, w4slot((q+6) >> 4)))
        if (q & 3) in (1, 3) and t == 0 and ks >= 1 and nissued < 56:
            gload(nissued); nissued += 1
nop(8)
for i in range(4): e(T_W(i))
e("s_waitcnt lgkmcnt(0)")
barrier("c")
for i in range(4): e(T_R(i))
e("s_waitcnt lgkmcnt(0)")
for i in range(8): e(f"v_pk_add_f32 {vr(vE+2*i,2)}, {vr(vACC+2*i,2)}, {vr(vE+2*i,2)}")
prof(20)
pack(vPK)
nop(2)
for s in range(2):
    e(f"v_permlane16_swap_b32 v{vPK+4*s}, v{vPK+4*s+2}")
    e(f"v_permlane16_swap_b32 v{vPK+4*s+1}, v{vPK+4*s+3}")
e(f"buffer_store_dwordx4 {vr(vPK,4)}, v{vOUTO}, {sr(sOUT,4)}, 0 offen")
e(f"buffer_store_dwordx4 {vr(vPK+4,4)}, v{vOUTO}, {sr(sOUT,4)}, 0 offen offset:64")
prof(21)
prof_flush()
e("s_endpgm")
for l, d in gpolls:
    lab(l)
    gpoll()
    e(f"s_sub_u32 s{sBUD}, s{sBUD}, 1")
    e(f"s_cbranch_scc0 {d}c")
    e(f"s_mov_b32 s{sBUD}, 0")
    e(f"s_branch {d}")
for l, d in cs_retries:
    lab(l)
    e(f"ds_read_b64 {vr(vCF,2)}, v{vCB} offset:{C_CSF}")
    for i in range(4): e(T_C(i))
    e("s_waitcnt lgkmcnt(0)")
    e(f"s_sub_u32 s{sBUD}, s{sBUD}, 1")
    e(f"s_cbranch_scc0 {l}_c")
    e(f"s_mov_b32 s{sBUD}, 0")
    e(f"s_branch {d}")

gen_pass64()
align(); lab("L_gelu")
for half in range(2):
    Xr = vE + 8*half; c0 = vACP + 8*half; U = vE+16
    for i in range(4): e(f"v_pk_mul_f32 {vr(Xr+2*i,2)}, {vr(Xr+2*i,2)}, {vr(vSC,2)}")
    for i in range(4): e(f"v_pk_fma_f32 {vr(Xr+2*i,2)}, {vr(c0+2*i,2)}, {vr(vMS,2)}, {vr(Xr+2*i,2)}")
    for i in range(4): e(f"v_pk_mul_f32 {vr(U+2*i,2)}, {vr(Xr+2*i,2)}, {vr(Xr+2*i,2)}")
    for i in range(4): e(f"v_pk_fma_f32 {vr(U+2*i,2)}, {vr(U+2*i,2)}, {vr(vGB,2)}, {vr(vGA,2)}")
    for i in range(4): e(f"v_pk_mul_f32 {vr(U+2*i,2)}, {vr(U+2*i,2)}, {vr(Xr+2*i,2)}")
    for i in range(8): e(f"v_exp_f32 v{U+i}, v{U+i}")
    for i in range(4): e(f"v_pk_add_f32 {vr(U+2*i,2)}, {vr(U+2*i,2)}, {sr(sONE2,2)}")
    for i in range(8): e(f"v_rcp_f32 v{U+i}, v{U+i}")
    for i in range(4): e(f"v_pk_mul_f32 {vr(Xr+2*i,2)}, {vr(Xr+2*i,2)}, {vr(U+2*i,2)}")
    for i in range(4): e(f"v_cvt_pk_bf16_f32 v{vPK+4*half+i}, v{Xr+2*i}, v{Xr+2*i+1}")
    if half == 0:
        e(f"s_cmp_eq_u32 s{sCNT}, 1")
        e("s_cbranch_scc1 L_gelu_h")
lab("L_gelu_h")
e(f"s_setpc_b64 {sr(sRET2,2)}")

vCSW, vTL, vT3P, vTQ, vON, vIN = vXR, vXR+1, vXR+2, vXR+3, vXR+4, vHP
lab("L_service")
if MAP42:
    e(f"v_lshrrev_b32 v{vT2}, 2, v{vLANE}")
    e(f"v_and_b32 v{vT3}, 3, v{vLANE}")
    e(f"v_lshlrev_b32 v{vT4}, 7, v{vT3}")
    e(f"v_lshl_add_u32 v{vTL}, v{vT2}, 10, v{vT4}")
    e(f"v_mul_u32_u24 v{vTQ}, 3072, v{vT2}")
    e(f"v_add_u32 v{vTQ}, v{vTQ}, v{vT4}")
    e(f"v_min_u32 v{vT2}, 13, v{vT1}")
    e(f"v_lshlrev_b32 v{vT2}, 7, v{vT2}")
    e(f"v_mul_u32_u24 v{vT3P}, 3584, v{vT0}")
    e(f"v_add_u32 v{vT3P}, v{vT3P}, v{vT2}")
    e(f"s_lshl_b32 s{sT0}, s{sHF}, 9")
    e(f"s_lshl_b32 s{sTA}, s{sR32}, 14")
    e(f"s_add_u32 s{sTA}, s{sTA}, s{sT0}")
    e(f"s_mul_i32 s{sTC}, s{sR32}, {16*3072}")
    e(f"s_add_u32 s{sTC}, s{sTC}, s{sT0}")
    e(f"s_mul_i32 s{sTB}, s{sR32}, {4*3584}")
    e(f"s_mul_i32 s{sT0}, s{sHF}, 1792")
    e(f"s_add_u32 s{sTB}, s{sTB}, s{sT0}")
else:
    e(f"v_lshlrev_b32 v{vTL}, 7, v{vLANE}")
    e(f"v_lshrrev_b32 v{vT2}, 3, v{vLANE}")
    e(f"v_and_b32 v{vT3}, 7, v{vLANE}")
    e(f"v_mul_u32_u24 v{vTQ}, 3072, v{vT2}")
    e(f"v_lshl_add_u32 v{vTQ}, v{vT3}, 7, v{vTQ}")
    e(f"s_lshl_b32 s{sTA}, s{sR32}, 13")
    e(f"s_mul_i32 s{sTC}, s{sR32}, {8*3072}")
e(f"s_cmp_ge_u32 s{sWAVE}, 6")
e("s_cbranch_scc1 L_loader")
lab("L_helper")
tr_bases()
e(f"s_lshl_b32 s{sT0}, s{sKH}, 6")
e(f"v_xor_b32 v{vB}, s{sT0}, v{vB}")
e(f"v_xor_b32 v{vB+1}, s{sT0}, v{vB+1}")
e(f"s_lshl_b32 s{sT1}, s{sKH}, 5")
e(f"v_xor_b32 v{vB32}, s{sT1}, v{vB32}")
e(f"v_lshlrev_b32 v{vT2}, 4, v{vT0}")
e(f"v_add_u32 v{vCSW}, {CSA}, v{vT2}")
e(f"s_mov_b32 s{sM1}, 0x00010001")
e(f"s_mov_b32 s{sM1+1}, 0x00010001")
for i in range(4): e(f"v_mov_b32 v{vON+i}, s{sONES}")
e(f"v_min_u32 v{vT2}, 2, v{vLANE}")
e(f"s_sub_u32 s{sT0}, s{sG}, 1")
e(f"v_add_u32 v{vT2}, s{sT0}, v{vT2}")
e(f"v_max_i32 v{vT2}, 0, v{vT2}")
e(f"v_min_u32 v{vT2}, 31, v{vT2}")
e(f"v_lshlrev_b32 v{vIN}, 2, v{vT2}")
e("s_waitcnt lgkmcnt(0)")
e(f"s_mov_b32 s{sWS}, s{pWSP}")
e(f"s_mov_b32 s{sWS+1}, s{pWSP+1}")
tv = [vA+64]
def touch1(t):
    ptr, size, pat, soff_s, c = t
    e(f"s_mov_b32 s{sX}, s{ptr}")
    e(f"s_mov_b32 s{sX+1}, s{ptr+1}")
    e(f"s_mov_b32 s{sX+2}, {size}")
    e(f"s_add_u32 s{sT0}, s{soff_s}, {c}")
    e(f"buffer_load_dword v{tv[0]}, v{pat}, {sr(sX,4)}, s{sT0} offen")
    tv[0] += 1
def touches(lst, role, sleep):
    if role == "h" or not lst: return 0
    lst = list(lst)
    if len(lst) % 2: lst.append((lst[0][0], 0, lst[0][2], lst[0][3], 0))
    if sleep: e(f"s_sleep {sleep}")
    a_ = uid("ta"); b_ = uid("tb")
    e(f"s_cmp_lg_u32 s{sKH}, 0")
    e(f"s_cbranch_scc1 {a_}")
    for t in lst[0::2]: touch1(t)
    e(f"s_branch {b_}")
    lab(a_)
    for t in lst[1::2]: touch1(t)
    lab(b_)
    return len(lst)//2
TQ = lambda c: [(pWQKV, 512*3072, vTQ, sTC, c + i*32*8*3072) for i in range(2)]
T1 = lambda p: [(p, 512*1024, vTL, sTA, i*32*8192) for i in range(2)]
T3 = lambda a, b: [(pW3, 512*3584, vTL, sTA, i*32*8192) for i in range(a, b)]
T4 = lambda a, b: [(pW4, 1792*1024, vTL, sTA, i*32*8192) for i in range(a, b)]
if MAP42:
    TQ = lambda c: [(pWQKV, 512*3072, vTQ, sTC, c)]
    T1 = lambda p: [(p, 512*1024, vTL, sTA, 0)]
    T3 = lambda a, b: [(pW3, 512*3584, vT3P, sTB, i*32*4*3584) for i in range(a, b)]
    T4 = lambda a, b: [(pW4, 1792*1024, vTL, sTA, i*32*16384) for i in range(a, b)]
barrier("h")
e(f"s_lshl_b32 s{sT0}, s{sJ}, 3")
e(f"s_add_u32 s{sT0}, s{sT0}, s{sWAVE}")
e(f"s_cmp_lg_u32 s{sT0}, 4")
e(f"s_cbranch_scc1 L_nozero")
for i in range(4): e(f"v_mov_b32 v{vA+i}, 0")
e(f"s_lshl_b32 s{sT0}, s{sG}, 8")
e(f"s_lshl_b32 s{sT1}, s{sG}, 10")
e(f"s_add_u32 s{sT1}, s{sT1}, {WS_FL2-WS_FL-256}")
e(f"v_mov_b32 v{vT3}, s{sT0}")
e(f"v_mov_b32 v{vT4}, s{sT1}")
e(f"v_cmp_gt_u32 {sr(sM0,2)}, 2, v{vLANE}")
e(f"s_mov_b32 s{sT0}, {WS_FL}")
nop(1)
e(f"v_cndmask_b32 v{vT3}, v{vT4}, v{vT3}, {sr(sM0,2)}")
e(f"v_lshl_add_u32 v{vT3}, v{vLANE}, 7, v{vT3}")
e("s_mov_b64 exec, 0x3ff")
e(f"buffer_store_dwordx4 {vr(vA,4)}, v{vT3}, {sr(sWS,4)}, s{sT0} offen sc1")
e(f"s_lshl_b32 s{sT0}, s{sG}, 2")
e(f"v_mov_b32 v{vT2}, s{sT0}")
e(f"v_mov_b32 v{vT6}, 1")
e("s_mov_b64 exec, 1")
e("s_waitcnt vmcnt(0)")
e(f"global_store_dword v{vT2}, v{vT6}, {sr(pDBG,2)} sc1")
e("s_mov_b64 exec, -1")
lab("L_nozero")
V_, Q_, WO_, W1_, W2_ = TQ(2048), TQ(0), T1(pWO), T1(pW1), T1(pW2)
K_ = TQ(1024)
SCH = {0: dict(s=K_, x=V_+Q_, b0=WO_, b1=W1_, b3=W2_, r1=T3(0,4), r2=T3(4,7), r3=T4(0,4), b9=T4(4,7)),
       1: dict(s=K_, x=V_+Q_, b0=WO_+W1_, b1=W2_+T3(0,2), r1=T3(2,5), r2=T3(5,7)+T4(0,2), r3=T4(2,5), b9=T4(5,7)),
       2: dict(s=K_+V_, x=Q_+WO_, b1=W1_+W2_, r1=T3(0,4), r2=T3(4,7), r3=T4(0,4), b9=T4(4,7)),
       3: dict(x=V_+Q_, b0=WO_, b1=W1_+W2_, r1=T3(0,4), r2=T3(4,7), r3=T4(0,4), b9=T4(4,7)),
       }[OPT.get("sch", 0) if not MAP42 else 0]
if MAP42:
    REST = dict(r1=T3(0,2), r2=T3(2,4), r3=T4(0,4))
    SCH = {0: dict(s=K_+V_, x=Q_, b0=WO_+W1_, b1=W2_, **REST),
           1: dict(s=K_, x=V_+Q_, b0=WO_+W1_, b1=W2_, **REST),
           2: dict(x=V_+Q_, b0=WO_+W1_, b1=W2_, **REST),
           3: dict(s=K_+V_, x=Q_+WO_+W1_+W2_, **REST),
           4: dict(s=K_, x=V_+Q_, b0=WO_+W1_, b1=W2_+T3(0,1), r1=T3(1,3), r2=T3(3,4)+T4(0,1), r3=T4(1,3), b9=T4(3,4)),
           }[OPT.get("sch", 0)]
for k_ in ("s", "x", "b0", "b1", "b3", "r1", "r2", "r3", "b9"): SCH.setdefault(k_, [])
TS0, TSL, TSL2 = OPT.get("t0sl", 6), OPT.get("tsl", 8), OPT.get("tsl2", 14)
touches(SCH["x"], "h", TS0)
def cs(base, slot, half=False):
    e(f"s_mov_b32 s{sT0}, {base}")
    e(f"s_call_b64 {sr(sRET,2)}, {'L_csh' if half else 'L_cs'}")
    e(f"s_lshl_b32 s{sT0}, s{sKH}, {6 if half else 7}")
    e(f"v_add_u32 v{vT2}, s{sT0}, v{vCSW}")
    e(f"s_mov_b64 exec, {sr(sM1,2)}")
    for i in range(1 if half else 2): e(f"ds_write_b128 v{vT2}, {vr(vACC+4*i,4)} offset:{256*slot+64*i}")
    e("s_mov_b64 exec, -1")
    e("s_waitcnt lgkmcnt(0)")
def halo_fetch(which):
    sk = uid("hf"); l = sk+"_l"; d = sk+"_d"
    e(f"s_cmp_lg_u32 s{sWAVE}, 5")
    e(f"s_cbranch_scc1 {sk}")
    e(f"s_lshl_b32 s{sT0}, s{sG}, 3")
    e(f"s_add_u32 s{sT0}, s{sT0}, s{sJ}")
    e(f"s_sub_u32 s{sT0}, s{sT0}, 8")
    e(f"s_lshl_b32 s{sHKO}, s{sT0}, 12")
    e(f"s_add_u32 s{sHKO}, s{sHKO}, {WS_HK + 2048*which}")
    e(f"s_lshl_b32 s{sT0}, s{sT0}, 7")
    e(f"s_add_u32 s{sT0}, s{sT0}, {WS_FL2}")
    e(f"s_cmp_eq_u32 s{sG}, 0")
    e(f"s_cselect_b32 s{sHKO}, {OOB}, s{sHKO}")
    e(f"s_cbranch_scc1 {d}")
    lab(l)
    e(f"s_mov_b32 s{sM0}, 0")
    e(f"s_atomic_add s{sM0}, {sr(pWSP,2)}, s{sT0} glc")
    e("s_waitcnt lgkmcnt(0)")
    e(f"s_bitcmp1_b32 s{sM0}, {8*which}")
    e(f"s_cbranch_scc0 {spin(l, d)}")
    lab(d)
    e(f"buffer_load_dwordx4 {vr(vA,4)}, v{vL16}, {sr(sWS,4)}, s{sHKO} offen sc1")
    e(f"buffer_load_dwordx4 {vr(vA+4,4)}, v{vL16}, {sr(sWS,4)}, s{sHKO} offen offset:1024 sc1")
    if which:
        e(f"v_bfe_u32 v{vT2}, v{vT1}, 1, 2")
        e(f"v_lshlrev_b32 v{vT2}, 1, v{vT2}")
        e(f"v_lshrrev_b32 v{vT3}, 1, v{vT0}")
        e(f"v_xor_b32 v{vT2}, v{vT2}, v{vT3}")
        e(f"v_lshlrev_b32 v{vT2}, 4, v{vT2}")
        e(f"v_lshl_add_u32 v{vT2}, v{vT1}, 7, v{vT2}")
        e(f"v_and_b32 v{vT3}, 1, v{vT0}")
        e(f"v_lshl_add_u32 v{vT2}, v{vT3}, 3, v{vT2}")
        e(f"v_add_u32 v{vA+8}, {XB}, v{vT2}")
        for h in range(1, 4): e(f"v_xor_b32 v{vA+8+h}, {h<<5}, v{vA+8}")
    else:
        e(f"v_lshlrev_b32 v{vT2}, 7, v{vT1}")
        e(f"v_lshl_add_u32 v{vT2}, v{vT0}, 5, v{vT2}")
        e(f"v_cmp_lt_u32 {sr(sM0,2)}, 1, v{vT1}")
        e(f"v_add_u32 v{vT2}, {KA-256}, v{vT2}")
        e(f"v_mov_b32 v{vT4}, {LOOB}")
        e(f"v_cndmask_b32 v{vT2}, v{vT4}, v{vT2}, {sr(sM0,2)}")
    e(f"v_mov_b32 v{vT6}, {1+which}")
    e("s_waitcnt vmcnt(0)")
    if which:
        for h in range(4): e(f"ds_write_b64 v{vA+8+h}, {vr(vA+2*h,2)}")
    else:
        e(f"ds_write_b128 v{vT2}, {vr(vA,4)}")
        e(f"ds_write_b128 v{vT2}, {vr(vA+4,4)} offset:16")
    e(f"ds_write_b32 v{vCB}, v{vT6} offset:{C_KV}")
    lab(sk)
e(f"v_mov_b32 v{vT6}, 0")
e(f"v_min_u32 v{vT2}, 15, v{vLANE}")
e(f"v_lshl_add_u32 v{vT2}, v{vT2}, 2, v{vCB}")
e(f"ds_write_b32 v{vT2}, v{vT6}")
e("s_waitcnt lgkmcnt(0)")
barrier("h")
e(f"s_cmp_eq_u32 s{sWAVE}, 4")
e("s_cbranch_scc1 L_in_n")
e(f"global_load_dword v{vIN+1}, v{vIN}, {sr(pDBG,2)}")
lab("L_in_n")
barrier("h")
e(f"s_cmp_eq_u32 s{sWAVE}, 4")
e("s_cbranch_scc1 L_in_d")
e("s_branch L_in_chk")
lab("L_in_loop")
e("s_sleep 8")
e(f"global_load_dword v{vIN+1}, v{vIN}, {sr(pDBG,2)} sc1")
lab("L_in_chk")
e("s_waitcnt vmcnt(0)")
e(f"v_cmp_eq_u32 {sr(sM0,2)}, 1, v{vIN+1}")
e(f"s_cmp_eq_u64 {sr(sM0,2)}, -1")
e(f"s_cbranch_scc0 {spin('L_in_loop', 'L_in_d')}")
lab("L_in_d")
barrier("h")
barrier("h")
barrier("h")
touches(SCH["b3"], "h", TSL)
halo_fetch(0)
barrier("h")
e("s_sleep 4")
halo_fetch(1)
barrier("h")
barrier("h")
cs(0, 0)
e(f"s_lshl_b32 s{sT0}, s{sKH}, 2")
e(f"v_add_u32 v{vT2}, s{sT0}, v{vCB}")
e(f"v_mov_b32 v{vT6}, 1")
e(f"ds_write_b32 v{vT2}, v{vT6} offset:{C_CSF}")
barrier("h")
barrier("h")
cs(0, 1)
barrier("h")
cs(32768, 2)
barrier("h")
cs(0, 1)
barrier("h")
cs(32768, 2, True)
prof_flush()
e("s_endpgm")
for half in (False, True):
    lab("L_csh" if half else "L_cs")
    blocks = [(par, it) for par in range(2) for it in range(1 if half else 2)]
    for bi, (par, it) in enumerate(blocks):
        if it == 0:
            e(f"v_add_u32 v{vW}, s{sT0}, v{vB32 if half else vB}")
            if not half: e(f"v_add_u32 v{vW+1}, s{sT0}, v{vB+1}")
            e(f"s_add_u32 s{sT0}, s{sT0}, 65536")
        for i in range(8):
            for h in range(2):
                off = (i*2048 + 1024*h) if half else (it*16384 + (i >> 1)*4096 + 2048*h)
                e(f"ds_read_b64_tr_b16 {vr(vA+4*i+2*h,2)}, v{vW if half else vW+(i&1)} offset:{off}")
        for i in range(8):
            e(f"s_waitcnt lgkmcnt({14-2*i})")
            e(mf_text(vA+4*i, vON, vACC if (half or i % 2 == 0) else vACC+4, bi == 0 and i < (1 if half else 2)))
    nop(4)
    e(f"s_setpc_b64 {sr(sRET,2)}")

vPat, vP3072, vP1024, vP3584, vPH = 12, 13, 14, 15, 16
lab("L_loader")
e(f"s_setprio {OPT.get('lp', 2)}")
e(f"v_lshrrev_b32 v{vT2}, 3, v{vLANE}")
e(f"v_bfe_u32 v{vT3}, v{vT2}, 1, 2")
e(f"v_lshlrev_b32 v{vT3}, 1, v{vT3}")
e(f"v_and_b32 v{vT4}, 7, v{vLANE}")
e(f"v_xor_b32 v{vT3}, v{vT3}, v{vT4}")
e(f"v_lshlrev_b32 v{vT3}, 4, v{vT3}")
e(f"v_mul_u32_u24 v{vP3072}, 3072, v{vT2}")
e(f"v_add_u32 v{vP3072}, v{vP3072}, v{vT3}")
e(f"v_lshl_add_u32 v{vP1024}, v{vT2}, 10, v{vT3}")
e(f"v_mul_u32_u24 v{vP3584}, 3584, v{vT2}")
e(f"v_add_u32 v{vP3584}, v{vP3584}, v{vT3}")
e(f"v_lshrrev_b32 v{vT2}, 2, v{vLANE}")
e(f"v_bfe_u32 v{vT3}, v{vT2}, 2, 1")
e(f"v_lshlrev_b32 v{vT3}, 1, v{vT3}")
e(f"v_and_b32 v{vT4}, 3, v{vLANE}")
e(f"v_xor_b32 v{vT3}, v{vT3}, v{vT4}")
e(f"v_mul_u32_u24 v{vPH}, 3584, v{vT2}")
e(f"v_lshl_add_u32 v{vPH}, v{vT3}, 4, v{vPH}")
e(f"s_lshl_b32 s{sT2}, s{sJ}, 7")
e(f"s_mul_i32 s{sC3}, s{sJ}, 448")
e(f"s_and_b32 s{sT0}, s{sJ}, 1")
e(f"s_lshl_b32 s{sT1}, s{sT0}, 6")
e(f"s_xor_b32 s{sT0}, s{sT0}, 1")
e(f"s_mul_i32 s{sT0}, s{sT0}, 384")
e(f"s_add_u32 s{sCQ}, s{sC3}, s{sT0}")
e(f"s_add_u32 s{sC3}, s{sC3}, s{sT1}")
e("s_waitcnt lgkmcnt(0)")
e(f"s_mov_b32 s{sWS}, s{pWSP}")
e(f"s_mov_b32 s{sWS+1}, s{pWSP+1}")
cur = {}
issued = []
def setif(key, val, emit):
    if cur.get(key) != val:
        emit(); cur[key] = val
def issue(li):
    P, s_ = li // 2, li % 2
    if li < 18:
        if P <= 2: ptr, size, pat, rs, col, cc = pWQKV, 512*3072, vP3072, 3072, sT2, (1024, 2048, 0)[P]
        elif P <= 5: ptr, size, pat, rs, col, cc = (pWO, pW1, pW2)[P-3], 512*1024, vP1024, 1024, sT2, 0
        else: ptr, size, pat, rs, col, cc = pW3, 512*3584, vP3584, 3584, sC3, 128*(P-6)
        step, mid, kstr, c0 = 8*rs, 0, 128*rs, cc + 256*rs*s_
    elif li == 18:
        ptr, size, pat, col = pW3, 512*3584, vPH, sCQ
        step, mid, kstr, c0 = 16*3584, 128*3584, 128*3584, 0
    else:
        c = li - 19
        ptr, size, pat, col = pW4, 1792*1024, vP1024, sT2
        if c < 6: step, mid, kstr, c0 = 8192, 192*1024, 448*1024, (64*(c//2) + 896*(c%2))*1024
        else: step, mid, kstr, c0 = 8192, 384*1024, 896*1024, 192*1024
    def esrc():
        e(f"s_mov_b32 s{sW}, s{ptr}"); e(f"s_mov_b32 s{sW+1}, s{ptr+1}"); e(f"s_mov_b32 s{sW+2}, {size}")
    setif("ptr", ptr, esrc)
    setif("pat", pat, lambda: e(f"v_mov_b32 v{vPat}, v{pat}"))
    setif("step", step, lambda: e(f"s_mov_b32 s{sSTEP}, {step}"))
    setif("mid", mid, lambda: e(f"s_mov_b32 s{sMID}, {mid}"))
    setif("kstr", kstr, lambda: e(f"s_mul_i32 s{sT1}, s{sKH}, {kstr}"))
    e(f"s_add_u32 m0, s{sPAR}, {(li & 3)*16384}")
    e(f"s_add_u32 s{sSO}, s{col}, s{sT1}")
    if c0: e(f"s_add_u32 s{sSO}, s{sSO}, {c0}")
    e(f"s_call_b64 {sr(sRET,2)}, L_iss")
    issued.append(li)
def land(li):
    idx = issued.index(li)
    e(f"s_waitcnt vmcnt({sum(1 if x == 't' else 16 for x in issued[idx+1:])})")
def ltouch(key, sleep):
    issued.extend(["t"]*touches(SCH[key], "l", sleep))
if OPT.get("cp", 1):
    cmt("pull the kernel's own code into this XCD's L2")
    e(f"s_getpc_b64 {sr(sM0,2)}")
    lab("L_pc")
    e(f"s_sub_u32 s{sM0}, s{sM0}, L_pc-{NAME}_kernel")
    e(f"s_subb_u32 s{sM0+1}, s{sM0+1}, 0")
    e(f"s_lshl_b32 s{sT0}, s{sR32}, 1")
    e(f"s_add_u32 s{sT0}, s{sT0}, s{sKH}")
    e(f"s_cmp_ge_u32 s{sT0}, 3")
    e("s_cbranch_scc1 L_nocp")
    e(f"s_lshl_b32 s{sT0}, s{sT0}, 13")
    e(f"v_lshlrev_b32 v{vT2}, 7, v{vLANE}")
    e(f"v_add_u32 v{vT2}, s{sT0}, v{vT2}")
    e(f"v_min_u32 v{vT2}, L_end-{NAME}_kernel, v{vT2}")
    e(f"global_load_dword v{vT3}, v{vT2}, {sr(sM0,2)}")
    lab("L_nocp")
ltouch("s", 0)
barrier("l")
issue(0); issue(1)
ltouch("x", OPT.get("tsd", 6))
sched = [(None, [], None),
         (1, [2, 3], "b0"),
         (3, [4, 5], "b1"),
         (5, [], None),
         (None, [6, 7], "b3"),
         (7, [], None),
         (None, [8, 9], "r1"),
         (9, [10, 11], "r2"),
         (11, [12, 13], "r3"),
         (13, [14, 15], None),
         (15, [16, 17], "b9"),
         (17, [18, 19], None),
         (18, [20, 21], None),
         (19, [22], None),
         (20, [], None), (21, [23], None), (22, [24], None), (23, [25], None), (24, [], None), (25, [], None)]
for k, (nd, aft, tk) in enumerate(sched):
    if nd is not None: land(nd)
    prof(k+1)
    barrier("l")
    for li in aft: issue(li)
    if tk: ltouch(tk, OPT.get("tsr", 30) if tk[0] == "r" else OPT.get("tsd", 6))
prof_flush()
e("s_endpgm")
lab("L_iss")
for i in range(16):
    e(f"buffer_load_dwordx4 v{vPat}, {sr(sW,4)}, s{sSO} offen lds")
    if i < 15:
        e("s_add_u32 m0, m0, 1024")
        e(f"s_add_u32 s{sSO}, s{sSO}, s{sSTEP}")
    if i == 7: e(f"s_add_u32 s{sSO}, s{sSO}, s{sMID}")
e(f"s_setpc_b64 {sr(sRET,2)}")
emit_tails()
lab("L_end")
e("s_endpgm")
assert nbar["c"] == nbar["l"] + 1, nbar

out.append('.section .rodata,"a"')
out.append(".p2align 6")
out.append(f".amdhsa_kernel {NAME}_kernel")
out.append(f"  .amdhsa_next_free_vgpr {NVGPR}")
out.append("  .amdhsa_next_free_sgpr 100")
out.append(f"  .amdhsa_accum_offset {NVGPR}")
out.append("  .amdhsa_group_segment_fixed_size 0")
out.append("  .amdhsa_kernarg_size 88")
out.append("  .amdhsa_user_sgpr_count 2")
out.append("  .amdhsa_user_sgpr_kernarg_segment_ptr 1")
out.append("  .amdhsa_system_sgpr_workgroup_id_x 1")
out.append(".end_amdhsa_kernel")
dst = [a for a in sys.argv[1:] if not a.startswith("--")]
open(dst[0] if dst else "cdna_kernels/%s.s" % NAME, "w").write("\n".join(o for o in out if o is not None) + "\n")
```

```python
import sys, math, struct

NAME = "sequential_preLN__sliding_local_dilated__mixer_s_mlp__prompt"
PROF = "--prof" in sys.argv
OPT = {}
for a in sys.argv:
    if a.startswith("--") and "=" in a:
        k, v = a[2:].split("="); OPT[k] = int(v)

out = []
def e(s): out.append("    " + s)
def lab(s): out.append(s + ":")
def cmt(s): out.append("    ; " + s)
def align(): out.append(".p2align 3")
def nop(n):
    while n > 0:
        k = min(n, 16); e(f"s_nop {k-1}"); n -= k
def f32(x): return "0x%08x" % struct.unpack("<I", struct.pack("<f", x))[0]
def vr(a, n): return f"v[{a}:{a+n-1}]"
def sr(a, n): return f"s[{a}:{a+n-1}]"
_uid = [0]
def uid(p):
    _uid[0] += 1
    return f"L_{p}_{_uid[0]}"

WS_O, WS_H, WS_H1, WS_X1, WS_G = 0, 2<<20, 4<<20, 6<<20, 8<<20
WS_HS = 15<<20
WS_X1S = WS_HS + (128<<10)
WS_FL = WS_HS + (256<<10)
WS_FL2 = WS_FL + (8<<10)
WS_HK = 16<<20
WS_PROF = 17<<20
WS_SIZE = 18<<20
GT = 56*1024
OOB = 0x40000000
LOOB = 0x30000
XB = 131072
KA = XB + 16384
KSZ = 1792
VA = KA + 4*KSZ
CSA = VA + 4*2048
CB = CSA + 768
C_KV, C_CSF, C_XF, C_ACK = 0, 8, 16, 32
LDS_BYTES = 163840
assert CB + 64 <= LDS_BYTES and VA % 256 == 0

sWAVE = 3
sX, sWS, sOUT = 4, 8, 12
sW = 12
pX, pWQKV, pWO, pBX, pW1, pW2, pW3, pW4, pOUT, pDBG, pWSP = 16, 18, 20, 22, 24, 26, 28, 30, 32, 34, 36
sJ, sG, sUNIT, sTILE, sBUD, sCNT = 38, 39, 40, 41, 42, 43
sT0, sT1, sT2, sT3 = 44, 45, 46, 47
sRET, sRET2 = 48, 50
sONES, sCEXP, sPUBO, sPUBV = 52, 53, 54, 55
sFLW = 56
sODD = 58
sOFFA, sPAR, sDST, sFLOFF, sR32, sHF, sHKO, sKH = 60, 61, 62, 63, 64, 65, 66, 67
sM0, sM1 = 68, 70
sFB, sFG = 72, 74
sTAIL, sXSEQ, sMK0, sNBO, sCSN = 89, 90, 91, 92, 93
sONE2 = 76
sPT, sPIDX = 78, 80
sSO, sSTEP, sC3, sCQ, sTA, sTB, sTC, sMID = 81, 82, 83, 84, 85, 86, 87, 88
vLANE = 0
vT0, vT1, vT2, vT3, vT4, vP, vCB, vT6, vT7 = 1, 2, 3, 4, 5, 6, 7, 8, 9
vL16, vFLO = 10, 11
vB, vW, vB32 = 12, 16, 20
vSC, vR1 = 22, 24
vSTO, vOUTO, vXA, vXP = 26, 27, 28, 29
vGA = 30
vLA = 32
vXR, vHP, vX1P = 36, 44, 52
vST = 60
vA, vWB = 64, 128
vACC, vACP = 160, 176
vE = 192
vPK, vK = 224, 232
vMS, vGB, vNMH = 240, 242, 244
vCSR = 246
vW1, vXFP, vBIT, vCF = 248, 249, 250, 252
vHS = 254
vP2 = 247
NVGPR = 256

def prof(idx):
    if not PROF: return
    e(f"s_memrealtime {sr(sPT,2)}")
    e("s_memtime s[98:99]")
    e("s_waitcnt lgkmcnt(0)")
    e(f"v_writelane_b32 v{vP}, s{sPT}, {idx}")
    e(f"v_writelane_b32 v{vP}, s98, {idx+32}")
def prof_flush():
    if not PROF: return
    e(f"v_lshlrev_b32 v{vT0}, 2, v{vLANE}")
    if OPT.get("dp") is not None: e(f"v_mov_b32 v{vP}, v{vP2}")
    e(f"buffer_store_dword v{vP}, v{vT0}, {sr(sWS,4)}, s{sPIDX} offen")
tails = []
def spin(loop, done):
    tails.append((loop+"_s", loop, done))
    return loop+"_s"
def emit_tails():
    for s_, l, d in tails:
        lab(s_)
        e(f"s_sub_u32 s{sBUD}, s{sBUD}, 1")
        e(f"s_cbranch_scc0 {l}")
        e(f"s_mov_b32 s{sBUD}, 0")
        e(f"s_branch {d}")
    tails.clear()
def red2x2(a, b, t, a2, b2, t2):
    e(f"v_permlane16_swap_b32 v{a}, v{b}")
    e(f"v_permlane16_swap_b32 v{a2}, v{b2}")
    e(f"v_add_f32 v{a}, v{a}, v{b}")
    e(f"v_add_f32 v{a2}, v{a2}, v{b2}")
    e(f"v_mov_b32 v{t}, v{a}")
    e(f"v_mov_b32 v{t2}, v{a2}")
    nop(1)
    e(f"v_permlane32_swap_b32 v{a}, v{t}")
    e(f"v_permlane32_swap_b32 v{a2}, v{t2}")
    e(f"v_add_f32 v{a}, v{a}, v{t}")
    e(f"v_add_f32 v{a2}, v{a2}, v{t2}")
    e(f"v_mov_b32 v{t}, v{a}")
    e(f"v_mov_b32 v{t2}, v{a2}")
    nop(1)
    e(f"v_permlane16_swap_b32 v{a}, v{t}")
    e(f"v_permlane16_swap_b32 v{a2}, v{t2}")
def red2(a, b, t):
    e(f"v_permlane16_swap_b32 v{a}, v{b}")
    e(f"v_add_f32 v{a}, v{a}, v{b}")
    e(f"v_mov_b32 v{t}, v{a}")
    nop(2)
    e(f"v_permlane32_swap_b32 v{a}, v{t}")
    e(f"v_add_f32 v{a}, v{a}, v{t}")
    e(f"v_mov_b32 v{t}, v{a}")
    nop(2)
    e(f"v_permlane16_swap_b32 v{a}, v{t}")
def mean_var(vs, vq):
    e(f"v_mul_f32 v{vs}, {f32(-1.0/512)}, v{vs}")
    e(f"v_mul_f32 v{vq}, {f32(1.0/512)}, v{vq}")
    e(f"v_fma_f32 v{vq}, -v{vs}, v{vs}, v{vq}")
    e(f"v_max_f32 v{vq}, 0, v{vq}")
def zero(base, n):
    for i in range(n): e(f"v_mov_b32 v{base+i}, 0")
class LQ:
    def __init__(self, pend=()): self.q = list(pend)
    def op(self, id_, text): e(text); self.q.append(id_)
    def need(self, ids, vm=None):
        idx = max([i for i, x in enumerate(self.q) if x in ids], default=-1)
        parts = []
        if vm is not None: parts.append(f"vmcnt({vm})")
        if idx >= 0:
            parts.append(f"lgkmcnt({min(len(self.q)-1-idx, 15)})")
            self.q = self.q[idx+1:]
        if parts: e("s_waitcnt " + " ".join(parts))
def rd_text(buf, h, p, half_panel=False, base=0):
    if half_panel: off = ((p >> 1) & 7)*2048 + 1024*h; jj = p & 1
    else: off = (p >> 2)*4096 + 2048*h; jj = p & 3
    return f"ds_read_b64_tr_b16 {vr(buf+2*h,2)}, v{vW+jj} offset:{base+off}"
def mf_text(buf, areg, c, czero=False):
    return f"v_mfma_f32_16x16x32_bf16 {vr(c,4)}, {vr(buf,4)}, {vr(areg,4)}, {'0' if czero else vr(c,4)}"
def wtog(jj): e(f"v_xor_b32 v{vW+jj}, 0x8000, v{vW+jj}")
T_W = lambda i: f"ds_write_b128 v{vXA}, {vr(vACP+4*i,4)} offset:{1024*i}"
T_R = lambda i: f"ds_read_b128 {vr(vE+4*i,4)}, v{vXP} offset:{1024*i}"
T_C = lambda i: f"ds_read_b128 {vr(vACP+4*i,4)}, v{vCSR} offset:{64*i}"
def pre(half_panel=False, base=0):
    for p in range(6):
        for h in range(2): e(rd_text(vWB+4*p, h, p, half_panel, base))
nbar = {"c": 0, "h": 0, "l": 0}
def barrier(role, n=1, emit=True):
    if role == "h" and nbar[role] and nbar[role] < 32: prof(nbar[role])
    nbar[role] += n
    if emit: e("s_barrier")

DS = [14, 82, 86, 88, 94, 96, 98, 100]
def dst_(i):
    if OPT.get("dp") is not None: e(f"s_memtime {sr(DS[i],2)}")
ncall = [0]
def gen_pass64():
    buf = lambda q: (vE + 4*(q-16)) if 16 <= q < 24 else (vWB + 4*(q % 8))
    areg = lambda q, t: vA + 8*(q >> 2) + 4*t
    acc = lambda q, t: (vACP if t else vACC) + 4*(q & 3)
    lq = LQ([f"f{p}" for p in range(6) for h in range(2)])
    def RD(q, h, nxt=False):
        lq.op(("n" if nxt else "f")+str(q), rd_text(vWB+4*q if nxt else buf(q), h, q))
    pend = [(q, h) for q in range(4+6, 32) for h in range(2)]
    def dual(q, czero=False):
        for t in range(2):
            e(mf_text(buf(q), areg(q, t), acc(q, t), czero))
            if q < 4: RD(q+6, t)
            else:
                RD(*pend.pop(0))
                if q >= 10 and t == 0: RD(*pend.pop(0))
    def waitq(q, vm=None): lq.need([f"f{q}", f"f{q+1}"], vm)
    align(); lab("L_pass64b")
    save = list(lq.q)
    for q in range(4):
        if q % 2 == 0: waitq(q, 14 if q == 0 else None)
        dual(q)
    e("s_branch L_pass64_c")
    lq.q = save
    align(); lab("L_pass64")
    for q in range(4):
        if q % 2 == 0: waitq(q, 14 if q == 0 else None)
        dual(q, True)
    lab("L_pass64_c")
    dst_(1)
    for q in range(4, 16):
        if q % 2 == 0: waitq(q, 14-2*(q >> 2) if q % 4 == 0 else None)
        dual(q)
    dst_(2)
    todo = [lambda j=j: wtog(j) for j in range(4)]
    for q in range(16, 32):
        if q % 2 == 0: waitq(q, 14-2*(q >> 2) if q % 4 == 0 else None)
        e(mf_text(buf(q), areg(q, 1), acc(q, 1)))
        k = 0
        while pend and k < 2: RD(*pend.pop(0)); k += 1
        if q == OPT.get("ph", 30):
            e("s_cbranch_vccnz L_pubhook"); lab("L_pubret"); k += 1
        while not pend and todo and k < 1: todo.pop(0)(); k += 1
    assert not pend and not todo
    O = lambda q: e(mf_text(buf(q), areg(q, 0), acc(q, 0)))
    W = lambda i: lq.op(f"W{i}", T_W(i))
    dst_(3)
    e(f"s_bitcmp1_b32 s{sTAIL}, 0")
    e("s_cbranch_scc1 L_pass64_f")
    save = list(lq.q)
    O(16); O(17); O(18); O(19); W(0); O(20); O(21); W(1); O(22); O(23); W(2); O(24); O(25); W(3); O(26); O(27)
    dst_(4)
    lq.need(["W3"])
    dst_(5)
    e("s_barrier")
    dst_(6)
    O(28)
    for i in range(2): lq.op(f"R{i}", T_R(i))
    O(29)
    for i in range(2, 4): lq.op(f"R{i}", T_R(i))
    O(30); RD(0, 0, True); RD(0, 1, True)
    O(31); RD(1, 0, True); RD(1, 1, True)
    for i in range(4): lq.op(f"C{i}", T_C(i))
    for q in range(2, 6): RD(q, 0, True); RD(q, 1, True)
    lq.need(["R3"])
    for i in range(8): e(f"v_pk_add_f32 {vr(vE+2*i,2)}, {vr(vACC+2*i,2)}, {vr(vE+2*i,2)}")
    lq.need(["C3"])
    dst_(7)
    e(f"s_setpc_b64 {sr(sRET,2)}")
    lq.q = save
    align(); lab("L_pass64_f")
    O(16); e(f"s_add_u32 s{sXSEQ}, s{sXSEQ}, 1"); O(17); e(f"v_mov_b32 v{vT7}, s{sXSEQ}"); O(18); W(0); O(19); O(20); W(1); O(21); O(22); W(2); O(23); O(24); W(3)
    O(25)
    lq.need(["W3"])
    lq.op("X", f"ds_write_b32 v{vW1}, v{vT7} offset:{C_XF}")
    lq.op("CF", f"ds_read_b64 {vr(vCF,2)}, v{vCB} offset:{C_CSF}")
    O(26); lq.op("C0", T_C(0)); lq.op("C1", T_C(1)); O(27); lq.op("C2", T_C(2)); lq.op("C3", T_C(3))
    O(28); O(29)
    lq.op("F", f"ds_read_b32 v{vT6}, v{vXFP} offset:{C_XF}"); lq.op("R0", T_R(0))
    O(30); lq.op("R1", T_R(1)); lq.op("R2", T_R(2)); O(31); lq.op("R3", T_R(3))
    nop(2)
    lab("L_xf_w")
    e("s_waitcnt lgkmcnt(0)")
    e(f"v_readfirstlane_b32 s{sT0}, v{vT6}")
    for i in range(8): e(f"v_pk_add_f32 {vr(vE+2*i,2)}, {vr(vACC+2*i,2)}, {vr(vE+2*i,2)}")
    e(f"s_cmp_ge_u32 s{sT0}, s{sXSEQ}")
    e("s_cbranch_scc0 L_xf_r")
    lab("L_xf_d")
    e(f"s_setpc_b64 {sr(sRET,2)}")
    lab("L_xf_r")
    e(f"ds_read_b32 v{vT6}, v{vXFP} offset:{C_XF}")
    for i in range(4): e(T_R(i))
    e(f"s_sub_u32 s{sBUD}, s{sBUD}, 1")
    e("s_cbranch_scc0 L_xf_w")
    e(f"s_mov_b32 s{sBUD}, 0")
    e("s_branch L_xf_d")
    lab("L_pubhook")
    e(f"v_mov_b32 v{vT6}, s{sPUBV}")
    e("s_waitcnt vmcnt(0)")
    e(f"buffer_atomic_add v{vT6}, v{vFLO}, {sr(sWS,4)}, s{sPUBO} offen sc1")
    e("s_mov_b64 vcc, 0")
    e("s_branch L_pubret")
def call_pass(name="L_pass64", bar=True):
    dst_(0)
    e(f"s_call_b64 {sr(sRET,2)}, {name}")
    if OPT.get("dp") == ncall[0]:
        e("s_waitcnt lgkmcnt(0)")
        for i in range(8): e(f"v_writelane_b32 v{vP2}, s{DS[i]}, {i}")
    ncall[0] += 1
    if bar: barrier("c", 1, False)
def scalepack(dst):
    for i in range(8): e(f"v_pk_mul_f32 {vr(vE+2*i,2)}, {vr(vE+2*i,2)}, {vr(vSC,2)}")
    for i in range(8): e(f"v_cvt_pk_bf16_f32 v{dst+i}, v{vE+2*i}, v{vE+2*i+1}")

hdr = open("cdna_kernels/%s.s.ref" % NAME).read().split("\n")
for l in hdr:
    if l.startswith("; Override"): break
    out.append(l)
out.append(f"; @launch grid=(256,1,1) block=(512,1,1) lds={LDS_BYTES}")
out.append('.amdgcn_target "amdgcn-amd-amdhsa--gfx950"')
out.append(".text")
out.append(f".globl {NAME}_kernel")
out.append(".p2align 8")
out.append(f".type {NAME}_kernel,@function")
lab(f"{NAME}_kernel")
if PROF: e("s_memrealtime s[96:97]")
e("s_cmp_ge_u32 s2, 256")
e("s_cbranch_scc1 L_end")
e(f"s_load_dwordx16 {sr(16,16)}, s[0:1], 0")
e(f"s_load_dwordx4 {sr(32,4)}, s[0:1], 64")
e(f"s_load_dwordx2 {sr(36,2)}, s[0:1], 80")
e(f"v_lshrrev_b32 v1, 6, v0")
e(f"v_and_b32 v{vLANE}, 63, v0")
e(f"v_readfirstlane_b32 s{sWAVE}, v1")
MAP42 = OPT.get("map", 42) == 42
if MAP42:
    e(f"s_and_b32 s{sHF}, s2, 1")
    e(f"s_lshr_b32 s{sR32}, s2, 3")
    e(f"s_and_b32 s{sJ}, s{sR32}, 3")
    e(f"s_lshl_b32 s{sT0}, s{sHF}, 2")
    e(f"s_add_u32 s{sJ}, s{sJ}, s{sT0}")
    e(f"s_and_b32 s{sG}, s2, 6")
    e(f"s_lshl_b32 s{sG}, s{sG}, 2")
    e(f"s_lshr_b32 s{sT1}, s{sR32}, 2")
    e(f"s_add_u32 s{sG}, s{sG}, s{sT1}")
else:
    e(f"s_lshr_b32 s{sR32}, s2, 3")
    e(f"s_and_b32 s{sJ}, s{sR32}, 7")
    e(f"s_and_b32 s{sG}, s2, 7")
    e(f"s_lshl_b32 s{sG}, s{sG}, 2")
    e(f"s_lshr_b32 s{sT1}, s{sR32}, 3")
    e(f"s_add_u32 s{sG}, s{sG}, s{sT1}")
e(f"s_mov_b32 s{sBUD}, 0x80000")
e(f"s_and_b32 s{sKH}, s{sWAVE}, 1")
e(f"s_lshl_b32 s{sPAR}, s{sKH}, 16")
e(f"v_mov_b32 v{vCB}, {CB}")
e(f"v_lshlrev_b32 v{vL16}, 4, v{vLANE}")
e(f"v_lshrrev_b32 v{vT0}, 4, v{vLANE}")
e(f"v_and_b32 v{vT1}, 15, v{vLANE}")
e(f"s_mov_b32 s{sWS+2}, {WS_SIZE}")
e(f"s_mov_b32 s{sWS+3}, 0x00020000")
e(f"s_mov_b32 s{sX+3}, 0x00020000")
e(f"s_mov_b32 s{sOUT+3}, 0x00020000")
e(f"s_mov_b32 s{sONES}, 0x3f803f80")
if PROF:
    e(f"s_lshl_b32 s{sPIDX}, s2, 3")
    e(f"s_add_u32 s{sPIDX}, s{sPIDX}, s{sWAVE}")
    e(f"s_lshl_b32 s{sPIDX}, s{sPIDX}, 8")
    e(f"s_add_u32 s{sPIDX}, s{sPIDX}, {WS_PROF}")
    e(f"v_mov_b32 v{vP}, 0")
    e("s_waitcnt lgkmcnt(0)")
    e(f"v_writelane_b32 v{vP}, s96, 63")
e(f"s_cmp_ge_u32 s{sWAVE}, 4")
e("s_cbranch_scc1 L_service")

def tr_bases():
    e(f"v_lshrrev_b32 v{vT3}, 2, v{vLANE}")
    e(f"v_bfe_u32 v{vT4}, v{vT3}, 1, 2")
    e(f"v_lshlrev_b32 v{vT4}, 5, v{vT4}")
    e(f"v_and_b32 v{vT2}, 3, v{vLANE}")
    e(f"v_lshl_add_u32 v{vT4}, v{vT2}, 3, v{vT4}")
    e(f"v_lshl_add_u32 v{vB}, v{vT3}, 7, v{vT4}")
    for jj in range(1, 4): e(f"v_xor_b32 v{vB+jj}, {jj<<5}, v{vB}")
    e(f"v_and_b32 v{vT4}, 1, v{vT0}")
    e(f"v_lshlrev_b32 v{vT4}, 5, v{vT4}")
    e(f"v_lshl_add_u32 v{vT4}, v{vT2}, 3, v{vT4}")
    e(f"v_lshl_add_u32 v{vB32}, v{vT3}, 6, v{vT4}")
    e(f"v_xor_b32 v{vB32+1}, 32, v{vB32}")
e(f"s_lshl_b32 s{sTILE}, s{sG}, 2")
e(f"s_add_u32 s{sTILE}, s{sTILE}, s{sWAVE}")
e(f"s_lshr_b32 s{sUNIT}, s{sTILE}, 1")
e(f"s_mov_b32 s{sX+2}, {2<<20}")
e(f"s_lshl_b32 s{sT2}, s{sUNIT}, 15")
e(f"s_lshl_b32 s{sT0}, s{sKH}, 8")
e(f"s_add_u32 s{sT2}, s{sT2}, s{sT0}")
e(f"s_lshr_b32 s{sT3}, s{sWAVE}, 1")
e(f"s_lshl_b32 s{sT3}, s{sT3}, 14")
e(f"s_add_u32 s{sT3}, s{sT3}, s{sPAR}")
e(f"s_add_u32 s{sT3}, s{sT3}, 32768")
e(f"s_mov_b32 m0, s{sT3}")
e(f"v_lshrrev_b32 v{vT2}, 5, v{vLANE}")
e(f"v_xor_b32 v{vT3}, v{vT1}, v{vT2}")
e(f"v_lshlrev_b32 v{vT3}, 4, v{vT3}")
e(f"v_lshl_add_u32 v{vT3}, v{vT2}, 10, v{vT3}")
e(f"v_and_b32 v{vT4}, 1, v{vT0}")
e(f"v_lshl_add_u32 v{vWB}, v{vT4}, 9, v{vT3}")
for i in range(1, 8): e(f"v_xor_b32 v{vWB+i}, {i<<5}, v{vWB}")
e("s_waitcnt lgkmcnt(0)")
e(f"s_mov_b32 s{sX}, s{pX}")
e(f"s_mov_b32 s{sX+1}, s{pX+1}")
for i in range(16):
    e(f"buffer_load_dwordx4 v{vWB+(i&7)}, {sr(sX,4)}, s{sT2} offen lds")
    if i < 15:
        e("s_add_u32 m0, m0, 1024")
        e(f"s_add_u32 s{sT2}, s{sT2}, 2048")
barrier("c")
prof(0)
e(f"s_mov_b32 s{sWS}, s{pWSP}")
e(f"s_mov_b32 s{sWS+1}, s{pWSP+1}")
e(f"s_mov_b32 s{sOUT}, s{pOUT}")
e(f"s_mov_b32 s{sOUT+1}, s{pOUT+1}")
e(f"s_mov_b32 s{sOUT+2}, {2<<20}")
e(f"s_mov_b32 s{sCEXP}, {f32(0.25*math.log2(math.e))}")
e(f"s_mov_b32 s{sODD}, 0xaaaaaaaa")
e(f"s_mov_b32 s{sODD+1}, 0xaaaaaaaa")
e(f"s_mov_b32 s{sONE2}, 1.0")
e(f"s_mov_b32 s{sONE2+1}, 1.0")
e("s_mov_b64 vcc, 0")
tr_bases()
for jj in range(4): e(f"v_add_u32 v{vW+jj}, s{sPAR}, v{vB+jj}")
e(f"v_lshlrev_b32 v{vCSR}, 4, v{vT0}")
e(f"v_add_u32 v{vCSR}, {CSA}, v{vCSR}")
e(f"s_lshl_b32 s{sT2}, s{sWAVE}, 12")
e(f"s_add_u32 s{sT2}, s{sT2}, {XB}")
e(f"v_add_u32 v{vXA}, s{sT2}, v{vL16}")
e(f"v_xor_b32 v{vXP}, 0x1000, v{vXA}")
e(f"v_cmp_eq_u32 {sr(sM0,2)}, 0, v{vLANE}")
e(f"v_cmp_gt_u32 {sr(sM1,2)}, 16, v{vLANE}")
e(f"v_mov_b32 v{vT2}, {OOB}")
e(f"s_lshl_b32 s{sFLOFF}, s{sUNIT}, 7")
e(f"s_add_u32 s{sFLOFF}, s{sFLOFF}, {WS_FL}")
e(f"v_cndmask_b32 v{vFLO}, v{vT2}, 0, {sr(sM0,2)}")
e(f"s_lshl_b32 s{sT0}, s{sTILE}, 10")
e(f"s_lshr_b32 s{sT1}, s{sJ}, 1")
e(f"s_lshl_b32 s{sT1}, s{sT1}, 8")
e(f"s_add_u32 s{sT0}, s{sT0}, s{sT1}")
e(f"s_and_b32 s{sT1}, s{sJ}, 1")
e(f"s_lshl_b32 s{sT1}, s{sT1}, 3")
e(f"s_add_u32 s{sT0}, s{sT0}, s{sT1}")
e(f"v_add_u32 v{vT3}, s{sT0}, v{vL16}")
e(f"v_cndmask_b32 v{vSTO}, v{vT2}, v{vT3}, {sr(sM1,2)}")
e(f"s_lshl_b32 s{sT0}, s{sG}, 3")
e(f"s_add_u32 s{sT0}, s{sT0}, s{sJ}")
e(f"s_lshl_b32 s{sPUBO}, s{sT0}, 7")
e(f"s_add_u32 s{sPUBO}, s{sPUBO}, {WS_FL2}")
e(f"s_lshl_b32 s{sHKO}, s{sT0}, 12")
e(f"s_add_u32 s{sHKO}, s{sHKO}, {WS_HK}")
e(f"s_lshl_b32 s{sDST}, s{sTILE}, 14")
e(f"s_lshl_b32 s{sT1}, s{sJ}, 11")
e(f"s_add_u32 s{sDST}, s{sDST}, s{sT1}")
e(f"s_lshl_b32 s{sT1}, s{sJ}, 7")
e(f"s_lshl_b32 s{sCQ}, s{sTILE}, 14")
e(f"s_add_u32 s{sCQ}, s{sCQ}, s{sT1}")
e(f"v_and_b32 v{vT3}, 1, v{vT0}")
e(f"v_lshlrev_b32 v{vT3}, 5, v{vT3}")
e(f"v_lshrrev_b32 v{vT4}, 1, v{vT0}")
e(f"v_lshl_add_u32 v{vT3}, v{vT4}, 4, v{vT3}")
e(f"v_lshl_add_u32 v{vOUTO}, v{vT1}, 10, v{vT3}")
e(f"v_add_u32 v{vOUTO}, s{sCQ}, v{vOUTO}")
GA = -2.0*math.sqrt(2.0/math.pi)*math.log2(math.e)
for i in range(2):
    e(f"v_mov_b32 v{vGA+i}, {f32(GA)}")
    e(f"v_mov_b32 v{vGB+i}, {f32(GA*0.044715)}")
def set_la(stride):
    e(f"s_mul_i32 s{sT0}, s{sKH}, {stride+4096}")
    e(f"s_mul_i32 s{sT1}, s{sKH}, {-stride+4096}")
    e(f"s_add_u32 s{sT1}, s{sT1}, {stride}")
    e(f"v_add_u32 v{vLA}, s{sT0}, v{vL16}")
    e(f"v_add_u32 v{vLA+1}, s{sT1}, v{vL16}")
    e(f"v_add_u32 v{vLA+2}, 0x2000, v{vLA}")
    e(f"v_add_u32 v{vLA+3}, 0x2000, v{vLA+1}")
set_la(16384)
XA = vE
e(f"v_lshrrev_b32 v{vT3}, 1, v{vT0}")
e(f"v_xor_b32 v{vT3}, v{vT3}, v{vT1}")
e(f"v_lshlrev_b32 v{vT3}, 4, v{vT3}")
e(f"v_lshl_add_u32 v{vT3}, v{vT1}, 9, v{vT3}")
e(f"v_and_b32 v{vT4}, 1, v{vT0}")
e(f"v_lshl_add_u32 v{vT3}, v{vT4}, 3, v{vT3}")
e(f"s_lshl_b32 s{sT0}, s{sKH}, 13")
e(f"s_add_u32 s{sT0}, s{sT0}, s{sT3}")
e(f"v_add_u32 v{XA}, s{sT0}, v{vT3}")
for c in range(1, 8): e(f"v_xor_b32 v{XA+c}, {c<<5}, v{XA}")
for c in range(8): e(f"v_xor_b32 v{XA+8+c}, 0x2000, v{XA+c}")
for i in range(4): e(f"v_mov_b32 v{vST+i}, 0")
e(f"s_lshl_b32 s{sT0}, s{sWAVE}, 11")
e(f"s_add_u32 s{sT0}, s{sT0}, {VA}")
e(f"v_lshl_add_u32 v{vT2}, v{vT1}, 4, s{sT0}")
e(f"v_xor_b32 v{vT3}, 0x800, v{vT1}") if False else None
e(f"s_lshl_b32 s{sT0}, s{sWAVE}, 2")
e(f"v_add_u32 v{vXFP}, s{sT0}, v{vCB}")
e(f"v_mov_b32 v{vT4}, {LOOB}")
e(f"v_cndmask_b32 v{vW1}, v{vT4}, v{vXFP}, {sr(sM0,2)}")
e(f"v_xor_b32 v{vXFP}, 4, v{vXFP}")
e(f"s_lshl_b32 s{sT0}, s{sJ}, 1")
e(f"s_add_u32 s{sT0}, s{sT0}, s{sKH}")
e(f"s_lshl_b32 s{sT0}, 1, s{sT0}")
e(f"v_mov_b32 v{vBIT}, s{sT0}")
e(f"s_lshl_b32 s{sT0}, s{sT0}, 16")
e(f"v_mov_b32 v{vBIT+1}, s{sT0}")
e(f"s_lshl_b32 s{sT0}, s{sKH}, 2")
e(f"s_lshl_b32 s{sMK0}, 15, s{sT0}")
e(f"s_mov_b32 s{sTAIL}, 0")
e(f"s_mov_b32 s{sXSEQ}, 0")
e(f"s_bfe_u32 s{sT0}, s{sJ}, 0x10001")
e(f"s_xor_b32 s{sT0}, s{sT0}, s{sKH}")
e(f"s_lshl_b32 s{sT0}, s{sT0}, 16")
e(f"s_and_b32 s{sT1}, s{sJ}, 1")
e(f"s_lshl_b32 s{sT1}, s{sT1}, 7")
e(f"s_or_b32 s{sT0}, s{sT0}, s{sT1}")
e(f"s_lshr_b32 s{sT1}, s{sJ}, 2")
e(f"s_lshl_b32 s{sT1}, s{sT1}, 8")
e(f"v_xor_b32 v{vK}, s{sT0}, v{XA}")
e(f"v_add_u32 v{vK}, s{sT1}, v{vK}")
for jj in range(1, 4): e(f"v_xor_b32 v{vK+jj}, {jj<<5}, v{vK}")
e(f"s_lshr_b32 s{sT0}, s{sJ}, 2")
e(f"s_add_u32 s{sT0}, s{sT0}, 1")
e(f"s_sub_u32 s{sT1}, 0, s{sT0}")
e(f"s_bitcmp1_b32 s{sJ}, 1")
e(f"s_cselect_b32 s{sT0}, s{sT1}, s{sT0}")
e(f"s_lshl_b32 s{sT1}, s{sTILE}, 4")
e(f"s_add_u32 s{sT0}, s{sT0}, s{sT1}")
e(f"s_movk_i32 s{sT1}, 0x800")
e(f"v_add_u32 v{vT3}, s{sT0}, v{vT1}")
e(f"v_cmp_gt_u32 {sr(sM1,2)}, s{sT1}, v{vT3}")
e(f"v_lshrrev_b32 v{vT4}, 4, v{vT3}")
e(f"v_lshlrev_b32 v{vT4}, 14, v{vT4}")
e(f"v_lshl_add_u32 v{vT4}, v{vT0}, 8, v{vT4}")
e(f"v_and_b32 v{vT3}, 15, v{vT3}")
e(f"v_lshl_add_u32 v{vT4}, v{vT3}, 4, v{vT4}")
e(f"v_mov_b32 v{vT3}, {OOB}")
e(f"v_cndmask_b32 v{vHS}, v{vT3}, v{vT4}, {sr(sM1,2)}")
BI, SEL = vX1P+2, vX1P+6
e(f"v_and_b32 v{vT3}, 1, v{vT1}")
e(f"v_lshl_add_u32 v{vT3}, v{vT0}, 2, v{vT3}")
e(f"v_sub_u32 v{vT3}, v{vT1}, v{vT3}")
e(f"v_mov_b32 v{vT6}, {f32(-1e30)}")
e(f"s_cmp_eq_u32 s{sTILE}, 0")
e(f"s_cselect_b32 s{sT0}, -64, 16")
e(f"v_add_u32 v{vT4}, -2, v{vT3}")
e(f"v_cmp_gt_u32 {sr(sM0,2)}, 15, v{vT3}")
e(f"v_cmp_gt_u32 {sr(sM1,2)}, 15, v{vT4}")
e(f"v_add_u32 v{vT3}, s{sT0}, v{vT3}")
e(f"v_add_u32 v{vT4}, -2, v{vT3}")
e(f"v_cndmask_b32 v{BI}, v{vT6}, 0, {sr(sM0,2)}")
e(f"v_cndmask_b32 v{BI+1}, v{vT6}, 0, {sr(sM1,2)}")
e(f"v_cmp_gt_u32 {sr(sM0,2)}, 15, v{vT3}")
e(f"v_cmp_gt_u32 {sr(sM1,2)}, 15, v{vT4}")
e(f"v_mov_b32 v{vT3}, 0x0c0c0100")
e(f"v_mov_b32 v{vT4}, 0x01000c0c")
e(f"v_cndmask_b32 v{BI+2}, v{vT6}, 0, {sr(sM0,2)}")
e(f"v_cndmask_b32 v{BI+3}, v{vT6}, 0, {sr(sM1,2)}")
e(f"v_cndmask_b32 v{SEL}, v{vT3}, v{vT4}, {sr(sODD,2)}")
e(f"v_mov_b32 v{vT3}, 0x0c0c0302")
e(f"v_mov_b32 v{vT4}, 0x03020c0c")
e(f"v_cndmask_b32 v{SEL+1}, v{vT3}, v{vT4}, {sr(sODD,2)}")
e("s_waitcnt vmcnt(0)")
for ksl in range(8):
    for t in range(2):
        for h in range(2):
            e(f"ds_read_b64 {vr(vA+8*ksl+4*t+2*h,2)}, v{XA+8*t+2*(ksl&3)+h} offset:{256*(ksl>>2)}")
for ksl in range(8):
    e(f"s_waitcnt lgkmcnt({min(15, 28-4*ksl)})")
    for d in range(4):
        for t in range(2):
            r = vA+8*ksl+4*t+d
            e(f"v_dot2_f32_bf16 v{vST+2*t}, v{r}, s{sONES}, v{vST+2*t}")
            e(f"v_dot2_f32_bf16 v{vST+2*t+1}, v{r}, v{r}, v{vST+2*t+1}")
nop(3)
red2x2(vST, vST+1, vST+1, vST+2, vST+3, vST+3)
e(f"ds_write_b128 v{vT2}, {vr(vST,4)}")
e(f"s_xor_b32 s{sT0}, s{sWAVE}, 1")
e(f"s_lshl_b32 s{sT0}, s{sT0}, 11")
e(f"s_add_u32 s{sT0}, s{sT0}, {VA}")
e(f"v_lshl_add_u32 v{vT3}, v{vT1}, 4, s{sT0}")
e("s_waitcnt lgkmcnt(0)")
prof(1)
barrier("c")
e(f"ds_read_b128 {vr(vE,4)}, v{vT3}")
for jj in range(4): e(f"ds_read_b64 {vr(vXR+2*jj,2)}, v{vK+jj}")
e(f"s_mov_b32 s{sT0}, 0x3f80")
e(f"s_mov_b32 s{sT1}, 0x3f800000")
e("s_waitcnt lgkmcnt(0)")
e(f"v_add_f32 v{vT4}, v{vE+2}, v{vST}")
e(f"v_add_f32 v{vT3}, v{vE+3}, v{vST+1}")
e(f"v_add_f32 v{vT6}, v{vE}, v{vST+2}")
e(f"v_mul_f32 v{vT6}, {f32(-1.0/512)}, v{vT6}")
mean_var(vT4, vT3)
e(f"v_add_f32 v{vT3}, {f32(1e-5)}, v{vT3}")
e(f"v_rsq_f32 v{vSC}, v{vT3}")
e(f"v_rsq_f32 v{vSC+1}, v{vT3}")
for c in range(8):
    for i in range(8):
        m_ = vT6 if (i >> 2) & 1 else vT4
        e(f"v_dot2_f32_bf16 v{vE+2*i}, v{vA+8*c+i}, s{sT0}, v{m_}")
        e(f"v_dot2_f32_bf16 v{vE+2*i+1}, v{vA+8*c+i}, s{sT1}, v{m_}")
    nop(1)
    for i in range(8): e(f"v_cvt_pk_bf16_f32 v{vA+8*c+i}, v{vE+2*i}, v{vE+2*i+1}")
    if c == 6:
        barrier("c")
        pre()
prof(30)
call_pass()
scalepack(vK)
e(f"v_lshlrev_b32 v{vT2}, 7, v{vT1}")
e(f"v_lshl_add_u32 v{vT2}, v{vT0}, 5, v{vT2}")
e(f"s_cmp_eq_u32 s{sWAVE}, 3")
e("s_cbranch_scc0 L_k3d")
e(f"buffer_store_dwordx4 {vr(vK,4)}, v{vL16}, {sr(sWS,4)}, s{sHKO} offen sc1")
e(f"buffer_store_dwordx4 {vr(vK+4,4)}, v{vL16}, {sr(sWS,4)}, s{sHKO} offen offset:1024 sc1")
e(f"s_mov_b32 s{sPUBV}, 1")
e("s_mov_b64 vcc, -1")
lab("L_k3d")
e(f"s_cselect_b32 s{sT1}, 16, 1")
e(f"s_mul_i32 s{sT0}, s{sWAVE}, {KSZ}")
e(f"s_add_u32 s{sT0}, s{sT0}, {KA+KSZ-256}")
e(f"v_cmp_lt_u32 {sr(sM0,2)}, s{sT1}, v{vT1}")
e(f"v_add_u32 v{vT2}, s{sT0}, v{vT2}")
e(f"v_mov_b32 v{vT3}, {LOOB}")
e(f"v_cndmask_b32 v{vX1P}, v{vT3}, v{vT2}, {sr(sM0,2)}")
e(f"v_bfe_u32 v{vT2}, v{vT1}, 1, 2")
e(f"v_lshlrev_b32 v{vT2}, 1, v{vT2}")
e(f"v_lshrrev_b32 v{vT3}, 1, v{vT0}")
e(f"v_xor_b32 v{vT2}, v{vT2}, v{vT3}")
e(f"v_lshlrev_b32 v{vT2}, 4, v{vT2}")
e(f"v_lshl_add_u32 v{vT2}, v{vT1}, 7, v{vT2}")
e(f"v_and_b32 v{vT3}, 1, v{vT0}")
e(f"v_lshl_add_u32 v{vHP}, v{vT3}, 3, v{vT2}")
for h in range(1, 4): e(f"v_xor_b32 v{vHP+h}, {h<<5}, v{vHP}")
e(f"s_lshl_b32 s{sT0}, s{sWAVE}, 11")
e(f"s_add_u32 s{sT0}, s{sT0}, {VA}")
for h in range(4): e(f"v_add_u32 v{vHP+4+h}, s{sT0}, v{vHP+h}")
prof(2)
call_pass()
scalepack(vPK)
for h in range(4): e(f"ds_write_b64 v{vHP+4+h}, {vr(vPK+2*h,2)}")
e(f"ds_write_b128 v{vX1P}, {vr(vK,4)}")
e(f"ds_write_b128 v{vX1P}, {vr(vK+4,4)} offset:16")
e(f"s_cmp_eq_u32 s{sWAVE}, 3")
e("s_cbranch_scc0 L_v3d")
for i in range(2): e(f"buffer_store_dwordx4 {vr(vPK+4*i,4)}, v{vL16}, {sr(sWS,4)}, s{sHKO} offen offset:{2048+1024*i} sc1")
e(f"s_mov_b32 s{sPUBV}, 0x100")
e("s_mov_b64 vcc, -1")
lab("L_v3d")
e(f"v_max_u32 v{vT2}, 2, v{vT1}")
e(f"v_lshlrev_b32 v{vT2}, 7, v{vT2}")
e(f"v_lshl_add_u32 v{vT2}, v{vT0}, 5, v{vT2}")
e(f"s_mul_i32 s{sT1}, s{sWAVE}, {KSZ}")
e(f"s_add_u32 s{sT1}, s{sT1}, {KA-256}")
e(f"v_add_u32 v{vT2}, s{sT1}, v{vT2}")
e(f"s_sub_u32 s{sT1}, s{sT0}, 2048")
e(f"s_cmp_eq_u32 s{sWAVE}, 0")
e(f"s_cselect_b32 s{sT1}, {XB}, s{sT1}")
e(f"s_cselect_b32 s{sT3}, 1, 0")
for h in range(4):
    e(f"v_add_u32 v{vHP+h}, s{sT0}, v{vB+h}")
    e(f"v_add_u32 v{vHP+4+h}, s{sT1}, v{vB+h}")
e("s_waitcnt lgkmcnt(0)")
barrier("c")
prof(3)
call_pass()
KP, VP, VO, SO, SP_ = vA, vA+8, vA+16, vA+24, vA+40
e(f"ds_write_b32 v{vW1}, v{vBIT} offset:{C_ACK}")
for h in range(4): e(f"ds_read_b64_tr_b16 {vr(VO+2*h,2)}, v{vHP+h}")
scalepack(vPK)
l = uid("kv"); d = l+"_d"
lab(l)
e(f"ds_read_b32 v{vT7}, v{vCB} offset:{C_KV}")
e(f"ds_read_b128 {vr(KP,4)}, v{vT2}")
e(f"ds_read_b128 {vr(KP+4,4)}, v{vT2} offset:16")
for h in range(4):
    e(f"v_mfma_f32_16x16x16_bf16 {vr(SO+4*h,4)}, {vr(vK+2*h,2)}, {vr(vPK+2*h,2)}, 0")
e("s_waitcnt lgkmcnt(0)")
e(f"v_readfirstlane_b32 s{sT2}, v{vT7}")
e(f"s_cmp_ge_u32 s{sT2}, s{sT3}")
e(f"s_cbranch_scc0 {spin(l, d)}")
lab(d)
for h in range(4):
    e(f"v_mfma_f32_16x16x16_bf16 {vr(SP_+4*h,4)}, {vr(KP+2*h,2)}, {vr(vPK+2*h,2)}, 0")
prof(4)
nop(4)
X = vE
for h in range(4):
    e(f"v_cndmask_b32 v{X+4*h}, v{SO+4*h}, v{SO+4*h+1}, {sr(sODD,2)}")
    e(f"v_cndmask_b32 v{X+4*h+1}, v{SO+4*h+2}, v{SO+4*h+3}, {sr(sODD,2)}")
for h in range(4):
    e(f"v_cndmask_b32 v{X+4*h+2}, v{SP_+4*h}, v{SP_+4*h+1}, {sr(sODD,2)}")
    e(f"v_cndmask_b32 v{X+4*h+3}, v{SP_+4*h+2}, v{SP_+4*h+3}, {sr(sODD,2)}")
for h in range(4):
    for i in range(4): e(f"v_fma_f32 v{X+4*h+i}, v{X+4*h+i}, s{sCEXP}, v{BI+i}")
M = vE+16; M2 = vE+20
for h in range(4): e(f"v_max3_f32 v{M+h}, v{X+4*h}, v{X+4*h+1}, v{X+4*h+2}")
for h in range(4): e(f"v_max_f32 v{M+h}, v{M+h}, v{X+4*h+3}")
def allred(op):
    for h in range(4): e(f"v_mov_b32 v{M2+h}, v{M+h}")
    nop(1)
    for h in range(4): e(f"v_permlane16_swap_b32 v{M+h}, v{M2+h}")
    for h in range(4): e(f"{op} v{M+h}, v{M+h}, v{M2+h}")
    for h in range(4): e(f"v_mov_b32 v{M2+h}, v{M+h}")
    nop(1)
    for h in range(4): e(f"v_permlane32_swap_b32 v{M+h}, v{M2+h}")
    for h in range(4): e(f"{op} v{M+h}, v{M+h}, v{M2+h}")
allred("v_max_f32")
for h in range(4):
    for i in range(4): e(f"v_sub_f32 v{X+4*h+i}, v{X+4*h+i}, v{M+h}")
for i in range(16): e(f"v_exp_f32 v{X+i}, v{X+i}")
for h in range(4): e(f"v_add_f32 v{M+h}, v{X+4*h}, v{X+4*h+1}")
for h in range(4): e(f"v_add_f32 v{M2+h}, v{X+4*h+2}, v{X+4*h+3}")
for h in range(4): e(f"v_add_f32 v{M+h}, v{M+h}, v{M2+h}")
allred("v_add_f32")
for h in range(4): e(f"v_rcp_f32 v{M+h}, v{M+h}")
lv_ = uid("vv")
e(f"s_lshl_b32 s{sT3}, s{sT3}, 1")
lab(lv_)
e(f"ds_read_b32 v{vT7}, v{vCB} offset:{C_KV}")
for h in range(4): e(f"ds_read_b64_tr_b16 {vr(VP+2*h,2)}, v{vHP+4+h}")
e("s_cbranch_vccnz "+lv_+"_w")
for h in range(4):
    for i in range(4): e(f"v_mul_f32 v{X+4*h+i}, v{X+4*h+i}, v{M+h}")
for h in range(4):
    e(f"v_cvt_pk_bf16_f32 v{M+h}, v{X+4*h}, v{X+4*h+1}")
    e(f"v_cvt_pk_bf16_f32 v{M2+h}, v{X+4*h+2}, v{X+4*h+3}")
for h in range(4):
    e(f"v_perm_b32 v{SO+2*h}, v{M+h}, v{M+h}, v{SEL}")
    e(f"v_perm_b32 v{SO+2*h+1}, v{M+h}, v{M+h}, v{SEL+1}")
    e(f"v_perm_b32 v{SP_+2*h}, v{M2+h}, v{M2+h}, v{SEL}")
    e(f"v_perm_b32 v{SP_+2*h+1}, v{M2+h}, v{M2+h}, v{SEL+1}")
nop(2)
OA = vE
for h in range(4):
    e(f"v_mfma_f32_16x16x16_bf16 {vr(OA+4*h,4)}, {vr(VO+2*h,2)}, {vr(SO+2*h,2)}, 0")
lab(lv_+"_w")
e("s_waitcnt lgkmcnt(0)")
e(f"v_readfirstlane_b32 s{sT2}, v{vT7}")
e("s_mov_b64 vcc, -1")
e(f"s_cmp_ge_u32 s{sT2}, s{sT3}")
e(f"s_cbranch_scc0 {spin(lv_, lv_+'_d')}")
lab(lv_+"_d")
e("s_mov_b64 vcc, 0")
for h in range(4):
    e(f"v_mfma_f32_16x16x16_bf16 {vr(OA+4*h,4)}, {vr(VP+2*h,2)}, {vr(SP_+2*h,2)}, {vr(OA+4*h,4)}")
nop(2)
def pack(dst):
    for i in range(8): e(f"v_cvt_pk_bf16_f32 v{dst+i}, v{vE+2*i}, v{vE+2*i+1}")
def store_act(pk, base):
    e(f"s_add_u32 s{sT0}, s{sDST}, {base}")
    e(f"buffer_store_dwordx4 {vr(pk,4)}, v{vL16}, {sr(sWS,4)}, s{sT0} offen sc1")
    e(f"buffer_store_dwordx4 {vr(pk+4,4)}, v{vL16}, {sr(sWS,4)}, s{sT0} offen offset:1024 sc1")
nop(3)
pack(vPK)
store_act(vPK, WS_O)
pubn = [0]
def publish(younger=0):
    f = pubn[0]; pubn[0] += 1
    if f in (1, 2): prof(21+f)
    e(f"s_waitcnt vmcnt({younger})")
    e(f"buffer_atomic_add v{vBIT+(f&1)}, v{vFLO}, {sr(sWS,4)}, s{sFLOFF} offen offset:{4*(f>>1)} sc1")
def loada(sgs=(0, 1)):
    for ksl in range(8):
        if ksl >> 2 not in sgs: continue
        for tsel in range(2):
            e(f"buffer_load_dwordx4 {vr(vA+8*ksl+4*tsel,4)}, v{vLA+2*(ksl>>2)+tsel}, {sr(sWS,4)}, s{sOFFA} offen offset:{1024*(ksl&3)} sc1")
def set_offa(base):
    e(f"s_lshl_b32 s{sOFFA}, s{sUNIT}, 15")
    e(f"s_add_u32 s{sOFFA}, s{sOFFA}, {base}")
def set_stats_off(base):
    e(f"s_lshl_b32 s{sT3}, s{sTILE}, 10")
    e(f"s_add_u32 s{sT3}, s{sT3}, {base}")
def load_stats(): e(f"buffer_load_dwordx4 {vr(vST,4)}, v{vL16}, {sr(sWS,4)}, s{sT3} offen sc1")
def consume_stats():
    e("s_waitcnt vmcnt(8)")
    e(f"v_add_f32 v{vT4}, v{vST}, v{vST+2}")
    e(f"v_add_f32 v{vT3}, v{vST+1}, v{vST+3}")
    nop(2)
    red2(vT4, vT3, vT3)
    mean_var(vT4, vT3)
def store_stats(pk, base):
    e(f"v_mov_b32 v{vST}, 0")
    e(f"v_mov_b32 v{vST+1}, 0")
    for i in range(8):
        e(f"v_dot2_f32_bf16 v{vST}, v{pk+i}, s{sONES}, v{vST}")
        e(f"v_dot2_f32_bf16 v{vST+1}, v{pk+i}, v{pk+i}, v{vST+1}")
    e(f"s_mov_b32 s{sT0}, {base}")
    nop(2)
    red2(vST, vST+1, vST+1)
    e(f"buffer_store_dwordx2 {vr(vST,2)}, v{vSTO}, {sr(sWS,4)}, s{sT0} offen sc1")
def unpack(dst, src, n):
    for i in range(n):
        e(f"v_lshlrev_b32 v{dst+2*i}, 16, v{src+i}")
        e(f"v_and_b32 v{dst+2*i+1}, 0xffff0000, v{src+i}")
def wait_bits(f, mask_s, shift, nb=None, first=True):
    l = uid("rdy"); d = l+"_d"; c = l+"_c"
    sh = 16*(f & 1) + shift
    if isinstance(mask_s, int): e(f"s_mov_b32 s{sT0}, {mask_s << sh}")
    else: e(f"s_lshl_b32 s{sT0}, s{mask_s}, {sh}")
    if nb is not None: e(f"s_lshl_b32 s{sT1}, s{nb}, {sh}")
    if not first: e(f"s_branch {c}")
    lab(l)
    e(f"s_mov_b32 s{sFLW}, 0")
    if nb is not None: e(f"s_mov_b32 s{sFB}, 0")
    e(f"s_atomic_add s{sFLW}, {sr(pWSP,2)}, s{sFLW+1} glc")
    if nb is not None: e(f"s_atomic_add s{sFB}, {sr(pWSP,2)}, s{sNBO} glc")
    e("s_waitcnt lgkmcnt(0)")
    lab(c)
    e(f"s_andn2_b32 s{sT2}, s{sT0}, s{sFLW}")
    if nb is not None:
        e(f"s_andn2_b32 s{sFB+1}, s{sT1}, s{sFB}")
        e(f"s_or_b32 s{sT2}, s{sT2}, s{sFB+1}")
    e(f"s_cbranch_scc1 {spin(l, d)}")
    lab(d)
def set_word(f): e(f"s_add_u32 s{sFLW+1}, s{sFLOFF}, {4*(f>>1)}")
def cs_check():
    l = uid("cs"); d = l+"_d"
    lab(l+"_c")
    e(f"v_min_u32 v{vCF}, v{vCF}, v{vCF+1}")
    nop(1)
    e(f"v_readfirstlane_b32 s{sT0}, v{vCF}")
    e(f"s_cmp_ge_u32 s{sT0}, 1")
    e(f"s_cbranch_scc0 {l}")
    lab(d)
    cs_retries.append((l, d))
cs_retries = []
zero(vACP, 16)
set_offa(WS_O)
set_word(0)
e(f"s_mov_b32 s{sTAIL}, 1")
unpack(vACC, vXR, 8)
publish()
barrier("c")
prof(5)
wait_bits(0, sMK0, 0)
prof(6)
loada((0,))
wait_bits(0, sMK0, 8, None, False)
loada((1,))
call_pass("L_pass64b", False)
prof(7)
pack(vHP)
store_act(vHP, WS_H)
store_stats(vHP, WS_HS)
set_offa(WS_H)
set_stats_off(WS_HS)
publish()
barrier("c")
pre()
prof(8)
wait_bits(1, sMK0, 0)
prof(9)
loada((0,))
wait_bits(1, 0xffff, 0, None, False)
load_stats()
loada((1,))
consume_stats()
e(f"v_add_f32 v{vT2}, {f32(1e-5)}, v{vT3}")
e(f"v_rsq_f32 v{vR1}, v{vT2}")
e(f"v_mov_b32 v{vNMH}, v{vT4}")
e(f"v_mul_f32 v{vT3}, v{vT3}, v{vR1}")
e(f"v_fmaak_f32 v{vT3}, v{vT3}, v{vR1}, {f32(1e-5)}")
e(f"v_rsq_f32 v{vT3}, v{vT3}")
e(f"v_mov_b32 v{vNMH+1}, v{vT4}")
e(f"v_mul_f32 v{vSC}, v{vT3}, v{vR1}")
e(f"v_mul_f32 v{vSC+1}, v{vT3}, v{vR1}")
e(f"v_mov_b32 v{vR1+1}, v{vR1}")
e(f"v_mul_f32 v{vMS}, v{vT4}, v{vSC}")
e(f"v_mul_f32 v{vMS+1}, v{vT4}, v{vSC}")
e(f"s_mov_b32 s{sCNT}, 0")
call_pass("L_pass64", False)
prof(10)
cs_check()
e(f"s_call_b64 {sr(sRET2,2)}, L_gelu")
e(f"s_lshl_b32 s{sT0}, s{sJ}, 11")
e(f"s_add_u32 s{sT0}, s{sT0}, {WS_H1}")
e(f"buffer_store_dwordx4 {vr(vPK,4)}, v{vHS}, {sr(sWS,4)}, s{sT0} offen sc1")
e(f"buffer_store_dwordx4 {vr(vPK+4,4)}, v{vHS}, {sr(sWS,4)}, s{sT0} offen offset:1024 sc1")
e(f"v_mov_b32 v{vT6}, {OOB}")
e(f"s_lshl_b32 s{sT2}, s{sKH}, 1")
e(f"s_sub_u32 s{sT2}, s{sT2}, 1")
e(f"s_movk_i32 s{sT3}, 0x800")
for sg in range(2):
    for tsel in range(2):
        if tsel: e(f"s_xor_b32 s{sT0}, s{sTILE}, 1")
        e(f"s_lshl_b32 s{sT0}, s{sT0 if tsel else sTILE}, 4")
        e(f"s_add_u32 s{sT0}, s{sT0}, s{sT2}")
        if sg: e(f"s_add_u32 s{sT0}, s{sT0}, s{sT2}")
        e(f"v_add_u32 v{vT2}, s{sT0}, v{vT1}")
        e(f"v_cmp_gt_u32 {sr(sM0,2)}, s{sT3}, v{vT2}")
        nop(2)
        e(f"v_cndmask_b32 v{vLA+2*sg+tsel}, v{vT6}, v{vLA+2*sg+tsel}, {sr(sM0,2)}")
unpack(vACC, vHP, 8)
for i in range(8): e(f"v_pk_add_f32 {vr(vACC+2*i,2)}, {vr(vACC+2*i,2)}, {vr(vNMH,2)}")
for i in range(8): e(f"v_pk_mul_f32 {vr(vACC+2*i,2)}, {vr(vACC+2*i,2)}, {vr(vR1,2)}")
zero(vACP, 16)
e(f"s_lshl_b32 s{sT0}, s{sT2}, 7")
e(f"s_add_u32 s{sNBO}, s{sFLOFF}, s{sT0}")
e(f"s_add_u32 s{sT0}, s{sUNIT}, s{sT2}")
e(f"s_cmp_gt_u32 s{sT0}, 63")
e(f"s_cselect_b32 s{sNBO}, s{sFLOFF}, s{sNBO}")
e(f"s_add_u32 s{sNBO}, s{sNBO}, 4")
e(f"s_cmp_eq_u32 s{sKH}, 0")
e(f"s_cselect_b32 s{sCSN}, 0x0a, 0x50")
set_word(2)
set_offa(WS_H1)
e(f"v_add_u32 v{vCSR}, 256, v{vCSR}")
publish()
barrier("c")
pre()
prof(11)
wait_bits(2, sMK0, 0, sCSN)
prof(12)
loada((0,))
wait_bits(2, sMK0, 8, sCSN, False)
loada((1,))
call_pass("L_pass64b", False)
prof(13)
pack(vX1P)
store_act(vX1P, WS_X1)
store_stats(vX1P, WS_X1S)
e(f"s_mov_b32 s{sTAIL}, 0")
set_la(16384)
e(f"s_mul_i32 s{sDST}, s{sTILE}, {GT}")
e(f"s_lshl_b32 s{sT1}, s{sJ}, 11")
e(f"s_add_u32 s{sDST}, s{sDST}, s{sT1}")
set_offa(WS_X1)
set_stats_off(WS_X1S)
publish()
barrier("c")
pre()
prof(14)
wait_bits(3, sMK0, 0)
prof(15)
loada((0,))
wait_bits(3, 0xffff, 0, None, False)
load_stats()
loada((1,))
consume_stats()
e(f"v_add_f32 v{vT2}, {f32(1e-5)}, v{vT3}")
e(f"v_rsq_f32 v{vSC}, v{vT2}")
e(f"v_rsq_f32 v{vSC+1}, v{vT2}")
e(f"v_mul_f32 v{vMS}, v{vT4}, v{vSC}")
e(f"v_mul_f32 v{vMS+1}, v{vT4}, v{vSC}")
for p in range(3):
    call_pass()
    if p: publish()
    if not OPT.get('dl'): prof(24+2*p)
    if p == 2:
        for jj in range(2): e(f"v_add_u32 v{vW+jj}, s{sPAR}, v{vB32+jj}")
        pre(True, 32768)
    e(f"v_add_u32 v{vCSR}, {256 if p != 1 else -256}, v{vCSR}")
    e(f"s_call_b64 {sr(sRET2,2)}, L_gelu")
    if not OPT.get('dl'): prof(25+2*p)
    store_act(vPK, WS_G + 16384*p)
    prof(16+p)
lq = LQ([f"f{p}" for p in range(6) for h in range(2)])
for q in range(16):
    if q % 2 == 0: lq.need([f"f{q}", f"f{q+1}"])
    for t in (1, 0):
        e(mf_text(vWB+4*(q % 8), vA + 8*(q >> 1) + 4*t, (vACP if t else vACC) + 4*(q & 1), q < 2))
        if q+6 < 16: lq.op(f"f{q+6}", rd_text(vWB+4*((q+6) % 8), 1-t, q+6, True, 32768))
for jj in range(4): e(f"v_add_u32 v{vW+jj}, s{sPAR}, v{vB+jj}")
e(f"s_mov_b32 s{sCNT}, 1")
nop(2)
for i in range(2): e(T_W(i))
publish()
set_la(GT)
e(f"s_mul_i32 s{sOFFA}, s{sUNIT}, {2*GT}")
e(f"s_add_u32 s{sOFFA}, s{sOFFA}, {WS_G}")
QUADS = ([vA+4*i for i in range(16)] + [vXR+4*i for i in range(6)] + [vE+16+4*i for i in range(4)] + [vK, vK+4] + [vE+4*i for i in range(4)])[:OPT.get("nq", 24)]
NQ = len(QUADS)
gpolls = []
def gpoll():
    e(f"s_mov_b64 {sr(sFG,2)}, 0")
    e(f"s_atomic_add_x2 {sr(sFG,2)}, {sr(pWSP,2)}, s{sFLW+1} glc")
    e("s_waitcnt lgkmcnt(0)")
def gcheck(p):
    l = uid("g"); d = l+"_d"
    lab(d+"c")
    e(f"s_lshr_b32 s{sT0}, s{sFG+(p>>1)}, {16*(p&1)}")
    e(f"s_andn2_b32 s{sT0}, 0xffff, s{sT0}")
    e(f"s_cbranch_scc1 {l}")
    lab(d)
    gpolls.append((l, d))
def gload(m):
    ks, t = m >> 1, m & 1
    if ks % 8 == 0 and t == 0:
        p = ks // 8
        gcheck(p)
        if p: e(f"s_add_u32 s{sOFFA}, s{sOFFA}, 16384")
    e(f"buffer_load_dwordx4 {vr(QUADS[m % NQ],4)}, v{vLA+2*((ks>>2)&1)+t}, {sr(sWS,4)}, s{sOFFA} offen offset:{1024*(ks&3)} sc1")
set_word(4)
gpoll()
for m in range(16): gload(m)
barrier("c")
for i in range(2): e(T_R(i))
for i in range(2): e(T_C(i))
w4slot = lambda it: ((19 + it) & 3) * 16384
pre(False, w4slot(0))
e("s_waitcnt lgkmcnt(12)")
for i in range(4): e(f"v_pk_add_f32 {vr(vE+2*i,2)}, {vr(vACC+2*i,2)}, {vr(vE+2*i,2)}")
e(f"s_call_b64 {sr(sRET2,2)}, L_gelu")
e(f"s_lshl_b32 s{sT1}, s{sJ}, 10")
e(f"s_sub_u32 s{sT0}, s{sDST}, s{sT1}")
e(f"s_add_u32 s{sT0}, s{sT0}, {WS_G + 48*1024}")
e(f"buffer_store_dwordx4 {vr(vPK,4)}, v{vL16}, {sr(sWS,4)}, s{sT0} offen sc1")
unpack(vE, vHP, 8)
unpack(vE+16, vX1P, 8)
for i in range(8): e(f"v_pk_add_f32 {vr(vACC+2*i,2)}, {vr(vE+2*i,2)}, {vr(vE+16+2*i,2)}")
zero(vACP, 16)
prof(19)
for m in range(16, NQ): gload(m)
lq = LQ([f"f{p}" for p in range(6) for h in range(2)])
nissued = NQ
NP = 112
g3pub = [None]
for q in range(NP):
    ks = q >> 2
    vm = None
    extra = (1 if 2*ks+1 < 16 else 0) + (1 if g3pub[0] is not None and 2*ks+1 < g3pub[0] else 0)
    if q % 4 == 0: vm = nissued - (2*ks+2) + extra
    if q == 32:
        cmt("the last G store is older than everything waited for from here on")
        lq.need([f"f{q}", f"f{q+1}"], vm); vm = None
        publish(nissued - 16)
        g3pub[0] = nissued
    if q % 2 == 0: lq.need([f"f{q}", f"f{q+1}"], vm)
    if (q+6) % 16 == 0 and q+6 < NP:
        barrier("c")
    for t in range(2):
        e(mf_text(vWB+4*(q % 8), QUADS[(2*ks+t) % NQ], (vACP if t else vACC)+4*(q & 3)))
        if q+6 < NP: lq.op(f"f{q+6}", rd_text(vWB+4*((q+6) % 8), t, (q+6) & 15, False, w4slot((q+6) >> 4)))
        if (q & 3) in (1, 3) and t == 0 and ks >= 1 and nissued < 56:
            gload(nissued); nissued += 1
nop(8)
for i in range(4): e(T_W(i))
e("s_waitcnt lgkmcnt(0)")
barrier("c")
for i in range(4): e(T_R(i))
e("s_waitcnt lgkmcnt(0)")
for i in range(8): e(f"v_pk_add_f32 {vr(vE+2*i,2)}, {vr(vACC+2*i,2)}, {vr(vE+2*i,2)}")
prof(20)
pack(vPK)
nop(2)
for s in range(2):
    e(f"v_permlane16_swap_b32 v{vPK+4*s}, v{vPK+4*s+2}")
    e(f"v_permlane16_swap_b32 v{vPK+4*s+1}, v{vPK+4*s+3}")
e(f"buffer_store_dwordx4 {vr(vPK,4)}, v{vOUTO}, {sr(sOUT,4)}, 0 offen")
e(f"buffer_store_dwordx4 {vr(vPK+4,4)}, v{vOUTO}, {sr(sOUT,4)}, 0 offen offset:64")
prof(21)
prof_flush()
e("s_endpgm")
for l, d in gpolls:
    lab(l)
    gpoll()
    e(f"s_sub_u32 s{sBUD}, s{sBUD}, 1")
    e(f"s_cbranch_scc0 {d}c")
    e(f"s_mov_b32 s{sBUD}, 0")
    e(f"s_branch {d}")
for l, d in cs_retries:
    lab(l)
    e(f"ds_read_b64 {vr(vCF,2)}, v{vCB} offset:{C_CSF}")
    for i in range(4): e(T_C(i))
    e("s_waitcnt lgkmcnt(0)")
    e(f"s_sub_u32 s{sBUD}, s{sBUD}, 1")
    e(f"s_cbranch_scc0 {l}_c")
    e(f"s_mov_b32 s{sBUD}, 0")
    e(f"s_branch {d}")

gen_pass64()
align(); lab("L_gelu")
for half in range(2):
    Xr = vE + 8*half; c0 = vACP + 8*half; U = vE+16
    for i in range(4): e(f"v_pk_mul_f32 {vr(Xr+2*i,2)}, {vr(Xr+2*i,2)}, {vr(vSC,2)}")
    for i in range(4): e(f"v_pk_fma_f32 {vr(Xr+2*i,2)}, {vr(c0+2*i,2)}, {vr(vMS,2)}, {vr(Xr+2*i,2)}")
    for i in range(4): e(f"v_pk_mul_f32 {vr(U+2*i,2)}, {vr(Xr+2*i,2)}, {vr(Xr+2*i,2)}")
    for i in range(4): e(f"v_pk_fma_f32 {vr(U+2*i,2)}, {vr(U+2*i,2)}, {vr(vGB,2)}, {vr(vGA,2)}")
    for i in range(4): e(f"v_pk_mul_f32 {vr(U+2*i,2)}, {vr(U+2*i,2)}, {vr(Xr+2*i,2)}")
    for i in range(8): e(f"v_exp_f32 v{U+i}, v{U+i}")
    for i in range(4): e(f"v_pk_add_f32 {vr(U+2*i,2)}, {vr(U+2*i,2)}, {sr(sONE2,2)}")
    for i in range(8): e(f"v_rcp_f32 v{U+i}, v{U+i}")
    for i in range(4): e(f"v_pk_mul_f32 {vr(Xr+2*i,2)}, {vr(Xr+2*i,2)}, {vr(U+2*i,2)}")
    for i in range(4): e(f"v_cvt_pk_bf16_f32 v{vPK+4*half+i}, v{Xr+2*i}, v{Xr+2*i+1}")
    if half == 0:
        e(f"s_cmp_eq_u32 s{sCNT}, 1")
        e("s_cbranch_scc1 L_gelu_h")
lab("L_gelu_h")
e(f"s_setpc_b64 {sr(sRET2,2)}")

vCSW, vTL, vT3P, vTQ, vON, vIN = vXR, vXR+1, vXR+2, vXR+3, vXR+4, vHP
lab("L_service")
if MAP42:
    e(f"v_lshrrev_b32 v{vT2}, 2, v{vLANE}")
    e(f"v_and_b32 v{vT3}, 3, v{vLANE}")
    e(f"v_lshlrev_b32 v{vT4}, 7, v{vT3}")
    e(f"v_lshl_add_u32 v{vTL}, v{vT2}, 10, v{vT4}")
    e(f"v_mul_u32_u24 v{vTQ}, 3072, v{vT2}")
    e(f"v_add_u32 v{vTQ}, v{vTQ}, v{vT4}")
    e(f"v_min_u32 v{vT2}, 13, v{vT1}")
    e(f"v_lshlrev_b32 v{vT2}, 7, v{vT2}")
    e(f"v_mul_u32_u24 v{vT3P}, 3584, v{vT0}")
    e(f"v_add_u32 v{vT3P}, v{vT3P}, v{vT2}")
    e(f"s_lshl_b32 s{sT0}, s{sHF}, 9")
    e(f"s_lshl_b32 s{sTA}, s{sR32}, 14")
    e(f"s_add_u32 s{sTA}, s{sTA}, s{sT0}")
    e(f"s_mul_i32 s{sTC}, s{sR32}, {16*3072}")
    e(f"s_add_u32 s{sTC}, s{sTC}, s{sT0}")
    e(f"s_mul_i32 s{sTB}, s{sR32}, {4*3584}")
    e(f"s_mul_i32 s{sT0}, s{sHF}, 1792")
    e(f"s_add_u32 s{sTB}, s{sTB}, s{sT0}")
else:
    e(f"v_lshlrev_b32 v{vTL}, 7, v{vLANE}")
    e(f"v_lshrrev_b32 v{vT2}, 3, v{vLANE}")
    e(f"v_and_b32 v{vT3}, 7, v{vLANE}")
    e(f"v_mul_u32_u24 v{vTQ}, 3072, v{vT2}")
    e(f"v_lshl_add_u32 v{vTQ}, v{vT3}, 7, v{vTQ}")
    e(f"s_lshl_b32 s{sTA}, s{sR32}, 13")
    e(f"s_mul_i32 s{sTC}, s{sR32}, {8*3072}")
e(f"s_cmp_ge_u32 s{sWAVE}, 6")
e("s_cbranch_scc1 L_loader")
lab("L_helper")
tr_bases()
e(f"s_lshl_b32 s{sT0}, s{sKH}, 6")
e(f"v_xor_b32 v{vB}, s{sT0}, v{vB}")
e(f"v_xor_b32 v{vB+1}, s{sT0}, v{vB+1}")
e(f"s_lshl_b32 s{sT1}, s{sKH}, 5")
e(f"v_xor_b32 v{vB32}, s{sT1}, v{vB32}")
e(f"v_lshlrev_b32 v{vT2}, 4, v{vT0}")
e(f"v_add_u32 v{vCSW}, {CSA}, v{vT2}")
e(f"s_mov_b32 s{sM1}, 0x00010001")
e(f"s_mov_b32 s{sM1+1}, 0x00010001")
for i in range(4): e(f"v_mov_b32 v{vON+i}, s{sONES}")
e("s_waitcnt lgkmcnt(0)")
e(f"s_mov_b32 s{sWS}, s{pWSP}")
e(f"s_mov_b32 s{sWS+1}, s{pWSP+1}")
tv = [vA+64]
def touch1(t):
    ptr, size, pat, soff_s, c = t
    e(f"s_mov_b32 s{sX}, s{ptr}")
    e(f"s_mov_b32 s{sX+1}, s{ptr+1}")
    e(f"s_mov_b32 s{sX+2}, {size}")
    e(f"s_add_u32 s{sT0}, s{soff_s}, {c}")
    e(f"buffer_load_dword v{tv[0]}, v{pat}, {sr(sX,4)}, s{sT0} offen")
    tv[0] += 1
def touches(lst, role, sleep):
    if role == "h" or not lst: return 0
    lst = list(lst)
    if len(lst) % 2: lst.append((lst[0][0], 0, lst[0][2], lst[0][3], 0))
    if sleep: e(f"s_sleep {sleep}")
    a_ = uid("ta"); b_ = uid("tb")
    e(f"s_cmp_lg_u32 s{sKH}, 0")
    e(f"s_cbranch_scc1 {a_}")
    for t in lst[0::2]: touch1(t)
    e(f"s_branch {b_}")
    lab(a_)
    for t in lst[1::2]: touch1(t)
    lab(b_)
    return len(lst)//2
TQ = lambda c: [(pWQKV, 512*3072, vTQ, sTC, c + i*32*8*3072) for i in range(2)]
T1 = lambda p: [(p, 512*1024, vTL, sTA, i*32*8192) for i in range(2)]
T3 = lambda a, b: [(pW3, 512*3584, vTL, sTA, i*32*8192) for i in range(a, b)]
T4 = lambda a, b: [(pW4, 1792*1024, vTL, sTA, i*32*8192) for i in range(a, b)]
if MAP42:
    TQ = lambda c: [(pWQKV, 512*3072, vTQ, sTC, c)]
    T1 = lambda p: [(p, 512*1024, vTL, sTA, 0)]
    T3 = lambda a, b: [(pW3, 512*3584, vT3P, sTB, i*32*4*3584) for i in range(a, b)]
    T4 = lambda a, b: [(pW4, 1792*1024, vTL, sTA, i*32*16384) for i in range(a, b)]
barrier("h")
e(f"s_lshl_b32 s{sT0}, s{sJ}, 3")
e(f"s_add_u32 s{sT0}, s{sT0}, s{sWAVE}")
e(f"s_cmp_lg_u32 s{sT0}, 4")
e(f"s_cbranch_scc1 L_nozero")
for i in range(4): e(f"v_mov_b32 v{vA+i}, 0")
e(f"s_lshl_b32 s{sT0}, s{sG}, 8")
e(f"s_lshl_b32 s{sT1}, s{sG}, 10")
e(f"s_add_u32 s{sT1}, s{sT1}, {WS_FL2-WS_FL-256}")
e(f"v_mov_b32 v{vT3}, s{sT0}")
e(f"v_mov_b32 v{vT4}, s{sT1}")
e(f"v_cmp_gt_u32 {sr(sM0,2)}, 2, v{vLANE}")
e(f"s_mov_b32 s{sT0}, {WS_FL}")
nop(1)
e(f"v_cndmask_b32 v{vT3}, v{vT4}, v{vT3}, {sr(sM0,2)}")
e(f"v_lshl_add_u32 v{vT3}, v{vLANE}, 7, v{vT3}")
e("s_mov_b64 exec, 0x3ff")
e(f"buffer_store_dwordx4 {vr(vA,4)}, v{vT3}, {sr(sWS,4)}, s{sT0} offen sc1")
e(f"s_lshl_b32 s{sT0}, s{sG}, 2")
e(f"v_mov_b32 v{vT2}, s{sT0}")
e(f"v_mov_b32 v{vT6}, 1")
e("s_mov_b64 exec, 1")
e("s_waitcnt vmcnt(0)")
e(f"global_store_dword v{vT2}, v{vT6}, {sr(pDBG,2)} sc1")
e("s_mov_b64 exec, -1")
lab("L_nozero")
V_, Q_, WO_, W1_, W2_ = TQ(2048), TQ(0), T1(pWO), T1(pW1), T1(pW2)
K_ = TQ(1024)
SCH = {0: dict(s=K_, x=V_+Q_, b0=WO_, b1=W1_, b3=W2_, r1=T3(0,4), r2=T3(4,7), r3=T4(0,4), b9=T4(4,7)),
       1: dict(s=K_, x=V_+Q_, b0=WO_+W1_, b1=W2_+T3(0,2), r1=T3(2,5), r2=T3(5,7)+T4(0,2), r3=T4(2,5), b9=T4(5,7)),
       2: dict(s=K_+V_, x=Q_+WO_, b1=W1_+W2_, r1=T3(0,4), r2=T3(4,7), r3=T4(0,4), b9=T4(4,7)),
       3: dict(x=V_+Q_, b0=WO_, b1=W1_+W2_, r1=T3(0,4), r2=T3(4,7), r3=T4(0,4), b9=T4(4,7)),
       }[OPT.get("sch", 0) if not MAP42 else 0]
if MAP42:
    REST = dict(r1=T3(0,2), r2=T3(2,4), r3=T4(0,4))
    SCH = {0: dict(s=K_+V_, x=Q_, b0=WO_+W1_, b1=W2_, **REST),
           1: dict(s=K_, x=V_+Q_, b0=WO_+W1_, b1=W2_, **REST),
           2: dict(x=V_+Q_, b0=WO_+W1_, b1=W2_, **REST),
           3: dict(s=K_+V_, x=Q_+WO_+W1_+W2_, **REST),
           4: dict(s=K_, x=V_+Q_, b0=WO_+W1_, b1=W2_+T3(0,1), r1=T3(1,3), r2=T3(3,4)+T4(0,1), r3=T4(1,3), b9=T4(3,4)),
           }[OPT.get("sch", 0)]
for k_ in ("s", "x", "b0", "b1", "b3", "r1", "r2", "r3", "b9"): SCH.setdefault(k_, [])
TS0, TSL, TSL2 = OPT.get("t0sl", 6), OPT.get("tsl", 8), OPT.get("tsl2", 14)
touches(SCH["x"], "h", TS0)
def cs(base, slot, half=False):
    e(f"s_mov_b32 s{sT0}, {base}")
    e(f"s_call_b64 {sr(sRET,2)}, {'L_csh' if half else 'L_cs'}")
    e(f"s_lshl_b32 s{sT0}, s{sKH}, {6 if half else 7}")
    e(f"v_add_u32 v{vT2}, s{sT0}, v{vCSW}")
    e(f"s_mov_b64 exec, {sr(sM1,2)}")
    for i in range(1 if half else 2): e(f"ds_write_b128 v{vT2}, {vr(vACC+4*i,4)} offset:{256*slot+64*i}")
    e("s_mov_b64 exec, -1")
    e("s_waitcnt lgkmcnt(0)")
def halo_fetch(which):
    sk = uid("hf"); l = sk+"_l"; d = sk+"_d"
    e(f"s_cmp_lg_u32 s{sWAVE}, 5")
    e(f"s_cbranch_scc1 {sk}")
    e(f"s_lshl_b32 s{sT0}, s{sG}, 3")
    e(f"s_add_u32 s{sT0}, s{sT0}, s{sJ}")
    e(f"s_sub_u32 s{sT0}, s{sT0}, 8")
    e(f"s_lshl_b32 s{sHKO}, s{sT0}, 12")
    e(f"s_add_u32 s{sHKO}, s{sHKO}, {WS_HK + 2048*which}")
    e(f"s_lshl_b32 s{sT0}, s{sT0}, 7")
    e(f"s_add_u32 s{sT0}, s{sT0}, {WS_FL2}")
    e(f"s_cmp_eq_u32 s{sG}, 0")
    e(f"s_cselect_b32 s{sHKO}, {OOB}, s{sHKO}")
    e(f"s_cbranch_scc1 {d}")
    lab(l)
    e(f"s_mov_b32 s{sM0}, 0")
    e(f"s_atomic_add s{sM0}, {sr(pWSP,2)}, s{sT0} glc")
    e("s_waitcnt lgkmcnt(0)")
    e(f"s_bitcmp1_b32 s{sM0}, {8*which}")
    e(f"s_cbranch_scc0 {spin(l, d)}")
    lab(d)
    e(f"buffer_load_dwordx4 {vr(vA,4)}, v{vL16}, {sr(sWS,4)}, s{sHKO} offen sc1")
    e(f"buffer_load_dwordx4 {vr(vA+4,4)}, v{vL16}, {sr(sWS,4)}, s{sHKO} offen offset:1024 sc1")
    if which:
        e(f"v_bfe_u32 v{vT2}, v{vT1}, 1, 2")
        e(f"v_lshlrev_b32 v{vT2}, 1, v{vT2}")
        e(f"v_lshrrev_b32 v{vT3}, 1, v{vT0}")
        e(f"v_xor_b32 v{vT2}, v{vT2}, v{vT3}")
        e(f"v_lshlrev_b32 v{vT2}, 4, v{vT2}")
        e(f"v_lshl_add_u32 v{vT2}, v{vT1}, 7, v{vT2}")
        e(f"v_and_b32 v{vT3}, 1, v{vT0}")
        e(f"v_lshl_add_u32 v{vT2}, v{vT3}, 3, v{vT2}")
        e(f"v_add_u32 v{vA+8}, {XB}, v{vT2}")
        for h in range(1, 4): e(f"v_xor_b32 v{vA+8+h}, {h<<5}, v{vA+8}")
    else:
        e(f"v_lshlrev_b32 v{vT2}, 7, v{vT1}")
        e(f"v_lshl_add_u32 v{vT2}, v{vT0}, 5, v{vT2}")
        e(f"v_cmp_lt_u32 {sr(sM0,2)}, 1, v{vT1}")
        e(f"v_add_u32 v{vT2}, {KA-256}, v{vT2}")
        e(f"v_mov_b32 v{vT4}, {LOOB}")
        e(f"v_cndmask_b32 v{vT2}, v{vT4}, v{vT2}, {sr(sM0,2)}")
    if which:
        cmt("wave 1 has finished reading wave 0's exchange buffer")
        l2 = uid("ak")
        lab(l2)
        e(f"ds_read_b32 v{vT7}, v{vCB} offset:{C_ACK+4}")
        e("s_waitcnt lgkmcnt(0)")
        e(f"v_readfirstlane_b32 s{sT0}, v{vT7}")
        e(f"s_cmp_lg_u32 s{sT0}, 0")
        e(f"s_cbranch_scc0 {spin(l2, l2+'_d')}")
        lab(l2+"_d")
    e(f"v_mov_b32 v{vT6}, {1+which}")
    e("s_waitcnt vmcnt(0)")
    if which:
        for h in range(4): e(f"ds_write_b64 v{vA+8+h}, {vr(vA+2*h,2)}")
    else:
        e(f"ds_write_b128 v{vT2}, {vr(vA,4)}")
        e(f"ds_write_b128 v{vT2}, {vr(vA+4,4)} offset:16")
    e("s_waitcnt lgkmcnt(0)")
    e(f"ds_write_b32 v{vCB}, v{vT6} offset:{C_KV}")
    lab(sk)
e(f"v_mov_b32 v{vT6}, 0")
e(f"v_min_u32 v{vT2}, 15, v{vLANE}")
e(f"v_lshl_add_u32 v{vT2}, v{vT2}, 2, v{vCB}")
e(f"ds_write_b32 v{vT2}, v{vT6}")
e("s_waitcnt lgkmcnt(0)")
barrier("h")
e(f"v_min_u32 v{vT2}, 2, v{vLANE}")
e(f"s_sub_u32 s{sT0}, s{sG}, 1")
e(f"v_add_u32 v{vT2}, s{sT0}, v{vT2}")
e(f"v_max_i32 v{vT2}, 0, v{vT2}")
e(f"v_min_u32 v{vT2}, 31, v{vT2}")
e(f"v_lshlrev_b32 v{vIN}, 2, v{vT2}")
e(f"s_cmp_eq_u32 s{sWAVE}, 4")
e("s_cbranch_scc1 L_in_n")
e(f"s_sleep {OPT.get('insl', 8)}")
e(f"global_load_dword v{vIN+1}, v{vIN}, {sr(pDBG,2)}")
lab("L_in_n")
barrier("h")
e(f"s_cmp_eq_u32 s{sWAVE}, 4")
e("s_cbranch_scc1 L_in_d")
e("s_branch L_in_chk")
lab("L_in_loop")
e("s_sleep 8")
e(f"global_load_dword v{vIN+1}, v{vIN}, {sr(pDBG,2)} sc1")
lab("L_in_chk")
e("s_waitcnt vmcnt(0)")
e(f"v_cmp_eq_u32 {sr(sM0,2)}, 1, v{vIN+1}")
e(f"s_cmp_eq_u64 {sr(sM0,2)}, -1")
e(f"s_cbranch_scc0 {spin('L_in_loop', 'L_in_d')}")
lab("L_in_d")
barrier("h")
barrier("h")
barrier("h")
touches(SCH["b3"], "h", TSL)
halo_fetch(0)
barrier("h")
halo_fetch(1)
barrier("h")
barrier("h")
cs(0, 0)
e(f"s_lshl_b32 s{sT0}, s{sKH}, 2")
e(f"v_add_u32 v{vT2}, s{sT0}, v{vCB}")
e(f"v_mov_b32 v{vT6}, 1")
e(f"ds_write_b32 v{vT2}, v{vT6} offset:{C_CSF}")
barrier("h")
barrier("h")
cs(0, 1)
barrier("h")
cs(32768, 2)
barrier("h")
cs(0, 1)
barrier("h")
cs(32768, 2, True)
prof_flush()
e("s_endpgm")
for half in (False, True):
    lab("L_csh" if half else "L_cs")
    blocks = [(par, it) for par in range(2) for it in range(1 if half else 2)]
    for bi, (par, it) in enumerate(blocks):
        if it == 0:
            e(f"v_add_u32 v{vW}, s{sT0}, v{vB32 if half else vB}")
            if not half: e(f"v_add_u32 v{vW+1}, s{sT0}, v{vB+1}")
            e(f"s_add_u32 s{sT0}, s{sT0}, 65536")
        for i in range(8):
            for h in range(2):
                off = (i*2048 + 1024*h) if half else (it*16384 + (i >> 1)*4096 + 2048*h)
                e(f"ds_read_b64_tr_b16 {vr(vA+4*i+2*h,2)}, v{vW if half else vW+(i&1)} offset:{off}")
        for i in range(8):
            e(f"s_waitcnt lgkmcnt({14-2*i})")
            e(mf_text(vA+4*i, vON, vACC if (half or i % 2 == 0) else vACC+4, bi == 0 and i < (1 if half else 2)))
    nop(4)
    e(f"s_setpc_b64 {sr(sRET,2)}")

vPat, vP3072, vP1024, vP3584, vPH = 12, 13, 14, 15, 16
lab("L_loader")
e(f"s_setprio {OPT.get('lp', 2)}")
e(f"v_lshrrev_b32 v{vT2}, 3, v{vLANE}")
e(f"v_bfe_u32 v{vT3}, v{vT2}, 1, 2")
e(f"v_lshlrev_b32 v{vT3}, 1, v{vT3}")
e(f"v_and_b32 v{vT4}, 7, v{vLANE}")
e(f"v_xor_b32 v{vT3}, v{vT3}, v{vT4}")
e(f"v_lshlrev_b32 v{vT3}, 4, v{vT3}")
e(f"v_mul_u32_u24 v{vP3072}, 3072, v{vT2}")
e(f"v_add_u32 v{vP3072}, v{vP3072}, v{vT3}")
e(f"v_lshl_add_u32 v{vP1024}, v{vT2}, 10, v{vT3}")
e(f"v_mul_u32_u24 v{vP3584}, 3584, v{vT2}")
e(f"v_add_u32 v{vP3584}, v{vP3584}, v{vT3}")
e(f"v_lshrrev_b32 v{vT2}, 2, v{vLANE}")
e(f"v_bfe_u32 v{vT3}, v{vT2}, 2, 1")
e(f"v_lshlrev_b32 v{vT3}, 1, v{vT3}")
e(f"v_and_b32 v{vT4}, 3, v{vLANE}")
e(f"v_xor_b32 v{vT3}, v{vT3}, v{vT4}")
e(f"v_mul_u32_u24 v{vPH}, 3584, v{vT2}")
e(f"v_lshl_add_u32 v{vPH}, v{vT3}, 4, v{vPH}")
e(f"s_lshl_b32 s{sT2}, s{sJ}, 7")
e(f"s_mul_i32 s{sC3}, s{sJ}, 448")
e(f"s_and_b32 s{sT0}, s{sJ}, 1")
e(f"s_lshl_b32 s{sT1}, s{sT0}, 6")
e(f"s_xor_b32 s{sT0}, s{sT0}, 1")
e(f"s_mul_i32 s{sT0}, s{sT0}, 384")
e(f"s_add_u32 s{sCQ}, s{sC3}, s{sT0}")
e(f"s_add_u32 s{sC3}, s{sC3}, s{sT1}")
e("s_waitcnt lgkmcnt(0)")
e(f"s_mov_b32 s{sWS}, s{pWSP}")
e(f"s_mov_b32 s{sWS+1}, s{pWSP+1}")
cur = {}
issued = []
def setif(key, val, emit):
    if cur.get(key) != val:
        emit(); cur[key] = val
def issue(li):
    P, s_ = li // 2, li % 2
    if li < 18:
        if P <= 2: ptr, size, pat, rs, col, cc = pWQKV, 512*3072, vP3072, 3072, sT2, (1024, 2048, 0)[P]
        elif P <= 5: ptr, size, pat, rs, col, cc = (pWO, pW1, pW2)[P-3], 512*1024, vP1024, 1024, sT2, 0
        else: ptr, size, pat, rs, col, cc = pW3, 512*3584, vP3584, 3584, sC3, 128*(P-6)
        step, mid, kstr, c0 = 8*rs, 0, 128*rs, cc + 256*rs*s_
    elif li == 18:
        ptr, size, pat, col = pW3, 512*3584, vPH, sCQ
        step, mid, kstr, c0 = 16*3584, 128*3584, 128*3584, 0
    else:
        c = li - 19
        ptr, size, pat, col = pW4, 1792*1024, vP1024, sT2
        if c < 6: step, mid, kstr, c0 = 8192, 192*1024, 448*1024, (64*(c//2) + 896*(c%2))*1024
        else: step, mid, kstr, c0 = 8192, 384*1024, 896*1024, 192*1024
    def esrc():
        e(f"s_mov_b32 s{sW}, s{ptr}"); e(f"s_mov_b32 s{sW+1}, s{ptr+1}"); e(f"s_mov_b32 s{sW+2}, {size}")
    setif("ptr", ptr, esrc)
    setif("pat", pat, lambda: e(f"v_mov_b32 v{vPat}, v{pat}"))
    setif("step", step, lambda: e(f"s_mov_b32 s{sSTEP}, {step}"))
    setif("mid", mid, lambda: e(f"s_mov_b32 s{sMID}, {mid}"))
    setif("kstr", kstr, lambda: e(f"s_mul_i32 s{sT1}, s{sKH}, {kstr}"))
    e(f"s_add_u32 m0, s{sPAR}, {(li & 3)*16384}")
    e(f"s_add_u32 s{sSO}, s{col}, s{sT1}")
    if c0: e(f"s_add_u32 s{sSO}, s{sSO}, {c0}")
    e(f"s_call_b64 {sr(sRET,2)}, L_iss")
    issued.append(li)
def land(li):
    idx = issued.index(li)
    e(f"s_waitcnt vmcnt({sum(1 if x == 't' else 16 for x in issued[idx+1:])})")
def ltouch(key, sleep):
    issued.extend(["t"]*touches(SCH[key], "l", sleep))
if OPT.get("cp", 1):
    cmt("pull the kernel's own code into this XCD's L2")
    e(f"s_getpc_b64 {sr(sM0,2)}")
    lab("L_pc")
    e(f"s_sub_u32 s{sM0}, s{sM0}, L_pc-{NAME}_kernel")
    e(f"s_subb_u32 s{sM0+1}, s{sM0+1}, 0")
    e(f"s_lshl_b32 s{sT0}, s{sR32}, 1")
    e(f"s_add_u32 s{sT0}, s{sT0}, s{sKH}")
    e(f"s_cmp_ge_u32 s{sT0}, 3")
    e("s_cbranch_scc1 L_nocp")
    e(f"s_lshl_b32 s{sT0}, s{sT0}, 13")
    e(f"v_lshlrev_b32 v{vT2}, 7, v{vLANE}")
    e(f"v_add_u32 v{vT2}, s{sT0}, v{vT2}")
    e(f"v_min_u32 v{vT2}, L_end-{NAME}_kernel, v{vT2}")
    e(f"global_load_dword v{vT3}, v{vT2}, {sr(sM0,2)}")
    lab("L_nocp")
ltouch("s", 0)
barrier("l")
issue(0); issue(1)
ltouch("x", OPT.get("tsd", 6))
sched = [(None, [], None),
         (1, [2, 3], "b0"),
         (3, [4, 5], "b1"),
         (5, [], None),
         (None, [6, 7], "b3"),
         (7, [], None),
         (None, [8, 9], "r1"),
         (9, [10, 11], "r2"),
         (11, [12, 13], "r3"),
         (13, [14, 15], None),
         (15, [16, 17], "b9"),
         (17, [18, 19], None),
         (18, [20, 21], None),
         (19, [22], None),
         (20, [], None), (21, [23], None), (22, [24], None), (23, [25], None), (24, [], None), (25, [], None)]
for k, (nd, aft, tk) in enumerate(sched):
    if nd is not None: land(nd)
    prof(k+1)
    barrier("l")
    for li in aft: issue(li)
    if tk: ltouch(tk, OPT.get("tsr", 30) if tk[0] == "r" else OPT.get("tsd", 6))
prof_flush()
e("s_endpgm")
lab("L_iss")
for i in range(16):
    e(f"buffer_load_dwordx4 v{vPat}, {sr(sW,4)}, s{sSO} offen lds")
    if i < 15:
        e("s_add_u32 m0, m0, 1024")
        e(f"s_add_u32 s{sSO}, s{sSO}, s{sSTEP}")
    if i == 7: e(f"s_add_u32 s{sSO}, s{sSO}, s{sMID}")
e(f"s_setpc_b64 {sr(sRET,2)}")
emit_tails()
lab("L_end")
e("s_endpgm")
assert nbar["c"] == nbar["l"] + 1, nbar

out.append('.section .rodata,"a"')
out.append(".p2align 6")
out.append(f".amdhsa_kernel {NAME}_kernel")
out.append(f"  .amdhsa_next_free_vgpr {NVGPR}")
out.append("  .amdhsa_next_free_sgpr 100")
out.append(f"  .amdhsa_accum_offset {NVGPR}")
out.append("  .amdhsa_group_segment_fixed_size 0")
out.append("  .amdhsa_kernarg_size 88")
out.append("  .amdhsa_user_sgpr_count 2")
out.append("  .amdhsa_user_sgpr_kernarg_segment_ptr 1")
out.append("  .amdhsa_system_sgpr_workgroup_id_x 1")
out.append(".end_amdhsa_kernel")
dst = [a for a in sys.argv[1:] if not a.startswith("--")]
open(dst[0] if dst else "cdna_kernels/%s.s" % NAME, "w").write("\n".join(o for o in out if o is not None) + "\n")
```

```python
import sys, math, struct

NAME = "sequential_preLN__sliding_local_dilated__mixer_s_mlp__prompt"
PROF = "--prof" in sys.argv
OPT = {}
for a in sys.argv:
    if a.startswith("--") and "=" in a:
        k, v = a[2:].split("="); OPT[k] = int(v)

out = []
def e(s): out.append("    " + s)
def lab(s): out.append(s + ":")
def cmt(s): out.append("    ; " + s)
def align(): out.append(".p2align 3")
def nop(n):
    while n > 0:
        k = min(n, 16); e(f"s_nop {k-1}"); n -= k
def f32(x): return "0x%08x" % struct.unpack("<I", struct.pack("<f", x))[0]
def vr(a, n): return f"v[{a}:{a+n-1}]"
def sr(a, n): return f"s[{a}:{a+n-1}]"
_uid = [0]
def uid(p):
    _uid[0] += 1
    return f"L_{p}_{_uid[0]}"

WS_O, WS_H, WS_H1, WS_X1, WS_G = 0, 2<<20, 4<<20, 6<<20, 8<<20
WS_HS = 15<<20
WS_X1S = WS_HS + (128<<10)
WS_FL = WS_HS + (256<<10)
WS_FL2 = WS_FL + (8<<10)
WS_HK = 16<<20
WS_PROF = 17<<20
WS_SIZE = 18<<20
GT = 56*1024
OOB = 0x40000000
LOOB = 0x30000
XB = 131072
KA = XB + 16384
KSZ = 1792
VA = KA + 4*KSZ
CSA = VA + 4*2048
CB = CSA + 768
C_KV, C_CSF, C_XF, C_ACK = 0, 8, 16, 32
LDS_BYTES = 163840
assert CB + 64 <= LDS_BYTES and VA % 256 == 0

sWAVE = 3
sX, sWS, sOUT = 4, 8, 12
sW = 12
pX, pWQKV, pWO, pBX, pW1, pW2, pW3, pW4, pOUT, pDBG, pWSP = 16, 18, 20, 22, 24, 26, 28, 30, 32, 34, 36
sJ, sG, sUNIT, sTILE, sBUD, sCNT = 38, 39, 40, 41, 42, 43
sT0, sT1, sT2, sT3 = 44, 45, 46, 47
sRET, sRET2 = 48, 50
sONES, sCEXP, sPUBO, sPUBV = 52, 53, 54, 55
sFLW = 56
sODD = 58
sOFFA, sPAR, sDST, sFLOFF, sR32, sHF, sHKO, sKH = 60, 61, 62, 63, 64, 65, 66, 67
sM0, sM1 = 68, 70
sFB, sFG = 72, 74
sTAIL, sXSEQ, sMK0, sNBO, sCSN = 89, 90, 91, 92, 93
sONE2 = 76
sPT, sPIDX = 78, 80
sSO, sSTEP, sC3, sCQ, sTA, sTB, sTC, sMID = 81, 82, 83, 84, 85, 86, 87, 88
vLANE = 0
vT0, vT1, vT2, vT3, vT4, vP, vCB, vT6, vT7 = 1, 2, 3, 4, 5, 6, 7, 8, 9
vL16, vFLO = 10, 11
vB, vW, vB32 = 12, 16, 20
vSC, vR1 = 22, 24
vSTO, vOUTO, vXA, vXP = 26, 27, 28, 29
vGA = 30
vLA = 32
vXR, vHP, vX1P = 36, 44, 52
vST = 60
vA, vWB = 64, 128
vACC, vACP = 160, 176
vE = 192
vPK, vK = 224, 232
vMS, vGB, vNMH = 240, 242, 244
vCSR = 246
vW1, vXFP, vBIT, vCF = 248, 249, 250, 252
vHS = 254
vP2 = 247
NVGPR = 256

def prof(idx):
    if not PROF: return
    e(f"s_memrealtime {sr(sPT,2)}")
    e("s_memtime s[98:99]")
    e("s_waitcnt lgkmcnt(0)")
    e(f"v_writelane_b32 v{vP}, s{sPT}, {idx}")
    e(f"v_writelane_b32 v{vP}, s98, {idx+32}")
def prof_flush():
    if not PROF: return
    e(f"v_lshlrev_b32 v{vT0}, 2, v{vLANE}")
    if OPT.get("dp") is not None: e(f"v_mov_b32 v{vP}, v{vP2}")
    e(f"buffer_store_dword v{vP}, v{vT0}, {sr(sWS,4)}, s{sPIDX} offen")
tails = []
def spin(loop, done):
    tails.append((loop+"_s", loop, done))
    return loop+"_s"
def emit_tails():
    for s_, l, d in tails:
        lab(s_)
        e(f"s_sub_u32 s{sBUD}, s{sBUD}, 1")
        e(f"s_cbranch_scc0 {l}")
        e(f"s_mov_b32 s{sBUD}, 0")
        e(f"s_branch {d}")
    tails.clear()
def red2x2(a, b, t, a2, b2, t2):
    e(f"v_permlane16_swap_b32 v{a}, v{b}")
    e(f"v_permlane16_swap_b32 v{a2}, v{b2}")
    e(f"v_add_f32 v{a}, v{a}, v{b}")
    e(f"v_add_f32 v{a2}, v{a2}, v{b2}")
    e(f"v_mov_b32 v{t}, v{a}")
    e(f"v_mov_b32 v{t2}, v{a2}")
    nop(1)
    e(f"v_permlane32_swap_b32 v{a}, v{t}")
    e(f"v_permlane32_swap_b32 v{a2}, v{t2}")
    e(f"v_add_f32 v{a}, v{a}, v{t}")
    e(f"v_add_f32 v{a2}, v{a2}, v{t2}")
    e(f"v_mov_b32 v{t}, v{a}")
    e(f"v_mov_b32 v{t2}, v{a2}")
    nop(1)
    e(f"v_permlane16_swap_b32 v{a}, v{t}")
    e(f"v_permlane16_swap_b32 v{a2}, v{t2}")
def red2(a, b, t):
    e(f"v_permlane16_swap_b32 v{a}, v{b}")
    e(f"v_add_f32 v{a}, v{a}, v{b}")
    e(f"v_mov_b32 v{t}, v{a}")
    nop(2)
    e(f"v_permlane32_swap_b32 v{a}, v{t}")
    e(f"v_add_f32 v{a}, v{a}, v{t}")
    e(f"v_mov_b32 v{t}, v{a}")
    nop(2)
    e(f"v_permlane16_swap_b32 v{a}, v{t}")
def mean_var(vs, vq):
    e(f"v_mul_f32 v{vs}, {f32(-1.0/512)}, v{vs}")
    e(f"v_mul_f32 v{vq}, {f32(1.0/512)}, v{vq}")
    e(f"v_fma_f32 v{vq}, -v{vs}, v{vs}, v{vq}")
    e(f"v_max_f32 v{vq}, 0, v{vq}")
def zero(base, n):
    for i in range(n): e(f"v_mov_b32 v{base+i}, 0")
class LQ:
    def __init__(self, pend=()): self.q = list(pend)
    def op(self, id_, text): e(text); self.q.append(id_)
    def need(self, ids, vm=None):
        idx = max([i for i, x in enumerate(self.q) if x in ids], default=-1)
        parts = []
        if vm is not None: parts.append(f"vmcnt({vm})")
        if idx >= 0:
            parts.append(f"lgkmcnt({min(len(self.q)-1-idx, 15)})")
            self.q = self.q[idx+1:]
        if parts: e("s_waitcnt " + " ".join(parts))
def rd_text(buf, h, p, half_panel=False, base=0):
    if half_panel: off = ((p >> 1) & 7)*2048 + 1024*h; jj = p & 1
    else: off = (p >> 2)*4096 + 2048*h; jj = p & 3
    return f"ds_read_b64_tr_b16 {vr(buf+2*h,2)}, v{vW+jj} offset:{base+off}"
def mf_text(buf, areg, c, czero=False):
    return f"v_mfma_f32_16x16x32_bf16 {vr(c,4)}, {vr(buf,4)}, {vr(areg,4)}, {'0' if czero else vr(c,4)}"
def wtog(jj): e(f"v_xor_b32 v{vW+jj}, 0x8000, v{vW+jj}")
T_W = lambda i: f"ds_write_b128 v{vXA}, {vr(vACP+4*i,4)} offset:{1024*i}"
T_R = lambda i: f"ds_read_b128 {vr(vE+4*i,4)}, v{vXP} offset:{1024*i}"
T_C = lambda i: f"ds_read_b128 {vr(vACP+4*i,4)}, v{vCSR} offset:{64*i}"
def pre(half_panel=False, base=0):
    for p in range(6):
        for h in range(2): e(rd_text(vWB+4*p, h, p, half_panel, base))
nbar = {"c": 0, "h": 0, "l": 0}
def barrier(role, n=1, emit=True):
    if role == "h" and nbar[role] and nbar[role] < 32: prof(nbar[role])
    nbar[role] += n
    if emit: e("s_barrier")

DS = [14, 82, 86, 88, 94, 96, 98, 100]
def dst_(i):
    if OPT.get("dp") is not None: e(f"s_memtime {sr(DS[i],2)}")
ncall = [0]
def gen_pass64():
    buf = lambda q: (vE + 4*(q-16)) if 16 <= q < 24 else (vWB + 4*(q % 8))
    areg = lambda q, t: vA + 8*(q >> 2) + 4*t
    acc = lambda q, t: (vACP if t else vACC) + 4*(q & 3)
    lq = LQ([f"f{p}" for p in range(6) for h in range(2)])
    def RD(q, h, nxt=False):
        lq.op(("n" if nxt else "f")+str(q), rd_text(vWB+4*q if nxt else buf(q), h, q))
    pend = [(q, h) for q in range(4+6, 32) for h in range(2)]
    def dual(q, czero=False):
        for t in range(2):
            e(mf_text(buf(q), areg(q, t), acc(q, t), czero))
            if q < 4: RD(q+6, t)
            else:
                RD(*pend.pop(0))
                if q >= 10 and t == 0: RD(*pend.pop(0))
    def waitq(q, vm=None): lq.need([f"f{q}", f"f{q+1}"], vm)
    align(); lab("L_pass64b")
    save = list(lq.q)
    for q in range(4):
        if q % 2 == 0: waitq(q, 14 if q == 0 else None)
        dual(q)
    e("s_branch L_pass64_c")
    lq.q = save
    align(); lab("L_pass64")
    for q in range(4):
        if q % 2 == 0: waitq(q, 14 if q == 0 else None)
        dual(q, True)
    lab("L_pass64_c")
    dst_(1)
    for q in range(4, 16):
        if q % 2 == 0: waitq(q, 14-2*(q >> 2) if q % 4 == 0 else None)
        dual(q)
    dst_(2)
    todo = [lambda j=j: wtog(j) for j in range(4)]
    for q in range(16, 32):
        if q % 2 == 0: waitq(q, 14-2*(q >> 2) if q % 4 == 0 else None)
        e(mf_text(buf(q), areg(q, 1), acc(q, 1)))
        k = 0
        while pend and k < 2: RD(*pend.pop(0)); k += 1
        if q == OPT.get("ph", 30):
            e("s_cbranch_vccnz L_pubhook"); lab("L_pubret"); k += 1
        while not pend and todo and k < 1: todo.pop(0)(); k += 1
    assert not pend and not todo
    O = lambda q: e(mf_text(buf(q), areg(q, 0), acc(q, 0)))
    W = lambda i: lq.op(f"W{i}", T_W(i))
    dst_(3)
    e(f"s_bitcmp1_b32 s{sTAIL}, 0")
    e("s_cbranch_scc1 L_pass64_f")
    save = list(lq.q)
    O(16); O(17); O(18); O(19); W(0); O(20); O(21); W(1); O(22); O(23); W(2); O(24); O(25); W(3); O(26); O(27)
    dst_(4)
    lq.need(["W3"])
    dst_(5)
    e("s_barrier")
    dst_(6)
    O(28)
    for i in range(2): lq.op(f"R{i}", T_R(i))
    O(29)
    for i in range(2, 4): lq.op(f"R{i}", T_R(i))
    O(30); RD(0, 0, True); RD(0, 1, True)
    O(31); RD(1, 0, True); RD(1, 1, True)
    for i in range(4): lq.op(f"C{i}", T_C(i))
    for q in range(2, 6): RD(q, 0, True); RD(q, 1, True)
    lq.need(["R3"])
    for i in range(8): e(f"v_pk_add_f32 {vr(vE+2*i,2)}, {vr(vACC+2*i,2)}, {vr(vE+2*i,2)}")
    lq.need(["C3"])
    dst_(7)
    e(f"s_setpc_b64 {sr(sRET,2)}")
    lq.q = save
    align(); lab("L_pass64_f")
    O(16); e(f"s_add_u32 s{sXSEQ}, s{sXSEQ}, 1"); O(17); e(f"v_mov_b32 v{vT7}, s{sXSEQ}"); O(18); W(0); O(19); O(20); W(1); O(21); O(22); W(2); O(23); O(24); W(3)
    O(25)
    lq.need(["W3"])
    lq.op("X", f"ds_write_b32 v{vW1}, v{vT7} offset:{C_XF}")
    lq.op("CF", f"ds_read_b64 {vr(vCF,2)}, v{vCB} offset:{C_CSF}")
    O(26); lq.op("C0", T_C(0)); lq.op("C1", T_C(1)); O(27); lq.op("C2", T_C(2)); lq.op("C3", T_C(3))
    O(28); O(29)
    lq.op("F", f"ds_read_b32 v{vT6}, v{vXFP} offset:{C_XF}"); lq.op("R0", T_R(0))
    O(30); lq.op("R1", T_R(1)); lq.op("R2", T_R(2)); O(31); lq.op("R3", T_R(3))
    nop(2)
    lab("L_xf_w")
    e("s_waitcnt lgkmcnt(0)")
    e(f"v_readfirstlane_b32 s{sT0}, v{vT6}")
    for i in range(8): e(f"v_pk_add_f32 {vr(vE+2*i,2)}, {vr(vACC+2*i,2)}, {vr(vE+2*i,2)}")
    e(f"s_cmp_ge_u32 s{sT0}, s{sXSEQ}")
    e("s_cbranch_scc0 L_xf_r")
    lab("L_xf_d")
    e(f"s_setpc_b64 {sr(sRET,2)}")
    lab("L_xf_r")
    e(f"ds_read_b32 v{vT6}, v{vXFP} offset:{C_XF}")
    for i in range(4): e(T_R(i))
    e(f"s_sub_u32 s{sBUD}, s{sBUD}, 1")
    e("s_cbranch_scc0 L_xf_w")
    e(f"s_mov_b32 s{sBUD}, 0")
    e("s_branch L_xf_d")
    lab("L_pubhook")
    e(f"v_mov_b32 v{vT6}, s{sPUBV}")
    e("s_waitcnt vmcnt(0)")
    e(f"buffer_atomic_add v{vT6}, v{vFLO}, {sr(sWS,4)}, s{sPUBO} offen sc1")
    e("s_mov_b64 vcc, 0")
    e("s_branch L_pubret")
def call_pass(name="L_pass64", bar=True):
    dst_(0)
    e(f"s_call_b64 {sr(sRET,2)}, {name}")
    if OPT.get("dp") == ncall[0]:
        e("s_waitcnt lgkmcnt(0)")
        for i in range(8): e(f"v_writelane_b32 v{vP2}, s{DS[i]}, {i}")
    ncall[0] += 1
    if bar: barrier("c", 1, False)
def scalepack(dst):
    for i in range(8): e(f"v_pk_mul_f32 {vr(vE+2*i,2)}, {vr(vE+2*i,2)}, {vr(vSC,2)}")
    for i in range(8): e(f"v_cvt_pk_bf16_f32 v{dst+i}, v{vE+2*i}, v{vE+2*i+1}")

hdr = open("cdna_kernels/%s.s.ref" % NAME).read().split("\n")
for l in hdr:
    if l.startswith("; Override"): break
    out.append(l)
out.append(f"; @launch grid=(256,1,1) block=(512,1,1) lds={LDS_BYTES}")
out.append('.amdgcn_target "amdgcn-amd-amdhsa--gfx950"')
out.append(".text")
out.append(f".globl {NAME}_kernel")
out.append(".p2align 8")
out.append(f".type {NAME}_kernel,@function")
lab(f"{NAME}_kernel")
if PROF: e("s_memrealtime s[96:97]")
e(f"s_getpc_b64 {sr(sM0,2)}")
lab("L_pc")
e(f"s_load_dwordx2 {sr(pX,2)}, s[0:1], 0")
e(f"s_cmp_ge_u32 s2, {OPT.get('cpn', 32)}")
e("s_cbranch_scc1 L_nocp")
e("v_lshlrev_b32 v1, 7, v0")
e(f"v_min_u32 v1, L_end-L_pc, v1")
e(f"global_load_dword v255, v1, {sr(sM0,2)}")
lab("L_nocp")
e("s_cmp_ge_u32 s2, 256")
e("s_cbranch_scc1 L_end")
e(f"s_load_dwordx2 {sr(18,2)}, s[0:1], 8")
e(f"s_load_dwordx4 {sr(20,4)}, s[0:1], 16")
e(f"s_load_dwordx8 {sr(24,8)}, s[0:1], 32")
e(f"s_load_dwordx4 {sr(32,4)}, s[0:1], 64")
e(f"s_load_dwordx2 {sr(36,2)}, s[0:1], 80")
e(f"v_lshrrev_b32 v1, 6, v0")
e(f"v_and_b32 v{vLANE}, 63, v0")
e(f"v_readfirstlane_b32 s{sWAVE}, v1")
MAP42 = OPT.get("map", 42) == 42
if MAP42:
    e(f"s_and_b32 s{sHF}, s2, 1")
    e(f"s_lshr_b32 s{sR32}, s2, 3")
    e(f"s_and_b32 s{sJ}, s{sR32}, 3")
    e(f"s_lshl_b32 s{sT0}, s{sHF}, 2")
    e(f"s_add_u32 s{sJ}, s{sJ}, s{sT0}")
    e(f"s_and_b32 s{sG}, s2, 6")
    e(f"s_lshl_b32 s{sG}, s{sG}, 2")
    e(f"s_lshr_b32 s{sT1}, s{sR32}, 2")
    e(f"s_add_u32 s{sG}, s{sG}, s{sT1}")
else:
    e(f"s_lshr_b32 s{sR32}, s2, 3")
    e(f"s_and_b32 s{sJ}, s{sR32}, 7")
    e(f"s_and_b32 s{sG}, s2, 7")
    e(f"s_lshl_b32 s{sG}, s{sG}, 2")
    e(f"s_lshr_b32 s{sT1}, s{sR32}, 3")
    e(f"s_add_u32 s{sG}, s{sG}, s{sT1}")
e(f"s_mov_b32 s{sBUD}, 0x80000")
e(f"s_and_b32 s{sKH}, s{sWAVE}, 1")
e(f"s_lshl_b32 s{sPAR}, s{sKH}, 16")
e(f"v_mov_b32 v{vCB}, {CB}")
e(f"v_lshlrev_b32 v{vL16}, 4, v{vLANE}")
e(f"v_lshrrev_b32 v{vT0}, 4, v{vLANE}")
e(f"v_and_b32 v{vT1}, 15, v{vLANE}")
e(f"s_mov_b32 s{sWS+2}, {WS_SIZE}")
e(f"s_mov_b32 s{sWS+3}, 0x00020000")
e(f"s_mov_b32 s{sX+3}, 0x00020000")
e(f"s_mov_b32 s{sOUT+3}, 0x00020000")
e(f"s_mov_b32 s{sONES}, 0x3f803f80")
if PROF:
    e(f"s_lshl_b32 s{sPIDX}, s2, 3")
    e(f"s_add_u32 s{sPIDX}, s{sPIDX}, s{sWAVE}")
    e(f"s_lshl_b32 s{sPIDX}, s{sPIDX}, 8")
    e(f"s_add_u32 s{sPIDX}, s{sPIDX}, {WS_PROF}")
    e(f"v_mov_b32 v{vP}, 0")
    e("s_waitcnt lgkmcnt(0)")
    e(f"v_writelane_b32 v{vP}, s96, 63")
e(f"s_cmp_ge_u32 s{sWAVE}, 4")
e("s_cbranch_scc1 L_service")

def tr_bases():
    e(f"v_lshrrev_b32 v{vT3}, 2, v{vLANE}")
    e(f"v_bfe_u32 v{vT4}, v{vT3}, 1, 2")
    e(f"v_lshlrev_b32 v{vT4}, 5, v{vT4}")
    e(f"v_and_b32 v{vT2}, 3, v{vLANE}")
    e(f"v_lshl_add_u32 v{vT4}, v{vT2}, 3, v{vT4}")
    e(f"v_lshl_add_u32 v{vB}, v{vT3}, 7, v{vT4}")
    for jj in range(1, 4): e(f"v_xor_b32 v{vB+jj}, {jj<<5}, v{vB}")
    e(f"v_and_b32 v{vT4}, 1, v{vT0}")
    e(f"v_lshlrev_b32 v{vT4}, 5, v{vT4}")
    e(f"v_lshl_add_u32 v{vT4}, v{vT2}, 3, v{vT4}")
    e(f"v_lshl_add_u32 v{vB32}, v{vT3}, 6, v{vT4}")
    e(f"v_xor_b32 v{vB32+1}, 32, v{vB32}")
e(f"s_lshl_b32 s{sTILE}, s{sG}, 2")
e(f"s_add_u32 s{sTILE}, s{sTILE}, s{sWAVE}")
e(f"s_lshr_b32 s{sUNIT}, s{sTILE}, 1")
e(f"s_mov_b32 s{sX+2}, {2<<20}")
e(f"s_lshl_b32 s{sT2}, s{sUNIT}, 15")
e(f"s_lshl_b32 s{sT0}, s{sKH}, 8")
e(f"s_add_u32 s{sT2}, s{sT2}, s{sT0}")
e(f"s_lshr_b32 s{sT3}, s{sWAVE}, 1")
e(f"s_lshl_b32 s{sT3}, s{sT3}, 14")
e(f"s_add_u32 s{sT3}, s{sT3}, s{sPAR}")
e(f"s_add_u32 s{sT3}, s{sT3}, 32768")
e(f"s_mov_b32 m0, s{sT3}")
e(f"v_lshrrev_b32 v{vT2}, 5, v{vLANE}")
e(f"v_xor_b32 v{vT3}, v{vT1}, v{vT2}")
e(f"v_lshlrev_b32 v{vT3}, 4, v{vT3}")
e(f"v_lshl_add_u32 v{vT3}, v{vT2}, 10, v{vT3}")
e(f"v_and_b32 v{vT4}, 1, v{vT0}")
e(f"v_lshl_add_u32 v{vWB}, v{vT4}, 9, v{vT3}")
for i in range(1, 8): e(f"v_xor_b32 v{vWB+i}, {i<<5}, v{vWB}")
e("s_waitcnt lgkmcnt(0)")
e(f"s_mov_b32 s{sX}, s{pX}")
e(f"s_mov_b32 s{sX+1}, s{pX+1}")
for i in range(16):
    e(f"buffer_load_dwordx4 v{vWB+(i&7)}, {sr(sX,4)}, s{sT2} offen lds")
    if i < 15:
        e("s_add_u32 m0, m0, 1024")
        e(f"s_add_u32 s{sT2}, s{sT2}, 2048")
barrier("c")
prof(0)
e(f"s_mov_b32 s{sWS}, s{pWSP}")
e(f"s_mov_b32 s{sWS+1}, s{pWSP+1}")
e(f"s_mov_b32 s{sOUT}, s{pOUT}")
e(f"s_mov_b32 s{sOUT+1}, s{pOUT+1}")
e(f"s_mov_b32 s{sOUT+2}, {2<<20}")
e(f"s_mov_b32 s{sCEXP}, {f32(0.25*math.log2(math.e))}")
e(f"s_mov_b32 s{sODD}, 0xaaaaaaaa")
e(f"s_mov_b32 s{sODD+1}, 0xaaaaaaaa")
e(f"s_mov_b32 s{sONE2}, 1.0")
e(f"s_mov_b32 s{sONE2+1}, 1.0")
e("s_mov_b64 vcc, 0")
tr_bases()
for jj in range(4): e(f"v_add_u32 v{vW+jj}, s{sPAR}, v{vB+jj}")
e(f"v_lshlrev_b32 v{vCSR}, 4, v{vT0}")
e(f"v_add_u32 v{vCSR}, {CSA}, v{vCSR}")
e(f"s_lshl_b32 s{sT2}, s{sWAVE}, 12")
e(f"s_add_u32 s{sT2}, s{sT2}, {XB}")
e(f"v_add_u32 v{vXA}, s{sT2}, v{vL16}")
e(f"v_xor_b32 v{vXP}, 0x1000, v{vXA}")
e(f"v_cmp_eq_u32 {sr(sM0,2)}, 0, v{vLANE}")
e(f"v_cmp_gt_u32 {sr(sM1,2)}, 16, v{vLANE}")
e(f"v_mov_b32 v{vT2}, {OOB}")
e(f"s_lshl_b32 s{sFLOFF}, s{sUNIT}, 7")
e(f"s_add_u32 s{sFLOFF}, s{sFLOFF}, {WS_FL}")
e(f"v_cndmask_b32 v{vFLO}, v{vT2}, 0, {sr(sM0,2)}")
e(f"s_lshl_b32 s{sT0}, s{sTILE}, 10")
e(f"s_lshr_b32 s{sT1}, s{sJ}, 1")
e(f"s_lshl_b32 s{sT1}, s{sT1}, 8")
e(f"s_add_u32 s{sT0}, s{sT0}, s{sT1}")
e(f"s_and_b32 s{sT1}, s{sJ}, 1")
e(f"s_lshl_b32 s{sT1}, s{sT1}, 3")
e(f"s_add_u32 s{sT0}, s{sT0}, s{sT1}")
e(f"v_add_u32 v{vT3}, s{sT0}, v{vL16}")
e(f"v_cndmask_b32 v{vSTO}, v{vT2}, v{vT3}, {sr(sM1,2)}")
e(f"s_lshl_b32 s{sT0}, s{sG}, 3")
e(f"s_add_u32 s{sT0}, s{sT0}, s{sJ}")
e(f"s_lshl_b32 s{sPUBO}, s{sT0}, 7")
e(f"s_add_u32 s{sPUBO}, s{sPUBO}, {WS_FL2}")
e(f"s_lshl_b32 s{sHKO}, s{sT0}, 12")
e(f"s_add_u32 s{sHKO}, s{sHKO}, {WS_HK}")
e(f"s_lshl_b32 s{sDST}, s{sTILE}, 14")
e(f"s_lshl_b32 s{sT1}, s{sJ}, 11")
e(f"s_add_u32 s{sDST}, s{sDST}, s{sT1}")
e(f"s_lshl_b32 s{sT1}, s{sJ}, 7")
e(f"s_lshl_b32 s{sCQ}, s{sTILE}, 14")
e(f"s_add_u32 s{sCQ}, s{sCQ}, s{sT1}")
e(f"v_and_b32 v{vT3}, 1, v{vT0}")
e(f"v_lshlrev_b32 v{vT3}, 5, v{vT3}")
e(f"v_lshrrev_b32 v{vT4}, 1, v{vT0}")
e(f"v_lshl_add_u32 v{vT3}, v{vT4}, 4, v{vT3}")
e(f"v_lshl_add_u32 v{vOUTO}, v{vT1}, 10, v{vT3}")
e(f"v_add_u32 v{vOUTO}, s{sCQ}, v{vOUTO}")
GA = -2.0*math.sqrt(2.0/math.pi)*math.log2(math.e)
for i in range(2):
    e(f"v_mov_b32 v{vGA+i}, {f32(GA)}")
    e(f"v_mov_b32 v{vGB+i}, {f32(GA*0.044715)}")
def set_la(stride):
    e(f"s_mul_i32 s{sT0}, s{sKH}, {stride+4096}")
    e(f"s_mul_i32 s{sT1}, s{sKH}, {-stride+4096}")
    e(f"s_add_u32 s{sT1}, s{sT1}, {stride}")
    e(f"v_add_u32 v{vLA}, s{sT0}, v{vL16}")
    e(f"v_add_u32 v{vLA+1}, s{sT1}, v{vL16}")
    e(f"v_add_u32 v{vLA+2}, 0x2000, v{vLA}")
    e(f"v_add_u32 v{vLA+3}, 0x2000, v{vLA+1}")
set_la(16384)
XA = vE
e(f"v_lshrrev_b32 v{vT3}, 1, v{vT0}")
e(f"v_xor_b32 v{vT3}, v{vT3}, v{vT1}")
e(f"v_lshlrev_b32 v{vT3}, 4, v{vT3}")
e(f"v_lshl_add_u32 v{vT3}, v{vT1}, 9, v{vT3}")
e(f"v_and_b32 v{vT4}, 1, v{vT0}")
e(f"v_lshl_add_u32 v{vT3}, v{vT4}, 3, v{vT3}")
e(f"s_lshl_b32 s{sT0}, s{sKH}, 13")
e(f"s_add_u32 s{sT0}, s{sT0}, s{sT3}")
e(f"v_add_u32 v{XA}, s{sT0}, v{vT3}")
for c in range(1, 8): e(f"v_xor_b32 v{XA+c}, {c<<5}, v{XA}")
for c in range(8): e(f"v_xor_b32 v{XA+8+c}, 0x2000, v{XA+c}")
for i in range(4): e(f"v_mov_b32 v{vST+i}, 0")
e(f"s_lshl_b32 s{sT0}, s{sWAVE}, 11")
e(f"s_add_u32 s{sT0}, s{sT0}, {VA}")
e(f"v_lshl_add_u32 v{vT2}, v{vT1}, 4, s{sT0}")
e(f"v_xor_b32 v{vT3}, 0x800, v{vT1}") if False else None
e(f"s_lshl_b32 s{sT0}, s{sWAVE}, 2")
e(f"v_add_u32 v{vXFP}, s{sT0}, v{vCB}")
e(f"v_mov_b32 v{vT4}, {LOOB}")
e(f"v_cndmask_b32 v{vW1}, v{vT4}, v{vXFP}, {sr(sM0,2)}")
e(f"v_xor_b32 v{vXFP}, 4, v{vXFP}")
e(f"s_lshl_b32 s{sT0}, s{sJ}, 1")
e(f"s_add_u32 s{sT0}, s{sT0}, s{sKH}")
e(f"s_lshl_b32 s{sT0}, 1, s{sT0}")
e(f"v_mov_b32 v{vBIT}, s{sT0}")
e(f"s_lshl_b32 s{sT0}, s{sT0}, 16")
e(f"v_mov_b32 v{vBIT+1}, s{sT0}")
e(f"s_lshl_b32 s{sT0}, s{sKH}, 2")
e(f"s_lshl_b32 s{sMK0}, 15, s{sT0}")
e(f"s_mov_b32 s{sTAIL}, 0")
e(f"s_mov_b32 s{sXSEQ}, 0")
e(f"s_bfe_u32 s{sT0}, s{sJ}, 0x10001")
e(f"s_xor_b32 s{sT0}, s{sT0}, s{sKH}")
e(f"s_lshl_b32 s{sT0}, s{sT0}, 16")
e(f"s_and_b32 s{sT1}, s{sJ}, 1")
e(f"s_lshl_b32 s{sT1}, s{sT1}, 7")
e(f"s_or_b32 s{sT0}, s{sT0}, s{sT1}")
e(f"s_lshr_b32 s{sT1}, s{sJ}, 2")
e(f"s_lshl_b32 s{sT1}, s{sT1}, 8")
e(f"v_xor_b32 v{vK}, s{sT0}, v{XA}")
e(f"v_add_u32 v{vK}, s{sT1}, v{vK}")
for jj in range(1, 4): e(f"v_xor_b32 v{vK+jj}, {jj<<5}, v{vK}")
e(f"s_lshr_b32 s{sT0}, s{sJ}, 2")
e(f"s_add_u32 s{sT0}, s{sT0}, 1")
e(f"s_sub_u32 s{sT1}, 0, s{sT0}")
e(f"s_bitcmp1_b32 s{sJ}, 1")
e(f"s_cselect_b32 s{sT0}, s{sT1}, s{sT0}")
e(f"s_lshl_b32 s{sT1}, s{sTILE}, 4")
e(f"s_add_u32 s{sT0}, s{sT0}, s{sT1}")
e(f"s_movk_i32 s{sT1}, 0x800")
e(f"v_add_u32 v{vT3}, s{sT0}, v{vT1}")
e(f"v_cmp_gt_u32 {sr(sM1,2)}, s{sT1}, v{vT3}")
e(f"v_lshrrev_b32 v{vT4}, 4, v{vT3}")
e(f"v_lshlrev_b32 v{vT4}, 14, v{vT4}")
e(f"v_lshl_add_u32 v{vT4}, v{vT0}, 8, v{vT4}")
e(f"v_and_b32 v{vT3}, 15, v{vT3}")
e(f"v_lshl_add_u32 v{vT4}, v{vT3}, 4, v{vT4}")
e(f"v_mov_b32 v{vT3}, {OOB}")
e(f"v_cndmask_b32 v{vHS}, v{vT3}, v{vT4}, {sr(sM1,2)}")
BI, SEL = vX1P+2, vX1P+6
e(f"v_and_b32 v{vT3}, 1, v{vT1}")
e(f"v_lshl_add_u32 v{vT3}, v{vT0}, 2, v{vT3}")
e(f"v_sub_u32 v{vT3}, v{vT1}, v{vT3}")
e(f"v_mov_b32 v{vT6}, {f32(-1e30)}")
e(f"s_cmp_eq_u32 s{sTILE}, 0")
e(f"s_cselect_b32 s{sT0}, -64, 16")
e(f"v_add_u32 v{vT4}, -2, v{vT3}")
e(f"v_cmp_gt_u32 {sr(sM0,2)}, 15, v{vT3}")
e(f"v_cmp_gt_u32 {sr(sM1,2)}, 15, v{vT4}")
e(f"v_add_u32 v{vT3}, s{sT0}, v{vT3}")
e(f"v_add_u32 v{vT4}, -2, v{vT3}")
e(f"v_cndmask_b32 v{BI}, v{vT6}, 0, {sr(sM0,2)}")
e(f"v_cndmask_b32 v{BI+1}, v{vT6}, 0, {sr(sM1,2)}")
e(f"v_cmp_gt_u32 {sr(sM0,2)}, 15, v{vT3}")
e(f"v_cmp_gt_u32 {sr(sM1,2)}, 15, v{vT4}")
e(f"v_mov_b32 v{vT3}, 0x0c0c0100")
e(f"v_mov_b32 v{vT4}, 0x01000c0c")
e(f"v_cndmask_b32 v{BI+2}, v{vT6}, 0, {sr(sM0,2)}")
e(f"v_cndmask_b32 v{BI+3}, v{vT6}, 0, {sr(sM1,2)}")
e(f"v_cndmask_b32 v{SEL}, v{vT3}, v{vT4}, {sr(sODD,2)}")
e(f"v_mov_b32 v{vT3}, 0x0c0c0302")
e(f"v_mov_b32 v{vT4}, 0x03020c0c")
e(f"v_cndmask_b32 v{SEL+1}, v{vT3}, v{vT4}, {sr(sODD,2)}")
e("s_waitcnt vmcnt(0)")
for ksl in range(8):
    for t in range(2):
        for h in range(2):
            e(f"ds_read_b64 {vr(vA+8*ksl+4*t+2*h,2)}, v{XA+8*t+2*(ksl&3)+h} offset:{256*(ksl>>2)}")
for ksl in range(8):
    e(f"s_waitcnt lgkmcnt({min(15, 28-4*ksl)})")
    for d in range(4):
        for t in range(2):
            r = vA+8*ksl+4*t+d
            e(f"v_dot2_f32_bf16 v{vST+2*t}, v{r}, s{sONES}, v{vST+2*t}")
            e(f"v_dot2_f32_bf16 v{vST+2*t+1}, v{r}, v{r}, v{vST+2*t+1}")
nop(3)
red2x2(vST, vST+1, vST+1, vST+2, vST+3, vST+3)
e(f"ds_write_b128 v{vT2}, {vr(vST,4)}")
e(f"s_xor_b32 s{sT0}, s{sWAVE}, 1")
e(f"s_lshl_b32 s{sT0}, s{sT0}, 11")
e(f"s_add_u32 s{sT0}, s{sT0}, {VA}")
e(f"v_lshl_add_u32 v{vT3}, v{vT1}, 4, s{sT0}")
e("s_waitcnt lgkmcnt(0)")
prof(1)
barrier("c")
e(f"ds_read_b128 {vr(vE,4)}, v{vT3}")
for jj in range(4): e(f"ds_read_b64 {vr(vXR+2*jj,2)}, v{vK+jj}")
e(f"s_mov_b32 s{sT0}, 0x3f80")
e(f"s_mov_b32 s{sT1}, 0x3f800000")
e("s_waitcnt lgkmcnt(0)")
e(f"v_add_f32 v{vT4}, v{vE+2}, v{vST}")
e(f"v_add_f32 v{vT3}, v{vE+3}, v{vST+1}")
e(f"v_add_f32 v{vT6}, v{vE}, v{vST+2}")
e(f"v_mul_f32 v{vT6}, {f32(-1.0/512)}, v{vT6}")
mean_var(vT4, vT3)
e(f"v_add_f32 v{vT3}, {f32(1e-5)}, v{vT3}")
e(f"v_rsq_f32 v{vSC}, v{vT3}")
e(f"v_rsq_f32 v{vSC+1}, v{vT3}")
for c in range(8):
    for i in range(8):
        m_ = vT6 if (i >> 2) & 1 else vT4
        e(f"v_dot2_f32_bf16 v{vE+2*i}, v{vA+8*c+i}, s{sT0}, v{m_}")
        e(f"v_dot2_f32_bf16 v{vE+2*i+1}, v{vA+8*c+i}, s{sT1}, v{m_}")
    nop(1)
    for i in range(8): e(f"v_cvt_pk_bf16_f32 v{vA+8*c+i}, v{vE+2*i}, v{vE+2*i+1}")
    if c == 6:
        barrier("c")
        pre()
prof(30)
call_pass()
scalepack(vK)
e(f"v_lshlrev_b32 v{vT2}, 7, v{vT1}")
e(f"v_lshl_add_u32 v{vT2}, v{vT0}, 5, v{vT2}")
e(f"s_cmp_eq_u32 s{sWAVE}, 3")
e("s_cbranch_scc0 L_k3d")
e(f"buffer_store_dwordx4 {vr(vK,4)}, v{vL16}, {sr(sWS,4)}, s{sHKO} offen sc1")
e(f"buffer_store_dwordx4 {vr(vK+4,4)}, v{vL16}, {sr(sWS,4)}, s{sHKO} offen offset:1024 sc1")
e(f"s_mov_b32 s{sPUBV}, 1")
e("s_mov_b64 vcc, -1")
lab("L_k3d")
e(f"s_cselect_b32 s{sT1}, 16, 1")
e(f"s_mul_i32 s{sT0}, s{sWAVE}, {KSZ}")
e(f"s_add_u32 s{sT0}, s{sT0}, {KA+KSZ-256}")
e(f"v_cmp_lt_u32 {sr(sM0,2)}, s{sT1}, v{vT1}")
e(f"v_add_u32 v{vT2}, s{sT0}, v{vT2}")
e(f"v_mov_b32 v{vT3}, {LOOB}")
e(f"v_cndmask_b32 v{vX1P}, v{vT3}, v{vT2}, {sr(sM0,2)}")
e(f"v_bfe_u32 v{vT2}, v{vT1}, 1, 2")
e(f"v_lshlrev_b32 v{vT2}, 1, v{vT2}")
e(f"v_lshrrev_b32 v{vT3}, 1, v{vT0}")
e(f"v_xor_b32 v{vT2}, v{vT2}, v{vT3}")
e(f"v_lshlrev_b32 v{vT2}, 4, v{vT2}")
e(f"v_lshl_add_u32 v{vT2}, v{vT1}, 7, v{vT2}")
e(f"v_and_b32 v{vT3}, 1, v{vT0}")
e(f"v_lshl_add_u32 v{vHP}, v{vT3}, 3, v{vT2}")
for h in range(1, 4): e(f"v_xor_b32 v{vHP+h}, {h<<5}, v{vHP}")
e(f"s_lshl_b32 s{sT0}, s{sWAVE}, 11")
e(f"s_add_u32 s{sT0}, s{sT0}, {VA}")
for h in range(4): e(f"v_add_u32 v{vHP+4+h}, s{sT0}, v{vHP+h}")
prof(2)
call_pass()
scalepack(vPK)
for h in range(4): e(f"ds_write_b64 v{vHP+4+h}, {vr(vPK+2*h,2)}")
e(f"ds_write_b128 v{vX1P}, {vr(vK,4)}")
e(f"ds_write_b128 v{vX1P}, {vr(vK+4,4)} offset:16")
e(f"s_cmp_eq_u32 s{sWAVE}, 3")
e("s_cbranch_scc0 L_v3d")
for i in range(2): e(f"buffer_store_dwordx4 {vr(vPK+4*i,4)}, v{vL16}, {sr(sWS,4)}, s{sHKO} offen offset:{2048+1024*i} sc1")
e(f"s_mov_b32 s{sPUBV}, 0x100")
e("s_mov_b64 vcc, -1")
lab("L_v3d")
e(f"v_max_u32 v{vT2}, 2, v{vT1}")
e(f"v_lshlrev_b32 v{vT2}, 7, v{vT2}")
e(f"v_lshl_add_u32 v{vT2}, v{vT0}, 5, v{vT2}")
e(f"s_mul_i32 s{sT1}, s{sWAVE}, {KSZ}")
e(f"s_add_u32 s{sT1}, s{sT1}, {KA-256}")
e(f"v_add_u32 v{vT2}, s{sT1}, v{vT2}")
e(f"s_sub_u32 s{sT1}, s{sT0}, 2048")
e(f"s_cmp_eq_u32 s{sWAVE}, 0")
e(f"s_cselect_b32 s{sT1}, {XB}, s{sT1}")
e(f"s_cselect_b32 s{sT3}, 1, 0")
for h in range(4):
    e(f"v_add_u32 v{vHP+h}, s{sT0}, v{vB+h}")
    e(f"v_add_u32 v{vHP+4+h}, s{sT1}, v{vB+h}")
e("s_waitcnt lgkmcnt(0)")
barrier("c")
prof(3)
call_pass()
KP, VP, VO, SO, SP_ = vA, vA+8, vA+16, vA+24, vA+40
e(f"ds_write_b32 v{vW1}, v{vBIT} offset:{C_ACK}")
for h in range(4): e(f"ds_read_b64_tr_b16 {vr(VO+2*h,2)}, v{vHP+h}")
scalepack(vPK)
l = uid("kv"); d = l+"_d"
lab(l)
e(f"ds_read_b32 v{vT7}, v{vCB} offset:{C_KV}")
e(f"ds_read_b128 {vr(KP,4)}, v{vT2}")
e(f"ds_read_b128 {vr(KP+4,4)}, v{vT2} offset:16")
for h in range(4):
    e(f"v_mfma_f32_16x16x16_bf16 {vr(SO+4*h,4)}, {vr(vK+2*h,2)}, {vr(vPK+2*h,2)}, 0")
e("s_waitcnt lgkmcnt(0)")
e(f"v_readfirstlane_b32 s{sT2}, v{vT7}")
e(f"s_cmp_ge_u32 s{sT2}, s{sT3}")
e(f"s_cbranch_scc0 {spin(l, d)}")
lab(d)
for h in range(4):
    e(f"v_mfma_f32_16x16x16_bf16 {vr(SP_+4*h,4)}, {vr(KP+2*h,2)}, {vr(vPK+2*h,2)}, 0")
prof(4)
nop(4)
X = vE
for h in range(4):
    e(f"v_cndmask_b32 v{X+4*h}, v{SO+4*h}, v{SO+4*h+1}, {sr(sODD,2)}")
    e(f"v_cndmask_b32 v{X+4*h+1}, v{SO+4*h+2}, v{SO+4*h+3}, {sr(sODD,2)}")
for h in range(4):
    e(f"v_cndmask_b32 v{X+4*h+2}, v{SP_+4*h}, v{SP_+4*h+1}, {sr(sODD,2)}")
    e(f"v_cndmask_b32 v{X+4*h+3}, v{SP_+4*h+2}, v{SP_+4*h+3}, {sr(sODD,2)}")
for h in range(4):
    for i in range(4): e(f"v_fma_f32 v{X+4*h+i}, v{X+4*h+i}, s{sCEXP}, v{BI+i}")
M = vE+16; M2 = vE+20
for h in range(4): e(f"v_max3_f32 v{M+h}, v{X+4*h}, v{X+4*h+1}, v{X+4*h+2}")
for h in range(4): e(f"v_max_f32 v{M+h}, v{M+h}, v{X+4*h+3}")
def allred(op):
    for h in range(4): e(f"v_mov_b32 v{M2+h}, v{M+h}")
    nop(1)
    for h in range(4): e(f"v_permlane16_swap_b32 v{M+h}, v{M2+h}")
    for h in range(4): e(f"{op} v{M+h}, v{M+h}, v{M2+h}")
    for h in range(4): e(f"v_mov_b32 v{M2+h}, v{M+h}")
    nop(1)
    for h in range(4): e(f"v_permlane32_swap_b32 v{M+h}, v{M2+h}")
    for h in range(4): e(f"{op} v{M+h}, v{M+h}, v{M2+h}")
allred("v_max_f32")
for h in range(4):
    for i in range(4): e(f"v_sub_f32 v{X+4*h+i}, v{X+4*h+i}, v{M+h}")
for i in range(16): e(f"v_exp_f32 v{X+i}, v{X+i}")
for h in range(4): e(f"v_add_f32 v{M+h}, v{X+4*h}, v{X+4*h+1}")
for h in range(4): e(f"v_add_f32 v{M2+h}, v{X+4*h+2}, v{X+4*h+3}")
for h in range(4): e(f"v_add_f32 v{M+h}, v{M+h}, v{M2+h}")
allred("v_add_f32")
for h in range(4): e(f"v_rcp_f32 v{M+h}, v{M+h}")
lv_ = uid("vv")
e(f"s_lshl_b32 s{sT3}, s{sT3}, 1")
lab(lv_)
e(f"ds_read_b32 v{vT7}, v{vCB} offset:{C_KV}")
for h in range(4): e(f"ds_read_b64_tr_b16 {vr(VP+2*h,2)}, v{vHP+4+h}")
e("s_cbranch_vccnz "+lv_+"_w")
for h in range(4):
    for i in range(4): e(f"v_mul_f32 v{X+4*h+i}, v{X+4*h+i}, v{M+h}")
for h in range(4):
    e(f"v_cvt_pk_bf16_f32 v{M+h}, v{X+4*h}, v{X+4*h+1}")
    e(f"v_cvt_pk_bf16_f32 v{M2+h}, v{X+4*h+2}, v{X+4*h+3}")
for h in range(4):
    e(f"v_perm_b32 v{SO+2*h}, v{M+h}, v{M+h}, v{SEL}")
    e(f"v_perm_b32 v{SO+2*h+1}, v{M+h}, v{M+h}, v{SEL+1}")
    e(f"v_perm_b32 v{SP_+2*h}, v{M2+h}, v{M2+h}, v{SEL}")
    e(f"v_perm_b32 v{SP_+2*h+1}, v{M2+h}, v{M2+h}, v{SEL+1}")
nop(2)
OA = vE
for h in range(4):
    e(f"v_mfma_f32_16x16x16_bf16 {vr(OA+4*h,4)}, {vr(VO+2*h,2)}, {vr(SO+2*h,2)}, 0")
lab(lv_+"_w")
e("s_waitcnt lgkmcnt(0)")
e(f"v_readfirstlane_b32 s{sT2}, v{vT7}")
e("s_mov_b64 vcc, -1")
e(f"s_cmp_ge_u32 s{sT2}, s{sT3}")
e(f"s_cbranch_scc0 {spin(lv_, lv_+'_d')}")
lab(lv_+"_d")
e("s_mov_b64 vcc, 0")
for h in range(4):
    e(f"v_mfma_f32_16x16x16_bf16 {vr(OA+4*h,4)}, {vr(VP+2*h,2)}, {vr(SP_+2*h,2)}, {vr(OA+4*h,4)}")
nop(2)
def pack(dst):
    for i in range(8): e(f"v_cvt_pk_bf16_f32 v{dst+i}, v{vE+2*i}, v{vE+2*i+1}")
def store_act(pk, base):
    e(f"s_add_u32 s{sT0}, s{sDST}, {base}")
    e(f"buffer_store_dwordx4 {vr(pk,4)}, v{vL16}, {sr(sWS,4)}, s{sT0} offen sc1")
    e(f"buffer_store_dwordx4 {vr(pk+4,4)}, v{vL16}, {sr(sWS,4)}, s{sT0} offen offset:1024 sc1")
nop(3)
pack(vPK)
store_act(vPK, WS_O)
pubn = [0]
def publish(younger=0):
    f = pubn[0]; pubn[0] += 1
    if f in (1, 2): prof(21+f)
    e(f"s_waitcnt vmcnt({younger})")
    e(f"buffer_atomic_add v{vBIT+(f&1)}, v{vFLO}, {sr(sWS,4)}, s{sFLOFF} offen offset:{4*(f>>1)} sc1")
def loada(sgs=(0, 1)):
    for ksl in range(8):
        if ksl >> 2 not in sgs: continue
        for tsel in range(2):
            e(f"buffer_load_dwordx4 {vr(vA+8*ksl+4*tsel,4)}, v{vLA+2*(ksl>>2)+tsel}, {sr(sWS,4)}, s{sOFFA} offen offset:{1024*(ksl&3)} sc1")
def set_offa(base):
    e(f"s_lshl_b32 s{sOFFA}, s{sUNIT}, 15")
    e(f"s_add_u32 s{sOFFA}, s{sOFFA}, {base}")
def set_stats_off(base):
    e(f"s_lshl_b32 s{sT3}, s{sTILE}, 10")
    e(f"s_add_u32 s{sT3}, s{sT3}, {base}")
def load_stats(): e(f"buffer_load_dwordx4 {vr(vST,4)}, v{vL16}, {sr(sWS,4)}, s{sT3} offen sc1")
def consume_stats():
    e("s_waitcnt vmcnt(8)")
    e(f"v_add_f32 v{vT4}, v{vST}, v{vST+2}")
    e(f"v_add_f32 v{vT3}, v{vST+1}, v{vST+3}")
    nop(2)
    red2(vT4, vT3, vT3)
    mean_var(vT4, vT3)
def store_stats(pk, base):
    e(f"v_mov_b32 v{vST}, 0")
    e(f"v_mov_b32 v{vST+1}, 0")
    for i in range(8):
        e(f"v_dot2_f32_bf16 v{vST}, v{pk+i}, s{sONES}, v{vST}")
        e(f"v_dot2_f32_bf16 v{vST+1}, v{pk+i}, v{pk+i}, v{vST+1}")
    e(f"s_mov_b32 s{sT0}, {base}")
    nop(2)
    red2(vST, vST+1, vST+1)
    e(f"buffer_store_dwordx2 {vr(vST,2)}, v{vSTO}, {sr(sWS,4)}, s{sT0} offen sc1")
def unpack(dst, src, n):
    for i in range(n):
        e(f"v_lshlrev_b32 v{dst+2*i}, 16, v{src+i}")
        e(f"v_and_b32 v{dst+2*i+1}, 0xffff0000, v{src+i}")
def wait_bits(f, mask_s, shift, nb=None, first=True):
    l = uid("rdy"); d = l+"_d"; c = l+"_c"
    sh = 16*(f & 1) + shift
    if isinstance(mask_s, int): e(f"s_mov_b32 s{sT0}, {mask_s << sh}")
    else: e(f"s_lshl_b32 s{sT0}, s{mask_s}, {sh}")
    if nb is not None: e(f"s_lshl_b32 s{sT1}, s{nb}, {sh}")
    if not first: e(f"s_branch {c}")
    lab(l)
    e(f"s_mov_b32 s{sFLW}, 0")
    if nb is not None: e(f"s_mov_b32 s{sFB}, 0")
    e(f"s_atomic_add s{sFLW}, {sr(pWSP,2)}, s{sFLW+1} glc")
    if nb is not None: e(f"s_atomic_add s{sFB}, {sr(pWSP,2)}, s{sNBO} glc")
    e("s_waitcnt lgkmcnt(0)")
    lab(c)
    e(f"s_andn2_b32 s{sT2}, s{sT0}, s{sFLW}")
    if nb is not None:
        e(f"s_andn2_b32 s{sFB+1}, s{sT1}, s{sFB}")
        e(f"s_or_b32 s{sT2}, s{sT2}, s{sFB+1}")
    e(f"s_cbranch_scc1 {spin(l, d)}")
    lab(d)
def set_word(f): e(f"s_add_u32 s{sFLW+1}, s{sFLOFF}, {4*(f>>1)}")
def cs_check():
    l = uid("cs"); d = l+"_d"
    lab(l+"_c")
    e(f"v_min_u32 v{vCF}, v{vCF}, v{vCF+1}")
    nop(1)
    e(f"v_readfirstlane_b32 s{sT0}, v{vCF}")
    e(f"s_cmp_ge_u32 s{sT0}, 1")
    e(f"s_cbranch_scc0 {l}")
    lab(d)
    cs_retries.append((l, d))
cs_retries = []
zero(vACP, 16)
set_offa(WS_O)
set_word(0)
e(f"s_mov_b32 s{sTAIL}, 1")
unpack(vACC, vXR, 8)
publish()
barrier("c")
prof(5)
wait_bits(0, sMK0, 0)
prof(6)
loada((0,))
wait_bits(0, sMK0, 8, None, False)
loada((1,))
call_pass("L_pass64b", False)
prof(7)
pack(vHP)
store_act(vHP, WS_H)
store_stats(vHP, WS_HS)
set_offa(WS_H)
set_stats_off(WS_HS)
publish()
barrier("c")
pre()
prof(8)
wait_bits(1, sMK0, 0)
prof(9)
loada((0,))
wait_bits(1, 0xffff, 0, None, False)
load_stats()
loada((1,))
consume_stats()
e(f"v_add_f32 v{vT2}, {f32(1e-5)}, v{vT3}")
e(f"v_rsq_f32 v{vR1}, v{vT2}")
e(f"v_mov_b32 v{vNMH}, v{vT4}")
e(f"v_mul_f32 v{vT3}, v{vT3}, v{vR1}")
e(f"v_fmaak_f32 v{vT3}, v{vT3}, v{vR1}, {f32(1e-5)}")
e(f"v_rsq_f32 v{vT3}, v{vT3}")
e(f"v_mov_b32 v{vNMH+1}, v{vT4}")
e(f"v_mul_f32 v{vSC}, v{vT3}, v{vR1}")
e(f"v_mul_f32 v{vSC+1}, v{vT3}, v{vR1}")
e(f"v_mov_b32 v{vR1+1}, v{vR1}")
e(f"v_mul_f32 v{vMS}, v{vT4}, v{vSC}")
e(f"v_mul_f32 v{vMS+1}, v{vT4}, v{vSC}")
e(f"s_mov_b32 s{sCNT}, 0")
call_pass("L_pass64", False)
prof(10)
cs_check()
e(f"s_call_b64 {sr(sRET2,2)}, L_gelu")
e(f"s_lshl_b32 s{sT0}, s{sJ}, 11")
e(f"s_add_u32 s{sT0}, s{sT0}, {WS_H1}")
e(f"buffer_store_dwordx4 {vr(vPK,4)}, v{vHS}, {sr(sWS,4)}, s{sT0} offen sc1")
e(f"buffer_store_dwordx4 {vr(vPK+4,4)}, v{vHS}, {sr(sWS,4)}, s{sT0} offen offset:1024 sc1")
e(f"v_mov_b32 v{vT6}, {OOB}")
e(f"s_lshl_b32 s{sT2}, s{sKH}, 1")
e(f"s_sub_u32 s{sT2}, s{sT2}, 1")
e(f"s_movk_i32 s{sT3}, 0x800")
for sg in range(2):
    for tsel in range(2):
        if tsel: e(f"s_xor_b32 s{sT0}, s{sTILE}, 1")
        e(f"s_lshl_b32 s{sT0}, s{sT0 if tsel else sTILE}, 4")
        e(f"s_add_u32 s{sT0}, s{sT0}, s{sT2}")
        if sg: e(f"s_add_u32 s{sT0}, s{sT0}, s{sT2}")
        e(f"v_add_u32 v{vT2}, s{sT0}, v{vT1}")
        e(f"v_cmp_gt_u32 {sr(sM0,2)}, s{sT3}, v{vT2}")
        nop(2)
        e(f"v_cndmask_b32 v{vLA+2*sg+tsel}, v{vT6}, v{vLA+2*sg+tsel}, {sr(sM0,2)}")
unpack(vACC, vHP, 8)
for i in range(8): e(f"v_pk_add_f32 {vr(vACC+2*i,2)}, {vr(vACC+2*i,2)}, {vr(vNMH,2)}")
for i in range(8): e(f"v_pk_mul_f32 {vr(vACC+2*i,2)}, {vr(vACC+2*i,2)}, {vr(vR1,2)}")
zero(vACP, 16)
e(f"s_lshl_b32 s{sT0}, s{sT2}, 7")
e(f"s_add_u32 s{sNBO}, s{sFLOFF}, s{sT0}")
e(f"s_add_u32 s{sT0}, s{sUNIT}, s{sT2}")
e(f"s_cmp_gt_u32 s{sT0}, 63")
e(f"s_cselect_b32 s{sNBO}, s{sFLOFF}, s{sNBO}")
e(f"s_add_u32 s{sNBO}, s{sNBO}, 4")
e(f"s_cmp_eq_u32 s{sKH}, 0")
e(f"s_cselect_b32 s{sCSN}, 0x0a, 0x50")
set_word(2)
set_offa(WS_H1)
e(f"v_add_u32 v{vCSR}, 256, v{vCSR}")
publish()
barrier("c")
pre()
prof(11)
wait_bits(2, sMK0, 0, sCSN)
prof(12)
loada((0,))
wait_bits(2, sMK0, 8, sCSN, False)
loada((1,))
call_pass("L_pass64b", False)
prof(13)
pack(vX1P)
store_act(vX1P, WS_X1)
store_stats(vX1P, WS_X1S)
e(f"s_mov_b32 s{sTAIL}, 0")
set_la(16384)
e(f"s_mul_i32 s{sDST}, s{sTILE}, {GT}")
e(f"s_lshl_b32 s{sT1}, s{sJ}, 11")
e(f"s_add_u32 s{sDST}, s{sDST}, s{sT1}")
set_offa(WS_X1)
set_stats_off(WS_X1S)
publish()
barrier("c")
pre()
prof(14)
wait_bits(3, sMK0, 0)
prof(15)
loada((0,))
wait_bits(3, 0xffff, 0, None, False)
load_stats()
loada((1,))
consume_stats()
e(f"v_add_f32 v{vT2}, {f32(1e-5)}, v{vT3}")
e(f"v_rsq_f32 v{vSC}, v{vT2}")
e(f"v_rsq_f32 v{vSC+1}, v{vT2}")
e(f"v_mul_f32 v{vMS}, v{vT4}, v{vSC}")
e(f"v_mul_f32 v{vMS+1}, v{vT4}, v{vSC}")
for p in range(3):
    call_pass()
    if p: publish()
    if not OPT.get('dl'): prof(24+2*p)
    if p == 2:
        for jj in range(2): e(f"v_add_u32 v{vW+jj}, s{sPAR}, v{vB32+jj}")
        pre(True, 32768)
    e(f"v_add_u32 v{vCSR}, {256 if p != 1 else -256}, v{vCSR}")
    e(f"s_call_b64 {sr(sRET2,2)}, L_gelu")
    if not OPT.get('dl'): prof(25+2*p)
    store_act(vPK, WS_G + 16384*p)
    prof(16+p)
lq = LQ([f"f{p}" for p in range(6) for h in range(2)])
for q in range(16):
    if q % 2 == 0: lq.need([f"f{q}", f"f{q+1}"])
    for t in (1, 0):
        e(mf_text(vWB+4*(q % 8), vA + 8*(q >> 1) + 4*t, (vACP if t else vACC) + 4*(q & 1), q < 2))
        if q+6 < 16: lq.op(f"f{q+6}", rd_text(vWB+4*((q+6) % 8), 1-t, q+6, True, 32768))
for jj in range(4): e(f"v_add_u32 v{vW+jj}, s{sPAR}, v{vB+jj}")
e(f"s_mov_b32 s{sCNT}, 1")
nop(2)
for i in range(2): e(T_W(i))
publish()
set_la(GT)
e(f"s_mul_i32 s{sOFFA}, s{sUNIT}, {2*GT}")
e(f"s_add_u32 s{sOFFA}, s{sOFFA}, {WS_G}")
QUADS = ([vA+4*i for i in range(16)] + [vXR+4*i for i in range(6)] + [vE+16+4*i for i in range(4)] + [vK, vK+4] + [vE+4*i for i in range(4)])[:OPT.get("nq", 24)]
NQ = len(QUADS)
gpolls = []
def gpoll():
    e(f"s_mov_b64 {sr(sFG,2)}, 0")
    e(f"s_atomic_add_x2 {sr(sFG,2)}, {sr(pWSP,2)}, s{sFLW+1} glc")
    e("s_waitcnt lgkmcnt(0)")
def gcheck(p):
    l = uid("g"); d = l+"_d"
    lab(d+"c")
    e(f"s_lshr_b32 s{sT0}, s{sFG+(p>>1)}, {16*(p&1)}")
    e(f"s_andn2_b32 s{sT0}, 0xffff, s{sT0}")
    e(f"s_cbranch_scc1 {l}")
    lab(d)
    gpolls.append((l, d))
def gload(m):
    ks, t = m >> 1, m & 1
    if ks % 8 == 0 and t == 0:
        p = ks // 8
        gcheck(p)
        if p: e(f"s_add_u32 s{sOFFA}, s{sOFFA}, 16384")
    e(f"buffer_load_dwordx4 {vr(QUADS[m % NQ],4)}, v{vLA+2*((ks>>2)&1)+t}, {sr(sWS,4)}, s{sOFFA} offen offset:{1024*(ks&3)} sc1")
set_word(4)
gpoll()
for m in range(16): gload(m)
barrier("c")
for i in range(2): e(T_R(i))
for i in range(2): e(T_C(i))
w4slot = lambda it: ((19 + it) & 3) * 16384
pre(False, w4slot(0))
e("s_waitcnt lgkmcnt(12)")
for i in range(4): e(f"v_pk_add_f32 {vr(vE+2*i,2)}, {vr(vACC+2*i,2)}, {vr(vE+2*i,2)}")
e(f"s_call_b64 {sr(sRET2,2)}, L_gelu")
e(f"s_lshl_b32 s{sT1}, s{sJ}, 10")
e(f"s_sub_u32 s{sT0}, s{sDST}, s{sT1}")
e(f"s_add_u32 s{sT0}, s{sT0}, {WS_G + 48*1024}")
e(f"buffer_store_dwordx4 {vr(vPK,4)}, v{vL16}, {sr(sWS,4)}, s{sT0} offen sc1")
unpack(vE, vHP, 8)
unpack(vE+16, vX1P, 8)
for i in range(8): e(f"v_pk_add_f32 {vr(vACC+2*i,2)}, {vr(vE+2*i,2)}, {vr(vE+16+2*i,2)}")
zero(vACP, 16)
prof(19)
for m in range(16, NQ): gload(m)
lq = LQ([f"f{p}" for p in range(6) for h in range(2)])
nissued = NQ
NP = 112
g3pub = [None]
for q in range(NP):
    ks = q >> 2
    vm = None
    extra = (1 if 2*ks+1 < 16 else 0) + (1 if g3pub[0] is not None and 2*ks+1 < g3pub[0] else 0)
    if q % 4 == 0: vm = nissued - (2*ks+2) + extra
    if q == 32:
        cmt("the last G store is older than everything waited for from here on")
        lq.need([f"f{q}", f"f{q+1}"], vm); vm = None
        publish(nissued - 16)
        g3pub[0] = nissued
    if q % 2 == 0: lq.need([f"f{q}", f"f{q+1}"], vm)
    if (q+6) % 16 == 0 and q+6 < NP:
        barrier("c")
    for t in range(2):
        e(mf_text(vWB+4*(q % 8), QUADS[(2*ks+t) % NQ], (vACP if t else vACC)+4*(q & 3)))
        if q+6 < NP: lq.op(f"f{q+6}", rd_text(vWB+4*((q+6) % 8), t, (q+6) & 15, False, w4slot((q+6) >> 4)))
        if (q & 3) in (1, 3) and t == 0 and ks >= 1 and nissued < 56:
            gload(nissued); nissued += 1
nop(8)
for i in range(4): e(T_W(i))
e("s_waitcnt lgkmcnt(0)")
barrier("c")
for i in range(4): e(T_R(i))
e("s_waitcnt lgkmcnt(0)")
for i in range(8): e(f"v_pk_add_f32 {vr(vE+2*i,2)}, {vr(vACC+2*i,2)}, {vr(vE+2*i,2)}")
prof(20)
pack(vPK)
nop(2)
for s in range(2):
    e(f"v_permlane16_swap_b32 v{vPK+4*s}, v{vPK+4*s+2}")
    e(f"v_permlane16_swap_b32 v{vPK+4*s+1}, v{vPK+4*s+3}")
e(f"buffer_store_dwordx4 {vr(vPK,4)}, v{vOUTO}, {sr(sOUT,4)}, 0 offen")
e(f"buffer_store_dwordx4 {vr(vPK+4,4)}, v{vOUTO}, {sr(sOUT,4)}, 0 offen offset:64")
prof(21)
prof_flush()
e("s_endpgm")
for l, d in gpolls:
    lab(l)
    gpoll()
    e(f"s_sub_u32 s{sBUD}, s{sBUD}, 1")
    e(f"s_cbranch_scc0 {d}c")
    e(f"s_mov_b32 s{sBUD}, 0")
    e(f"s_branch {d}")
for l, d in cs_retries:
    lab(l)
    e(f"ds_read_b64 {vr(vCF,2)}, v{vCB} offset:{C_CSF}")
    for i in range(4): e(T_C(i))
    e("s_waitcnt lgkmcnt(0)")
    e(f"s_sub_u32 s{sBUD}, s{sBUD}, 1")
    e(f"s_cbranch_scc0 {l}_c")
    e(f"s_mov_b32 s{sBUD}, 0")
    e(f"s_branch {d}")

gen_pass64()
align(); lab("L_gelu")
for half in range(2):
    Xr = vE + 8*half; c0 = vACP + 8*half; U = vE+16
    for i in range(4): e(f"v_pk_mul_f32 {vr(Xr+2*i,2)}, {vr(Xr+2*i,2)}, {vr(vSC,2)}")
    for i in range(4): e(f"v_pk_fma_f32 {vr(Xr+2*i,2)}, {vr(c0+2*i,2)}, {vr(vMS,2)}, {vr(Xr+2*i,2)}")
    for i in range(4): e(f"v_pk_mul_f32 {vr(U+2*i,2)}, {vr(Xr+2*i,2)}, {vr(Xr+2*i,2)}")
    for i in range(4): e(f"v_pk_fma_f32 {vr(U+2*i,2)}, {vr(U+2*i,2)}, {vr(vGB,2)}, {vr(vGA,2)}")
    for i in range(4): e(f"v_pk_mul_f32 {vr(U+2*i,2)}, {vr(U+2*i,2)}, {vr(Xr+2*i,2)}")
    for i in range(8): e(f"v_exp_f32 v{U+i}, v{U+i}")
    for i in range(4): e(f"v_pk_add_f32 {vr(U+2*i,2)}, {vr(U+2*i,2)}, {sr(sONE2,2)}")
    for i in range(8): e(f"v_rcp_f32 v{U+i}, v{U+i}")
    for i in range(4): e(f"v_pk_mul_f32 {vr(Xr+2*i,2)}, {vr(Xr+2*i,2)}, {vr(U+2*i,2)}")
    for i in range(4): e(f"v_cvt_pk_bf16_f32 v{vPK+4*half+i}, v{Xr+2*i}, v{Xr+2*i+1}")
    if half == 0:
        e(f"s_cmp_eq_u32 s{sCNT}, 1")
        e("s_cbranch_scc1 L_gelu_h")
lab("L_gelu_h")
e(f"s_setpc_b64 {sr(sRET2,2)}")

vCSW, vTL, vT3P, vTQ, vON, vIN = vXR, vXR+1, vXR+2, vXR+3, vXR+4, vHP
lab("L_service")
if MAP42:
    e(f"v_lshrrev_b32 v{vT2}, 2, v{vLANE}")
    e(f"v_and_b32 v{vT3}, 3, v{vLANE}")
    e(f"v_lshlrev_b32 v{vT4}, 7, v{vT3}")
    e(f"v_lshl_add_u32 v{vTL}, v{vT2}, 10, v{vT4}")
    e(f"v_mul_u32_u24 v{vTQ}, 3072, v{vT2}")
    e(f"v_add_u32 v{vTQ}, v{vTQ}, v{vT4}")
    e(f"v_min_u32 v{vT2}, 13, v{vT1}")
    e(f"v_lshlrev_b32 v{vT2}, 7, v{vT2}")
    e(f"v_mul_u32_u24 v{vT3P}, 3584, v{vT0}")
    e(f"v_add_u32 v{vT3P}, v{vT3P}, v{vT2}")
    e(f"s_lshl_b32 s{sT0}, s{sHF}, 9")
    e(f"s_lshl_b32 s{sTA}, s{sR32}, 14")
    e(f"s_add_u32 s{sTA}, s{sTA}, s{sT0}")
    e(f"s_mul_i32 s{sTC}, s{sR32}, {16*3072}")
    e(f"s_add_u32 s{sTC}, s{sTC}, s{sT0}")
    e(f"s_mul_i32 s{sTB}, s{sR32}, {4*3584}")
    e(f"s_mul_i32 s{sT0}, s{sHF}, 1792")
    e(f"s_add_u32 s{sTB}, s{sTB}, s{sT0}")
else:
    e(f"v_lshlrev_b32 v{vTL}, 7, v{vLANE}")
    e(f"v_lshrrev_b32 v{vT2}, 3, v{vLANE}")
    e(f"v_and_b32 v{vT3}, 7, v{vLANE}")
    e(f"v_mul_u32_u24 v{vTQ}, 3072, v{vT2}")
    e(f"v_lshl_add_u32 v{vTQ}, v{vT3}, 7, v{vTQ}")
    e(f"s_lshl_b32 s{sTA}, s{sR32}, 13")
    e(f"s_mul_i32 s{sTC}, s{sR32}, {8*3072}")
e(f"s_cmp_ge_u32 s{sWAVE}, 6")
e("s_cbranch_scc1 L_loader")
lab("L_helper")
tr_bases()
e(f"s_lshl_b32 s{sT0}, s{sKH}, 6")
e(f"v_xor_b32 v{vB}, s{sT0}, v{vB}")
e(f"v_xor_b32 v{vB+1}, s{sT0}, v{vB+1}")
e(f"s_lshl_b32 s{sT1}, s{sKH}, 5")
e(f"v_xor_b32 v{vB32}, s{sT1}, v{vB32}")
e(f"v_lshlrev_b32 v{vT2}, 4, v{vT0}")
e(f"v_add_u32 v{vCSW}, {CSA}, v{vT2}")
e(f"s_mov_b32 s{sM1}, 0x00010001")
e(f"s_mov_b32 s{sM1+1}, 0x00010001")
for i in range(4): e(f"v_mov_b32 v{vON+i}, s{sONES}")
e("s_waitcnt lgkmcnt(0)")
e(f"s_mov_b32 s{sWS}, s{pWSP}")
e(f"s_mov_b32 s{sWS+1}, s{pWSP+1}")
tv = [vA+64]
def touch1(t):
    ptr, size, pat, soff_s, c = t
    e(f"s_mov_b32 s{sX}, s{ptr}")
    e(f"s_mov_b32 s{sX+1}, s{ptr+1}")
    e(f"s_mov_b32 s{sX+2}, {size}")
    e(f"s_add_u32 s{sT0}, s{soff_s}, {c}")
    e(f"buffer_load_dword v{tv[0]}, v{pat}, {sr(sX,4)}, s{sT0} offen")
    tv[0] += 1
def touches(lst, role, sleep):
    if role == "h" or not lst: return 0
    lst = list(lst)
    if len(lst) % 2: lst.append((lst[0][0], 0, lst[0][2], lst[0][3], 0))
    if sleep: e(f"s_sleep {sleep}")
    a_ = uid("ta"); b_ = uid("tb")
    e(f"s_cmp_lg_u32 s{sKH}, 0")
    e(f"s_cbranch_scc1 {a_}")
    for t in lst[0::2]: touch1(t)
    e(f"s_branch {b_}")
    lab(a_)
    for t in lst[1::2]: touch1(t)
    lab(b_)
    return len(lst)//2
TQ = lambda c: [(pWQKV, 512*3072, vTQ, sTC, c + i*32*8*3072) for i in range(2)]
T1 = lambda p: [(p, 512*1024, vTL, sTA, i*32*8192) for i in range(2)]
T3 = lambda a, b: [(pW3, 512*3584, vTL, sTA, i*32*8192) for i in range(a, b)]
T4 = lambda a, b: [(pW4, 1792*1024, vTL, sTA, i*32*8192) for i in range(a, b)]
if MAP42:
    TQ = lambda c: [(pWQKV, 512*3072, vTQ, sTC, c)]
    T1 = lambda p: [(p, 512*1024, vTL, sTA, 0)]
    T3 = lambda a, b: [(pW3, 512*3584, vT3P, sTB, i*32*4*3584) for i in range(a, b)]
    T4 = lambda a, b: [(pW4, 1792*1024, vTL, sTA, i*32*16384) for i in range(a, b)]
barrier("h")
e(f"s_lshl_b32 s{sT0}, s{sJ}, 3")
e(f"s_add_u32 s{sT0}, s{sT0}, s{sWAVE}")
e(f"s_cmp_lg_u32 s{sT0}, 4")
e(f"s_cbranch_scc1 L_nozero")
for i in range(4): e(f"v_mov_b32 v{vA+i}, 0")
e(f"s_lshl_b32 s{sT0}, s{sG}, 8")
e(f"s_lshl_b32 s{sT1}, s{sG}, 10")
e(f"s_add_u32 s{sT1}, s{sT1}, {WS_FL2-WS_FL-256}")
e(f"v_mov_b32 v{vT3}, s{sT0}")
e(f"v_mov_b32 v{vT4}, s{sT1}")
e(f"v_cmp_gt_u32 {sr(sM0,2)}, 2, v{vLANE}")
e(f"s_mov_b32 s{sT0}, {WS_FL}")
nop(1)
e(f"v_cndmask_b32 v{vT3}, v{vT4}, v{vT3}, {sr(sM0,2)}")
e(f"v_lshl_add_u32 v{vT3}, v{vLANE}, 7, v{vT3}")
e("s_mov_b64 exec, 0x3ff")
e(f"buffer_store_dwordx4 {vr(vA,4)}, v{vT3}, {sr(sWS,4)}, s{sT0} offen sc1")
e(f"s_lshl_b32 s{sT0}, s{sG}, 2")
e(f"v_mov_b32 v{vT2}, s{sT0}")
e(f"v_mov_b32 v{vT6}, 1")
e("s_mov_b64 exec, 1")
e("s_waitcnt vmcnt(0)")
e(f"global_store_dword v{vT2}, v{vT6}, {sr(pDBG,2)} sc1")
e("s_mov_b64 exec, -1")
lab("L_nozero")
V_, Q_, WO_, W1_, W2_ = TQ(2048), TQ(0), T1(pWO), T1(pW1), T1(pW2)
K_ = TQ(1024)
SCH = {0: dict(s=K_, x=V_+Q_, b0=WO_, b1=W1_, b3=W2_, r1=T3(0,4), r2=T3(4,7), r3=T4(0,4), b9=T4(4,7)),
       1: dict(s=K_, x=V_+Q_, b0=WO_+W1_, b1=W2_+T3(0,2), r1=T3(2,5), r2=T3(5,7)+T4(0,2), r3=T4(2,5), b9=T4(5,7)),
       2: dict(s=K_+V_, x=Q_+WO_, b1=W1_+W2_, r1=T3(0,4), r2=T3(4,7), r3=T4(0,4), b9=T4(4,7)),
       3: dict(x=V_+Q_, b0=WO_, b1=W1_+W2_, r1=T3(0,4), r2=T3(4,7), r3=T4(0,4), b9=T4(4,7)),
       }[OPT.get("sch", 0) if not MAP42 else 0]
if MAP42:
    REST = dict(r1=T3(0,2), r2=T3(2,4), r3=T4(0,4))
    SCH = {0: dict(s=K_+V_, x=Q_, b0=WO_+W1_, b1=W2_, **REST),
           1: dict(s=K_, x=V_+Q_, b0=WO_+W1_, b1=W2_, **REST),
           2: dict(x=V_+Q_, b0=WO_+W1_, b1=W2_, **REST),
           3: dict(s=K_+V_, x=Q_+WO_+W1_+W2_, **REST),
           4: dict(s=K_, x=V_+Q_, b0=WO_+W1_, b1=W2_+T3(0,1), r1=T3(1,3), r2=T3(3,4)+T4(0,1), r3=T4(1,3), b9=T4(3,4)),
           }[OPT.get("sch", 0)]
for k_ in ("s", "x", "b0", "b1", "b3", "r1", "r2", "r3", "b9"): SCH.setdefault(k_, [])
TS0, TSL, TSL2 = OPT.get("t0sl", 6), OPT.get("tsl", 8), OPT.get("tsl2", 14)
touches(SCH["x"], "h", TS0)
def cs(base, slot, half=False):
    e(f"s_mov_b32 s{sT0}, {base}")
    e(f"s_call_b64 {sr(sRET,2)}, {'L_csh' if half else 'L_cs'}")
    e(f"s_lshl_b32 s{sT0}, s{sKH}, {6 if half else 7}")
    e(f"v_add_u32 v{vT2}, s{sT0}, v{vCSW}")
    e(f"s_mov_b64 exec, {sr(sM1,2)}")
    for i in range(1 if half else 2): e(f"ds_write_b128 v{vT2}, {vr(vACC+4*i,4)} offset:{256*slot+64*i}")
    e("s_mov_b64 exec, -1")
    e("s_waitcnt lgkmcnt(0)")
def halo_fetch(which):
    sk = uid("hf"); l = sk+"_l"; d = sk+"_d"
    e(f"s_cmp_lg_u32 s{sWAVE}, 5")
    e(f"s_cbranch_scc1 {sk}")
    e(f"s_lshl_b32 s{sT0}, s{sG}, 3")
    e(f"s_add_u32 s{sT0}, s{sT0}, s{sJ}")
    e(f"s_sub_u32 s{sT0}, s{sT0}, 8")
    e(f"s_lshl_b32 s{sHKO}, s{sT0}, 12")
    e(f"s_add_u32 s{sHKO}, s{sHKO}, {WS_HK + 2048*which}")
    e(f"s_lshl_b32 s{sT0}, s{sT0}, 7")
    e(f"s_add_u32 s{sT0}, s{sT0}, {WS_FL2}")
    e(f"s_cmp_eq_u32 s{sG}, 0")
    e(f"s_cselect_b32 s{sHKO}, {OOB}, s{sHKO}")
    e(f"s_cbranch_scc1 {d}")
    lab(l)
    e(f"s_mov_b32 s{sM0}, 0")
    e(f"s_atomic_add s{sM0}, {sr(pWSP,2)}, s{sT0} glc")
    e("s_waitcnt lgkmcnt(0)")
    e(f"s_bitcmp1_b32 s{sM0}, {8*which}")
    e(f"s_cbranch_scc0 {spin(l, d)}")
    lab(d)
    e(f"buffer_load_dwordx4 {vr(vA,4)}, v{vL16}, {sr(sWS,4)}, s{sHKO} offen sc1")
    e(f"buffer_load_dwordx4 {vr(vA+4,4)}, v{vL16}, {sr(sWS,4)}, s{sHKO} offen offset:1024 sc1")
    if which:
        e(f"v_bfe_u32 v{vT2}, v{vT1}, 1, 2")
        e(f"v_lshlrev_b32 v{vT2}, 1, v{vT2}")
        e(f"v_lshrrev_b32 v{vT3}, 1, v{vT0}")
        e(f"v_xor_b32 v{vT2}, v{vT2}, v{vT3}")
        e(f"v_lshlrev_b32 v{vT2}, 4, v{vT2}")
        e(f"v_lshl_add_u32 v{vT2}, v{vT1}, 7, v{vT2}")
        e(f"v_and_b32 v{vT3}, 1, v{vT0}")
        e(f"v_lshl_add_u32 v{vT2}, v{vT3}, 3, v{vT2}")
        e(f"v_add_u32 v{vA+8}, {XB}, v{vT2}")
        for h in range(1, 4): e(f"v_xor_b32 v{vA+8+h}, {h<<5}, v{vA+8}")
    else:
        e(f"v_lshlrev_b32 v{vT2}, 7, v{vT1}")
        e(f"v_lshl_add_u32 v{vT2}, v{vT0}, 5, v{vT2}")
        e(f"v_cmp_lt_u32 {sr(sM0,2)}, 1, v{vT1}")
        e(f"v_add_u32 v{vT2}, {KA-256}, v{vT2}")
        e(f"v_mov_b32 v{vT4}, {LOOB}")
        e(f"v_cndmask_b32 v{vT2}, v{vT4}, v{vT2}, {sr(sM0,2)}")
    if which:
        cmt("wave 1 has finished reading wave 0's exchange buffer")
        l2 = uid("ak")
        lab(l2)
        e(f"ds_read_b32 v{vT7}, v{vCB} offset:{C_ACK+4}")
        e("s_waitcnt lgkmcnt(0)")
        e(f"v_readfirstlane_b32 s{sT0}, v{vT7}")
        e(f"s_cmp_lg_u32 s{sT0}, 0")
        e(f"s_cbranch_scc0 {spin(l2, l2+'_d')}")
        lab(l2+"_d")
    e(f"v_mov_b32 v{vT6}, {1+which}")
    e("s_waitcnt vmcnt(0)")
    if which:
        for h in range(4): e(f"ds_write_b64 v{vA+8+h}, {vr(vA+2*h,2)}")
    else:
        e(f"ds_write_b128 v{vT2}, {vr(vA,4)}")
        e(f"ds_write_b128 v{vT2}, {vr(vA+4,4)} offset:16")
    e("s_waitcnt lgkmcnt(0)")
    e(f"ds_write_b32 v{vCB}, v{vT6} offset:{C_KV}")
    lab(sk)
e(f"v_mov_b32 v{vT6}, 0")
e(f"v_min_u32 v{vT2}, 15, v{vLANE}")
e(f"v_lshl_add_u32 v{vT2}, v{vT2}, 2, v{vCB}")
e(f"ds_write_b32 v{vT2}, v{vT6}")
e("s_waitcnt lgkmcnt(0)")
barrier("h")
e(f"v_min_u32 v{vT2}, 2, v{vLANE}")
e(f"s_sub_u32 s{sT0}, s{sG}, 1")
e(f"v_add_u32 v{vT2}, s{sT0}, v{vT2}")
e(f"v_max_i32 v{vT2}, 0, v{vT2}")
e(f"v_min_u32 v{vT2}, 31, v{vT2}")
e(f"v_lshlrev_b32 v{vIN}, 2, v{vT2}")
e(f"s_cmp_eq_u32 s{sWAVE}, 4")
e("s_cbranch_scc1 L_in_n")
e(f"s_sleep {OPT.get('insl', 8)}")
e(f"global_load_dword v{vIN+1}, v{vIN}, {sr(pDBG,2)}")
lab("L_in_n")
barrier("h")
e(f"s_cmp_eq_u32 s{sWAVE}, 4")
e("s_cbranch_scc1 L_in_d")
e("s_branch L_in_chk")
lab("L_in_loop")
e("s_sleep 8")
e(f"global_load_dword v{vIN+1}, v{vIN}, {sr(pDBG,2)} sc1")
lab("L_in_chk")
e("s_waitcnt vmcnt(0)")
e(f"v_cmp_eq_u32 {sr(sM0,2)}, 1, v{vIN+1}")
e(f"s_cmp_eq_u64 {sr(sM0,2)}, -1")
e(f"s_cbranch_scc0 {spin('L_in_loop', 'L_in_d')}")
lab("L_in_d")
barrier("h")
barrier("h")
barrier("h")
touches(SCH["b3"], "h", TSL)
halo_fetch(0)
barrier("h")
halo_fetch(1)
barrier("h")
barrier("h")
cs(0, 0)
e(f"s_lshl_b32 s{sT0}, s{sKH}, 2")
e(f"v_add_u32 v{vT2}, s{sT0}, v{vCB}")
e(f"v_mov_b32 v{vT6}, 1")
e(f"ds_write_b32 v{vT2}, v{vT6} offset:{C_CSF}")
barrier("h")
barrier("h")
cs(0, 1)
barrier("h")
cs(32768, 2)
barrier("h")
cs(0, 1)
barrier("h")
cs(32768, 2, True)
prof_flush()
e("s_endpgm")
for half in (False, True):
    lab("L_csh" if half else "L_cs")
    blocks = [(par, it) for par in range(2) for it in range(1 if half else 2)]
    for bi, (par, it) in enumerate(blocks):
        if it == 0:
            e(f"v_add_u32 v{vW}, s{sT0}, v{vB32 if half else vB}")
            if not half: e(f"v_add_u32 v{vW+1}, s{sT0}, v{vB+1}")
            e(f"s_add_u32 s{sT0}, s{sT0}, 65536")
        for i in range(8):
            for h in range(2):
                off = (i*2048 + 1024*h) if half else (it*16384 + (i >> 1)*4096 + 2048*h)
                e(f"ds_read_b64_tr_b16 {vr(vA+4*i+2*h,2)}, v{vW if half else vW+(i&1)} offset:{off}")
        for i in range(8):
            e(f"s_waitcnt lgkmcnt({14-2*i})")
            e(mf_text(vA+4*i, vON, vACC if (half or i % 2 == 0) else vACC+4, bi == 0 and i < (1 if half else 2)))
    nop(4)
    e(f"s_setpc_b64 {sr(sRET,2)}")

vPat, vP3072, vP1024, vP3584, vPH = 12, 13, 14, 15, 16
lab("L_loader")
e(f"s_setprio {OPT.get('lp', 2)}")
e(f"v_lshrrev_b32 v{vT2}, 3, v{vLANE}")
e(f"v_bfe_u32 v{vT3}, v{vT2}, 1, 2")
e(f"v_lshlrev_b32 v{vT3}, 1, v{vT3}")
e(f"v_and_b32 v{vT4}, 7, v{vLANE}")
e(f"v_xor_b32 v{vT3}, v{vT3}, v{vT4}")
e(f"v_lshlrev_b32 v{vT3}, 4, v{vT3}")
e(f"v_mul_u32_u24 v{vP3072}, 3072, v{vT2}")
e(f"v_add_u32 v{vP3072}, v{vP3072}, v{vT3}")
e(f"v_lshl_add_u32 v{vP1024}, v{vT2}, 10, v{vT3}")
e(f"v_mul_u32_u24 v{vP3584}, 3584, v{vT2}")
e(f"v_add_u32 v{vP3584}, v{vP3584}, v{vT3}")
e(f"v_lshrrev_b32 v{vT2}, 2, v{vLANE}")
e(f"v_bfe_u32 v{vT3}, v{vT2}, 2, 1")
e(f"v_lshlrev_b32 v{vT3}, 1, v{vT3}")
e(f"v_and_b32 v{vT4}, 3, v{vLANE}")
e(f"v_xor_b32 v{vT3}, v{vT3}, v{vT4}")
e(f"v_mul_u32_u24 v{vPH}, 3584, v{vT2}")
e(f"v_lshl_add_u32 v{vPH}, v{vT3}, 4, v{vPH}")
e(f"s_lshl_b32 s{sT2}, s{sJ}, 7")
e(f"s_mul_i32 s{sC3}, s{sJ}, 448")
e(f"s_and_b32 s{sT0}, s{sJ}, 1")
e(f"s_lshl_b32 s{sT1}, s{sT0}, 6")
e(f"s_xor_b32 s{sT0}, s{sT0}, 1")
e(f"s_mul_i32 s{sT0}, s{sT0}, 384")
e(f"s_add_u32 s{sCQ}, s{sC3}, s{sT0}")
e(f"s_add_u32 s{sC3}, s{sC3}, s{sT1}")
e("s_waitcnt lgkmcnt(0)")
e(f"s_mov_b32 s{sWS}, s{pWSP}")
e(f"s_mov_b32 s{sWS+1}, s{pWSP+1}")
cur = {}
issued = []
def setif(key, val, emit):
    if cur.get(key) != val:
        emit(); cur[key] = val
def issue(li):
    P, s_ = li // 2, li % 2
    if li < 18:
        if P <= 2: ptr, size, pat, rs, col, cc = pWQKV, 512*3072, vP3072, 3072, sT2, (1024, 2048, 0)[P]
        elif P <= 5: ptr, size, pat, rs, col, cc = (pWO, pW1, pW2)[P-3], 512*1024, vP1024, 1024, sT2, 0
        else: ptr, size, pat, rs, col, cc = pW3, 512*3584, vP3584, 3584, sC3, 128*(P-6)
        step, mid, kstr, c0 = 8*rs, 0, 128*rs, cc + 256*rs*s_
    elif li == 18:
        ptr, size, pat, col = pW3, 512*3584, vPH, sCQ
        step, mid, kstr, c0 = 16*3584, 128*3584, 128*3584, 0
    else:
        c = li - 19
        ptr, size, pat, col = pW4, 1792*1024, vP1024, sT2
        if c < 6: step, mid, kstr, c0 = 8192, 192*1024, 448*1024, (64*(c//2) + 896*(c%2))*1024
        else: step, mid, kstr, c0 = 8192, 384*1024, 896*1024, 192*1024
    def esrc():
        e(f"s_mov_b32 s{sW}, s{ptr}"); e(f"s_mov_b32 s{sW+1}, s{ptr+1}"); e(f"s_mov_b32 s{sW+2}, {size}")
    setif("ptr", ptr, esrc)
    setif("pat", pat, lambda: e(f"v_mov_b32 v{vPat}, v{pat}"))
    setif("step", step, lambda: e(f"s_mov_b32 s{sSTEP}, {step}"))
    setif("mid", mid, lambda: e(f"s_mov_b32 s{sMID}, {mid}"))
    setif("kstr", kstr, lambda: e(f"s_mul_i32 s{sT1}, s{sKH}, {kstr}"))
    e(f"s_add_u32 m0, s{sPAR}, {(li & 3)*16384}")
    e(f"s_add_u32 s{sSO}, s{col}, s{sT1}")
    if c0: e(f"s_add_u32 s{sSO}, s{sSO}, {c0}")
    e(f"s_call_b64 {sr(sRET,2)}, L_iss")
    issued.append(li)
def land(li):
    idx = issued.index(li)
    e(f"s_waitcnt vmcnt({sum(1 if x == 't' else 16 for x in issued[idx+1:])})")
def ltouch(key, sleep):
    issued.extend(["t"]*touches(SCH[key], "l", sleep))
ltouch("s", 0)
barrier("l")
issue(0); issue(1)
ltouch("x", OPT.get("tsd", 6))
sched = [(None, [], None),
         (1, [2, 3], "b0"),
         (3, [4, 5], "b1"),
         (5, [], None),
         (None, [6, 7], "b3"),
         (7, [], None),
         (None, [8, 9], "r1"),
         (9, [10, 11], "r2"),
         (11, [12, 13], "r3"),
         (13, [14, 15], None),
         (15, [16, 17], "b9"),
         (17, [18, 19], None),
         (18, [20, 21], None),
         (19, [22], None),
         (20, [], None), (21, [23], None), (22, [24], None), (23, [25], None), (24, [], None), (25, [], None)]
for k, (nd, aft, tk) in enumerate(sched):
    if nd is not None: land(nd)
    prof(k+1)
    barrier("l")
    for li in aft: issue(li)
    if tk: ltouch(tk, OPT.get("tsr", 30) if tk[0] == "r" else OPT.get("tsd", 6))
prof_flush()
e("s_endpgm")
lab("L_iss")
for i in range(16):
    e(f"buffer_load_dwordx4 v{vPat}, {sr(sW,4)}, s{sSO} offen lds")
    if i < 15:
        e("s_add_u32 m0, m0, 1024")
        e(f"s_add_u32 s{sSO}, s{sSO}, s{sSTEP}")
    if i == 7: e(f"s_add_u32 s{sSO}, s{sSO}, s{sMID}")
e(f"s_setpc_b64 {sr(sRET,2)}")
emit_tails()
lab("L_end")
e("s_endpgm")
assert nbar["c"] == nbar["l"] + 1, nbar

out.append('.section .rodata,"a"')
out.append(".p2align 6")
out.append(f".amdhsa_kernel {NAME}_kernel")
out.append(f"  .amdhsa_next_free_vgpr {NVGPR}")
out.append("  .amdhsa_next_free_sgpr 100")
out.append(f"  .amdhsa_accum_offset {NVGPR}")
out.append("  .amdhsa_group_segment_fixed_size 0")
out.append("  .amdhsa_kernarg_size 88")
out.append("  .amdhsa_user_sgpr_count 2")
out.append("  .amdhsa_user_sgpr_kernarg_segment_ptr 1")
out.append("  .amdhsa_system_sgpr_workgroup_id_x 1")
out.append(".end_amdhsa_kernel")
dst = [a for a in sys.argv[1:] if not a.startswith("--")]
open(dst[0] if dst else "cdna_kernels/%s.s" % NAME, "w").write("\n".join(o for o in out if o is not None) + "\n")
```

```python
import sys, math, struct

NAME = "sequential_preLN__sliding_local_dilated__mixer_s_mlp__prompt"
PROF = "--prof" in sys.argv
OPT = {}
for a in sys.argv:
    if a.startswith("--") and "=" in a:
        k, v = a[2:].split("="); OPT[k] = int(v)

out = []
def e(s): out.append("    " + s)
def lab(s): out.append(s + ":")
def cmt(s): out.append("    ; " + s)
def align(): out.append(".p2align 3")
def nop(n):
    while n > 0:
        k = min(n, 16); e(f"s_nop {k-1}"); n -= k
def f32(x): return "0x%08x" % struct.unpack("<I", struct.pack("<f", x))[0]
def vr(a, n): return f"v[{a}:{a+n-1}]"
def sr(a, n): return f"s[{a}:{a+n-1}]"
_uid = [0]
def uid(p):
    _uid[0] += 1
    return f"L_{p}_{_uid[0]}"

WS_O, WS_H, WS_H1, WS_X1, WS_G = 0, 2<<20, 4<<20, 6<<20, 8<<20
WS_HS = 15<<20
WS_X1S = WS_HS + (128<<10)
WS_FL = WS_HS + (256<<10)
WS_FL2 = WS_FL + (8<<10)
WS_HK = 16<<20
WS_PROF = 17<<20
WS_SIZE = 18<<20
GT = 56*1024
OOB = 0x40000000
LOOB = 0x30000
XB = 131072
KA = XB + 16384
KSZ = 1792
VA = KA + 4*KSZ
CSA = VA + 4*2048
CB = CSA + 768
C_KV, C_CSF, C_XF, C_ACK = 0, 8, 16, 32
LDS_BYTES = 163840
assert CB + 64 <= LDS_BYTES and VA % 256 == 0

sWAVE = 3
sX, sWS, sOUT = 4, 8, 12
sW = 12
pX, pWQKV, pWO, pBX, pW1, pW2, pW3, pW4, pOUT, pDBG, pWSP = 16, 18, 20, 22, 24, 26, 28, 30, 32, 34, 36
sJ, sG, sUNIT, sTILE, sBUD, sCNT = 38, 39, 40, 41, 42, 43
sT0, sT1, sT2, sT3 = 44, 45, 46, 47
sRET, sRET2 = 48, 50
sONES, sCEXP, sPUBO, sPUBV = 52, 53, 54, 55
sFLW = 56
sODD = 58
sOFFA, sPAR, sDST, sFLOFF, sR32, sHF, sHKO, sKH = 60, 61, 62, 63, 64, 65, 66, 67
sM0, sM1 = 68, 70
sFB, sFG = 72, 74
sTAIL, sXSEQ, sMK0, sNBO, sCSN = 89, 90, 91, 92, 93
sONE2 = 76
sPT, sPIDX = 78, 80
sSO, sSTEP, sC3, sCQ, sTA, sTB, sTC, sMID = 81, 82, 83, 84, 85, 86, 87, 88
vLANE = 0
vT0, vT1, vT2, vT3, vT4, vP, vCB, vT6, vT7 = 1, 2, 3, 4, 5, 6, 7, 8, 9
vL16, vFLO = 10, 11
vB, vW, vB32 = 12, 16, 20
vSC, vR1 = 22, 24
vSTO, vOUTO, vXA, vXP = 26, 27, 28, 29
vGA = 30
vLA = 32
vXR, vHP, vX1P = 36, 44, 52
vST = 60
vA, vWB = 64, 128
vACC, vACP = 160, 176
vE = 192
vPK, vK = 224, 232
vMS, vGB, vNMH = 240, 242, 244
vCSR = 246
vW1, vXFP, vBIT, vCF = 248, 249, 250, 252
vHS = 254
vP2 = 247
NVGPR = 256

def prof(idx):
    if not PROF: return
    e(f"s_memrealtime {sr(sPT,2)}")
    e("s_memtime s[98:99]")
    e("s_waitcnt lgkmcnt(0)")
    e(f"v_writelane_b32 v{vP}, s{sPT}, {idx}")
    e(f"v_writelane_b32 v{vP}, s98, {idx+32}")
def prof_flush(dbg=False):
    if not PROF: return
    if dbg and OPT.get("dbgwg") is not None:
        l = uid("dbg")
        e(f"s_lshl_b32 s{sT0}, s2, 3")
        e(f"s_add_u32 s{sT0}, s{sT0}, s{sWAVE}")
        e(f"s_cmp_lg_u32 s{sT0}, {OPT['dbgwg']*8}")
        e(f"s_cbranch_scc1 {l}")
        e(f"v_readlane_b32 s{sT1}, v{vP}, 63")
        for k, idx in enumerate([0, 1, 30, 2, 3, 4, 5, 6, 8, 9, 11, 12, 14, 15, 19, 21]):
            e(f"v_readlane_b32 s{sT0}, v{vP}, {idx}")
            e(f"s_sub_u32 s{sT0}, s{sT0}, s{sT1}")
            e(f"v_writelane_b32 v{vT2}, s{sT0}, {k}")
        e(f"v_lshlrev_b32 v{vT0}, 2, v{vLANE}")
        e("s_mov_b64 exec, 0xffff")
        e(f"global_store_dword v{vT0}, v{vT2}, {sr(pDBG,2)}")
        e("s_mov_b64 exec, -1")
        lab(l)
    e(f"v_lshlrev_b32 v{vT0}, 2, v{vLANE}")
    if OPT.get("dp") is not None: e(f"v_mov_b32 v{vP}, v{vP2}")
    e(f"buffer_store_dword v{vP}, v{vT0}, {sr(sWS,4)}, s{sPIDX} offen")
tails = []
def spin(loop, done):
    tails.append((loop+"_s", loop, done))
    return loop+"_s"
def emit_tails():
    for s_, l, d in tails:
        lab(s_)
        e(f"s_sub_u32 s{sBUD}, s{sBUD}, 1")
        e(f"s_cbranch_scc0 {l}")
        e(f"s_mov_b32 s{sBUD}, 0")
        e(f"s_branch {d}")
    tails.clear()
def red2x2(a, b, t, a2, b2, t2):
    e(f"v_permlane16_swap_b32 v{a}, v{b}")
    e(f"v_permlane16_swap_b32 v{a2}, v{b2}")
    e(f"v_add_f32 v{a}, v{a}, v{b}")
    e(f"v_add_f32 v{a2}, v{a2}, v{b2}")
    e(f"v_mov_b32 v{t}, v{a}")
    e(f"v_mov_b32 v{t2}, v{a2}")
    nop(1)
    e(f"v_permlane32_swap_b32 v{a}, v{t}")
    e(f"v_permlane32_swap_b32 v{a2}, v{t2}")
    e(f"v_add_f32 v{a}, v{a}, v{t}")
    e(f"v_add_f32 v{a2}, v{a2}, v{t2}")
    e(f"v_mov_b32 v{t}, v{a}")
    e(f"v_mov_b32 v{t2}, v{a2}")
    nop(1)
    e(f"v_permlane16_swap_b32 v{a}, v{t}")
    e(f"v_permlane16_swap_b32 v{a2}, v{t2}")
def red2(a, b, t):
    e(f"v_permlane16_swap_b32 v{a}, v{b}")
    e(f"v_add_f32 v{a}, v{a}, v{b}")
    e(f"v_mov_b32 v{t}, v{a}")
    nop(2)
    e(f"v_permlane32_swap_b32 v{a}, v{t}")
    e(f"v_add_f32 v{a}, v{a}, v{t}")
    e(f"v_mov_b32 v{t}, v{a}")
    nop(2)
    e(f"v_permlane16_swap_b32 v{a}, v{t}")
def mean_var(vs, vq):
    e(f"v_mul_f32 v{vs}, {f32(-1.0/512)}, v{vs}")
    e(f"v_mul_f32 v{vq}, {f32(1.0/512)}, v{vq}")
    e(f"v_fma_f32 v{vq}, -v{vs}, v{vs}, v{vq}")
    e(f"v_max_f32 v{vq}, 0, v{vq}")
def zero(base, n):
    for i in range(n): e(f"v_mov_b32 v{base+i}, 0")
class LQ:
    def __init__(self, pend=()): self.q = list(pend)
    def op(self, id_, text): e(text); self.q.append(id_)
    def need(self, ids, vm=None):
        idx = max([i for i, x in enumerate(self.q) if x in ids], default=-1)
        parts = []
        if vm is not None: parts.append(f"vmcnt({vm})")
        if idx >= 0:
            parts.append(f"lgkmcnt({min(len(self.q)-1-idx, 15)})")
            self.q = self.q[idx+1:]
        if parts: e("s_waitcnt " + " ".join(parts))
def rd_text(buf, h, p, half_panel=False, base=0):
    if half_panel: off = ((p >> 1) & 7)*2048 + 1024*h; jj = p & 1
    else: off = (p >> 2)*4096 + 2048*h; jj = p & 3
    return f"ds_read_b64_tr_b16 {vr(buf+2*h,2)}, v{vW+jj} offset:{base+off}"
def mf_text(buf, areg, c, czero=False):
    return f"v_mfma_f32_16x16x32_bf16 {vr(c,4)}, {vr(buf,4)}, {vr(areg,4)}, {'0' if czero else vr(c,4)}"
def wtog(jj): e(f"v_xor_b32 v{vW+jj}, 0x8000, v{vW+jj}")
T_W = lambda i: f"ds_write_b128 v{vXA}, {vr(vACP+4*i,4)} offset:{1024*i}"
T_R = lambda i: f"ds_read_b128 {vr(vE+4*i,4)}, v{vXP} offset:{1024*i}"
T_C = lambda i: f"ds_read_b128 {vr(vACP+4*i,4)}, v{vCSR} offset:{64*i}"
def pre(half_panel=False, base=0):
    for p in range(6):
        for h in range(2): e(rd_text(vWB+4*p, h, p, half_panel, base))
nbar = {"c": 0, "h": 0, "l": 0}
def barrier(role, n=1, emit=True):
    if role == "h" and nbar[role] and nbar[role] < 32: prof(nbar[role])
    nbar[role] += n
    if emit: e("s_barrier")

DS = [18, 20, 22, 24, 26, 28, 30, 82]
def dst_(i):
    if OPT.get("dp") is not None: e(f"s_memtime {sr(DS[i],2)}")
ncall = [0]
def gen_pass64():
    buf = lambda q: (vE + 4*(q-16)) if 16 <= q < 24 else (vWB + 4*(q % 8))
    areg = lambda q, t: vA + 8*(q >> 2) + 4*t
    acc = lambda q, t: (vACP if t else vACC) + 4*(q & 3)
    lq = LQ([f"f{p}" for p in range(6) for h in range(2)])
    def RD(q, h, nxt=False):
        lq.op(("n" if nxt else "f")+str(q), rd_text(vWB+4*q if nxt else buf(q), h, q))
    pend = [(q, h) for q in range(4+6, 32) for h in range(2)]
    def dual(q, czero=False):
        for t in range(2):
            e(mf_text(buf(q), areg(q, t), acc(q, t), czero))
            if q < 4: RD(q+6, t)
            else:
                RD(*pend.pop(0))
                if q >= 10 and t == 0: RD(*pend.pop(0))
    def waitq(q, vm=None): lq.need([f"f{q}", f"f{q+1}"], vm)
    align(); lab("L_pass64b")
    save = list(lq.q)
    for q in range(4):
        if q % 2 == 0: waitq(q, 14 if q == 0 else None)
        dual(q)
    e("s_branch L_pass64_c")
    lq.q = save
    align(); lab("L_pass64")
    for q in range(4):
        if q % 2 == 0: waitq(q, 14 if q == 0 else None)
        dual(q, True)
    lab("L_pass64_c")
    dst_(1)
    for q in range(4, 16):
        if q % 2 == 0: waitq(q, 14-2*(q >> 2) if q % 4 == 0 else None)
        dual(q)
    dst_(2)
    todo = [lambda j=j: wtog(j) for j in range(4)]
    for q in range(16, 32):
        if q % 2 == 0: waitq(q, 14-2*(q >> 2) if q % 4 == 0 else None)
        e(mf_text(buf(q), areg(q, 1), acc(q, 1)))
        k = 0
        while pend and k < 2: RD(*pend.pop(0)); k += 1
        if q == OPT.get("ph", 30):
            e("s_cbranch_vccnz L_pubhook"); lab("L_pubret"); k += 1
        while not pend and todo and k < 1: todo.pop(0)(); k += 1
    assert not pend and not todo
    O = lambda q: e(mf_text(buf(q), areg(q, 0), acc(q, 0)))
    W = lambda i: lq.op(f"W{i}", T_W(i))
    dst_(3)
    e(f"s_bitcmp1_b32 s{sTAIL}, 0")
    e("s_cbranch_scc1 L_pass64_f")
    save = list(lq.q)
    O(16); O(17); O(18); O(19); W(0); O(20); O(21); W(1); O(22); O(23); W(2); O(24); O(25); W(3); O(26); O(27)
    dst_(4)
    lq.need(["W3"])
    dst_(5)
    e("s_barrier")
    dst_(6)
    O(28)
    for i in range(2): lq.op(f"R{i}", T_R(i))
    O(29)
    for i in range(2, 4): lq.op(f"R{i}", T_R(i))
    O(30); RD(0, 0, True); RD(0, 1, True)
    O(31); RD(1, 0, True); RD(1, 1, True)
    for i in range(4): lq.op(f"C{i}", T_C(i))
    for q in range(2, 6): RD(q, 0, True); RD(q, 1, True)
    lq.need(["R3"])
    for i in range(8): e(f"v_pk_add_f32 {vr(vE+2*i,2)}, {vr(vACC+2*i,2)}, {vr(vE+2*i,2)}")
    lq.need(["C3"])
    dst_(7)
    e(f"s_setpc_b64 {sr(sRET,2)}")
    lq.q = save
    align(); lab("L_pass64_f")
    O(16); e(f"s_add_u32 s{sXSEQ}, s{sXSEQ}, 1"); O(17); e(f"v_mov_b32 v{vT7}, s{sXSEQ}"); O(18); W(0); O(19); O(20); W(1); O(21); O(22); W(2); O(23); O(24); W(3)
    O(25)
    lq.need(["W3"])
    lq.op("X", f"ds_write_b32 v{vW1}, v{vT7} offset:{C_XF}")
    lq.op("CF", f"ds_read_b64 {vr(vCF,2)}, v{vCB} offset:{C_CSF}")
    O(26); lq.op("C0", T_C(0)); lq.op("C1", T_C(1)); O(27); lq.op("C2", T_C(2)); lq.op("C3", T_C(3))
    O(28); O(29)
    lq.op("F", f"ds_read_b32 v{vT6}, v{vXFP} offset:{C_XF}"); lq.op("R0", T_R(0))
    O(30); lq.op("R1", T_R(1)); lq.op("R2", T_R(2)); O(31); lq.op("R3", T_R(3))
    nop(2)
    lab("L_xf_w")
    e("s_waitcnt lgkmcnt(0)")
    e(f"v_readfirstlane_b32 s{sT0}, v{vT6}")
    for i in range(8): e(f"v_pk_add_f32 {vr(vE+2*i,2)}, {vr(vACC+2*i,2)}, {vr(vE+2*i,2)}")
    e(f"s_cmp_ge_u32 s{sT0}, s{sXSEQ}")
    e("s_cbranch_scc0 L_xf_r")
    lab("L_xf_d")
    e(f"s_setpc_b64 {sr(sRET,2)}")
    lab("L_xf_r")
    e(f"ds_read_b32 v{vT6}, v{vXFP} offset:{C_XF}")
    for i in range(4): e(T_R(i))
    e(f"s_sub_u32 s{sBUD}, s{sBUD}, 1")
    e("s_cbranch_scc0 L_xf_w")
    e(f"s_mov_b32 s{sBUD}, 0")
    e("s_branch L_xf_d")
    lab("L_pubhook")
    e(f"v_mov_b32 v{vT6}, s{sPUBV}")
    e("s_waitcnt vmcnt(0)")
    e(f"buffer_atomic_add v{vT6}, v{vFLO}, {sr(sWS,4)}, s{sPUBO} offen sc1")
    e("s_mov_b64 vcc, 0")
    e("s_branch L_pubret")
def call_pass(name="L_pass64", bar=True):
    dst_(0)
    e(f"s_call_b64 {sr(sRET,2)}, {name}")
    if OPT.get("dp") == ncall[0]:
        e("s_waitcnt lgkmcnt(0)")
        for i in range(8): e(f"v_writelane_b32 v{vP2}, s{DS[i]}, {i}")
    ncall[0] += 1
    if bar: barrier("c", 1, False)
def scalepack(dst):
    for i in range(8): e(f"v_pk_mul_f32 {vr(vE+2*i,2)}, {vr(vE+2*i,2)}, {vr(vSC,2)}")
    for i in range(8): e(f"v_cvt_pk_bf16_f32 v{dst+i}, v{vE+2*i}, v{vE+2*i+1}")

hdr = open("cdna_kernels/%s.s.ref" % NAME).read().split("\n")
for l in hdr:
    if l.startswith("; Override"): break
    out.append(l)
out.append(f"; @launch grid=(256,1,1) block=(512,1,1) lds={LDS_BYTES}")
out.append('.amdgcn_target "amdgcn-amd-amdhsa--gfx950"')
out.append(".text")
out.append(f".globl {NAME}_kernel")
out.append(".p2align 8")
out.append(f".type {NAME}_kernel,@function")
lab(f"{NAME}_kernel")
if PROF: e("s_memrealtime s[96:97]")
if PROF: e("s_memrealtime s[96:97]")
e(f"s_getpc_b64 {sr(sM0,2)}")
lab("L_pc")
e(f"s_load_dwordx2 {sr(pX,2)}, s[0:1], 0")
e(f"s_cmp_ge_u32 s2, {OPT.get('cpn', 32)}")
e("s_cbranch_scc1 L_nocp")
e("v_lshlrev_b32 v1, 7, v0")
e(f"v_min_u32 v1, L_end-L_pc, v1")
e(f"global_load_dword v255, v1, {sr(sM0,2)}")
lab("L_nocp")
e("s_cmp_ge_u32 s2, 256")
e("s_cbranch_scc1 L_end")
e(f"s_load_dwordx2 {sr(18,2)}, s[0:1], 8")
e(f"s_load_dwordx4 {sr(20,4)}, s[0:1], 16")
e(f"s_load_dwordx8 {sr(24,8)}, s[0:1], 32")
e(f"s_load_dwordx4 {sr(32,4)}, s[0:1], 64")
e(f"s_load_dwordx2 {sr(36,2)}, s[0:1], 80")
e(f"v_lshrrev_b32 v1, 6, v0")
e(f"v_and_b32 v{vLANE}, 63, v0")
e(f"v_readfirstlane_b32 s{sWAVE}, v1")
MAP42 = OPT.get("map", 42) == 42
if MAP42:
    e(f"s_and_b32 s{sHF}, s2, 1")
    e(f"s_lshr_b32 s{sR32}, s2, 3")
    e(f"s_and_b32 s{sJ}, s{sR32}, 3")
    e(f"s_lshl_b32 s{sT0}, s{sHF}, 2")
    e(f"s_add_u32 s{sJ}, s{sJ}, s{sT0}")
    e(f"s_and_b32 s{sG}, s2, 6")
    e(f"s_lshl_b32 s{sG}, s{sG}, 2")
    e(f"s_lshr_b32 s{sT1}, s{sR32}, 2")
    e(f"s_add_u32 s{sG}, s{sG}, s{sT1}")
else:
    e(f"s_lshr_b32 s{sR32}, s2, 3")
    e(f"s_and_b32 s{sJ}, s{sR32}, 7")
    e(f"s_and_b32 s{sG}, s2, 7")
    e(f"s_lshl_b32 s{sG}, s{sG}, 2")
    e(f"s_lshr_b32 s{sT1}, s{sR32}, 3")
    e(f"s_add_u32 s{sG}, s{sG}, s{sT1}")
e(f"s_mov_b32 s{sBUD}, 0x80000")
e(f"s_and_b32 s{sKH}, s{sWAVE}, 1")
e(f"s_lshl_b32 s{sPAR}, s{sKH}, 16")
e(f"v_mov_b32 v{vCB}, {CB}")
e(f"v_lshlrev_b32 v{vL16}, 4, v{vLANE}")
e(f"v_lshrrev_b32 v{vT0}, 4, v{vLANE}")
e(f"v_and_b32 v{vT1}, 15, v{vLANE}")
e(f"s_mov_b32 s{sWS+2}, {WS_SIZE}")
e(f"s_mov_b32 s{sWS+3}, 0x00020000")
e(f"s_mov_b32 s{sX+3}, 0x00020000")
e(f"s_mov_b32 s{sOUT+3}, 0x00020000")
e(f"s_mov_b32 s{sONES}, 0x3f803f80")
if PROF:
    e(f"s_lshl_b32 s{sPIDX}, s2, 3")
    e(f"s_add_u32 s{sPIDX}, s{sPIDX}, s{sWAVE}")
    e(f"s_lshl_b32 s{sPIDX}, s{sPIDX}, 8")
    e(f"s_add_u32 s{sPIDX}, s{sPIDX}, {WS_PROF}")
    e(f"v_mov_b32 v{vP}, 0")
    e("s_waitcnt lgkmcnt(0)")
    e(f"v_writelane_b32 v{vP}, s96, 63")
e(f"s_cmp_ge_u32 s{sWAVE}, 4")
e("s_cbranch_scc1 L_service")

def tr_bases():
    e(f"v_lshrrev_b32 v{vT3}, 2, v{vLANE}")
    e(f"v_bfe_u32 v{vT4}, v{vT3}, 1, 2")
    e(f"v_lshlrev_b32 v{vT4}, 5, v{vT4}")
    e(f"v_and_b32 v{vT2}, 3, v{vLANE}")
    e(f"v_lshl_add_u32 v{vT4}, v{vT2}, 3, v{vT4}")
    e(f"v_lshl_add_u32 v{vB}, v{vT3}, 7, v{vT4}")
    for jj in range(1, 4): e(f"v_xor_b32 v{vB+jj}, {jj<<5}, v{vB}")
    e(f"v_and_b32 v{vT4}, 1, v{vT0}")
    e(f"v_lshlrev_b32 v{vT4}, 5, v{vT4}")
    e(f"v_lshl_add_u32 v{vT4}, v{vT2}, 3, v{vT4}")
    e(f"v_lshl_add_u32 v{vB32}, v{vT3}, 6, v{vT4}")
    e(f"v_xor_b32 v{vB32+1}, 32, v{vB32}")
e(f"s_lshl_b32 s{sTILE}, s{sG}, 2")
e(f"s_add_u32 s{sTILE}, s{sTILE}, s{sWAVE}")
e(f"s_lshr_b32 s{sUNIT}, s{sTILE}, 1")
e(f"s_mov_b32 s{sX+2}, {2<<20}")
e(f"s_lshl_b32 s{sT2}, s{sUNIT}, 15")
e(f"s_lshl_b32 s{sT0}, s{sKH}, 8")
e(f"s_add_u32 s{sT2}, s{sT2}, s{sT0}")
e(f"s_lshr_b32 s{sT3}, s{sWAVE}, 1")
e(f"s_lshl_b32 s{sT3}, s{sT3}, 14")
e(f"s_add_u32 s{sT3}, s{sT3}, s{sPAR}")
e(f"s_add_u32 s{sT3}, s{sT3}, 32768")
e(f"s_mov_b32 m0, s{sT3}")
e(f"v_lshrrev_b32 v{vT2}, 5, v{vLANE}")
e(f"v_xor_b32 v{vT3}, v{vT1}, v{vT2}")
e(f"v_lshlrev_b32 v{vT3}, 4, v{vT3}")
e(f"v_lshl_add_u32 v{vT3}, v{vT2}, 10, v{vT3}")
e(f"v_and_b32 v{vT4}, 1, v{vT0}")
e(f"v_lshl_add_u32 v{vWB}, v{vT4}, 9, v{vT3}")
for i in range(1, 8): e(f"v_xor_b32 v{vWB+i}, {i<<5}, v{vWB}")
e("s_waitcnt lgkmcnt(0)")
e(f"s_mov_b32 s{sX}, s{pX}")
e(f"s_mov_b32 s{sX+1}, s{pX+1}")
for i in range(16):
    e(f"buffer_load_dwordx4 v{vWB+(i&7)}, {sr(sX,4)}, s{sT2} offen lds")
    if i < 15:
        e("s_add_u32 m0, m0, 1024")
        e(f"s_add_u32 s{sT2}, s{sT2}, 2048")
barrier("c")
prof(0)
e(f"s_mov_b32 s{sWS}, s{pWSP}")
e(f"s_mov_b32 s{sWS+1}, s{pWSP+1}")
e(f"s_mov_b32 s{sOUT}, s{pOUT}")
e(f"s_mov_b32 s{sOUT+1}, s{pOUT+1}")
e(f"s_mov_b32 s{sOUT+2}, {2<<20}")
e(f"s_mov_b32 s{sCEXP}, {f32(0.25*math.log2(math.e))}")
e(f"s_mov_b32 s{sODD}, 0xaaaaaaaa")
e(f"s_mov_b32 s{sODD+1}, 0xaaaaaaaa")
e(f"s_mov_b32 s{sONE2}, 1.0")
e(f"s_mov_b32 s{sONE2+1}, 1.0")
e("s_mov_b64 vcc, 0")
tr_bases()
for jj in range(4): e(f"v_add_u32 v{vW+jj}, s{sPAR}, v{vB+jj}")
e(f"v_lshlrev_b32 v{vCSR}, 4, v{vT0}")
e(f"v_add_u32 v{vCSR}, {CSA}, v{vCSR}")
e(f"s_lshl_b32 s{sT2}, s{sWAVE}, 12")
e(f"s_add_u32 s{sT2}, s{sT2}, {XB}")
e(f"v_add_u32 v{vXA}, s{sT2}, v{vL16}")
e(f"v_xor_b32 v{vXP}, 0x1000, v{vXA}")
e(f"v_cmp_eq_u32 {sr(sM0,2)}, 0, v{vLANE}")
e(f"v_cmp_gt_u32 {sr(sM1,2)}, 16, v{vLANE}")
e(f"v_mov_b32 v{vT2}, {OOB}")
e(f"s_lshl_b32 s{sFLOFF}, s{sUNIT}, 7")
e(f"s_add_u32 s{sFLOFF}, s{sFLOFF}, {WS_FL}")
e(f"v_cndmask_b32 v{vFLO}, v{vT2}, 0, {sr(sM0,2)}")
e(f"s_lshl_b32 s{sT0}, s{sTILE}, 10")
e(f"s_lshr_b32 s{sT1}, s{sJ}, 1")
e(f"s_lshl_b32 s{sT1}, s{sT1}, 8")
e(f"s_add_u32 s{sT0}, s{sT0}, s{sT1}")
e(f"s_and_b32 s{sT1}, s{sJ}, 1")
e(f"s_lshl_b32 s{sT1}, s{sT1}, 3")
e(f"s_add_u32 s{sT0}, s{sT0}, s{sT1}")
e(f"v_add_u32 v{vT3}, s{sT0}, v{vL16}")
e(f"v_cndmask_b32 v{vSTO}, v{vT2}, v{vT3}, {sr(sM1,2)}")
e(f"s_lshl_b32 s{sT0}, s{sG}, 3")
e(f"s_add_u32 s{sT0}, s{sT0}, s{sJ}")
e(f"s_lshl_b32 s{sPUBO}, s{sT0}, 7")
e(f"s_add_u32 s{sPUBO}, s{sPUBO}, {WS_FL2}")
e(f"s_lshl_b32 s{sHKO}, s{sT0}, 12")
e(f"s_add_u32 s{sHKO}, s{sHKO}, {WS_HK}")
e(f"s_lshl_b32 s{sDST}, s{sTILE}, 14")
e(f"s_lshl_b32 s{sT1}, s{sJ}, 11")
e(f"s_add_u32 s{sDST}, s{sDST}, s{sT1}")
e(f"s_lshl_b32 s{sT1}, s{sJ}, 7")
e(f"s_lshl_b32 s{sCQ}, s{sTILE}, 14")
e(f"s_add_u32 s{sCQ}, s{sCQ}, s{sT1}")
e(f"v_and_b32 v{vT3}, 1, v{vT0}")
e(f"v_lshlrev_b32 v{vT3}, 5, v{vT3}")
e(f"v_lshrrev_b32 v{vT4}, 1, v{vT0}")
e(f"v_lshl_add_u32 v{vT3}, v{vT4}, 4, v{vT3}")
e(f"v_lshl_add_u32 v{vOUTO}, v{vT1}, 10, v{vT3}")
e(f"v_add_u32 v{vOUTO}, s{sCQ}, v{vOUTO}")
GA = -2.0*math.sqrt(2.0/math.pi)*math.log2(math.e)
for i in range(2):
    e(f"v_mov_b32 v{vGA+i}, {f32(GA)}")
    e(f"v_mov_b32 v{vGB+i}, {f32(GA*0.044715)}")
def set_la(stride):
    e(f"s_mul_i32 s{sT0}, s{sKH}, {stride+4096}")
    e(f"s_mul_i32 s{sT1}, s{sKH}, {-stride+4096}")
    e(f"s_add_u32 s{sT1}, s{sT1}, {stride}")
    e(f"v_add_u32 v{vLA}, s{sT0}, v{vL16}")
    e(f"v_add_u32 v{vLA+1}, s{sT1}, v{vL16}")
    e(f"v_add_u32 v{vLA+2}, 0x2000, v{vLA}")
    e(f"v_add_u32 v{vLA+3}, 0x2000, v{vLA+1}")
set_la(16384)
XA = vE
e(f"v_lshrrev_b32 v{vT3}, 1, v{vT0}")
e(f"v_xor_b32 v{vT3}, v{vT3}, v{vT1}")
e(f"v_lshlrev_b32 v{vT3}, 4, v{vT3}")
e(f"v_lshl_add_u32 v{vT3}, v{vT1}, 9, v{vT3}")
e(f"v_and_b32 v{vT4}, 1, v{vT0}")
e(f"v_lshl_add_u32 v{vT3}, v{vT4}, 3, v{vT3}")
e(f"s_lshl_b32 s{sT0}, s{sKH}, 13")
e(f"s_add_u32 s{sT0}, s{sT0}, s{sT3}")
e(f"v_add_u32 v{XA}, s{sT0}, v{vT3}")
for c in range(1, 8): e(f"v_xor_b32 v{XA+c}, {c<<5}, v{XA}")
for c in range(8): e(f"v_xor_b32 v{XA+8+c}, 0x2000, v{XA+c}")
for i in range(4): e(f"v_mov_b32 v{vST+i}, 0")
e(f"s_lshl_b32 s{sT0}, s{sWAVE}, 11")
e(f"s_add_u32 s{sT0}, s{sT0}, {VA}")
e(f"v_lshl_add_u32 v{vT2}, v{vT1}, 4, s{sT0}")
e(f"v_xor_b32 v{vT3}, 0x800, v{vT1}") if False else None
e(f"s_lshl_b32 s{sT0}, s{sWAVE}, 2")
e(f"v_add_u32 v{vXFP}, s{sT0}, v{vCB}")
e(f"v_mov_b32 v{vT4}, {LOOB}")
e(f"v_cndmask_b32 v{vW1}, v{vT4}, v{vXFP}, {sr(sM0,2)}")
e(f"v_xor_b32 v{vXFP}, 4, v{vXFP}")
e(f"s_lshl_b32 s{sT0}, s{sJ}, 1")
e(f"s_add_u32 s{sT0}, s{sT0}, s{sKH}")
e(f"s_lshl_b32 s{sT0}, 1, s{sT0}")
e(f"v_mov_b32 v{vBIT}, s{sT0}")
e(f"s_lshl_b32 s{sT0}, s{sT0}, 16")
e(f"v_mov_b32 v{vBIT+1}, s{sT0}")
e(f"s_lshl_b32 s{sT0}, s{sKH}, 2")
e(f"s_lshl_b32 s{sMK0}, 15, s{sT0}")
e(f"s_mov_b32 s{sTAIL}, 0")
e(f"s_mov_b32 s{sXSEQ}, 0")
e(f"s_bfe_u32 s{sT0}, s{sJ}, 0x10001")
e(f"s_xor_b32 s{sT0}, s{sT0}, s{sKH}")
e(f"s_lshl_b32 s{sT0}, s{sT0}, 16")
e(f"s_and_b32 s{sT1}, s{sJ}, 1")
e(f"s_lshl_b32 s{sT1}, s{sT1}, 7")
e(f"s_or_b32 s{sT0}, s{sT0}, s{sT1}")
e(f"s_lshr_b32 s{sT1}, s{sJ}, 2")
e(f"s_lshl_b32 s{sT1}, s{sT1}, 8")
e(f"v_xor_b32 v{vK}, s{sT0}, v{XA}")
e(f"v_add_u32 v{vK}, s{sT1}, v{vK}")
for jj in range(1, 4): e(f"v_xor_b32 v{vK+jj}, {jj<<5}, v{vK}")
e(f"s_lshr_b32 s{sT0}, s{sJ}, 2")
e(f"s_add_u32 s{sT0}, s{sT0}, 1")
e(f"s_sub_u32 s{sT1}, 0, s{sT0}")
e(f"s_bitcmp1_b32 s{sJ}, 1")
e(f"s_cselect_b32 s{sT0}, s{sT1}, s{sT0}")
e(f"s_lshl_b32 s{sT1}, s{sTILE}, 4")
e(f"s_add_u32 s{sT0}, s{sT0}, s{sT1}")
e(f"s_movk_i32 s{sT1}, 0x800")
e(f"v_add_u32 v{vT3}, s{sT0}, v{vT1}")
e(f"v_cmp_gt_u32 {sr(sM1,2)}, s{sT1}, v{vT3}")
e(f"v_lshrrev_b32 v{vT4}, 4, v{vT3}")
e(f"v_lshlrev_b32 v{vT4}, 14, v{vT4}")
e(f"v_lshl_add_u32 v{vT4}, v{vT0}, 8, v{vT4}")
e(f"v_and_b32 v{vT3}, 15, v{vT3}")
e(f"v_lshl_add_u32 v{vT4}, v{vT3}, 4, v{vT4}")
e(f"v_mov_b32 v{vT3}, {OOB}")
e(f"v_cndmask_b32 v{vHS}, v{vT3}, v{vT4}, {sr(sM1,2)}")
BI, SEL = vX1P+2, vX1P+6
e(f"v_and_b32 v{vT3}, 1, v{vT1}")
e(f"v_lshl_add_u32 v{vT3}, v{vT0}, 2, v{vT3}")
e(f"v_sub_u32 v{vT3}, v{vT1}, v{vT3}")
e(f"v_mov_b32 v{vT6}, {f32(-1e30)}")
e(f"s_cmp_eq_u32 s{sTILE}, 0")
e(f"s_cselect_b32 s{sT0}, -64, 16")
e(f"v_add_u32 v{vT4}, -2, v{vT3}")
e(f"v_cmp_gt_u32 {sr(sM0,2)}, 15, v{vT3}")
e(f"v_cmp_gt_u32 {sr(sM1,2)}, 15, v{vT4}")
e(f"v_add_u32 v{vT3}, s{sT0}, v{vT3}")
e(f"v_add_u32 v{vT4}, -2, v{vT3}")
e(f"v_cndmask_b32 v{BI}, v{vT6}, 0, {sr(sM0,2)}")
e(f"v_cndmask_b32 v{BI+1}, v{vT6}, 0, {sr(sM1,2)}")
e(f"v_cmp_gt_u32 {sr(sM0,2)}, 15, v{vT3}")
e(f"v_cmp_gt_u32 {sr(sM1,2)}, 15, v{vT4}")
e(f"v_mov_b32 v{vT3}, 0x0c0c0100")
e(f"v_mov_b32 v{vT4}, 0x01000c0c")
e(f"v_cndmask_b32 v{BI+2}, v{vT6}, 0, {sr(sM0,2)}")
e(f"v_cndmask_b32 v{BI+3}, v{vT6}, 0, {sr(sM1,2)}")
e(f"v_cndmask_b32 v{SEL}, v{vT3}, v{vT4}, {sr(sODD,2)}")
e(f"v_mov_b32 v{vT3}, 0x0c0c0302")
e(f"v_mov_b32 v{vT4}, 0x03020c0c")
e(f"v_cndmask_b32 v{SEL+1}, v{vT3}, v{vT4}, {sr(sODD,2)}")
e("s_waitcnt vmcnt(0)")
for ksl in range(8):
    for t in range(2):
        for h in range(2):
            e(f"ds_read_b64 {vr(vA+8*ksl+4*t+2*h,2)}, v{XA+8*t+2*(ksl&3)+h} offset:{256*(ksl>>2)}")
for ksl in range(8):
    e(f"s_waitcnt lgkmcnt({min(15, 28-4*ksl)})")
    for d in range(4):
        for t in range(2):
            r = vA+8*ksl+4*t+d
            e(f"v_dot2_f32_bf16 v{vST+2*t}, v{r}, s{sONES}, v{vST+2*t}")
            e(f"v_dot2_f32_bf16 v{vST+2*t+1}, v{r}, v{r}, v{vST+2*t+1}")
nop(3)
red2x2(vST, vST+1, vST+1, vST+2, vST+3, vST+3)
e(f"ds_write_b128 v{vT2}, {vr(vST,4)}")
e(f"s_xor_b32 s{sT0}, s{sWAVE}, 1")
e(f"s_lshl_b32 s{sT0}, s{sT0}, 11")
e(f"s_add_u32 s{sT0}, s{sT0}, {VA}")
e(f"v_lshl_add_u32 v{vT3}, v{vT1}, 4, s{sT0}")
e("s_waitcnt lgkmcnt(0)")
prof(1)
barrier("c")
e(f"ds_read_b128 {vr(vE,4)}, v{vT3}")
for jj in range(4): e(f"ds_read_b64 {vr(vXR+2*jj,2)}, v{vK+jj}")
e(f"s_mov_b32 s{sT0}, 0x3f80")
e(f"s_mov_b32 s{sT1}, 0x3f800000")
e("s_waitcnt lgkmcnt(0)")
e(f"v_add_f32 v{vT4}, v{vE+2}, v{vST}")
e(f"v_add_f32 v{vT3}, v{vE+3}, v{vST+1}")
e(f"v_add_f32 v{vT6}, v{vE}, v{vST+2}")
e(f"v_mul_f32 v{vT6}, {f32(-1.0/512)}, v{vT6}")
mean_var(vT4, vT3)
e(f"v_add_f32 v{vT3}, {f32(1e-5)}, v{vT3}")
e(f"v_rsq_f32 v{vSC}, v{vT3}")
e(f"v_rsq_f32 v{vSC+1}, v{vT3}")
for c in range(8):
    for i in range(8):
        m_ = vT6 if (i >> 2) & 1 else vT4
        e(f"v_dot2_f32_bf16 v{vE+2*i}, v{vA+8*c+i}, s{sT0}, v{m_}")
        e(f"v_dot2_f32_bf16 v{vE+2*i+1}, v{vA+8*c+i}, s{sT1}, v{m_}")
    nop(1)
    for i in range(8): e(f"v_cvt_pk_bf16_f32 v{vA+8*c+i}, v{vE+2*i}, v{vE+2*i+1}")
    if c == 6:
        barrier("c")
        pre()
prof(30)
call_pass()
scalepack(vK)
e(f"v_lshlrev_b32 v{vT2}, 7, v{vT1}")
e(f"v_lshl_add_u32 v{vT2}, v{vT0}, 5, v{vT2}")
e(f"s_cmp_eq_u32 s{sWAVE}, 3")
e("s_cbranch_scc0 L_k3d")
e(f"buffer_store_dwordx4 {vr(vK,4)}, v{vL16}, {sr(sWS,4)}, s{sHKO} offen sc1")
e(f"buffer_store_dwordx4 {vr(vK+4,4)}, v{vL16}, {sr(sWS,4)}, s{sHKO} offen offset:1024 sc1")
e(f"s_mov_b32 s{sPUBV}, 1")
e("s_mov_b64 vcc, -1")
lab("L_k3d")
e(f"s_cselect_b32 s{sT1}, 16, 1")
e(f"s_mul_i32 s{sT0}, s{sWAVE}, {KSZ}")
e(f"s_add_u32 s{sT0}, s{sT0}, {KA+KSZ-256}")
e(f"v_cmp_lt_u32 {sr(sM0,2)}, s{sT1}, v{vT1}")
e(f"v_add_u32 v{vT2}, s{sT0}, v{vT2}")
e(f"v_mov_b32 v{vT3}, {LOOB}")
e(f"v_cndmask_b32 v{vX1P}, v{vT3}, v{vT2}, {sr(sM0,2)}")
e(f"v_bfe_u32 v{vT2}, v{vT1}, 1, 2")
e(f"v_lshlrev_b32 v{vT2}, 1, v{vT2}")
e(f"v_lshrrev_b32 v{vT3}, 1, v{vT0}")
e(f"v_xor_b32 v{vT2}, v{vT2}, v{vT3}")
e(f"v_lshlrev_b32 v{vT2}, 4, v{vT2}")
e(f"v_lshl_add_u32 v{vT2}, v{vT1}, 7, v{vT2}")
e(f"v_and_b32 v{vT3}, 1, v{vT0}")
e(f"v_lshl_add_u32 v{vHP}, v{vT3}, 3, v{vT2}")
for h in range(1, 4): e(f"v_xor_b32 v{vHP+h}, {h<<5}, v{vHP}")
e(f"s_lshl_b32 s{sT0}, s{sWAVE}, 11")
e(f"s_add_u32 s{sT0}, s{sT0}, {VA}")
for h in range(4): e(f"v_add_u32 v{vHP+4+h}, s{sT0}, v{vHP+h}")
prof(2)
call_pass()
scalepack(vPK)
for h in range(4): e(f"ds_write_b64 v{vHP+4+h}, {vr(vPK+2*h,2)}")
e(f"ds_write_b128 v{vX1P}, {vr(vK,4)}")
e(f"ds_write_b128 v{vX1P}, {vr(vK+4,4)} offset:16")
e(f"s_cmp_eq_u32 s{sWAVE}, 3")
e("s_cbranch_scc0 L_v3d")
for i in range(2): e(f"buffer_store_dwordx4 {vr(vPK+4*i,4)}, v{vL16}, {sr(sWS,4)}, s{sHKO} offen offset:{2048+1024*i} sc1")
e(f"s_mov_b32 s{sPUBV}, 0x100")
e("s_mov_b64 vcc, -1")
lab("L_v3d")
e(f"v_max_u32 v{vT2}, 2, v{vT1}")
e(f"v_lshlrev_b32 v{vT2}, 7, v{vT2}")
e(f"v_lshl_add_u32 v{vT2}, v{vT0}, 5, v{vT2}")
e(f"s_mul_i32 s{sT1}, s{sWAVE}, {KSZ}")
e(f"s_add_u32 s{sT1}, s{sT1}, {KA-256}")
e(f"v_add_u32 v{vT2}, s{sT1}, v{vT2}")
e(f"s_sub_u32 s{sT1}, s{sT0}, 2048")
e(f"s_cmp_eq_u32 s{sWAVE}, 0")
e(f"s_cselect_b32 s{sT1}, {XB}, s{sT1}")
e(f"s_cselect_b32 s{sT3}, 1, 0")
for h in range(4):
    e(f"v_add_u32 v{vHP+h}, s{sT0}, v{vB+h}")
    e(f"v_add_u32 v{vHP+4+h}, s{sT1}, v{vB+h}")
e("s_waitcnt lgkmcnt(0)")
barrier("c")
prof(3)
call_pass()
KP, VP, VO, SO, SP_ = vA, vA+8, vA+16, vA+24, vA+40
e(f"ds_write_b32 v{vW1}, v{vBIT} offset:{C_ACK}")
for h in range(4): e(f"ds_read_b64_tr_b16 {vr(VO+2*h,2)}, v{vHP+h}")
scalepack(vPK)
l = uid("kv"); d = l+"_d"
lab(l)
e(f"ds_read_b32 v{vT7}, v{vCB} offset:{C_KV}")
e(f"ds_read_b128 {vr(KP,4)}, v{vT2}")
e(f"ds_read_b128 {vr(KP+4,4)}, v{vT2} offset:16")
for h in range(4):
    e(f"v_mfma_f32_16x16x16_bf16 {vr(SO+4*h,4)}, {vr(vK+2*h,2)}, {vr(vPK+2*h,2)}, 0")
e("s_waitcnt lgkmcnt(0)")
e(f"v_readfirstlane_b32 s{sT2}, v{vT7}")
e(f"s_cmp_ge_u32 s{sT2}, s{sT3}")
e(f"s_cbranch_scc0 {spin(l, d)}")
lab(d)
for h in range(4):
    e(f"v_mfma_f32_16x16x16_bf16 {vr(SP_+4*h,4)}, {vr(KP+2*h,2)}, {vr(vPK+2*h,2)}, 0")
prof(4)
nop(4)
X = vE
for h in range(4):
    e(f"v_cndmask_b32 v{X+4*h}, v{SO+4*h}, v{SO+4*h+1}, {sr(sODD,2)}")
    e(f"v_cndmask_b32 v{X+4*h+1}, v{SO+4*h+2}, v{SO+4*h+3}, {sr(sODD,2)}")
for h in range(4):
    e(f"v_cndmask_b32 v{X+4*h+2}, v{SP_+4*h}, v{SP_+4*h+1}, {sr(sODD,2)}")
    e(f"v_cndmask_b32 v{X+4*h+3}, v{SP_+4*h+2}, v{SP_+4*h+3}, {sr(sODD,2)}")
for h in range(4):
    for i in range(4): e(f"v_fma_f32 v{X+4*h+i}, v{X+4*h+i}, s{sCEXP}, v{BI+i}")
M = vE+16; M2 = vE+20
for h in range(4): e(f"v_max3_f32 v{M+h}, v{X+4*h}, v{X+4*h+1}, v{X+4*h+2}")
for h in range(4): e(f"v_max_f32 v{M+h}, v{M+h}, v{X+4*h+3}")
def allred(op):
    for h in range(4): e(f"v_mov_b32 v{M2+h}, v{M+h}")
    nop(1)
    for h in range(4): e(f"v_permlane16_swap_b32 v{M+h}, v{M2+h}")
    for h in range(4): e(f"{op} v{M+h}, v{M+h}, v{M2+h}")
    for h in range(4): e(f"v_mov_b32 v{M2+h}, v{M+h}")
    nop(1)
    for h in range(4): e(f"v_permlane32_swap_b32 v{M+h}, v{M2+h}")
    for h in range(4): e(f"{op} v{M+h}, v{M+h}, v{M2+h}")
allred("v_max_f32")
for h in range(4):
    for i in range(4): e(f"v_sub_f32 v{X+4*h+i}, v{X+4*h+i}, v{M+h}")
for i in range(16): e(f"v_exp_f32 v{X+i}, v{X+i}")
for h in range(4): e(f"v_add_f32 v{M+h}, v{X+4*h}, v{X+4*h+1}")
for h in range(4): e(f"v_add_f32 v{M2+h}, v{X+4*h+2}, v{X+4*h+3}")
for h in range(4): e(f"v_add_f32 v{M+h}, v{M+h}, v{M2+h}")
allred("v_add_f32")
for h in range(4): e(f"v_rcp_f32 v{M+h}, v{M+h}")
lv_ = uid("vv")
e(f"s_lshl_b32 s{sT3}, s{sT3}, 1")
lab(lv_)
e(f"ds_read_b32 v{vT7}, v{vCB} offset:{C_KV}")
for h in range(4): e(f"ds_read_b64_tr_b16 {vr(VP+2*h,2)}, v{vHP+4+h}")
e("s_cbranch_vccnz "+lv_+"_w")
for h in range(4):
    for i in range(4): e(f"v_mul_f32 v{X+4*h+i}, v{X+4*h+i}, v{M+h}")
for h in range(4):
    e(f"v_cvt_pk_bf16_f32 v{M+h}, v{X+4*h}, v{X+4*h+1}")
    e(f"v_cvt_pk_bf16_f32 v{M2+h}, v{X+4*h+2}, v{X+4*h+3}")
for h in range(4):
    e(f"v_perm_b32 v{SO+2*h}, v{M+h}, v{M+h}, v{SEL}")
    e(f"v_perm_b32 v{SO+2*h+1}, v{M+h}, v{M+h}, v{SEL+1}")
    e(f"v_perm_b32 v{SP_+2*h}, v{M2+h}, v{M2+h}, v{SEL}")
    e(f"v_perm_b32 v{SP_+2*h+1}, v{M2+h}, v{M2+h}, v{SEL+1}")
nop(2)
OA = vE
for h in range(4):
    e(f"v_mfma_f32_16x16x16_bf16 {vr(OA+4*h,4)}, {vr(VO+2*h,2)}, {vr(SO+2*h,2)}, 0")
lab(lv_+"_w")
e("s_waitcnt lgkmcnt(0)")
e(f"v_readfirstlane_b32 s{sT2}, v{vT7}")
e("s_mov_b64 vcc, -1")
e(f"s_cmp_ge_u32 s{sT2}, s{sT3}")
e(f"s_cbranch_scc0 {spin(lv_, lv_+'_d')}")
lab(lv_+"_d")
e("s_mov_b64 vcc, 0")
for h in range(4):
    e(f"v_mfma_f32_16x16x16_bf16 {vr(OA+4*h,4)}, {vr(VP+2*h,2)}, {vr(SP_+2*h,2)}, {vr(OA+4*h,4)}")
nop(2)
def pack(dst):
    for i in range(8): e(f"v_cvt_pk_bf16_f32 v{dst+i}, v{vE+2*i}, v{vE+2*i+1}")
def store_act(pk, base):
    e(f"s_add_u32 s{sT0}, s{sDST}, {base}")
    e(f"buffer_store_dwordx4 {vr(pk,4)}, v{vL16}, {sr(sWS,4)}, s{sT0} offen sc1")
    e(f"buffer_store_dwordx4 {vr(pk+4,4)}, v{vL16}, {sr(sWS,4)}, s{sT0} offen offset:1024 sc1")
nop(3)
pack(vPK)
store_act(vPK, WS_O)
pubn = [0]
def publish(younger=0):
    f = pubn[0]; pubn[0] += 1
    if f in (1, 2): prof(21+f)
    e(f"s_waitcnt vmcnt({younger})")
    e(f"buffer_atomic_add v{vBIT+(f&1)}, v{vFLO}, {sr(sWS,4)}, s{sFLOFF} offen offset:{4*(f>>1)} sc1")
def loada(sgs=(0, 1)):
    for ksl in range(8):
        if ksl >> 2 not in sgs: continue
        for tsel in range(2):
            e(f"buffer_load_dwordx4 {vr(vA+8*ksl+4*tsel,4)}, v{vLA+2*(ksl>>2)+tsel}, {sr(sWS,4)}, s{sOFFA} offen offset:{1024*(ksl&3)} sc1")
def set_offa(base):
    e(f"s_lshl_b32 s{sOFFA}, s{sUNIT}, 15")
    e(f"s_add_u32 s{sOFFA}, s{sOFFA}, {base}")
def set_stats_off(base):
    e(f"s_lshl_b32 s{sT3}, s{sTILE}, 10")
    e(f"s_add_u32 s{sT3}, s{sT3}, {base}")
def load_stats(): e(f"buffer_load_dwordx4 {vr(vST,4)}, v{vL16}, {sr(sWS,4)}, s{sT3} offen sc1")
def consume_stats():
    e("s_waitcnt vmcnt(8)")
    e(f"v_add_f32 v{vT4}, v{vST}, v{vST+2}")
    e(f"v_add_f32 v{vT3}, v{vST+1}, v{vST+3}")
    nop(2)
    red2(vT4, vT3, vT3)
    mean_var(vT4, vT3)
def store_stats(pk, base):
    e(f"v_mov_b32 v{vST}, 0")
    e(f"v_mov_b32 v{vST+1}, 0")
    for i in range(8):
        e(f"v_dot2_f32_bf16 v{vST}, v{pk+i}, s{sONES}, v{vST}")
        e(f"v_dot2_f32_bf16 v{vST+1}, v{pk+i}, v{pk+i}, v{vST+1}")
    e(f"s_mov_b32 s{sT0}, {base}")
    nop(2)
    red2(vST, vST+1, vST+1)
    e(f"buffer_store_dwordx2 {vr(vST,2)}, v{vSTO}, {sr(sWS,4)}, s{sT0} offen sc1")
def unpack(dst, src, n):
    for i in range(n):
        e(f"v_lshlrev_b32 v{dst+2*i}, 16, v{src+i}")
        e(f"v_and_b32 v{dst+2*i+1}, 0xffff0000, v{src+i}")
def wait_bits(f, mask_s, shift, nb=None, first=True):
    l = uid("rdy"); d = l+"_d"; c = l+"_c"
    sh = 16*(f & 1) + shift
    if isinstance(mask_s, int): e(f"s_mov_b32 s{sT0}, {mask_s << sh}")
    else: e(f"s_lshl_b32 s{sT0}, s{mask_s}, {sh}")
    if nb is not None: e(f"s_lshl_b32 s{sT1}, s{nb}, {sh}")
    if not first: e(f"s_branch {c}")
    lab(l)
    e(f"s_mov_b32 s{sFLW}, 0")
    if nb is not None: e(f"s_mov_b32 s{sFB}, 0")
    e(f"s_atomic_add s{sFLW}, {sr(pWSP,2)}, s{sFLW+1} glc")
    if nb is not None: e(f"s_atomic_add s{sFB}, {sr(pWSP,2)}, s{sNBO} glc")
    e("s_waitcnt lgkmcnt(0)")
    lab(c)
    e(f"s_andn2_b32 s{sT2}, s{sT0}, s{sFLW}")
    if nb is not None:
        e(f"s_andn2_b32 s{sFB+1}, s{sT1}, s{sFB}")
        e(f"s_or_b32 s{sT2}, s{sT2}, s{sFB+1}")
    e(f"s_cbranch_scc1 {spin(l, d)}")
    lab(d)
def set_word(f): e(f"s_add_u32 s{sFLW+1}, s{sFLOFF}, {4*(f>>1)}")
def cs_check():
    l = uid("cs"); d = l+"_d"
    lab(l+"_c")
    e(f"v_min_u32 v{vCF}, v{vCF}, v{vCF+1}")
    nop(1)
    e(f"v_readfirstlane_b32 s{sT0}, v{vCF}")
    e(f"s_cmp_ge_u32 s{sT0}, 1")
    e(f"s_cbranch_scc0 {l}")
    lab(d)
    cs_retries.append((l, d))
cs_retries = []
zero(vACP, 16)
set_offa(WS_O)
set_word(0)
e(f"s_mov_b32 s{sTAIL}, 1")
unpack(vACC, vXR, 8)
publish()
barrier("c")
prof(5)
wait_bits(0, sMK0, 0)
prof(6)
loada((0,))
wait_bits(0, sMK0, 8, None, False)
loada((1,))
call_pass("L_pass64b", False)
prof(7)
pack(vHP)
store_act(vHP, WS_H)
store_stats(vHP, WS_HS)
set_offa(WS_H)
set_stats_off(WS_HS)
publish()
barrier("c")
pre()
prof(8)
wait_bits(1, sMK0, 0)
prof(9)
loada((0,))
wait_bits(1, 0xffff, 0, None, False)
load_stats()
loada((1,))
consume_stats()
e(f"v_add_f32 v{vT2}, {f32(1e-5)}, v{vT3}")
e(f"v_rsq_f32 v{vR1}, v{vT2}")
e(f"v_mov_b32 v{vNMH}, v{vT4}")
e(f"v_mul_f32 v{vT3}, v{vT3}, v{vR1}")
e(f"v_fmaak_f32 v{vT3}, v{vT3}, v{vR1}, {f32(1e-5)}")
e(f"v_rsq_f32 v{vT3}, v{vT3}")
e(f"v_mov_b32 v{vNMH+1}, v{vT4}")
e(f"v_mul_f32 v{vSC}, v{vT3}, v{vR1}")
e(f"v_mul_f32 v{vSC+1}, v{vT3}, v{vR1}")
e(f"v_mov_b32 v{vR1+1}, v{vR1}")
e(f"v_mul_f32 v{vMS}, v{vT4}, v{vSC}")
e(f"v_mul_f32 v{vMS+1}, v{vT4}, v{vSC}")
e(f"s_mov_b32 s{sCNT}, 0")
call_pass("L_pass64", False)
prof(10)
cs_check()
e(f"s_call_b64 {sr(sRET2,2)}, L_gelu")
e(f"s_lshl_b32 s{sT0}, s{sJ}, 11")
e(f"s_add_u32 s{sT0}, s{sT0}, {WS_H1}")
e(f"buffer_store_dwordx4 {vr(vPK,4)}, v{vHS}, {sr(sWS,4)}, s{sT0} offen sc1")
e(f"buffer_store_dwordx4 {vr(vPK+4,4)}, v{vHS}, {sr(sWS,4)}, s{sT0} offen offset:1024 sc1")
e(f"v_mov_b32 v{vT6}, {OOB}")
e(f"s_lshl_b32 s{sT2}, s{sKH}, 1")
e(f"s_sub_u32 s{sT2}, s{sT2}, 1")
e(f"s_movk_i32 s{sT3}, 0x800")
for sg in range(2):
    for tsel in range(2):
        if tsel: e(f"s_xor_b32 s{sT0}, s{sTILE}, 1")
        e(f"s_lshl_b32 s{sT0}, s{sT0 if tsel else sTILE}, 4")
        e(f"s_add_u32 s{sT0}, s{sT0}, s{sT2}")
        if sg: e(f"s_add_u32 s{sT0}, s{sT0}, s{sT2}")
        e(f"v_add_u32 v{vT2}, s{sT0}, v{vT1}")
        e(f"v_cmp_gt_u32 {sr(sM0,2)}, s{sT3}, v{vT2}")
        nop(2)
        e(f"v_cndmask_b32 v{vLA+2*sg+tsel}, v{vT6}, v{vLA+2*sg+tsel}, {sr(sM0,2)}")
unpack(vACC, vHP, 8)
for i in range(8): e(f"v_pk_add_f32 {vr(vACC+2*i,2)}, {vr(vACC+2*i,2)}, {vr(vNMH,2)}")
for i in range(8): e(f"v_pk_mul_f32 {vr(vACC+2*i,2)}, {vr(vACC+2*i,2)}, {vr(vR1,2)}")
zero(vACP, 16)
e(f"s_lshl_b32 s{sT0}, s{sT2}, 7")
e(f"s_add_u32 s{sNBO}, s{sFLOFF}, s{sT0}")
e(f"s_add_u32 s{sT0}, s{sUNIT}, s{sT2}")
e(f"s_cmp_gt_u32 s{sT0}, 63")
e(f"s_cselect_b32 s{sNBO}, s{sFLOFF}, s{sNBO}")
e(f"s_add_u32 s{sNBO}, s{sNBO}, 4")
e(f"s_cmp_eq_u32 s{sKH}, 0")
e(f"s_cselect_b32 s{sCSN}, 0x0a, 0x50")
set_word(2)
set_offa(WS_H1)
e(f"v_add_u32 v{vCSR}, 256, v{vCSR}")
publish()
barrier("c")
pre()
prof(11)
wait_bits(2, sMK0, 0, sCSN)
prof(12)
loada((0,))
wait_bits(2, sMK0, 8, sCSN, False)
loada((1,))
call_pass("L_pass64b", False)
prof(13)
pack(vX1P)
store_act(vX1P, WS_X1)
store_stats(vX1P, WS_X1S)
e(f"s_mov_b32 s{sTAIL}, 0")
set_la(16384)
e(f"s_mul_i32 s{sDST}, s{sTILE}, {GT}")
e(f"s_lshl_b32 s{sT1}, s{sJ}, 11")
e(f"s_add_u32 s{sDST}, s{sDST}, s{sT1}")
set_offa(WS_X1)
set_stats_off(WS_X1S)
publish()
barrier("c")
pre()
prof(14)
wait_bits(3, sMK0, 0)
prof(15)
loada((0,))
wait_bits(3, 0xffff, 0, None, False)
load_stats()
loada((1,))
consume_stats()
e(f"v_add_f32 v{vT2}, {f32(1e-5)}, v{vT3}")
e(f"v_rsq_f32 v{vSC}, v{vT2}")
e(f"v_rsq_f32 v{vSC+1}, v{vT2}")
e(f"v_mul_f32 v{vMS}, v{vT4}, v{vSC}")
e(f"v_mul_f32 v{vMS+1}, v{vT4}, v{vSC}")
for p in range(3):
    call_pass()
    if p: publish()
    if not OPT.get('dl'): prof(24+2*p)
    if p == 2:
        for jj in range(2): e(f"v_add_u32 v{vW+jj}, s{sPAR}, v{vB32+jj}")
        pre(True, 32768)
    e(f"v_add_u32 v{vCSR}, {256 if p != 1 else -256}, v{vCSR}")
    e(f"s_call_b64 {sr(sRET2,2)}, L_gelu")
    if not OPT.get('dl'): prof(25+2*p)
    store_act(vPK, WS_G + 16384*p)
    prof(16+p)
lq = LQ([f"f{p}" for p in range(6) for h in range(2)])
for q in range(16):
    if q % 2 == 0: lq.need([f"f{q}", f"f{q+1}"])
    for t in (1, 0):
        e(mf_text(vWB+4*(q % 8), vA + 8*(q >> 1) + 4*t, (vACP if t else vACC) + 4*(q & 1), q < 2))
        if q+6 < 16: lq.op(f"f{q+6}", rd_text(vWB+4*((q+6) % 8), 1-t, q+6, True, 32768))
for jj in range(4): e(f"v_add_u32 v{vW+jj}, s{sPAR}, v{vB+jj}")
e(f"s_mov_b32 s{sCNT}, 1")
nop(2)
for i in range(2): e(T_W(i))
publish()
set_la(GT)
e(f"s_mul_i32 s{sOFFA}, s{sUNIT}, {2*GT}")
e(f"s_add_u32 s{sOFFA}, s{sOFFA}, {WS_G}")
QUADS = ([vA+4*i for i in range(16)] + [vXR+4*i for i in range(6)] + [vE+16+4*i for i in range(4)] + [vK, vK+4] + [vE+4*i for i in range(4)])[:OPT.get("nq", 24)]
NQ = len(QUADS)
gpolls = []
def gpoll():
    e(f"s_mov_b64 {sr(sFG,2)}, 0")
    e(f"s_atomic_add_x2 {sr(sFG,2)}, {sr(pWSP,2)}, s{sFLW+1} glc")
    e("s_waitcnt lgkmcnt(0)")
def gcheck(p):
    l = uid("g"); d = l+"_d"
    lab(d+"c")
    e(f"s_lshr_b32 s{sT0}, s{sFG+(p>>1)}, {16*(p&1)}")
    e(f"s_andn2_b32 s{sT0}, 0xffff, s{sT0}")
    e(f"s_cbranch_scc1 {l}")
    lab(d)
    gpolls.append((l, d))
def gload(m):
    ks, t = m >> 1, m & 1
    if ks % 8 == 0 and t == 0:
        p = ks // 8
        gcheck(p)
        if p: e(f"s_add_u32 s{sOFFA}, s{sOFFA}, 16384")
    e(f"buffer_load_dwordx4 {vr(QUADS[m % NQ],4)}, v{vLA+2*((ks>>2)&1)+t}, {sr(sWS,4)}, s{sOFFA} offen offset:{1024*(ks&3)} sc1")
set_word(4)
gpoll()
for m in range(16): gload(m)
barrier("c")
for i in range(2): e(T_R(i))
for i in range(2): e(T_C(i))
w4slot = lambda it: ((19 + it) & 3) * 16384
pre(False, w4slot(0))
e("s_waitcnt lgkmcnt(12)")
for i in range(4): e(f"v_pk_add_f32 {vr(vE+2*i,2)}, {vr(vACC+2*i,2)}, {vr(vE+2*i,2)}")
e(f"s_call_b64 {sr(sRET2,2)}, L_gelu")
e(f"s_lshl_b32 s{sT1}, s{sJ}, 10")
e(f"s_sub_u32 s{sT0}, s{sDST}, s{sT1}")
e(f"s_add_u32 s{sT0}, s{sT0}, {WS_G + 48*1024}")
e(f"buffer_store_dwordx4 {vr(vPK,4)}, v{vL16}, {sr(sWS,4)}, s{sT0} offen sc1")
unpack(vE, vHP, 8)
unpack(vE+16, vX1P, 8)
for i in range(8): e(f"v_pk_add_f32 {vr(vACC+2*i,2)}, {vr(vE+2*i,2)}, {vr(vE+16+2*i,2)}")
zero(vACP, 16)
prof(19)
for m in range(16, NQ): gload(m)
lq = LQ([f"f{p}" for p in range(6) for h in range(2)])
nissued = NQ
NP = 112
g3pub = [None]
for q in range(NP):
    ks = q >> 2
    vm = None
    extra = (1 if 2*ks+1 < 16 else 0) + (1 if g3pub[0] is not None and 2*ks+1 < g3pub[0] else 0)
    if q % 4 == 0: vm = nissued - (2*ks+2) + extra
    if q == 32:
        cmt("the last G store is older than everything waited for from here on")
        lq.need([f"f{q}", f"f{q+1}"], vm); vm = None
        publish(nissued - 16)
        g3pub[0] = nissued
    if q % 2 == 0: lq.need([f"f{q}", f"f{q+1}"], vm)
    if (q+6) % 16 == 0 and q+6 < NP:
        barrier("c")
    for t in range(2):
        e(mf_text(vWB+4*(q % 8), QUADS[(2*ks+t) % NQ], (vACP if t else vACC)+4*(q & 3)))
        if q+6 < NP: lq.op(f"f{q+6}", rd_text(vWB+4*((q+6) % 8), t, (q+6) & 15, False, w4slot((q+6) >> 4)))
        if (q & 3) in (1, 3) and t == 0 and ks >= 1 and nissued < 56:
            gload(nissued); nissued += 1
nop(8)
for i in range(4): e(T_W(i))
e("s_waitcnt lgkmcnt(0)")
barrier("c")
for i in range(4): e(T_R(i))
e("s_waitcnt lgkmcnt(0)")
for i in range(8): e(f"v_pk_add_f32 {vr(vE+2*i,2)}, {vr(vACC+2*i,2)}, {vr(vE+2*i,2)}")
prof(20)
pack(vPK)
nop(2)
for s in range(2):
    e(f"v_permlane16_swap_b32 v{vPK+4*s}, v{vPK+4*s+2}")
    e(f"v_permlane16_swap_b32 v{vPK+4*s+1}, v{vPK+4*s+3}")
e(f"buffer_store_dwordx4 {vr(vPK,4)}, v{vOUTO}, {sr(sOUT,4)}, 0 offen")
e(f"buffer_store_dwordx4 {vr(vPK+4,4)}, v{vOUTO}, {sr(sOUT,4)}, 0 offen offset:64")
prof(21)
prof_flush(True)
e("s_endpgm")
for l, d in gpolls:
    lab(l)
    gpoll()
    e(f"s_sub_u32 s{sBUD}, s{sBUD}, 1")
    e(f"s_cbranch_scc0 {d}c")
    e(f"s_mov_b32 s{sBUD}, 0")
    e(f"s_branch {d}")
for l, d in cs_retries:
    lab(l)
    e(f"ds_read_b64 {vr(vCF,2)}, v{vCB} offset:{C_CSF}")
    for i in range(4): e(T_C(i))
    e("s_waitcnt lgkmcnt(0)")
    e(f"s_sub_u32 s{sBUD}, s{sBUD}, 1")
    e(f"s_cbranch_scc0 {l}_c")
    e(f"s_mov_b32 s{sBUD}, 0")
    e(f"s_branch {d}")

gen_pass64()
align(); lab("L_gelu")
for half in range(2):
    Xr = vE + 8*half; c0 = vACP + 8*half; U = vE+16
    for i in range(4): e(f"v_pk_mul_f32 {vr(Xr+2*i,2)}, {vr(Xr+2*i,2)}, {vr(vSC,2)}")
    for i in range(4): e(f"v_pk_fma_f32 {vr(Xr+2*i,2)}, {vr(c0+2*i,2)}, {vr(vMS,2)}, {vr(Xr+2*i,2)}")
    for i in range(4): e(f"v_pk_mul_f32 {vr(U+2*i,2)}, {vr(Xr+2*i,2)}, {vr(Xr+2*i,2)}")
    for i in range(4): e(f"v_pk_fma_f32 {vr(U+2*i,2)}, {vr(U+2*i,2)}, {vr(vGB,2)}, {vr(vGA,2)}")
    for i in range(4): e(f"v_pk_mul_f32 {vr(U+2*i,2)}, {vr(U+2*i,2)}, {vr(Xr+2*i,2)}")
    for i in range(8): e(f"v_exp_f32 v{U+i}, v{U+i}")
    for i in range(4): e(f"v_pk_add_f32 {vr(U+2*i,2)}, {vr(U+2*i,2)}, {sr(sONE2,2)}")
    for i in range(8): e(f"v_rcp_f32 v{U+i}, v{U+i}")
    for i in range(4): e(f"v_pk_mul_f32 {vr(Xr+2*i,2)}, {vr(Xr+2*i,2)}, {vr(U+2*i,2)}")
    for i in range(4): e(f"v_cvt_pk_bf16_f32 v{vPK+4*half+i}, v{Xr+2*i}, v{Xr+2*i+1}")
    if half == 0:
        e(f"s_cmp_eq_u32 s{sCNT}, 1")
        e("s_cbranch_scc1 L_gelu_h")
lab("L_gelu_h")
e(f"s_setpc_b64 {sr(sRET2,2)}")

vCSW, vTL, vT3P, vTQ, vON, vIN = vXR, vXR+1, vXR+2, vXR+3, vXR+4, vHP
lab("L_service")
if MAP42:
    e(f"v_lshrrev_b32 v{vT2}, 2, v{vLANE}")
    e(f"v_and_b32 v{vT3}, 3, v{vLANE}")
    e(f"v_lshlrev_b32 v{vT4}, 7, v{vT3}")
    e(f"v_lshl_add_u32 v{vTL}, v{vT2}, 10, v{vT4}")
    e(f"v_mul_u32_u24 v{vTQ}, 3072, v{vT2}")
    e(f"v_add_u32 v{vTQ}, v{vTQ}, v{vT4}")
    e(f"v_min_u32 v{vT2}, 13, v{vT1}")
    e(f"v_lshlrev_b32 v{vT2}, 7, v{vT2}")
    e(f"v_mul_u32_u24 v{vT3P}, 3584, v{vT0}")
    e(f"v_add_u32 v{vT3P}, v{vT3P}, v{vT2}")
    e(f"s_lshl_b32 s{sT0}, s{sHF}, 9")
    e(f"s_lshl_b32 s{sTA}, s{sR32}, 14")
    e(f"s_add_u32 s{sTA}, s{sTA}, s{sT0}")
    e(f"s_mul_i32 s{sTC}, s{sR32}, {16*3072}")
    e(f"s_add_u32 s{sTC}, s{sTC}, s{sT0}")
    e(f"s_mul_i32 s{sTB}, s{sR32}, {4*3584}")
    e(f"s_mul_i32 s{sT0}, s{sHF}, 1792")
    e(f"s_add_u32 s{sTB}, s{sTB}, s{sT0}")
else:
    e(f"v_lshlrev_b32 v{vTL}, 7, v{vLANE}")
    e(f"v_lshrrev_b32 v{vT2}, 3, v{vLANE}")
    e(f"v_and_b32 v{vT3}, 7, v{vLANE}")
    e(f"v_mul_u32_u24 v{vTQ}, 3072, v{vT2}")
    e(f"v_lshl_add_u32 v{vTQ}, v{vT3}, 7, v{vTQ}")
    e(f"s_lshl_b32 s{sTA}, s{sR32}, 13")
    e(f"s_mul_i32 s{sTC}, s{sR32}, {8*3072}")
e(f"s_cmp_ge_u32 s{sWAVE}, 6")
e("s_cbranch_scc1 L_loader")
lab("L_helper")
tr_bases()
e(f"s_lshl_b32 s{sT0}, s{sKH}, 6")
e(f"v_xor_b32 v{vB}, s{sT0}, v{vB}")
e(f"v_xor_b32 v{vB+1}, s{sT0}, v{vB+1}")
e(f"s_lshl_b32 s{sT1}, s{sKH}, 5")
e(f"v_xor_b32 v{vB32}, s{sT1}, v{vB32}")
e(f"v_lshlrev_b32 v{vT2}, 4, v{vT0}")
e(f"v_add_u32 v{vCSW}, {CSA}, v{vT2}")
e(f"s_mov_b32 s{sM1}, 0x00010001")
e(f"s_mov_b32 s{sM1+1}, 0x00010001")
for i in range(4): e(f"v_mov_b32 v{vON+i}, s{sONES}")
e("s_waitcnt lgkmcnt(0)")
e(f"s_mov_b32 s{sWS}, s{pWSP}")
e(f"s_mov_b32 s{sWS+1}, s{pWSP+1}")
tv = [vA+64]
def touch1(t):
    ptr, size, pat, soff_s, c = t
    e(f"s_mov_b32 s{sX}, s{ptr}")
    e(f"s_mov_b32 s{sX+1}, s{ptr+1}")
    e(f"s_mov_b32 s{sX+2}, {size}")
    e(f"s_add_u32 s{sT0}, s{soff_s}, {c}")
    e(f"buffer_load_dword v{tv[0]}, v{pat}, {sr(sX,4)}, s{sT0} offen")
    tv[0] += 1
def touches(lst, role, sleep):
    if role == "h" or not lst: return 0
    lst = list(lst)
    if len(lst) % 2: lst.append((lst[0][0], 0, lst[0][2], lst[0][3], 0))
    if sleep: e(f"s_sleep {sleep}")
    a_ = uid("ta"); b_ = uid("tb")
    e(f"s_cmp_lg_u32 s{sKH}, 0")
    e(f"s_cbranch_scc1 {a_}")
    for t in lst[0::2]: touch1(t)
    e(f"s_branch {b_}")
    lab(a_)
    for t in lst[1::2]: touch1(t)
    lab(b_)
    return len(lst)//2
TQ = lambda c: [(pWQKV, 512*3072, vTQ, sTC, c + i*32*8*3072) for i in range(2)]
T1 = lambda p: [(p, 512*1024, vTL, sTA, i*32*8192) for i in range(2)]
T3 = lambda a, b: [(pW3, 512*3584, vTL, sTA, i*32*8192) for i in range(a, b)]
T4 = lambda a, b: [(pW4, 1792*1024, vTL, sTA, i*32*8192) for i in range(a, b)]
if MAP42:
    TQ = lambda c: [(pWQKV, 512*3072, vTQ, sTC, c)]
    T1 = lambda p: [(p, 512*1024, vTL, sTA, 0)]
    T3 = lambda a, b: [(pW3, 512*3584, vT3P, sTB, i*32*4*3584) for i in range(a, b)]
    T4 = lambda a, b: [(pW4, 1792*1024, vTL, sTA, i*32*16384) for i in range(a, b)]
barrier("h")
e(f"s_lshl_b32 s{sT0}, s{sJ}, 3")
e(f"s_add_u32 s{sT0}, s{sT0}, s{sWAVE}")
e(f"s_cmp_lg_u32 s{sT0}, 4")
e(f"s_cbranch_scc1 L_nozero")
for i in range(4): e(f"v_mov_b32 v{vA+i}, 0")
e(f"s_lshl_b32 s{sT0}, s{sG}, 8")
e(f"s_lshl_b32 s{sT1}, s{sG}, 10")
e(f"s_add_u32 s{sT1}, s{sT1}, {WS_FL2-WS_FL-256}")
e(f"v_mov_b32 v{vT3}, s{sT0}")
e(f"v_mov_b32 v{vT4}, s{sT1}")
e(f"v_cmp_gt_u32 {sr(sM0,2)}, 2, v{vLANE}")
e(f"s_mov_b32 s{sT0}, {WS_FL}")
nop(1)
e(f"v_cndmask_b32 v{vT3}, v{vT4}, v{vT3}, {sr(sM0,2)}")
e(f"v_lshl_add_u32 v{vT3}, v{vLANE}, 7, v{vT3}")
e("s_mov_b64 exec, 0x3ff")
e(f"buffer_store_dwordx4 {vr(vA,4)}, v{vT3}, {sr(sWS,4)}, s{sT0} offen sc1")
e(f"s_lshl_b32 s{sT0}, s{sG}, 2")
e(f"v_mov_b32 v{vT2}, s{sT0}")
e(f"v_mov_b32 v{vT6}, 1")
e("s_mov_b64 exec, 1")
e("s_waitcnt vmcnt(0)")
e(f"global_store_dword v{vT2}, v{vT6}, {sr(pDBG,2)} offset:128 sc1")
e("s_mov_b64 exec, -1")
lab("L_nozero")
V_, Q_, WO_, W1_, W2_ = TQ(2048), TQ(0), T1(pWO), T1(pW1), T1(pW2)
K_ = TQ(1024)
SCH = {0: dict(s=K_, x=V_+Q_, b0=WO_, b1=W1_, b3=W2_, r1=T3(0,4), r2=T3(4,7), r3=T4(0,4), b9=T4(4,7)),
       1: dict(s=K_, x=V_+Q_, b0=WO_+W1_, b1=W2_+T3(0,2), r1=T3(2,5), r2=T3(5,7)+T4(0,2), r3=T4(2,5), b9=T4(5,7)),
       2: dict(s=K_+V_, x=Q_+WO_, b1=W1_+W2_, r1=T3(0,4), r2=T3(4,7), r3=T4(0,4), b9=T4(4,7)),
       3: dict(x=V_+Q_, b0=WO_, b1=W1_+W2_, r1=T3(0,4), r2=T3(4,7), r3=T4(0,4), b9=T4(4,7)),
       }[OPT.get("sch", 0) if not MAP42 else 0]
if MAP42:
    REST = dict(r1=T3(0,2), r2=T3(2,4), r3=T4(0,4))
    SCH = {0: dict(s=K_+V_, x=Q_, b0=WO_+W1_, b1=W2_, **REST),
           1: dict(s=K_, x=V_+Q_, b0=WO_+W1_, b1=W2_, **REST),
           2: dict(x=V_+Q_, b0=WO_+W1_, b1=W2_, **REST),
           3: dict(s=K_+V_, x=Q_+WO_+W1_+W2_, **REST),
           4: dict(s=K_, x=V_+Q_, b0=WO_+W1_, b1=W2_+T3(0,1), r1=T3(1,3), r2=T3(3,4)+T4(0,1), r3=T4(1,3), b9=T4(3,4)),
           }[OPT.get("sch", 0)]
for k_ in ("s", "x", "b0", "b1", "b3", "r1", "r2", "r3", "b9"): SCH.setdefault(k_, [])
TS0, TSL, TSL2 = OPT.get("t0sl", 6), OPT.get("tsl", 8), OPT.get("tsl2", 14)
touches(SCH["x"], "h", TS0)
def cs(base, slot, half=False):
    e(f"s_mov_b32 s{sT0}, {base}")
    e(f"s_call_b64 {sr(sRET,2)}, {'L_csh' if half else 'L_cs'}")
    e(f"s_lshl_b32 s{sT0}, s{sKH}, {6 if half else 7}")
    e(f"v_add_u32 v{vT2}, s{sT0}, v{vCSW}")
    e(f"s_mov_b64 exec, {sr(sM1,2)}")
    for i in range(1 if half else 2): e(f"ds_write_b128 v{vT2}, {vr(vACC+4*i,4)} offset:{256*slot+64*i}")
    e("s_mov_b64 exec, -1")
    e("s_waitcnt lgkmcnt(0)")
def halo_fetch(which):
    sk = uid("hf"); l = sk+"_l"; d = sk+"_d"
    e(f"s_cmp_lg_u32 s{sWAVE}, 5")
    e(f"s_cbranch_scc1 {sk}")
    e(f"s_lshl_b32 s{sT0}, s{sG}, 3")
    e(f"s_add_u32 s{sT0}, s{sT0}, s{sJ}")
    e(f"s_sub_u32 s{sT0}, s{sT0}, 8")
    e(f"s_lshl_b32 s{sHKO}, s{sT0}, 12")
    e(f"s_add_u32 s{sHKO}, s{sHKO}, {WS_HK + 2048*which}")
    e(f"s_lshl_b32 s{sT0}, s{sT0}, 7")
    e(f"s_add_u32 s{sT0}, s{sT0}, {WS_FL2}")
    e(f"s_cmp_eq_u32 s{sG}, 0")
    e(f"s_cselect_b32 s{sHKO}, {OOB}, s{sHKO}")
    e(f"s_cbranch_scc1 {d}")
    lab(l)
    e(f"s_mov_b32 s{sM0}, 0")
    e(f"s_atomic_add s{sM0}, {sr(pWSP,2)}, s{sT0} glc")
    e("s_waitcnt lgkmcnt(0)")
    e(f"s_bitcmp1_b32 s{sM0}, {8*which}")
    e(f"s_cbranch_scc0 {spin(l, d)}")
    lab(d)
    e(f"buffer_load_dwordx4 {vr(vA,4)}, v{vL16}, {sr(sWS,4)}, s{sHKO} offen sc1")
    e(f"buffer_load_dwordx4 {vr(vA+4,4)}, v{vL16}, {sr(sWS,4)}, s{sHKO} offen offset:1024 sc1")
    if which:
        e(f"v_bfe_u32 v{vT2}, v{vT1}, 1, 2")
        e(f"v_lshlrev_b32 v{vT2}, 1, v{vT2}")
        e(f"v_lshrrev_b32 v{vT3}, 1, v{vT0}")
        e(f"v_xor_b32 v{vT2}, v{vT2}, v{vT3}")
        e(f"v_lshlrev_b32 v{vT2}, 4, v{vT2}")
        e(f"v_lshl_add_u32 v{vT2}, v{vT1}, 7, v{vT2}")
        e(f"v_and_b32 v{vT3}, 1, v{vT0}")
        e(f"v_lshl_add_u32 v{vT2}, v{vT3}, 3, v{vT2}")
        e(f"v_add_u32 v{vA+8}, {XB}, v{vT2}")
        for h in range(1, 4): e(f"v_xor_b32 v{vA+8+h}, {h<<5}, v{vA+8}")
    else:
        e(f"v_lshlrev_b32 v{vT2}, 7, v{vT1}")
        e(f"v_lshl_add_u32 v{vT2}, v{vT0}, 5, v{vT2}")
        e(f"v_cmp_lt_u32 {sr(sM0,2)}, 1, v{vT1}")
        e(f"v_add_u32 v{vT2}, {KA-256}, v{vT2}")
        e(f"v_mov_b32 v{vT4}, {LOOB}")
        e(f"v_cndmask_b32 v{vT2}, v{vT4}, v{vT2}, {sr(sM0,2)}")
    if which:
        cmt("wave 1 has finished reading wave 0's exchange buffer")
        l2 = uid("ak")
        lab(l2)
        e(f"ds_read_b32 v{vT7}, v{vCB} offset:{C_ACK+4}")
        e("s_waitcnt lgkmcnt(0)")
        e(f"v_readfirstlane_b32 s{sT0}, v{vT7}")
        e(f"s_cmp_lg_u32 s{sT0}, 0")
        e(f"s_cbranch_scc0 {spin(l2, l2+'_d')}")
        lab(l2+"_d")
    e(f"v_mov_b32 v{vT6}, {1+which}")
    e("s_waitcnt vmcnt(0)")
    if which:
        for h in range(4): e(f"ds_write_b64 v{vA+8+h}, {vr(vA+2*h,2)}")
    else:
        e(f"ds_write_b128 v{vT2}, {vr(vA,4)}")
        e(f"ds_write_b128 v{vT2}, {vr(vA+4,4)} offset:16")
    e("s_waitcnt lgkmcnt(0)")
    e(f"ds_write_b32 v{vCB}, v{vT6} offset:{C_KV}")
    lab(sk)
e(f"v_mov_b32 v{vT6}, 0")
e(f"v_min_u32 v{vT2}, 15, v{vLANE}")
e(f"v_lshl_add_u32 v{vT2}, v{vT2}, 2, v{vCB}")
e(f"ds_write_b32 v{vT2}, v{vT6}")
e("s_waitcnt lgkmcnt(0)")
barrier("h")
e(f"v_min_u32 v{vT2}, 2, v{vLANE}")
e(f"s_sub_u32 s{sT0}, s{sG}, 1")
e(f"v_add_u32 v{vT2}, s{sT0}, v{vT2}")
e(f"v_max_i32 v{vT2}, 0, v{vT2}")
e(f"v_min_u32 v{vT2}, 31, v{vT2}")
e(f"v_lshlrev_b32 v{vIN}, 2, v{vT2}")
e(f"s_cmp_eq_u32 s{sWAVE}, 4")
e("s_cbranch_scc1 L_in_n")
e(f"s_sleep {OPT.get('insl', 8)}")
e(f"global_load_dword v{vIN+1}, v{vIN}, {sr(pDBG,2)} offset:128")
lab("L_in_n")
barrier("h")
e(f"s_cmp_eq_u32 s{sWAVE}, 4")
e("s_cbranch_scc1 L_in_d")
e("s_branch L_in_chk")
lab("L_in_loop")
e("s_sleep 8")
e(f"global_load_dword v{vIN+1}, v{vIN}, {sr(pDBG,2)} offset:128 sc1")
lab("L_in_chk")
e("s_waitcnt vmcnt(0)")
e(f"v_cmp_eq_u32 {sr(sM0,2)}, 1, v{vIN+1}")
e(f"s_cmp_eq_u64 {sr(sM0,2)}, -1")
e(f"s_cbranch_scc0 {spin('L_in_loop', 'L_in_d')}")
lab("L_in_d")
barrier("h")
barrier("h")
barrier("h")
touches(SCH["b3"], "h", TSL)
halo_fetch(0)
barrier("h")
halo_fetch(1)
barrier("h")
barrier("h")
cs(0, 0)
e(f"s_lshl_b32 s{sT0}, s{sKH}, 2")
e(f"v_add_u32 v{vT2}, s{sT0}, v{vCB}")
e(f"v_mov_b32 v{vT6}, 1")
e(f"ds_write_b32 v{vT2}, v{vT6} offset:{C_CSF}")
barrier("h")
barrier("h")
cs(0, 1)
barrier("h")
cs(32768, 2)
barrier("h")
cs(0, 1)
barrier("h")
cs(32768, 2, True)
prof_flush()
e("s_endpgm")
for half in (False, True):
    lab("L_csh" if half else "L_cs")
    blocks = [(par, it) for par in range(2) for it in range(1 if half else 2)]
    for bi, (par, it) in enumerate(blocks):
        if it == 0:
            e(f"v_add_u32 v{vW}, s{sT0}, v{vB32 if half else vB}")
            if not half: e(f"v_add_u32 v{vW+1}, s{sT0}, v{vB+1}")
            e(f"s_add_u32 s{sT0}, s{sT0}, 65536")
        for i in range(8):
            for h in range(2):
                off = (i*2048 + 1024*h) if half else (it*16384 + (i >> 1)*4096 + 2048*h)
                e(f"ds_read_b64_tr_b16 {vr(vA+4*i+2*h,2)}, v{vW if half else vW+(i&1)} offset:{off}")
        for i in range(8):
            e(f"s_waitcnt lgkmcnt({14-2*i})")
            e(mf_text(vA+4*i, vON, vACC if (half or i % 2 == 0) else vACC+4, bi == 0 and i < (1 if half else 2)))
    nop(4)
    e(f"s_setpc_b64 {sr(sRET,2)}")

vPat, vP3072, vP1024, vP3584, vPH = 12, 13, 14, 15, 16
lab("L_loader")
e(f"s_setprio {OPT.get('lp', 2)}")
e(f"v_lshrrev_b32 v{vT2}, 3, v{vLANE}")
e(f"v_bfe_u32 v{vT3}, v{vT2}, 1, 2")
e(f"v_lshlrev_b32 v{vT3}, 1, v{vT3}")
e(f"v_and_b32 v{vT4}, 7, v{vLANE}")
e(f"v_xor_b32 v{vT3}, v{vT3}, v{vT4}")
e(f"v_lshlrev_b32 v{vT3}, 4, v{vT3}")
e(f"v_mul_u32_u24 v{vP3072}, 3072, v{vT2}")
e(f"v_add_u32 v{vP3072}, v{vP3072}, v{vT3}")
e(f"v_lshl_add_u32 v{vP1024}, v{vT2}, 10, v{vT3}")
e(f"v_mul_u32_u24 v{vP3584}, 3584, v{vT2}")
e(f"v_add_u32 v{vP3584}, v{vP3584}, v{vT3}")
e(f"v_lshrrev_b32 v{vT2}, 2, v{vLANE}")
e(f"v_bfe_u32 v{vT3}, v{vT2}, 2, 1")
e(f"v_lshlrev_b32 v{vT3}, 1, v{vT3}")
e(f"v_and_b32 v{vT4}, 3, v{vLANE}")
e(f"v_xor_b32 v{vT3}, v{vT3}, v{vT4}")
e(f"v_mul_u32_u24 v{vPH}, 3584, v{vT2}")
e(f"v_lshl_add_u32 v{vPH}, v{vT3}, 4, v{vPH}")
e(f"s_lshl_b32 s{sT2}, s{sJ}, 7")
e(f"s_mul_i32 s{sC3}, s{sJ}, 448")
e(f"s_and_b32 s{sT0}, s{sJ}, 1")
e(f"s_lshl_b32 s{sT1}, s{sT0}, 6")
e(f"s_xor_b32 s{sT0}, s{sT0}, 1")
e(f"s_mul_i32 s{sT0}, s{sT0}, 384")
e(f"s_add_u32 s{sCQ}, s{sC3}, s{sT0}")
e(f"s_add_u32 s{sC3}, s{sC3}, s{sT1}")
e("s_waitcnt lgkmcnt(0)")
e(f"s_mov_b32 s{sWS}, s{pWSP}")
e(f"s_mov_b32 s{sWS+1}, s{pWSP+1}")
cur = {}
issued = []
def setif(key, val, emit):
    if cur.get(key) != val:
        emit(); cur[key] = val
def issue(li):
    P, s_ = li // 2, li % 2
    if li < 18:
        if P <= 2: ptr, size, pat, rs, col, cc = pWQKV, 512*3072, vP3072, 3072, sT2, (1024, 2048, 0)[P]
        elif P <= 5: ptr, size, pat, rs, col, cc = (pWO, pW1, pW2)[P-3], 512*1024, vP1024, 1024, sT2, 0
        else: ptr, size, pat, rs, col, cc = pW3, 512*3584, vP3584, 3584, sC3, 128*(P-6)
        step, mid, kstr, c0 = 8*rs, 0, 128*rs, cc + 256*rs*s_
    elif li == 18:
        ptr, size, pat, col = pW3, 512*3584, vPH, sCQ
        step, mid, kstr, c0 = 16*3584, 128*3584, 128*3584, 0
    else:
        c = li - 19
        ptr, size, pat, col = pW4, 1792*1024, vP1024, sT2
        if c < 6: step, mid, kstr, c0 = 8192, 192*1024, 448*1024, (64*(c//2) + 896*(c%2))*1024
        else: step, mid, kstr, c0 = 8192, 384*1024, 896*1024, 192*1024
    def esrc():
        e(f"s_mov_b32 s{sW}, s{ptr}"); e(f"s_mov_b32 s{sW+1}, s{ptr+1}"); e(f"s_mov_b32 s{sW+2}, {size}")
    setif("ptr", ptr, esrc)
    setif("pat", pat, lambda: e(f"v_mov_b32 v{vPat}, v{pat}"))
    setif("step", step, lambda: e(f"s_mov_b32 s{sSTEP}, {step}"))
    setif("mid", mid, lambda: e(f"s_mov_b32 s{sMID}, {mid}"))
    setif("kstr", kstr, lambda: e(f"s_mul_i32 s{sT1}, s{sKH}, {kstr}"))
    e(f"s_add_u32 m0, s{sPAR}, {(li & 3)*16384}")
    e(f"s_add_u32 s{sSO}, s{col}, s{sT1}")
    if c0: e(f"s_add_u32 s{sSO}, s{sSO}, {c0}")
    e(f"s_call_b64 {sr(sRET,2)}, L_iss")
    issued.append(li)
def land(li):
    idx = issued.index(li)
    e(f"s_waitcnt vmcnt({sum(1 if x == 't' else 16 for x in issued[idx+1:])})")
def ltouch(key, sleep):
    issued.extend(["t"]*touches(SCH[key], "l", sleep))
ltouch("s", 0)
barrier("l")
issue(0); issue(1)
ltouch("x", OPT.get("tsd", 6))
sched = [(None, [], None),
         (1, [2, 3], "b0"),
         (3, [4, 5], "b1"),
         (5, [], None),
         (None, [6, 7], "b3"),
         (7, [], None),
         (None, [8, 9], "r1"),
         (9, [10, 11], "r2"),
         (11, [12, 13], "r3"),
         (13, [14, 15], None),
         (15, [16, 17], "b9"),
         (17, [18, 19], None),
         (18, [20, 21], None),
         (19, [22], None),
         (20, [], None), (21, [23], None), (22, [24], None), (23, [25], None), (24, [], None), (25, [], None)]
for k, (nd, aft, tk) in enumerate(sched):
    if nd is not None: land(nd)
    prof(k+1)
    barrier("l")
    for li in aft: issue(li)
    if tk: ltouch(tk, OPT.get("tsr", 30) if tk[0] == "r" else OPT.get("tsd", 6))
prof_flush()
e("s_endpgm")
lab("L_iss")
for i in range(16):
    e(f"buffer_load_dwordx4 v{vPat}, {sr(sW,4)}, s{sSO} offen lds")
    if i < 15:
        e("s_add_u32 m0, m0, 1024")
        e(f"s_add_u32 s{sSO}, s{sSO}, s{sSTEP}")
    if i == 7: e(f"s_add_u32 s{sSO}, s{sSO}, s{sMID}")
e(f"s_setpc_b64 {sr(sRET,2)}")
emit_tails()
lab("L_end")
e("s_endpgm")
assert nbar["c"] == nbar["l"] + 1, nbar

out.append('.section .rodata,"a"')
out.append(".p2align 6")
out.append(f".amdhsa_kernel {NAME}_kernel")
out.append(f"  .amdhsa_next_free_vgpr {NVGPR}")
out.append("  .amdhsa_next_free_sgpr 100")
out.append(f"  .amdhsa_accum_offset {NVGPR}")
out.append("  .amdhsa_group_segment_fixed_size 0")
out.append("  .amdhsa_kernarg_size 88")
out.append("  .amdhsa_user_sgpr_count 2")
out.append("  .amdhsa_user_sgpr_kernarg_segment_ptr 1")
out.append("  .amdhsa_system_sgpr_workgroup_id_x 1")
out.append(".end_amdhsa_kernel")
dst = [a for a in sys.argv[1:] if not a.startswith("--")]
open(dst[0] if dst else "cdna_kernels/%s.s" % NAME, "w").write("\n".join(o for o in out if o is not None) + "\n")
```

```python
import sys, math, struct

NAME = "sequential_preLN__sliding_local_dilated__mixer_s_mlp__prompt"
PROF = "--prof" in sys.argv
OPT = {}
for a in sys.argv:
    if a.startswith("--") and "=" in a:
        k, v = a[2:].split("="); OPT[k] = int(v)

out = []
def e(s): out.append("    " + s)
def lab(s): out.append(s + ":")
def cmt(s): out.append("    ; " + s)
def align(): out.append(".p2align 3")
def nop(n):
    while n > 0:
        k = min(n, 16); e(f"s_nop {k-1}"); n -= k
def f32(x): return "0x%08x" % struct.unpack("<I", struct.pack("<f", x))[0]
def vr(a, n): return f"v[{a}:{a+n-1}]"
def sr(a, n): return f"s[{a}:{a+n-1}]"
_uid = [0]
def uid(p):
    _uid[0] += 1
    return f"L_{p}_{_uid[0]}"

WS_O, WS_H, WS_H1, WS_X1, WS_G = 0, 2<<20, 4<<20, 6<<20, 8<<20
WS_HS = 15<<20
WS_X1S = WS_HS + (128<<10)
WS_FL = WS_HS + (256<<10)
WS_FL2 = WS_FL + (8<<10)
WS_HK = 16<<20
WS_PROF = 17<<20
WS_SIZE = 18<<20
GT = 56*1024
OOB = 0x40000000
LOOB = 0x30000
XB = 131072
KA = XB + 16384
KSZ = 1792
VA = KA + 4*KSZ
CSA = VA + 4*2048
CB = CSA + 768
C_KV, C_CSF, C_XF, C_ACK = 0, 8, 16, 32
LDS_BYTES = 163840
assert CB + 64 <= LDS_BYTES and VA % 256 == 0

sWAVE = 3
sX, sWS, sOUT = 4, 8, 12
sW = 12
pX, pWQKV, pWO, pBX, pW1, pW2, pW3, pW4, pOUT, pDBG, pWSP = 16, 18, 20, 22, 24, 26, 28, 30, 32, 34, 36
sJ, sG, sUNIT, sTILE, sBUD, sCNT = 38, 39, 40, 41, 42, 43
sT0, sT1, sT2, sT3 = 44, 45, 46, 47
sRET, sRET2 = 48, 50
sONES, sCEXP, sPUBO, sPUBV = 52, 53, 54, 55
sFLW = 56
sODD = 58
sOFFA, sPAR, sDST, sFLOFF, sR32, sHF, sHKO, sKH = 60, 61, 62, 63, 64, 65, 66, 67
sM0, sM1 = 68, 70
sFB, sFG = 72, 74
sTAIL, sXSEQ, sMK0, sNBO, sCSN = 89, 90, 91, 92, 93
sONE2 = 76
sPT, sPIDX = 78, 80
sSO, sSTEP, sC3, sCQ, sTA, sTB, sTC, sMID = 81, 82, 83, 84, 85, 86, 87, 88
vLANE = 0
vT0, vT1, vT2, vT3, vT4, vP, vCB, vT6, vT7 = 1, 2, 3, 4, 5, 6, 7, 8, 9
vL16, vFLO = 10, 11
vB, vW, vB32 = 12, 16, 20
vSC, vR1 = 22, 24
vSTO, vOUTO, vXA, vXP = 26, 27, 28, 29
vGA = 30
vLA = 32
vXR, vHP, vX1P = 36, 44, 52
vST = 60
vA, vWB = 64, 128
vACC, vACP = 160, 176
vE = 192
vPK, vK = 224, 232
vMS, vGB, vNMH = 240, 242, 244
vCSR = 246
vW1, vXFP, vBIT, vCF = 248, 249, 250, 252
vHS = 254
vP2 = 247
NVGPR = 256

def prof(idx):
    if not PROF: return
    e(f"s_memrealtime {sr(sPT,2)}")
    e("s_memtime s[98:99]")
    e("s_waitcnt lgkmcnt(0)")
    e(f"v_writelane_b32 v{vP}, s{sPT}, {idx}")
    e(f"v_writelane_b32 v{vP}, s98, {idx+32}")
def prof_flush(dbg=False):
    if not PROF: return
    if dbg and OPT.get("dbgwg") is not None:
        l = uid("dbg")
        e(f"s_lshl_b32 s{sT0}, s2, 3")
        e(f"s_add_u32 s{sT0}, s{sT0}, s{sWAVE}")
        e(f"s_cmp_lg_u32 s{sT0}, {OPT['dbgwg']*8}")
        e(f"s_cbranch_scc1 {l}")
        e(f"v_readlane_b32 s{sT1}, v{vP}, 63")
        for k, idx in enumerate([0, 1, 30, 2, 3, 4, 5, 6, 8, 9, 11, 12, 14, 15, 19, 21]):
            e(f"v_readlane_b32 s{sT0}, v{vP}, {idx}")
            e(f"s_sub_u32 s{sT0}, s{sT0}, s{sT1}")
            e(f"v_writelane_b32 v{vT2}, s{sT0}, {k}")
        e(f"v_lshlrev_b32 v{vT0}, 2, v{vLANE}")
        e("s_mov_b64 exec, 0xffff")
        e(f"global_store_dword v{vT0}, v{vT2}, {sr(pDBG,2)}")
        e("s_mov_b64 exec, -1")
        lab(l)
    e(f"v_lshlrev_b32 v{vT0}, 2, v{vLANE}")
    if OPT.get("dp") is not None: e(f"v_mov_b32 v{vP}, v{vP2}")
    e(f"buffer_store_dword v{vP}, v{vT0}, {sr(sWS,4)}, s{sPIDX} offen")
tails = []
def spin(loop, done):
    tails.append((loop+"_s", loop, done))
    return loop+"_s"
def emit_tails():
    for s_, l, d in tails:
        lab(s_)
        e(f"s_sub_u32 s{sBUD}, s{sBUD}, 1")
        e(f"s_cbranch_scc0 {l}")
        e(f"s_mov_b32 s{sBUD}, 0")
        e(f"s_branch {d}")
    tails.clear()
def red2x2(a, b, t, a2, b2, t2):
    e(f"v_permlane16_swap_b32 v{a}, v{b}")
    e(f"v_permlane16_swap_b32 v{a2}, v{b2}")
    e(f"v_add_f32 v{a}, v{a}, v{b}")
    e(f"v_add_f32 v{a2}, v{a2}, v{b2}")
    e(f"v_mov_b32 v{t}, v{a}")
    e(f"v_mov_b32 v{t2}, v{a2}")
    nop(1)
    e(f"v_permlane32_swap_b32 v{a}, v{t}")
    e(f"v_permlane32_swap_b32 v{a2}, v{t2}")
    e(f"v_add_f32 v{a}, v{a}, v{t}")
    e(f"v_add_f32 v{a2}, v{a2}, v{t2}")
    e(f"v_mov_b32 v{t}, v{a}")
    e(f"v_mov_b32 v{t2}, v{a2}")
    nop(1)
    e(f"v_permlane16_swap_b32 v{a}, v{t}")
    e(f"v_permlane16_swap_b32 v{a2}, v{t2}")
def red2(a, b, t):
    e(f"v_permlane16_swap_b32 v{a}, v{b}")
    e(f"v_add_f32 v{a}, v{a}, v{b}")
    e(f"v_mov_b32 v{t}, v{a}")
    nop(2)
    e(f"v_permlane32_swap_b32 v{a}, v{t}")
    e(f"v_add_f32 v{a}, v{a}, v{t}")
    e(f"v_mov_b32 v{t}, v{a}")
    nop(2)
    e(f"v_permlane16_swap_b32 v{a}, v{t}")
def mean_var(vs, vq):
    e(f"v_mul_f32 v{vs}, {f32(-1.0/512)}, v{vs}")
    e(f"v_mul_f32 v{vq}, {f32(1.0/512)}, v{vq}")
    e(f"v_fma_f32 v{vq}, -v{vs}, v{vs}, v{vq}")
    e(f"v_max_f32 v{vq}, 0, v{vq}")
def zero(base, n):
    for i in range(n): e(f"v_mov_b32 v{base+i}, 0")
class LQ:
    def __init__(self, pend=()): self.q = list(pend)
    def op(self, id_, text): e(text); self.q.append(id_)
    def need(self, ids, vm=None):
        idx = max([i for i, x in enumerate(self.q) if x in ids], default=-1)
        parts = []
        if vm is not None: parts.append(f"vmcnt({vm})")
        if idx >= 0:
            parts.append(f"lgkmcnt({min(len(self.q)-1-idx, 15)})")
            self.q = self.q[idx+1:]
        if parts: e("s_waitcnt " + " ".join(parts))
def rd_text(buf, h, p, half_panel=False, base=0):
    if half_panel: off = ((p >> 1) & 7)*2048 + 1024*h; jj = p & 1
    else: off = (p >> 2)*4096 + 2048*h; jj = p & 3
    return f"ds_read_b64_tr_b16 {vr(buf+2*h,2)}, v{vW+jj} offset:{base+off}"
def mf_text(buf, areg, c, czero=False):
    return f"v_mfma_f32_16x16x32_bf16 {vr(c,4)}, {vr(buf,4)}, {vr(areg,4)}, {'0' if czero else vr(c,4)}"
def wtog(jj): e(f"v_xor_b32 v{vW+jj}, 0x8000, v{vW+jj}")
T_W = lambda i: f"ds_write_b128 v{vXA}, {vr(vACP+4*i,4)} offset:{1024*i}"
T_R = lambda i: f"ds_read_b128 {vr(vE+4*i,4)}, v{vXP} offset:{1024*i}"
T_C = lambda i: f"ds_read_b128 {vr(vACP+4*i,4)}, v{vCSR} offset:{64*i}"
def pre(half_panel=False, base=0):
    for p in range(6):
        for h in range(2): e(rd_text(vWB+4*p, h, p, half_panel, base))
nbar = {"c": 0, "h": 0, "l": 0}
def barrier(role, n=1, emit=True):
    if role == "h" and nbar[role] and nbar[role] < 32: prof(nbar[role])
    nbar[role] += n
    if emit: e("s_barrier")

DS = [18, 20, 22, 24, 26, 28, 30, 82]
def dst_(i):
    if OPT.get("dp") is not None: e(f"s_memtime {sr(DS[i],2)}")
ncall = [0]
MID = OPT.get('mid', 1)
def gen_pass64():
    buf = lambda q: (vE + 4*(q-16)) if 16 <= q < 24 else (vWB + 4*(q % 8))
    areg = lambda q, t: vA + 8*(q >> 2) + 4*t
    acc = lambda q, t: (vACP if t else vACC) + 4*(q & 3)
    lq = LQ([f"f{p}" for p in range(6) for h in range(2)])
    def RD(q, h, nxt=False):
        lq.op(("n" if nxt else "f")+str(q), rd_text(vWB+4*q if nxt else buf(q), h, q))
    pend = [(q, h) for q in range(4+6, 32) for h in range(2)]
    def dual(q, czero=False):
        for t in range(2):
            e(mf_text(buf(q), areg(q, t), acc(q, t), czero))
            if q < 4: RD(q+6, t)
            else:
                RD(*pend.pop(0))
                if q >= 10 and t == 0: RD(*pend.pop(0))
    def waitq(q, vm=None): lq.need([f"f{q}", f"f{q+1}"], vm)
    align(); lab("L_pass64b")
    save = list(lq.q)
    for q in range(4):
        if q % 2 == 0: waitq(q, 14 if q == 0 else None)
        dual(q)
    e("s_branch L_pass64_c")
    lq.q = save
    align(); lab("L_pass64")
    for q in range(4):
        if q % 2 == 0: waitq(q, 14 if q == 0 else None)
        dual(q, True)
    lab("L_pass64_c")
    dst_(1)
    for q in range(4, 16):
        if q % 2 == 0: waitq(q, 14-2*(q >> 2) if q % 4 == 0 else None)
        dual(q)
    dst_(2)
    if MID:
        lq.need(["f15"])
        e(f"s_bitcmp1_b32 s{sTAIL}, 0")
        e("s_cbranch_scc1 L_nomid")
        e("s_barrier")
        lab("L_nomid")
    todo = [lambda j=j: wtog(j) for j in range(4)]
    for q in range(16, 32):
        if q % 2 == 0: waitq(q, 14-2*(q >> 2) if q % 4 == 0 else None)
        e(mf_text(buf(q), areg(q, 1), acc(q, 1)))
        k = 0
        while pend and k < 2: RD(*pend.pop(0)); k += 1
        if q == OPT.get("ph", 18):
            e("s_cbranch_vccnz L_pubhook"); lab("L_pubret"); k += 1
        while not pend and todo and k < 1: todo.pop(0)(); k += 1
    assert not pend and not todo
    O = lambda q: e(mf_text(buf(q), areg(q, 0), acc(q, 0)))
    W = lambda i: lq.op(f"W{i}", T_W(i))
    dst_(3)
    e(f"s_bitcmp1_b32 s{sTAIL}, 0")
    e("s_cbranch_scc1 L_pass64_f")
    save = list(lq.q)
    O(16); O(17); O(18); O(19); W(0); O(20); O(21); W(1); O(22); O(23); W(2); O(24); O(25); W(3); O(26); O(27)
    dst_(4)
    lq.need(["W3"])
    dst_(5)
    e("s_barrier")
    dst_(6)
    O(28)
    for i in range(2): lq.op(f"R{i}", T_R(i))
    O(29)
    for i in range(2, 4): lq.op(f"R{i}", T_R(i))
    O(30); RD(0, 0, True); RD(0, 1, True)
    O(31); RD(1, 0, True); RD(1, 1, True)
    for i in range(4): lq.op(f"C{i}", T_C(i))
    for q in range(2, 6): RD(q, 0, True); RD(q, 1, True)
    lq.need(["R3"])
    for i in range(8): e(f"v_pk_add_f32 {vr(vE+2*i,2)}, {vr(vACC+2*i,2)}, {vr(vE+2*i,2)}")
    lq.need(["C3"])
    dst_(7)
    e(f"s_setpc_b64 {sr(sRET,2)}")
    lq.q = save
    align(); lab("L_pass64_f")
    O(16); e(f"s_add_u32 s{sXSEQ}, s{sXSEQ}, 1"); O(17); e(f"v_mov_b32 v{vT7}, s{sXSEQ}"); O(18); W(0); O(19); O(20); W(1); O(21); O(22); W(2); O(23); O(24); W(3)
    O(25)
    lq.need(["W3"])
    lq.op("X", f"ds_write_b32 v{vW1}, v{vT7} offset:{C_XF}")
    lq.op("CF", f"ds_read_b64 {vr(vCF,2)}, v{vCB} offset:{C_CSF}")
    O(26); lq.op("C0", T_C(0)); lq.op("C1", T_C(1)); O(27); lq.op("C2", T_C(2)); lq.op("C3", T_C(3))
    O(28); O(29)
    lq.op("F", f"ds_read_b32 v{vT6}, v{vXFP} offset:{C_XF}"); lq.op("R0", T_R(0))
    O(30); lq.op("R1", T_R(1)); lq.op("R2", T_R(2)); O(31); lq.op("R3", T_R(3))
    nop(2)
    lab("L_xf_w")
    e("s_waitcnt lgkmcnt(0)")
    e(f"v_readfirstlane_b32 s{sT0}, v{vT6}")
    for i in range(8): e(f"v_pk_add_f32 {vr(vE+2*i,2)}, {vr(vACC+2*i,2)}, {vr(vE+2*i,2)}")
    e(f"s_cmp_ge_u32 s{sT0}, s{sXSEQ}")
    e("s_cbranch_scc0 L_xf_r")
    lab("L_xf_d")
    e(f"s_setpc_b64 {sr(sRET,2)}")
    lab("L_xf_r")
    e(f"ds_read_b32 v{vT6}, v{vXFP} offset:{C_XF}")
    for i in range(4): e(T_R(i))
    e(f"s_sub_u32 s{sBUD}, s{sBUD}, 1")
    e("s_cbranch_scc0 L_xf_w")
    e(f"s_mov_b32 s{sBUD}, 0")
    e("s_branch L_xf_d")
    lab("L_pubhook")
    e(f"v_mov_b32 v{vT6}, s{sPUBV}")
    e("s_waitcnt vmcnt(0)")
    e(f"buffer_atomic_add v{vT6}, v{vFLO}, {sr(sWS,4)}, s{sPUBO} offen sc1")
    e("s_mov_b64 vcc, 0")
    e("s_branch L_pubret")
def call_pass(name="L_pass64", bar=True):
    dst_(0)
    e(f"s_call_b64 {sr(sRET,2)}, {name}")
    if OPT.get("dp") == ncall[0]:
        e("s_waitcnt lgkmcnt(0)")
        for i in range(8): e(f"v_writelane_b32 v{vP2}, s{DS[i]}, {i}")
    ncall[0] += 1
    if bar: barrier("c", 2 if MID else 1, False)
def scalepack(dst):
    for i in range(8): e(f"v_pk_mul_f32 {vr(vE+2*i,2)}, {vr(vE+2*i,2)}, {vr(vSC,2)}")
    for i in range(8): e(f"v_cvt_pk_bf16_f32 v{dst+i}, v{vE+2*i}, v{vE+2*i+1}")

hdr = open("cdna_kernels/%s.s.ref" % NAME).read().split("\n")
for l in hdr:
    if l.startswith("; Override"): break
    out.append(l)
out.append(f"; @launch grid=(256,1,1) block=(512,1,1) lds={LDS_BYTES}")
out.append('.amdgcn_target "amdgcn-amd-amdhsa--gfx950"')
out.append(".text")
out.append(f".globl {NAME}_kernel")
out.append(".p2align 8")
out.append(f".type {NAME}_kernel,@function")
lab(f"{NAME}_kernel")
if PROF: e("s_memrealtime s[96:97]")
if PROF: e("s_memrealtime s[96:97]")
e(f"s_getpc_b64 {sr(sM0,2)}")
lab("L_pc")
e(f"s_load_dwordx2 {sr(pX,2)}, s[0:1], 0")
e(f"s_cmp_ge_u32 s2, {OPT.get('cpn', 32)}")
e("s_cbranch_scc1 L_nocp")
e("v_lshlrev_b32 v1, 7, v0")
e(f"v_min_u32 v1, L_end-L_pc, v1")
e(f"global_load_dword v255, v1, {sr(sM0,2)}")
lab("L_nocp")
e("s_cmp_ge_u32 s2, 256")
e("s_cbranch_scc1 L_end")
e(f"s_load_dwordx2 {sr(18,2)}, s[0:1], 8")
e(f"s_load_dwordx4 {sr(20,4)}, s[0:1], 16")
e(f"s_load_dwordx8 {sr(24,8)}, s[0:1], 32")
e(f"s_load_dwordx4 {sr(32,4)}, s[0:1], 64")
e(f"s_load_dwordx2 {sr(36,2)}, s[0:1], 80")
e(f"v_lshrrev_b32 v1, 6, v0")
e(f"v_and_b32 v{vLANE}, 63, v0")
e(f"v_readfirstlane_b32 s{sWAVE}, v1")
MAP42 = OPT.get("map", 42) == 42
if MAP42:
    e(f"s_and_b32 s{sHF}, s2, 1")
    e(f"s_lshr_b32 s{sR32}, s2, 3")
    e(f"s_and_b32 s{sJ}, s{sR32}, 3")
    e(f"s_lshl_b32 s{sT0}, s{sHF}, 2")
    e(f"s_add_u32 s{sJ}, s{sJ}, s{sT0}")
    e(f"s_and_b32 s{sG}, s2, 6")
    e(f"s_lshl_b32 s{sG}, s{sG}, 2")
    e(f"s_lshr_b32 s{sT1}, s{sR32}, 2")
    e(f"s_add_u32 s{sG}, s{sG}, s{sT1}")
else:
    e(f"s_lshr_b32 s{sR32}, s2, 3")
    e(f"s_and_b32 s{sJ}, s{sR32}, 7")
    e(f"s_and_b32 s{sG}, s2, 7")
    e(f"s_lshl_b32 s{sG}, s{sG}, 2")
    e(f"s_lshr_b32 s{sT1}, s{sR32}, 3")
    e(f"s_add_u32 s{sG}, s{sG}, s{sT1}")
e(f"s_mov_b32 s{sBUD}, 0x80000")
e(f"s_and_b32 s{sKH}, s{sWAVE}, 1")
e(f"s_lshl_b32 s{sPAR}, s{sKH}, 16")
e(f"v_mov_b32 v{vCB}, {CB}")
e(f"v_lshlrev_b32 v{vL16}, 4, v{vLANE}")
e(f"v_lshrrev_b32 v{vT0}, 4, v{vLANE}")
e(f"v_and_b32 v{vT1}, 15, v{vLANE}")
e(f"s_mov_b32 s{sWS+2}, {WS_SIZE}")
e(f"s_mov_b32 s{sWS+3}, 0x00020000")
e(f"s_mov_b32 s{sX+3}, 0x00020000")
e(f"s_mov_b32 s{sOUT+3}, 0x00020000")
e(f"s_mov_b32 s{sONES}, 0x3f803f80")
if PROF:
    e(f"s_lshl_b32 s{sPIDX}, s2, 3")
    e(f"s_add_u32 s{sPIDX}, s{sPIDX}, s{sWAVE}")
    e(f"s_lshl_b32 s{sPIDX}, s{sPIDX}, 8")
    e(f"s_add_u32 s{sPIDX}, s{sPIDX}, {WS_PROF}")
    e(f"v_mov_b32 v{vP}, 0")
    e("s_waitcnt lgkmcnt(0)")
    e(f"v_writelane_b32 v{vP}, s96, 63")
e(f"s_cmp_ge_u32 s{sWAVE}, 4")
e("s_cbranch_scc1 L_service")

def tr_bases():
    e(f"v_lshrrev_b32 v{vT3}, 2, v{vLANE}")
    e(f"v_bfe_u32 v{vT4}, v{vT3}, 1, 2")
    e(f"v_lshlrev_b32 v{vT4}, 5, v{vT4}")
    e(f"v_and_b32 v{vT2}, 3, v{vLANE}")
    e(f"v_lshl_add_u32 v{vT4}, v{vT2}, 3, v{vT4}")
    e(f"v_lshl_add_u32 v{vB}, v{vT3}, 7, v{vT4}")
    for jj in range(1, 4): e(f"v_xor_b32 v{vB+jj}, {jj<<5}, v{vB}")
    e(f"v_and_b32 v{vT4}, 1, v{vT0}")
    e(f"v_lshlrev_b32 v{vT4}, 5, v{vT4}")
    e(f"v_lshl_add_u32 v{vT4}, v{vT2}, 3, v{vT4}")
    e(f"v_lshl_add_u32 v{vB32}, v{vT3}, 6, v{vT4}")
    e(f"v_xor_b32 v{vB32+1}, 32, v{vB32}")
e(f"s_lshl_b32 s{sTILE}, s{sG}, 2")
e(f"s_add_u32 s{sTILE}, s{sTILE}, s{sWAVE}")
e(f"s_lshr_b32 s{sUNIT}, s{sTILE}, 1")
e(f"s_mov_b32 s{sX+2}, {2<<20}")
e(f"s_lshl_b32 s{sT2}, s{sUNIT}, 15")
e(f"s_lshl_b32 s{sT0}, s{sKH}, 8")
e(f"s_add_u32 s{sT2}, s{sT2}, s{sT0}")
e(f"s_lshr_b32 s{sT3}, s{sWAVE}, 1")
e(f"s_lshl_b32 s{sT3}, s{sT3}, 14")
e(f"s_add_u32 s{sT3}, s{sT3}, s{sPAR}")
e(f"s_add_u32 s{sT3}, s{sT3}, 32768")
e(f"s_mov_b32 m0, s{sT3}")
e(f"v_lshrrev_b32 v{vT2}, 5, v{vLANE}")
e(f"v_xor_b32 v{vT3}, v{vT1}, v{vT2}")
e(f"v_lshlrev_b32 v{vT3}, 4, v{vT3}")
e(f"v_lshl_add_u32 v{vT3}, v{vT2}, 10, v{vT3}")
e(f"v_and_b32 v{vT4}, 1, v{vT0}")
e(f"v_lshl_add_u32 v{vWB}, v{vT4}, 9, v{vT3}")
for i in range(1, 8): e(f"v_xor_b32 v{vWB+i}, {i<<5}, v{vWB}")
e("s_waitcnt lgkmcnt(0)")
e(f"s_mov_b32 s{sX}, s{pX}")
e(f"s_mov_b32 s{sX+1}, s{pX+1}")
for i in range(16):
    e(f"buffer_load_dwordx4 v{vWB+(i&7)}, {sr(sX,4)}, s{sT2} offen lds")
    if i < 15:
        e("s_add_u32 m0, m0, 1024")
        e(f"s_add_u32 s{sT2}, s{sT2}, 2048")
barrier("c")
prof(0)
e(f"s_mov_b32 s{sWS}, s{pWSP}")
e(f"s_mov_b32 s{sWS+1}, s{pWSP+1}")
e(f"s_mov_b32 s{sOUT}, s{pOUT}")
e(f"s_mov_b32 s{sOUT+1}, s{pOUT+1}")
e(f"s_mov_b32 s{sOUT+2}, {2<<20}")
e(f"s_mov_b32 s{sCEXP}, {f32(0.25*math.log2(math.e))}")
e(f"s_mov_b32 s{sODD}, 0xaaaaaaaa")
e(f"s_mov_b32 s{sODD+1}, 0xaaaaaaaa")
e(f"s_mov_b32 s{sONE2}, 1.0")
e(f"s_mov_b32 s{sONE2+1}, 1.0")
e("s_mov_b64 vcc, 0")
tr_bases()
for jj in range(4): e(f"v_add_u32 v{vW+jj}, s{sPAR}, v{vB+jj}")
e(f"v_lshlrev_b32 v{vCSR}, 4, v{vT0}")
e(f"v_add_u32 v{vCSR}, {CSA}, v{vCSR}")
e(f"s_lshl_b32 s{sT2}, s{sWAVE}, 12")
e(f"s_add_u32 s{sT2}, s{sT2}, {XB}")
e(f"v_add_u32 v{vXA}, s{sT2}, v{vL16}")
e(f"v_xor_b32 v{vXP}, 0x1000, v{vXA}")
e(f"v_cmp_eq_u32 {sr(sM0,2)}, 0, v{vLANE}")
e(f"v_cmp_gt_u32 {sr(sM1,2)}, 16, v{vLANE}")
e(f"v_mov_b32 v{vT2}, {OOB}")
e(f"s_lshl_b32 s{sFLOFF}, s{sUNIT}, 7")
e(f"s_add_u32 s{sFLOFF}, s{sFLOFF}, {WS_FL}")
e(f"v_cndmask_b32 v{vFLO}, v{vT2}, 0, {sr(sM0,2)}")
e(f"s_lshl_b32 s{sT0}, s{sTILE}, 10")
e(f"s_lshr_b32 s{sT1}, s{sJ}, 1")
e(f"s_lshl_b32 s{sT1}, s{sT1}, 8")
e(f"s_add_u32 s{sT0}, s{sT0}, s{sT1}")
e(f"s_and_b32 s{sT1}, s{sJ}, 1")
e(f"s_lshl_b32 s{sT1}, s{sT1}, 3")
e(f"s_add_u32 s{sT0}, s{sT0}, s{sT1}")
e(f"v_add_u32 v{vT3}, s{sT0}, v{vL16}")
e(f"v_cndmask_b32 v{vSTO}, v{vT2}, v{vT3}, {sr(sM1,2)}")
e(f"s_lshl_b32 s{sT0}, s{sG}, 3")
e(f"s_add_u32 s{sT0}, s{sT0}, s{sJ}")
e(f"s_lshl_b32 s{sPUBO}, s{sT0}, 7")
e(f"s_add_u32 s{sPUBO}, s{sPUBO}, {WS_FL2}")
e(f"s_lshl_b32 s{sHKO}, s{sT0}, 12")
e(f"s_add_u32 s{sHKO}, s{sHKO}, {WS_HK}")
e(f"s_lshl_b32 s{sDST}, s{sTILE}, 14")
e(f"s_lshl_b32 s{sT1}, s{sJ}, 11")
e(f"s_add_u32 s{sDST}, s{sDST}, s{sT1}")
e(f"s_lshl_b32 s{sT1}, s{sJ}, 7")
e(f"s_lshl_b32 s{sCQ}, s{sTILE}, 14")
e(f"s_add_u32 s{sCQ}, s{sCQ}, s{sT1}")
e(f"v_and_b32 v{vT3}, 1, v{vT0}")
e(f"v_lshlrev_b32 v{vT3}, 5, v{vT3}")
e(f"v_lshrrev_b32 v{vT4}, 1, v{vT0}")
e(f"v_lshl_add_u32 v{vT3}, v{vT4}, 4, v{vT3}")
e(f"v_lshl_add_u32 v{vOUTO}, v{vT1}, 10, v{vT3}")
e(f"v_add_u32 v{vOUTO}, s{sCQ}, v{vOUTO}")
GA = -2.0*math.sqrt(2.0/math.pi)*math.log2(math.e)
for i in range(2):
    e(f"v_mov_b32 v{vGA+i}, {f32(GA)}")
    e(f"v_mov_b32 v{vGB+i}, {f32(GA*0.044715)}")
def set_la(stride):
    e(f"s_mul_i32 s{sT0}, s{sKH}, {stride+4096}")
    e(f"s_mul_i32 s{sT1}, s{sKH}, {-stride+4096}")
    e(f"s_add_u32 s{sT1}, s{sT1}, {stride}")
    e(f"v_add_u32 v{vLA}, s{sT0}, v{vL16}")
    e(f"v_add_u32 v{vLA+1}, s{sT1}, v{vL16}")
    e(f"v_add_u32 v{vLA+2}, 0x2000, v{vLA}")
    e(f"v_add_u32 v{vLA+3}, 0x2000, v{vLA+1}")
set_la(16384)
XA = vE
e(f"v_lshrrev_b32 v{vT3}, 1, v{vT0}")
e(f"v_xor_b32 v{vT3}, v{vT3}, v{vT1}")
e(f"v_lshlrev_b32 v{vT3}, 4, v{vT3}")
e(f"v_lshl_add_u32 v{vT3}, v{vT1}, 9, v{vT3}")
e(f"v_and_b32 v{vT4}, 1, v{vT0}")
e(f"v_lshl_add_u32 v{vT3}, v{vT4}, 3, v{vT3}")
e(f"s_lshl_b32 s{sT0}, s{sKH}, 13")
e(f"s_add_u32 s{sT0}, s{sT0}, s{sT3}")
e(f"v_add_u32 v{XA}, s{sT0}, v{vT3}")
for c in range(1, 8): e(f"v_xor_b32 v{XA+c}, {c<<5}, v{XA}")
for c in range(8): e(f"v_xor_b32 v{XA+8+c}, 0x2000, v{XA+c}")
for i in range(4): e(f"v_mov_b32 v{vST+i}, 0")
e(f"s_lshl_b32 s{sT0}, s{sWAVE}, 11")
e(f"s_add_u32 s{sT0}, s{sT0}, {VA}")
e(f"v_lshl_add_u32 v{vT2}, v{vT1}, 4, s{sT0}")
e(f"v_xor_b32 v{vT3}, 0x800, v{vT1}") if False else None
e(f"s_lshl_b32 s{sT0}, s{sWAVE}, 2")
e(f"v_add_u32 v{vXFP}, s{sT0}, v{vCB}")
e(f"v_mov_b32 v{vT4}, {LOOB}")
e(f"v_cndmask_b32 v{vW1}, v{vT4}, v{vXFP}, {sr(sM0,2)}")
e(f"v_xor_b32 v{vXFP}, 4, v{vXFP}")
e(f"s_lshl_b32 s{sT0}, s{sJ}, 1")
e(f"s_add_u32 s{sT0}, s{sT0}, s{sKH}")
e(f"s_lshl_b32 s{sT0}, 1, s{sT0}")
e(f"v_mov_b32 v{vBIT}, s{sT0}")
e(f"s_lshl_b32 s{sT0}, s{sT0}, 16")
e(f"v_mov_b32 v{vBIT+1}, s{sT0}")
e(f"s_lshl_b32 s{sT0}, s{sKH}, 2")
e(f"s_lshl_b32 s{sMK0}, 15, s{sT0}")
e(f"s_mov_b32 s{sTAIL}, 0")
e(f"s_mov_b32 s{sXSEQ}, 0")
e(f"s_bfe_u32 s{sT0}, s{sJ}, 0x10001")
e(f"s_xor_b32 s{sT0}, s{sT0}, s{sKH}")
e(f"s_lshl_b32 s{sT0}, s{sT0}, 16")
e(f"s_and_b32 s{sT1}, s{sJ}, 1")
e(f"s_lshl_b32 s{sT1}, s{sT1}, 7")
e(f"s_or_b32 s{sT0}, s{sT0}, s{sT1}")
e(f"s_lshr_b32 s{sT1}, s{sJ}, 2")
e(f"s_lshl_b32 s{sT1}, s{sT1}, 8")
e(f"v_xor_b32 v{vK}, s{sT0}, v{XA}")
e(f"v_add_u32 v{vK}, s{sT1}, v{vK}")
for jj in range(1, 4): e(f"v_xor_b32 v{vK+jj}, {jj<<5}, v{vK}")
e(f"s_lshr_b32 s{sT0}, s{sJ}, 2")
e(f"s_add_u32 s{sT0}, s{sT0}, 1")
e(f"s_sub_u32 s{sT1}, 0, s{sT0}")
e(f"s_bitcmp1_b32 s{sJ}, 1")
e(f"s_cselect_b32 s{sT0}, s{sT1}, s{sT0}")
e(f"s_lshl_b32 s{sT1}, s{sTILE}, 4")
e(f"s_add_u32 s{sT0}, s{sT0}, s{sT1}")
e(f"s_movk_i32 s{sT1}, 0x800")
e(f"v_add_u32 v{vT3}, s{sT0}, v{vT1}")
e(f"v_cmp_gt_u32 {sr(sM1,2)}, s{sT1}, v{vT3}")
e(f"v_lshrrev_b32 v{vT4}, 4, v{vT3}")
e(f"v_lshlrev_b32 v{vT4}, 14, v{vT4}")
e(f"v_lshl_add_u32 v{vT4}, v{vT0}, 8, v{vT4}")
e(f"v_and_b32 v{vT3}, 15, v{vT3}")
e(f"v_lshl_add_u32 v{vT4}, v{vT3}, 4, v{vT4}")
e(f"v_mov_b32 v{vT3}, {OOB}")
e(f"v_cndmask_b32 v{vHS}, v{vT3}, v{vT4}, {sr(sM1,2)}")
BI, SEL = vX1P+2, vX1P+6
e(f"v_and_b32 v{vT3}, 1, v{vT1}")
e(f"v_lshl_add_u32 v{vT3}, v{vT0}, 2, v{vT3}")
e(f"v_sub_u32 v{vT3}, v{vT1}, v{vT3}")
e(f"v_mov_b32 v{vT6}, {f32(-1e30)}")
e(f"s_cmp_eq_u32 s{sTILE}, 0")
e(f"s_cselect_b32 s{sT0}, -64, 16")
e(f"v_add_u32 v{vT4}, -2, v{vT3}")
e(f"v_cmp_gt_u32 {sr(sM0,2)}, 15, v{vT3}")
e(f"v_cmp_gt_u32 {sr(sM1,2)}, 15, v{vT4}")
e(f"v_add_u32 v{vT3}, s{sT0}, v{vT3}")
e(f"v_add_u32 v{vT4}, -2, v{vT3}")
e(f"v_cndmask_b32 v{BI}, v{vT6}, 0, {sr(sM0,2)}")
e(f"v_cndmask_b32 v{BI+1}, v{vT6}, 0, {sr(sM1,2)}")
e(f"v_cmp_gt_u32 {sr(sM0,2)}, 15, v{vT3}")
e(f"v_cmp_gt_u32 {sr(sM1,2)}, 15, v{vT4}")
e(f"v_mov_b32 v{vT3}, 0x0c0c0100")
e(f"v_mov_b32 v{vT4}, 0x01000c0c")
e(f"v_cndmask_b32 v{BI+2}, v{vT6}, 0, {sr(sM0,2)}")
e(f"v_cndmask_b32 v{BI+3}, v{vT6}, 0, {sr(sM1,2)}")
e(f"v_cndmask_b32 v{SEL}, v{vT3}, v{vT4}, {sr(sODD,2)}")
e(f"v_mov_b32 v{vT3}, 0x0c0c0302")
e(f"v_mov_b32 v{vT4}, 0x03020c0c")
e(f"v_cndmask_b32 v{SEL+1}, v{vT3}, v{vT4}, {sr(sODD,2)}")
e("s_waitcnt vmcnt(0)")
for ksl in range(8):
    for t in range(2):
        for h in range(2):
            e(f"ds_read_b64 {vr(vA+8*ksl+4*t+2*h,2)}, v{XA+8*t+2*(ksl&3)+h} offset:{256*(ksl>>2)}")
for ksl in range(8):
    e(f"s_waitcnt lgkmcnt({min(15, 28-4*ksl)})")
    for d in range(4):
        for t in range(2):
            r = vA+8*ksl+4*t+d
            e(f"v_dot2_f32_bf16 v{vST+2*t}, v{r}, s{sONES}, v{vST+2*t}")
            e(f"v_dot2_f32_bf16 v{vST+2*t+1}, v{r}, v{r}, v{vST+2*t+1}")
nop(3)
red2x2(vST, vST+1, vST+1, vST+2, vST+3, vST+3)
e(f"ds_write_b128 v{vT2}, {vr(vST,4)}")
e(f"s_xor_b32 s{sT0}, s{sWAVE}, 1")
e(f"s_lshl_b32 s{sT0}, s{sT0}, 11")
e(f"s_add_u32 s{sT0}, s{sT0}, {VA}")
e(f"v_lshl_add_u32 v{vT3}, v{vT1}, 4, s{sT0}")
e("s_waitcnt lgkmcnt(0)")
prof(1)
barrier("c")
e(f"ds_read_b128 {vr(vE,4)}, v{vT3}")
for jj in range(4): e(f"ds_read_b64 {vr(vXR+2*jj,2)}, v{vK+jj}")
e(f"s_mov_b32 s{sT0}, 0x3f80")
e(f"s_mov_b32 s{sT1}, 0x3f800000")
e("s_waitcnt lgkmcnt(0)")
e(f"v_add_f32 v{vT4}, v{vE+2}, v{vST}")
e(f"v_add_f32 v{vT3}, v{vE+3}, v{vST+1}")
e(f"v_add_f32 v{vT6}, v{vE}, v{vST+2}")
e(f"v_mul_f32 v{vT6}, {f32(-1.0/512)}, v{vT6}")
mean_var(vT4, vT3)
e(f"v_add_f32 v{vT3}, {f32(1e-5)}, v{vT3}")
e(f"v_rsq_f32 v{vSC}, v{vT3}")
e(f"v_rsq_f32 v{vSC+1}, v{vT3}")
for c in range(8):
    for i in range(8):
        m_ = vT6 if (i >> 2) & 1 else vT4
        e(f"v_dot2_f32_bf16 v{vE+2*i}, v{vA+8*c+i}, s{sT0}, v{m_}")
        e(f"v_dot2_f32_bf16 v{vE+2*i+1}, v{vA+8*c+i}, s{sT1}, v{m_}")
    nop(1)
    for i in range(8): e(f"v_cvt_pk_bf16_f32 v{vA+8*c+i}, v{vE+2*i}, v{vE+2*i+1}")
    if c == 6:
        barrier("c")
        pre()
prof(30)
call_pass()
scalepack(vK)
e(f"v_lshlrev_b32 v{vT2}, 7, v{vT1}")
e(f"v_lshl_add_u32 v{vT2}, v{vT0}, 5, v{vT2}")
e(f"s_cmp_eq_u32 s{sWAVE}, 3")
e("s_cbranch_scc0 L_k3d")
e(f"buffer_store_dwordx4 {vr(vK,4)}, v{vL16}, {sr(sWS,4)}, s{sHKO} offen sc1")
e(f"buffer_store_dwordx4 {vr(vK+4,4)}, v{vL16}, {sr(sWS,4)}, s{sHKO} offen offset:1024 sc1")
e(f"s_mov_b32 s{sPUBV}, 1")
e("s_mov_b64 vcc, -1")
lab("L_k3d")
e(f"s_cselect_b32 s{sT1}, 16, 1")
barrier("c")
e(f"s_mul_i32 s{sT0}, s{sWAVE}, {KSZ}")
e(f"s_add_u32 s{sT0}, s{sT0}, {KA+KSZ-256}")
e(f"v_cmp_lt_u32 {sr(sM0,2)}, s{sT1}, v{vT1}")
e(f"v_add_u32 v{vT2}, s{sT0}, v{vT2}")
e(f"v_mov_b32 v{vT3}, {LOOB}")
e(f"v_cndmask_b32 v{vX1P}, v{vT3}, v{vT2}, {sr(sM0,2)}")
e(f"v_bfe_u32 v{vT2}, v{vT1}, 1, 2")
e(f"v_lshlrev_b32 v{vT2}, 1, v{vT2}")
e(f"v_lshrrev_b32 v{vT3}, 1, v{vT0}")
e(f"v_xor_b32 v{vT2}, v{vT2}, v{vT3}")
e(f"v_lshlrev_b32 v{vT2}, 4, v{vT2}")
e(f"v_lshl_add_u32 v{vT2}, v{vT1}, 7, v{vT2}")
e(f"v_and_b32 v{vT3}, 1, v{vT0}")
e(f"v_lshl_add_u32 v{vHP}, v{vT3}, 3, v{vT2}")
for h in range(1, 4): e(f"v_xor_b32 v{vHP+h}, {h<<5}, v{vHP}")
e(f"s_lshl_b32 s{sT0}, s{sWAVE}, 11")
e(f"s_add_u32 s{sT0}, s{sT0}, {VA}")
for h in range(4): e(f"v_add_u32 v{vHP+4+h}, s{sT0}, v{vHP+h}")
prof(2)
call_pass()
scalepack(vPK)
for h in range(4): e(f"ds_write_b64 v{vHP+4+h}, {vr(vPK+2*h,2)}")
e(f"ds_write_b128 v{vX1P}, {vr(vK,4)}")
e(f"ds_write_b128 v{vX1P}, {vr(vK+4,4)} offset:16")
e(f"s_cmp_eq_u32 s{sWAVE}, 3")
e("s_cbranch_scc0 L_v3d")
for i in range(2): e(f"buffer_store_dwordx4 {vr(vPK+4*i,4)}, v{vL16}, {sr(sWS,4)}, s{sHKO} offen offset:{2048+1024*i} sc1")
e(f"s_mov_b32 s{sPUBV}, 0x100")
e("s_mov_b64 vcc, -1")
lab("L_v3d")
e(f"v_max_u32 v{vT2}, 2, v{vT1}")
e(f"v_lshlrev_b32 v{vT2}, 7, v{vT2}")
e(f"v_lshl_add_u32 v{vT2}, v{vT0}, 5, v{vT2}")
e(f"s_mul_i32 s{sT1}, s{sWAVE}, {KSZ}")
e(f"s_add_u32 s{sT1}, s{sT1}, {KA-256}")
e(f"v_add_u32 v{vT2}, s{sT1}, v{vT2}")
e(f"s_sub_u32 s{sT1}, s{sT0}, 2048")
e(f"s_cmp_eq_u32 s{sWAVE}, 0")
e(f"s_cselect_b32 s{sT1}, {XB}, s{sT1}")
e(f"s_cselect_b32 s{sT3}, 1, 0")
for h in range(4):
    e(f"v_add_u32 v{vHP+h}, s{sT0}, v{vB+h}")
    e(f"v_add_u32 v{vHP+4+h}, s{sT1}, v{vB+h}")
e("s_waitcnt lgkmcnt(0)")
barrier("c")
prof(3)
call_pass()
KP, VP, VO, SO, SP_ = vA, vA+8, vA+16, vA+24, vA+40
e(f"ds_write_b32 v{vW1}, v{vBIT} offset:{C_ACK}")
for h in range(4): e(f"ds_read_b64_tr_b16 {vr(VO+2*h,2)}, v{vHP+h}")
scalepack(vPK)
l = uid("kv"); d = l+"_d"
lab(l)
e(f"ds_read_b32 v{vT7}, v{vCB} offset:{C_KV}")
e(f"ds_read_b128 {vr(KP,4)}, v{vT2}")
e(f"ds_read_b128 {vr(KP+4,4)}, v{vT2} offset:16")
for h in range(4):
    e(f"v_mfma_f32_16x16x16_bf16 {vr(SO+4*h,4)}, {vr(vK+2*h,2)}, {vr(vPK+2*h,2)}, 0")
e("s_waitcnt lgkmcnt(0)")
e(f"v_readfirstlane_b32 s{sT2}, v{vT7}")
e(f"s_cmp_ge_u32 s{sT2}, s{sT3}")
e(f"s_cbranch_scc0 {spin(l, d)}")
lab(d)
for h in range(4):
    e(f"v_mfma_f32_16x16x16_bf16 {vr(SP_+4*h,4)}, {vr(KP+2*h,2)}, {vr(vPK+2*h,2)}, 0")
prof(4)
nop(4)
X = vE
for h in range(4):
    e(f"v_cndmask_b32 v{X+4*h}, v{SO+4*h}, v{SO+4*h+1}, {sr(sODD,2)}")
    e(f"v_cndmask_b32 v{X+4*h+1}, v{SO+4*h+2}, v{SO+4*h+3}, {sr(sODD,2)}")
for h in range(4):
    e(f"v_cndmask_b32 v{X+4*h+2}, v{SP_+4*h}, v{SP_+4*h+1}, {sr(sODD,2)}")
    e(f"v_cndmask_b32 v{X+4*h+3}, v{SP_+4*h+2}, v{SP_+4*h+3}, {sr(sODD,2)}")
for h in range(4):
    for i in range(4): e(f"v_fma_f32 v{X+4*h+i}, v{X+4*h+i}, s{sCEXP}, v{BI+i}")
M = vE+16; M2 = vE+20
for h in range(4): e(f"v_max3_f32 v{M+h}, v{X+4*h}, v{X+4*h+1}, v{X+4*h+2}")
for h in range(4): e(f"v_max_f32 v{M+h}, v{M+h}, v{X+4*h+3}")
def allred(op):
    for h in range(4): e(f"v_mov_b32 v{M2+h}, v{M+h}")
    nop(1)
    for h in range(4): e(f"v_permlane16_swap_b32 v{M+h}, v{M2+h}")
    for h in range(4): e(f"{op} v{M+h}, v{M+h}, v{M2+h}")
    for h in range(4): e(f"v_mov_b32 v{M2+h}, v{M+h}")
    nop(1)
    for h in range(4): e(f"v_permlane32_swap_b32 v{M+h}, v{M2+h}")
    for h in range(4): e(f"{op} v{M+h}, v{M+h}, v{M2+h}")
allred("v_max_f32")
for h in range(4):
    for i in range(4): e(f"v_sub_f32 v{X+4*h+i}, v{X+4*h+i}, v{M+h}")
for i in range(16): e(f"v_exp_f32 v{X+i}, v{X+i}")
for h in range(4): e(f"v_add_f32 v{M+h}, v{X+4*h}, v{X+4*h+1}")
for h in range(4): e(f"v_add_f32 v{M2+h}, v{X+4*h+2}, v{X+4*h+3}")
for h in range(4): e(f"v_add_f32 v{M+h}, v{M+h}, v{M2+h}")
allred("v_add_f32")
for h in range(4): e(f"v_rcp_f32 v{M+h}, v{M+h}")
lv_ = uid("vv")
e(f"s_lshl_b32 s{sT3}, s{sT3}, 1")
lab(lv_)
e(f"ds_read_b32 v{vT7}, v{vCB} offset:{C_KV}")
for h in range(4): e(f"ds_read_b64_tr_b16 {vr(VP+2*h,2)}, v{vHP+4+h}")
e("s_cbranch_vccnz "+lv_+"_w")
for h in range(4):
    for i in range(4): e(f"v_mul_f32 v{X+4*h+i}, v{X+4*h+i}, v{M+h}")
for h in range(4):
    e(f"v_cvt_pk_bf16_f32 v{M+h}, v{X+4*h}, v{X+4*h+1}")
    e(f"v_cvt_pk_bf16_f32 v{M2+h}, v{X+4*h+2}, v{X+4*h+3}")
for h in range(4):
    e(f"v_perm_b32 v{SO+2*h}, v{M+h}, v{M+h}, v{SEL}")
    e(f"v_perm_b32 v{SO+2*h+1}, v{M+h}, v{M+h}, v{SEL+1}")
    e(f"v_perm_b32 v{SP_+2*h}, v{M2+h}, v{M2+h}, v{SEL}")
    e(f"v_perm_b32 v{SP_+2*h+1}, v{M2+h}, v{M2+h}, v{SEL+1}")
nop(2)
OA = vE
for h in range(4):
    e(f"v_mfma_f32_16x16x16_bf16 {vr(OA+4*h,4)}, {vr(VO+2*h,2)}, {vr(SO+2*h,2)}, 0")
lab(lv_+"_w")
e("s_waitcnt lgkmcnt(0)")
e(f"v_readfirstlane_b32 s{sT2}, v{vT7}")
e("s_mov_b64 vcc, -1")
e(f"s_cmp_ge_u32 s{sT2}, s{sT3}")
e(f"s_cbranch_scc0 {spin(lv_, lv_+'_d')}")
lab(lv_+"_d")
e("s_mov_b64 vcc, 0")
for h in range(4):
    e(f"v_mfma_f32_16x16x16_bf16 {vr(OA+4*h,4)}, {vr(VP+2*h,2)}, {vr(SP_+2*h,2)}, {vr(OA+4*h,4)}")
nop(2)
def pack(dst):
    for i in range(8): e(f"v_cvt_pk_bf16_f32 v{dst+i}, v{vE+2*i}, v{vE+2*i+1}")
def store_act(pk, base):
    e(f"s_add_u32 s{sT0}, s{sDST}, {base}")
    e(f"buffer_store_dwordx4 {vr(pk,4)}, v{vL16}, {sr(sWS,4)}, s{sT0} offen sc1")
    e(f"buffer_store_dwordx4 {vr(pk+4,4)}, v{vL16}, {sr(sWS,4)}, s{sT0} offen offset:1024 sc1")
nop(3)
pack(vPK)
store_act(vPK, WS_O)
pubn = [0]
def publish(younger=0):
    f = pubn[0]; pubn[0] += 1
    if f in (1, 2): prof(21+f)
    e(f"s_waitcnt vmcnt({younger})")
    e(f"buffer_atomic_add v{vBIT+(f&1)}, v{vFLO}, {sr(sWS,4)}, s{sFLOFF} offen offset:{4*(f>>1)} sc1")
def loada(sgs=(0, 1)):
    for ksl in range(8):
        if ksl >> 2 not in sgs: continue
        for tsel in range(2):
            e(f"buffer_load_dwordx4 {vr(vA+8*ksl+4*tsel,4)}, v{vLA+2*(ksl>>2)+tsel}, {sr(sWS,4)}, s{sOFFA} offen offset:{1024*(ksl&3)} sc1")
def set_offa(base):
    e(f"s_lshl_b32 s{sOFFA}, s{sUNIT}, 15")
    e(f"s_add_u32 s{sOFFA}, s{sOFFA}, {base}")
def set_stats_off(base):
    e(f"s_lshl_b32 s{sT3}, s{sTILE}, 10")
    e(f"s_add_u32 s{sT3}, s{sT3}, {base}")
def load_stats(): e(f"buffer_load_dwordx4 {vr(vST,4)}, v{vL16}, {sr(sWS,4)}, s{sT3} offen sc1")
def consume_stats():
    e("s_waitcnt vmcnt(8)")
    e(f"v_add_f32 v{vT4}, v{vST}, v{vST+2}")
    e(f"v_add_f32 v{vT3}, v{vST+1}, v{vST+3}")
    nop(2)
    red2(vT4, vT3, vT3)
    mean_var(vT4, vT3)
def store_stats(pk, base):
    e(f"v_mov_b32 v{vST}, 0")
    e(f"v_mov_b32 v{vST+1}, 0")
    for i in range(8):
        e(f"v_dot2_f32_bf16 v{vST}, v{pk+i}, s{sONES}, v{vST}")
        e(f"v_dot2_f32_bf16 v{vST+1}, v{pk+i}, v{pk+i}, v{vST+1}")
    e(f"s_mov_b32 s{sT0}, {base}")
    nop(2)
    red2(vST, vST+1, vST+1)
    e(f"buffer_store_dwordx2 {vr(vST,2)}, v{vSTO}, {sr(sWS,4)}, s{sT0} offen sc1")
def unpack(dst, src, n):
    for i in range(n):
        e(f"v_lshlrev_b32 v{dst+2*i}, 16, v{src+i}")
        e(f"v_and_b32 v{dst+2*i+1}, 0xffff0000, v{src+i}")
def wait_bits(f, mask_s, shift, nb=None, first=True):
    l = uid("rdy"); d = l+"_d"; c = l+"_c"
    sh = 16*(f & 1) + shift
    if isinstance(mask_s, int): e(f"s_mov_b32 s{sT0}, {mask_s << sh}")
    else: e(f"s_lshl_b32 s{sT0}, s{mask_s}, {sh}")
    if nb is not None: e(f"s_lshl_b32 s{sT1}, s{nb}, {sh}")
    if not first: e(f"s_branch {c}")
    lab(l)
    e(f"s_mov_b32 s{sFLW}, 0")
    if nb is not None: e(f"s_mov_b32 s{sFB}, 0")
    e(f"s_atomic_add s{sFLW}, {sr(pWSP,2)}, s{sFLW+1} glc")
    if nb is not None: e(f"s_atomic_add s{sFB}, {sr(pWSP,2)}, s{sNBO} glc")
    e("s_waitcnt lgkmcnt(0)")
    lab(c)
    e(f"s_andn2_b32 s{sT2}, s{sT0}, s{sFLW}")
    if nb is not None:
        e(f"s_andn2_b32 s{sFB+1}, s{sT1}, s{sFB}")
        e(f"s_or_b32 s{sT2}, s{sT2}, s{sFB+1}")
    e(f"s_cbranch_scc1 {spin(l, d)}")
    lab(d)
def set_word(f): e(f"s_add_u32 s{sFLW+1}, s{sFLOFF}, {4*(f>>1)}")
def cs_check():
    l = uid("cs"); d = l+"_d"
    lab(l+"_c")
    e(f"v_min_u32 v{vCF}, v{vCF}, v{vCF+1}")
    nop(1)
    e(f"v_readfirstlane_b32 s{sT0}, v{vCF}")
    e(f"s_cmp_ge_u32 s{sT0}, 1")
    e(f"s_cbranch_scc0 {l}")
    lab(d)
    cs_retries.append((l, d))
cs_retries = []
zero(vACP, 16)
set_offa(WS_O)
set_word(0)
e(f"s_mov_b32 s{sTAIL}, 1")
unpack(vACC, vXR, 8)
publish()
barrier("c")
pre()
prof(5)
wait_bits(0, sMK0, 0)
prof(6)
loada((0,))
wait_bits(0, sMK0, 8, None, False)
loada((1,))
call_pass("L_pass64b", False)
prof(7)
pack(vHP)
store_act(vHP, WS_H)
store_stats(vHP, WS_HS)
set_offa(WS_H)
set_stats_off(WS_HS)
publish()
barrier("c")
pre()
prof(8)
wait_bits(1, sMK0, 0)
prof(9)
loada((0,))
wait_bits(1, 0xffff, 0, None, False)
load_stats()
loada((1,))
consume_stats()
e(f"v_add_f32 v{vT2}, {f32(1e-5)}, v{vT3}")
e(f"v_rsq_f32 v{vR1}, v{vT2}")
e(f"v_mov_b32 v{vNMH}, v{vT4}")
e(f"v_mul_f32 v{vT3}, v{vT3}, v{vR1}")
e(f"v_fmaak_f32 v{vT3}, v{vT3}, v{vR1}, {f32(1e-5)}")
e(f"v_rsq_f32 v{vT3}, v{vT3}")
e(f"v_mov_b32 v{vNMH+1}, v{vT4}")
e(f"v_mul_f32 v{vSC}, v{vT3}, v{vR1}")
e(f"v_mul_f32 v{vSC+1}, v{vT3}, v{vR1}")
e(f"v_mov_b32 v{vR1+1}, v{vR1}")
e(f"v_mul_f32 v{vMS}, v{vT4}, v{vSC}")
e(f"v_mul_f32 v{vMS+1}, v{vT4}, v{vSC}")
e(f"s_mov_b32 s{sCNT}, 0")
call_pass("L_pass64", False)
prof(10)
cs_check()
e(f"s_call_b64 {sr(sRET2,2)}, L_gelu")
e(f"s_lshl_b32 s{sT0}, s{sJ}, 11")
e(f"s_add_u32 s{sT0}, s{sT0}, {WS_H1}")
e(f"buffer_store_dwordx4 {vr(vPK,4)}, v{vHS}, {sr(sWS,4)}, s{sT0} offen sc1")
e(f"buffer_store_dwordx4 {vr(vPK+4,4)}, v{vHS}, {sr(sWS,4)}, s{sT0} offen offset:1024 sc1")
e(f"v_mov_b32 v{vT6}, {OOB}")
e(f"s_lshl_b32 s{sT2}, s{sKH}, 1")
e(f"s_sub_u32 s{sT2}, s{sT2}, 1")
e(f"s_movk_i32 s{sT3}, 0x800")
for sg in range(2):
    for tsel in range(2):
        if tsel: e(f"s_xor_b32 s{sT0}, s{sTILE}, 1")
        e(f"s_lshl_b32 s{sT0}, s{sT0 if tsel else sTILE}, 4")
        e(f"s_add_u32 s{sT0}, s{sT0}, s{sT2}")
        if sg: e(f"s_add_u32 s{sT0}, s{sT0}, s{sT2}")
        e(f"v_add_u32 v{vT2}, s{sT0}, v{vT1}")
        e(f"v_cmp_gt_u32 {sr(sM0,2)}, s{sT3}, v{vT2}")
        nop(2)
        e(f"v_cndmask_b32 v{vLA+2*sg+tsel}, v{vT6}, v{vLA+2*sg+tsel}, {sr(sM0,2)}")
unpack(vACC, vHP, 8)
for i in range(8): e(f"v_pk_add_f32 {vr(vACC+2*i,2)}, {vr(vACC+2*i,2)}, {vr(vNMH,2)}")
for i in range(8): e(f"v_pk_mul_f32 {vr(vACC+2*i,2)}, {vr(vACC+2*i,2)}, {vr(vR1,2)}")
zero(vACP, 16)
e(f"s_lshl_b32 s{sT0}, s{sT2}, 7")
e(f"s_add_u32 s{sNBO}, s{sFLOFF}, s{sT0}")
e(f"s_add_u32 s{sT0}, s{sUNIT}, s{sT2}")
e(f"s_cmp_gt_u32 s{sT0}, 63")
e(f"s_cselect_b32 s{sNBO}, s{sFLOFF}, s{sNBO}")
e(f"s_add_u32 s{sNBO}, s{sNBO}, 4")
e(f"s_cmp_eq_u32 s{sKH}, 0")
e(f"s_cselect_b32 s{sCSN}, 0x0a, 0x50")
set_word(2)
set_offa(WS_H1)
e(f"v_add_u32 v{vCSR}, 256, v{vCSR}")
publish()
barrier("c")
pre()
prof(11)
wait_bits(2, sMK0, 0, sCSN)
prof(12)
loada((0,))
wait_bits(2, sMK0, 8, sCSN, False)
loada((1,))
call_pass("L_pass64b", False)
prof(13)
pack(vX1P)
store_act(vX1P, WS_X1)
store_stats(vX1P, WS_X1S)
e(f"s_mov_b32 s{sTAIL}, 0")
set_la(16384)
e(f"s_mul_i32 s{sDST}, s{sTILE}, {GT}")
e(f"s_lshl_b32 s{sT1}, s{sJ}, 11")
e(f"s_add_u32 s{sDST}, s{sDST}, s{sT1}")
set_offa(WS_X1)
set_stats_off(WS_X1S)
publish()
barrier("c")
pre()
prof(14)
wait_bits(3, sMK0, 0)
prof(15)
loada((0,))
wait_bits(3, 0xffff, 0, None, False)
load_stats()
loada((1,))
consume_stats()
e(f"v_add_f32 v{vT2}, {f32(1e-5)}, v{vT3}")
e(f"v_rsq_f32 v{vSC}, v{vT2}")
e(f"v_rsq_f32 v{vSC+1}, v{vT2}")
e(f"v_mul_f32 v{vMS}, v{vT4}, v{vSC}")
e(f"v_mul_f32 v{vMS+1}, v{vT4}, v{vSC}")
for p in range(3):
    call_pass()
    if p: publish()
    if not OPT.get('dl'): prof(24+2*p)
    if p == 2:
        for jj in range(2): e(f"v_add_u32 v{vW+jj}, s{sPAR}, v{vB32+jj}")
        pre(True, 32768)
    e(f"v_add_u32 v{vCSR}, {256 if p != 1 else -256}, v{vCSR}")
    e(f"s_call_b64 {sr(sRET2,2)}, L_gelu")
    if not OPT.get('dl'): prof(25+2*p)
    store_act(vPK, WS_G + 16384*p)
    prof(16+p)
lq = LQ([f"f{p}" for p in range(6) for h in range(2)])
for q in range(16):
    if q % 2 == 0: lq.need([f"f{q}", f"f{q+1}"])
    for t in (1, 0):
        e(mf_text(vWB+4*(q % 8), vA + 8*(q >> 1) + 4*t, (vACP if t else vACC) + 4*(q & 1), q < 2))
        if q+6 < 16: lq.op(f"f{q+6}", rd_text(vWB+4*((q+6) % 8), 1-t, q+6, True, 32768))
for jj in range(4): e(f"v_add_u32 v{vW+jj}, s{sPAR}, v{vB+jj}")
e(f"s_mov_b32 s{sCNT}, 1")
nop(2)
for i in range(2): e(T_W(i))
publish()
set_la(GT)
e(f"s_mul_i32 s{sOFFA}, s{sUNIT}, {2*GT}")
e(f"s_add_u32 s{sOFFA}, s{sOFFA}, {WS_G}")
QUADS = ([vA+4*i for i in range(16)] + [vXR+4*i for i in range(6)] + [vE+16+4*i for i in range(4)] + [vK, vK+4] + [vE+4*i for i in range(4)])[:OPT.get("nq", 24)]
NQ = len(QUADS)
gpolls = []
def gpoll():
    e(f"s_mov_b64 {sr(sFG,2)}, 0")
    e(f"s_atomic_add_x2 {sr(sFG,2)}, {sr(pWSP,2)}, s{sFLW+1} glc")
    e("s_waitcnt lgkmcnt(0)")
def gcheck(p):
    l = uid("g"); d = l+"_d"
    lab(d+"c")
    e(f"s_lshr_b32 s{sT0}, s{sFG+(p>>1)}, {16*(p&1)}")
    e(f"s_andn2_b32 s{sT0}, 0xffff, s{sT0}")
    e(f"s_cbranch_scc1 {l}")
    lab(d)
    gpolls.append((l, d))
def gload(m):
    ks, t = m >> 1, m & 1
    if ks % 8 == 0 and t == 0:
        p = ks // 8
        gcheck(p)
        if p: e(f"s_add_u32 s{sOFFA}, s{sOFFA}, 16384")
    e(f"buffer_load_dwordx4 {vr(QUADS[m % NQ],4)}, v{vLA+2*((ks>>2)&1)+t}, {sr(sWS,4)}, s{sOFFA} offen offset:{1024*(ks&3)} sc1")
set_word(4)
gpoll()
for m in range(16): gload(m)
barrier("c")
for i in range(2): e(T_R(i))
for i in range(2): e(T_C(i))
w4slot = lambda it: ((19 + it) & 3) * 16384
pre(False, w4slot(0))
e("s_waitcnt lgkmcnt(12)")
for i in range(4): e(f"v_pk_add_f32 {vr(vE+2*i,2)}, {vr(vACC+2*i,2)}, {vr(vE+2*i,2)}")
e(f"s_call_b64 {sr(sRET2,2)}, L_gelu")
e(f"s_lshl_b32 s{sT1}, s{sJ}, 10")
e(f"s_sub_u32 s{sT0}, s{sDST}, s{sT1}")
e(f"s_add_u32 s{sT0}, s{sT0}, {WS_G + 48*1024}")
e(f"buffer_store_dwordx4 {vr(vPK,4)}, v{vL16}, {sr(sWS,4)}, s{sT0} offen sc1")
unpack(vE, vHP, 8)
unpack(vE+16, vX1P, 8)
for i in range(8): e(f"v_pk_add_f32 {vr(vACC+2*i,2)}, {vr(vE+2*i,2)}, {vr(vE+16+2*i,2)}")
zero(vACP, 16)
prof(19)
for m in range(16, NQ): gload(m)
lq = LQ([f"f{p}" for p in range(6) for h in range(2)])
nissued = NQ
NP = 112
g3pub = [None]
for q in range(NP):
    ks = q >> 2
    vm = None
    extra = (1 if 2*ks+1 < 16 else 0) + (1 if g3pub[0] is not None and 2*ks+1 < g3pub[0] else 0)
    if q % 4 == 0: vm = nissued - (2*ks+2) + extra
    if q == 32:
        cmt("the last G store is older than everything waited for from here on")
        lq.need([f"f{q}", f"f{q+1}"], vm); vm = None
        publish(nissued - 16)
        g3pub[0] = nissued
    if q % 2 == 0: lq.need([f"f{q}", f"f{q+1}"], vm)
    if (q+6) % 16 == 0 and q+6 < NP:
        barrier("c")
    for t in range(2):
        e(mf_text(vWB+4*(q % 8), QUADS[(2*ks+t) % NQ], (vACP if t else vACC)+4*(q & 3)))
        if q+6 < NP: lq.op(f"f{q+6}", rd_text(vWB+4*((q+6) % 8), t, (q+6) & 15, False, w4slot((q+6) >> 4)))
        if (q & 3) in (1, 3) and t == 0 and ks >= 1 and nissued < 56:
            gload(nissued); nissued += 1
nop(8)
for i in range(4): e(T_W(i))
e("s_waitcnt lgkmcnt(0)")
barrier("c")
for i in range(4): e(T_R(i))
e("s_waitcnt lgkmcnt(0)")
for i in range(8): e(f"v_pk_add_f32 {vr(vE+2*i,2)}, {vr(vACC+2*i,2)}, {vr(vE+2*i,2)}")
prof(20)
pack(vPK)
nop(2)
for s in range(2):
    e(f"v_permlane16_swap_b32 v{vPK+4*s}, v{vPK+4*s+2}")
    e(f"v_permlane16_swap_b32 v{vPK+4*s+1}, v{vPK+4*s+3}")
e(f"buffer_store_dwordx4 {vr(vPK,4)}, v{vOUTO}, {sr(sOUT,4)}, 0 offen")
e(f"buffer_store_dwordx4 {vr(vPK+4,4)}, v{vOUTO}, {sr(sOUT,4)}, 0 offen offset:64")
prof(21)
prof_flush(True)
e("s_endpgm")
for l, d in gpolls:
    lab(l)
    gpoll()
    e(f"s_sub_u32 s{sBUD}, s{sBUD}, 1")
    e(f"s_cbranch_scc0 {d}c")
    e(f"s_mov_b32 s{sBUD}, 0")
    e(f"s_branch {d}")
for l, d in cs_retries:
    lab(l)
    e(f"ds_read_b64 {vr(vCF,2)}, v{vCB} offset:{C_CSF}")
    for i in range(4): e(T_C(i))
    e("s_waitcnt lgkmcnt(0)")
    e(f"s_sub_u32 s{sBUD}, s{sBUD}, 1")
    e(f"s_cbranch_scc0 {l}_c")
    e(f"s_mov_b32 s{sBUD}, 0")
    e(f"s_branch {d}")

gen_pass64()
align(); lab("L_gelu")
for half in range(2):
    Xr = vE + 8*half; c0 = vACP + 8*half; U = vE+16
    for i in range(4): e(f"v_pk_mul_f32 {vr(Xr+2*i,2)}, {vr(Xr+2*i,2)}, {vr(vSC,2)}")
    for i in range(4): e(f"v_pk_fma_f32 {vr(Xr+2*i,2)}, {vr(c0+2*i,2)}, {vr(vMS,2)}, {vr(Xr+2*i,2)}")
    for i in range(4): e(f"v_pk_mul_f32 {vr(U+2*i,2)}, {vr(Xr+2*i,2)}, {vr(Xr+2*i,2)}")
    for i in range(4): e(f"v_pk_fma_f32 {vr(U+2*i,2)}, {vr(U+2*i,2)}, {vr(vGB,2)}, {vr(vGA,2)}")
    for i in range(4): e(f"v_pk_mul_f32 {vr(U+2*i,2)}, {vr(U+2*i,2)}, {vr(Xr+2*i,2)}")
    for i in range(8): e(f"v_exp_f32 v{U+i}, v{U+i}")
    for i in range(4): e(f"v_pk_add_f32 {vr(U+2*i,2)}, {vr(U+2*i,2)}, {sr(sONE2,2)}")
    for i in range(8): e(f"v_rcp_f32 v{U+i}, v{U+i}")
    for i in range(4): e(f"v_pk_mul_f32 {vr(Xr+2*i,2)}, {vr(Xr+2*i,2)}, {vr(U+2*i,2)}")
    for i in range(4): e(f"v_cvt_pk_bf16_f32 v{vPK+4*half+i}, v{Xr+2*i}, v{Xr+2*i+1}")
    if half == 0:
        e(f"s_cmp_eq_u32 s{sCNT}, 1")
        e("s_cbranch_scc1 L_gelu_h")
lab("L_gelu_h")
e(f"s_setpc_b64 {sr(sRET2,2)}")

vCSW, vTL, vT3P, vTQ, vON, vIN = vXR, vXR+1, vXR+2, vXR+3, vXR+4, vHP
lab("L_service")
if MAP42:
    e(f"v_lshrrev_b32 v{vT2}, 2, v{vLANE}")
    e(f"v_and_b32 v{vT3}, 3, v{vLANE}")
    e(f"v_lshlrev_b32 v{vT4}, 7, v{vT3}")
    e(f"v_lshl_add_u32 v{vTL}, v{vT2}, 10, v{vT4}")
    e(f"v_mul_u32_u24 v{vTQ}, 3072, v{vT2}")
    e(f"v_add_u32 v{vTQ}, v{vTQ}, v{vT4}")
    e(f"v_min_u32 v{vT2}, 13, v{vT1}")
    e(f"v_lshlrev_b32 v{vT2}, 7, v{vT2}")
    e(f"v_mul_u32_u24 v{vT3P}, 3584, v{vT0}")
    e(f"v_add_u32 v{vT3P}, v{vT3P}, v{vT2}")
    e(f"s_lshl_b32 s{sT0}, s{sHF}, 9")
    e(f"s_lshl_b32 s{sTA}, s{sR32}, 14")
    e(f"s_add_u32 s{sTA}, s{sTA}, s{sT0}")
    e(f"s_mul_i32 s{sTC}, s{sR32}, {16*3072}")
    e(f"s_add_u32 s{sTC}, s{sTC}, s{sT0}")
    e(f"s_mul_i32 s{sTB}, s{sR32}, {4*3584}")
    e(f"s_mul_i32 s{sT0}, s{sHF}, 1792")
    e(f"s_add_u32 s{sTB}, s{sTB}, s{sT0}")
else:
    e(f"v_lshlrev_b32 v{vTL}, 7, v{vLANE}")
    e(f"v_lshrrev_b32 v{vT2}, 3, v{vLANE}")
    e(f"v_and_b32 v{vT3}, 7, v{vLANE}")
    e(f"v_mul_u32_u24 v{vTQ}, 3072, v{vT2}")
    e(f"v_lshl_add_u32 v{vTQ}, v{vT3}, 7, v{vTQ}")
    e(f"s_lshl_b32 s{sTA}, s{sR32}, 13")
    e(f"s_mul_i32 s{sTC}, s{sR32}, {8*3072}")
e(f"s_cmp_ge_u32 s{sWAVE}, 6")
e("s_cbranch_scc1 L_loader")
lab("L_helper")
tr_bases()
e(f"s_lshl_b32 s{sT0}, s{sKH}, 6")
e(f"v_xor_b32 v{vB}, s{sT0}, v{vB}")
e(f"v_xor_b32 v{vB+1}, s{sT0}, v{vB+1}")
e(f"s_lshl_b32 s{sT1}, s{sKH}, 5")
e(f"v_xor_b32 v{vB32}, s{sT1}, v{vB32}")
e(f"v_lshlrev_b32 v{vT2}, 4, v{vT0}")
e(f"v_add_u32 v{vCSW}, {CSA}, v{vT2}")
e(f"s_mov_b32 s{sM1}, 0x00010001")
e(f"s_mov_b32 s{sM1+1}, 0x00010001")
for i in range(4): e(f"v_mov_b32 v{vON+i}, s{sONES}")
e("s_waitcnt lgkmcnt(0)")
e(f"s_mov_b32 s{sWS}, s{pWSP}")
e(f"s_mov_b32 s{sWS+1}, s{pWSP+1}")
tv = [vA+64]
def touch1(t):
    ptr, size, pat, soff_s, c = t
    e(f"s_mov_b32 s{sX}, s{ptr}")
    e(f"s_mov_b32 s{sX+1}, s{ptr+1}")
    e(f"s_mov_b32 s{sX+2}, {size}")
    e(f"s_add_u32 s{sT0}, s{soff_s}, {c}")
    e(f"buffer_load_dword v{tv[0]}, v{pat}, {sr(sX,4)}, s{sT0} offen")
    tv[0] += 1
def touches(lst, role, sleep):
    if role == "h" or not lst: return 0
    lst = list(lst)
    if len(lst) % 2: lst.append((lst[0][0], 0, lst[0][2], lst[0][3], 0))
    if sleep: e(f"s_sleep {sleep}")
    a_ = uid("ta"); b_ = uid("tb")
    e(f"s_cmp_lg_u32 s{sKH}, 0")
    e(f"s_cbranch_scc1 {a_}")
    for t in lst[0::2]: touch1(t)
    e(f"s_branch {b_}")
    lab(a_)
    for t in lst[1::2]: touch1(t)
    lab(b_)
    return len(lst)//2
TQ = lambda c: [(pWQKV, 512*3072, vTQ, sTC, c + i*32*8*3072) for i in range(2)]
T1 = lambda p: [(p, 512*1024, vTL, sTA, i*32*8192) for i in range(2)]
T3 = lambda a, b: [(pW3, 512*3584, vTL, sTA, i*32*8192) for i in range(a, b)]
T4 = lambda a, b: [(pW4, 1792*1024, vTL, sTA, i*32*8192) for i in range(a, b)]
if MAP42:
    TQ = lambda c: [(pWQKV, 512*3072, vTQ, sTC, c)]
    T1 = lambda p: [(p, 512*1024, vTL, sTA, 0)]
    T3 = lambda a, b: [(pW3, 512*3584, vT3P, sTB, i*32*4*3584) for i in range(a, b)]
    T4 = lambda a, b: [(pW4, 1792*1024, vTL, sTA, i*32*16384) for i in range(a, b)]
barrier("h")
e(f"s_lshl_b32 s{sT0}, s{sJ}, 3")
e(f"s_add_u32 s{sT0}, s{sT0}, s{sWAVE}")
e(f"s_cmp_lg_u32 s{sT0}, 4")
e(f"s_cbranch_scc1 L_nozero")
for i in range(4): e(f"v_mov_b32 v{vA+i}, 0")
e(f"s_lshl_b32 s{sT0}, s{sG}, 8")
e(f"s_lshl_b32 s{sT1}, s{sG}, 10")
e(f"s_add_u32 s{sT1}, s{sT1}, {WS_FL2-WS_FL-256}")
e(f"v_mov_b32 v{vT3}, s{sT0}")
e(f"v_mov_b32 v{vT4}, s{sT1}")
e(f"v_cmp_gt_u32 {sr(sM0,2)}, 2, v{vLANE}")
e(f"s_mov_b32 s{sT0}, {WS_FL}")
nop(1)
e(f"v_cndmask_b32 v{vT3}, v{vT4}, v{vT3}, {sr(sM0,2)}")
e(f"v_lshl_add_u32 v{vT3}, v{vLANE}, 7, v{vT3}")
e("s_mov_b64 exec, 0x3ff")
e(f"buffer_store_dwordx4 {vr(vA,4)}, v{vT3}, {sr(sWS,4)}, s{sT0} offen sc1")
e(f"s_lshl_b32 s{sT0}, s{sG}, 2")
e(f"v_mov_b32 v{vT2}, s{sT0}")
e(f"v_mov_b32 v{vT6}, 1")
e("s_mov_b64 exec, 1")
e("s_waitcnt vmcnt(0)")
e(f"global_store_dword v{vT2}, v{vT6}, {sr(pDBG,2)} offset:128 sc1")
e("s_mov_b64 exec, -1")
lab("L_nozero")
V_, Q_, WO_, W1_, W2_ = TQ(2048), TQ(0), T1(pWO), T1(pW1), T1(pW2)
K_ = TQ(1024)
SCH = {0: dict(s=K_, x=V_+Q_, b0=WO_, b1=W1_, b3=W2_, r1=T3(0,4), r2=T3(4,7), r3=T4(0,4), b9=T4(4,7)),
       1: dict(s=K_, x=V_+Q_, b0=WO_+W1_, b1=W2_+T3(0,2), r1=T3(2,5), r2=T3(5,7)+T4(0,2), r3=T4(2,5), b9=T4(5,7)),
       2: dict(s=K_+V_, x=Q_+WO_, b1=W1_+W2_, r1=T3(0,4), r2=T3(4,7), r3=T4(0,4), b9=T4(4,7)),
       3: dict(x=V_+Q_, b0=WO_, b1=W1_+W2_, r1=T3(0,4), r2=T3(4,7), r3=T4(0,4), b9=T4(4,7)),
       }[OPT.get("sch", 0) if not MAP42 else 0]
if MAP42:
    REST = dict(r1=T3(0,2), r2=T3(2,4), r3=T4(0,4))
    SCH = {0: dict(s=K_+V_, x=Q_, b0=WO_+W1_, b1=W2_, **REST),
           1: dict(s=K_, x=V_+Q_, b0=WO_+W1_, b1=W2_, **REST),
           2: dict(x=V_+Q_, b0=WO_+W1_, b1=W2_, **REST),
           3: dict(s=K_+V_, x=Q_+WO_+W1_+W2_, **REST),
           4: dict(s=K_, x=V_+Q_, b0=WO_+W1_, b1=W2_+T3(0,1), r1=T3(1,3), r2=T3(3,4)+T4(0,1), r3=T4(1,3), b9=T4(3,4)),
           }[OPT.get("sch", 0)]
for k_ in ("s", "x", "b0", "b1", "b3", "r1", "r2", "r3", "b9"): SCH.setdefault(k_, [])
TS0, TSL, TSL2 = OPT.get("t0sl", 6), OPT.get("tsl", 8), OPT.get("tsl2", 14)
touches(SCH["x"], "h", TS0)
def cs(base, slot, half=False):
    e(f"s_mov_b32 s{sT0}, {base}")
    e(f"s_call_b64 {sr(sRET,2)}, {'L_csh' if half else 'L_cs'}")
    e(f"s_lshl_b32 s{sT0}, s{sKH}, {6 if half else 7}")
    e(f"v_add_u32 v{vT2}, s{sT0}, v{vCSW}")
    e(f"s_mov_b64 exec, {sr(sM1,2)}")
    for i in range(1 if half else 2): e(f"ds_write_b128 v{vT2}, {vr(vACC+4*i,4)} offset:{256*slot+64*i}")
    e("s_mov_b64 exec, -1")
    e("s_waitcnt lgkmcnt(0)")
def halo_fetch(which, between=None):
    sk = uid("hf"); l = sk+"_l"; d = sk+"_d"
    e(f"s_cmp_lg_u32 s{sWAVE}, 5")
    e(f"s_cbranch_scc1 {sk}a")
    e(f"s_lshl_b32 s{sT0}, s{sG}, 3")
    e(f"s_add_u32 s{sT0}, s{sT0}, s{sJ}")
    e(f"s_sub_u32 s{sT0}, s{sT0}, 8")
    e(f"s_lshl_b32 s{sHKO}, s{sT0}, 12")
    e(f"s_add_u32 s{sHKO}, s{sHKO}, {WS_HK + 2048*which}")
    e(f"s_lshl_b32 s{sT0}, s{sT0}, 7")
    e(f"s_add_u32 s{sT0}, s{sT0}, {WS_FL2}")
    e(f"s_cmp_eq_u32 s{sG}, 0")
    e(f"s_cselect_b32 s{sHKO}, {OOB}, s{sHKO}")
    e(f"s_cbranch_scc1 {d}")
    lab(l)
    e(f"s_mov_b32 s{sM0}, 0")
    e(f"s_atomic_add s{sM0}, {sr(pWSP,2)}, s{sT0} glc")
    e("s_waitcnt lgkmcnt(0)")
    e(f"s_bitcmp1_b32 s{sM0}, {8*which}")
    e(f"s_cbranch_scc0 {spin(l, d)}")
    lab(d)
    e(f"buffer_load_dwordx4 {vr(vA,4)}, v{vL16}, {sr(sWS,4)}, s{sHKO} offen sc1")
    e(f"buffer_load_dwordx4 {vr(vA+4,4)}, v{vL16}, {sr(sWS,4)}, s{sHKO} offen offset:1024 sc1")
    lab(sk+"a")
    if between: between()
    e(f"s_cmp_lg_u32 s{sWAVE}, 5")
    e(f"s_cbranch_scc1 {sk}")
    if which:
        e(f"v_bfe_u32 v{vT2}, v{vT1}, 1, 2")
        e(f"v_lshlrev_b32 v{vT2}, 1, v{vT2}")
        e(f"v_lshrrev_b32 v{vT3}, 1, v{vT0}")
        e(f"v_xor_b32 v{vT2}, v{vT2}, v{vT3}")
        e(f"v_lshlrev_b32 v{vT2}, 4, v{vT2}")
        e(f"v_lshl_add_u32 v{vT2}, v{vT1}, 7, v{vT2}")
        e(f"v_and_b32 v{vT3}, 1, v{vT0}")
        e(f"v_lshl_add_u32 v{vT2}, v{vT3}, 3, v{vT2}")
        e(f"v_add_u32 v{vA+8}, {XB}, v{vT2}")
        for h in range(1, 4): e(f"v_xor_b32 v{vA+8+h}, {h<<5}, v{vA+8}")
    else:
        e(f"v_lshlrev_b32 v{vT2}, 7, v{vT1}")
        e(f"v_lshl_add_u32 v{vT2}, v{vT0}, 5, v{vT2}")
        e(f"v_cmp_lt_u32 {sr(sM0,2)}, 1, v{vT1}")
        e(f"v_add_u32 v{vT2}, {KA-256}, v{vT2}")
        e(f"v_mov_b32 v{vT4}, {LOOB}")
        e(f"v_cndmask_b32 v{vT2}, v{vT4}, v{vT2}, {sr(sM0,2)}")
    if which:
        cmt("wave 1 has finished reading wave 0's exchange buffer")
        l2 = uid("ak")
        lab(l2)
        e(f"ds_read_b32 v{vT7}, v{vCB} offset:{C_ACK+4}")
        e("s_waitcnt lgkmcnt(0)")
        e(f"v_readfirstlane_b32 s{sT0}, v{vT7}")
        e(f"s_cmp_lg_u32 s{sT0}, 0")
        e(f"s_cbranch_scc0 {spin(l2, l2+'_d')}")
        lab(l2+"_d")
    e(f"v_mov_b32 v{vT6}, {1+which}")
    e("s_waitcnt vmcnt(0)")
    if which:
        for h in range(4): e(f"ds_write_b64 v{vA+8+h}, {vr(vA+2*h,2)}")
    else:
        e(f"ds_write_b128 v{vT2}, {vr(vA,4)}")
        e(f"ds_write_b128 v{vT2}, {vr(vA+4,4)} offset:16")
    e("s_waitcnt lgkmcnt(0)")
    e(f"ds_write_b32 v{vCB}, v{vT6} offset:{C_KV}")
    lab(sk)
e(f"v_mov_b32 v{vT6}, 0")
e(f"v_min_u32 v{vT2}, 15, v{vLANE}")
e(f"v_lshl_add_u32 v{vT2}, v{vT2}, 2, v{vCB}")
e(f"ds_write_b32 v{vT2}, v{vT6}")
e("s_waitcnt lgkmcnt(0)")
barrier("h")
e(f"v_min_u32 v{vT2}, 2, v{vLANE}")
e(f"s_sub_u32 s{sT0}, s{sG}, 1")
e(f"v_add_u32 v{vT2}, s{sT0}, v{vT2}")
e(f"v_max_i32 v{vT2}, 0, v{vT2}")
e(f"v_min_u32 v{vT2}, 31, v{vT2}")
e(f"v_lshlrev_b32 v{vIN}, 2, v{vT2}")
e(f"s_cmp_eq_u32 s{sWAVE}, 4")
e("s_cbranch_scc1 L_in_n")
e(f"s_sleep {OPT.get('insl', 8)}")
e(f"global_load_dword v{vIN+1}, v{vIN}, {sr(pDBG,2)} offset:128")
lab("L_in_n")
barrier("h")
def mid():
    if MID: barrier("h")
mid()
barrier("h")
e(f"s_cmp_eq_u32 s{sWAVE}, 4")
e("s_cbranch_scc1 L_in_d")
e("s_branch L_in_chk")
lab("L_in_loop")
e("s_sleep 8")
e(f"global_load_dword v{vIN+1}, v{vIN}, {sr(pDBG,2)} offset:128 sc1")
lab("L_in_chk")
e("s_waitcnt vmcnt(0)")
e(f"v_cmp_eq_u32 {sr(sM0,2)}, 1, v{vIN+1}")
e(f"s_cmp_eq_u64 {sr(sM0,2)}, -1")
e(f"s_cbranch_scc0 {spin('L_in_loop', 'L_in_d')}")
lab("L_in_d")
barrier("h")
mid()
barrier("h")
barrier("h")
halo_fetch(0, mid)
barrier("h")
halo_fetch(1)
barrier("h")
barrier("h")
cs(0, 0)
e(f"s_lshl_b32 s{sT0}, s{sKH}, 2")
e(f"v_add_u32 v{vT2}, s{sT0}, v{vCB}")
e(f"v_mov_b32 v{vT6}, 1")
e(f"ds_write_b32 v{vT2}, v{vT6} offset:{C_CSF}")
barrier("h")
barrier("h")
cs(0, 1)
mid()
barrier("h")
cs(32768, 2)
mid()
barrier("h")
cs(0, 1)
mid()
barrier("h")
cs(32768, 2, True)
prof_flush()
e("s_endpgm")
for half in (False, True):
    lab("L_csh" if half else "L_cs")
    blocks = [(par, it) for par in range(2) for it in range(1 if half else 2)]
    for bi, (par, it) in enumerate(blocks):
        if it == 0:
            e(f"v_add_u32 v{vW}, s{sT0}, v{vB32 if half else vB}")
            if not half: e(f"v_add_u32 v{vW+1}, s{sT0}, v{vB+1}")
            e(f"s_add_u32 s{sT0}, s{sT0}, 65536")
        for i in range(8):
            for h in range(2):
                off = (i*2048 + 1024*h) if half else (it*16384 + (i >> 1)*4096 + 2048*h)
                e(f"ds_read_b64_tr_b16 {vr(vA+4*i+2*h,2)}, v{vW if half else vW+(i&1)} offset:{off}")
        for i in range(8):
            e(f"s_waitcnt lgkmcnt({14-2*i})")
            e(mf_text(vA+4*i, vON, vACC if (half or i % 2 == 0) else vACC+4, bi == 0 and i < (1 if half else 2)))
    nop(4)
    e(f"s_setpc_b64 {sr(sRET,2)}")

vPat, vP3072, vP1024, vP3584, vPH = 12, 13, 14, 15, 16
lab("L_loader")
e(f"s_setprio {OPT.get('lp', 2)}")
e(f"v_lshrrev_b32 v{vT2}, 3, v{vLANE}")
e(f"v_bfe_u32 v{vT3}, v{vT2}, 1, 2")
e(f"v_lshlrev_b32 v{vT3}, 1, v{vT3}")
e(f"v_and_b32 v{vT4}, 7, v{vLANE}")
e(f"v_xor_b32 v{vT3}, v{vT3}, v{vT4}")
e(f"v_lshlrev_b32 v{vT3}, 4, v{vT3}")
e(f"v_mul_u32_u24 v{vP3072}, 3072, v{vT2}")
e(f"v_add_u32 v{vP3072}, v{vP3072}, v{vT3}")
e(f"v_lshl_add_u32 v{vP1024}, v{vT2}, 10, v{vT3}")
e(f"v_mul_u32_u24 v{vP3584}, 3584, v{vT2}")
e(f"v_add_u32 v{vP3584}, v{vP3584}, v{vT3}")
e(f"v_lshrrev_b32 v{vT2}, 2, v{vLANE}")
e(f"v_bfe_u32 v{vT3}, v{vT2}, 2, 1")
e(f"v_lshlrev_b32 v{vT3}, 1, v{vT3}")
e(f"v_and_b32 v{vT4}, 3, v{vLANE}")
e(f"v_xor_b32 v{vT3}, v{vT3}, v{vT4}")
e(f"v_mul_u32_u24 v{vPH}, 3584, v{vT2}")
e(f"v_lshl_add_u32 v{vPH}, v{vT3}, 4, v{vPH}")
e(f"s_lshl_b32 s{sT2}, s{sJ}, 7")
e(f"s_mul_i32 s{sC3}, s{sJ}, 448")
e(f"s_and_b32 s{sT0}, s{sJ}, 1")
e(f"s_lshl_b32 s{sT1}, s{sT0}, 6")
e(f"s_xor_b32 s{sT0}, s{sT0}, 1")
e(f"s_mul_i32 s{sT0}, s{sT0}, 384")
e(f"s_add_u32 s{sCQ}, s{sC3}, s{sT0}")
e(f"s_add_u32 s{sC3}, s{sC3}, s{sT1}")
e("s_waitcnt lgkmcnt(0)")
e(f"s_mov_b32 s{sWS}, s{pWSP}")
e(f"s_mov_b32 s{sWS+1}, s{pWSP+1}")
cur = {}
issued = []
def setif(key, val, emit):
    if cur.get(key) != val:
        emit(); cur[key] = val
def issue(li):
    P, s_ = li // 2, li % 2
    if li < 18:
        if P <= 2: ptr, size, pat, rs, col, cc = pWQKV, 512*3072, vP3072, 3072, sT2, (1024, 2048, 0)[P]
        elif P <= 5: ptr, size, pat, rs, col, cc = (pWO, pW1, pW2)[P-3], 512*1024, vP1024, 1024, sT2, 0
        else: ptr, size, pat, rs, col, cc = pW3, 512*3584, vP3584, 3584, sC3, 128*(P-6)
        step, mid, kstr, c0 = 8*rs, 0, 128*rs, cc + 256*rs*s_
    elif li == 18:
        ptr, size, pat, col = pW3, 512*3584, vPH, sCQ
        step, mid, kstr, c0 = 16*3584, 128*3584, 128*3584, 0
    else:
        c = li - 19
        ptr, size, pat, col = pW4, 1792*1024, vP1024, sT2
        if c < 6: step, mid, kstr, c0 = 8192, 192*1024, 448*1024, (64*(c//2) + 896*(c%2))*1024
        else: step, mid, kstr, c0 = 8192, 384*1024, 896*1024, 192*1024
    def esrc():
        e(f"s_mov_b32 s{sW}, s{ptr}"); e(f"s_mov_b32 s{sW+1}, s{ptr+1}"); e(f"s_mov_b32 s{sW+2}, {size}")
    setif("ptr", ptr, esrc)
    setif("pat", pat, lambda: e(f"v_mov_b32 v{vPat}, v{pat}"))
    setif("step", step, lambda: e(f"s_mov_b32 s{sSTEP}, {step}"))
    setif("mid", mid, lambda: e(f"s_mov_b32 s{sMID}, {mid}"))
    setif("kstr", kstr, lambda: e(f"s_mul_i32 s{sT1}, s{sKH}, {kstr}"))
    e(f"s_add_u32 m0, s{sPAR}, {(li & 3)*16384}")
    e(f"s_add_u32 s{sSO}, s{col}, s{sT1}")
    if c0: e(f"s_add_u32 s{sSO}, s{sSO}, {c0}")
    e(f"s_call_b64 {sr(sRET,2)}, L_iss")
    issued.append(li)
def land(li):
    idx = issued.index(li)
    e(f"s_waitcnt vmcnt({sum(1 if x == 't' else 16 for x in issued[idx+1:])})")
def ltouch(key, sleep):
    issued.extend(["t"]*touches(SCH[key], "l", sleep))
ltouch("s", 0)
barrier("l")
issue(0); issue(1)
ltouch("x", OPT.get("tsd", 6))
if MID:
  sched = [(None, [], None), (1, [2, 3], "b0"),
         (None, [4], None), (3, [], None), (None, [5], "b1"),
         (None, [], None), (5, [], None), (None, [6, 7], "b3"),
         (None, [], None), (None, [], None), (7, [8, 9], "r1"),
         (9, [10, 11], "r2"), (11, [12, 13], "r3"), (13, [14, 15], None),
         (None, [16], None), (15, [17], "b9"),
         (None, [18], None), (17, [19], None),
         (None, [20], None), (18, [21], None),
         (19, [22], None),
         (20, [], None), (21, [23], None), (22, [24], None), (23, [25], None), (24, [], None), (25, [], None)]
else:
  sched = [(None, [], None), (1, [2, 3], "b0"),
         (3, [], None), (None, [4, 5], "b1"),
         (5, [], None), (None, [6, 7], "b3"),
         (None, [], None), (7, [8, 9], "r1"),
         (9, [10, 11], "r2"), (11, [12, 13], "r3"), (13, [14, 15], None),
         (15, [16, 17], "b9"), (17, [18, 19], None), (18, [20, 21], None),
         (19, [22], None),
         (20, [], None), (21, [23], None), (22, [24], None), (23, [25], None), (24, [], None), (25, [], None)]
for k, (nd, aft, tk) in enumerate(sched):
    if nd is not None: land(nd)
    prof(k+1)
    barrier("l")
    for li in aft: issue(li)
    if tk: ltouch(tk, OPT.get("tsr", 30) if tk[0] == "r" else OPT.get("tsd", 6))
prof_flush()
e("s_endpgm")
lab("L_iss")
for i in range(16):
    e(f"buffer_load_dwordx4 v{vPat}, {sr(sW,4)}, s{sSO} offen lds")
    if i < 15:
        e("s_add_u32 m0, m0, 1024")
        e(f"s_add_u32 s{sSO}, s{sSO}, s{sSTEP}")
    if i == 7: e(f"s_add_u32 s{sSO}, s{sSO}, s{sMID}")
e(f"s_setpc_b64 {sr(sRET,2)}")
emit_tails()
lab("L_end")
e("s_endpgm")
assert nbar["c"] == nbar["l"] + 1, nbar

out.append('.section .rodata,"a"')
out.append(".p2align 6")
out.append(f".amdhsa_kernel {NAME}_kernel")
out.append(f"  .amdhsa_next_free_vgpr {NVGPR}")
out.append("  .amdhsa_next_free_sgpr 100")
out.append(f"  .amdhsa_accum_offset {NVGPR}")
out.append("  .amdhsa_group_segment_fixed_size 0")
out.append("  .amdhsa_kernarg_size 88")
out.append("  .amdhsa_user_sgpr_count 2")
out.append("  .amdhsa_user_sgpr_kernarg_segment_ptr 1")
out.append("  .amdhsa_system_sgpr_workgroup_id_x 1")
out.append(".end_amdhsa_kernel")
dst = [a for a in sys.argv[1:] if not a.startswith("--")]
open(dst[0] if dst else "cdna_kernels/%s.s" % NAME, "w").write("\n".join(o for o in out if o is not None) + "\n")
```

```python
import sys, math, struct

NAME = "sequential_preLN__sliding_local_dilated__mixer_s_mlp__prompt"
PROF = "--prof" in sys.argv
OPT = {}
for a in sys.argv:
    if a.startswith("--") and "=" in a:
        k, v = a[2:].split("="); OPT[k] = int(v)

out = []
def e(s): out.append("    " + s)
def lab(s): out.append(s + ":")
def cmt(s): out.append("    ; " + s)
def align(): out.append(".p2align 3")
def nop(n):
    while n > 0:
        k = min(n, 16); e(f"s_nop {k-1}"); n -= k
def f32(x): return "0x%08x" % struct.unpack("<I", struct.pack("<f", x))[0]
def vr(a, n): return f"v[{a}:{a+n-1}]"
def sr(a, n): return f"s[{a}:{a+n-1}]"
_uid = [0]
def uid(p):
    _uid[0] += 1
    return f"L_{p}_{_uid[0]}"

WS_O, WS_H, WS_H1, WS_X1, WS_G = 0, 2<<20, 4<<20, 6<<20, 8<<20
WS_HS = 15<<20
WS_X1S = WS_HS + (128<<10)
WS_FL = WS_HS + (256<<10)
WS_FL2 = WS_FL + (8<<10)
WS_HK = 16<<20
WS_PROF = 17<<20
WS_SIZE = 18<<20
GT = 56*1024
OOB = 0x40000000
LOOB = 0x30000
XB = 131072
KA = XB + 16384
KSZ = 1792
VA = KA + 4*KSZ
CSA = VA + 4*2048
CB = CSA + 768
C_KV, C_CSF, C_XF, C_ACK = 0, 8, 16, 32
LDS_BYTES = 163840
assert CB + 64 <= LDS_BYTES and VA % 256 == 0

sWAVE = 3
sX, sWS, sOUT = 4, 8, 12
sW = 12
pX, pWQKV, pWO, pBX, pW1, pW2, pW3, pW4, pOUT, pDBG, pWSP = 16, 18, 20, 22, 24, 26, 28, 30, 32, 34, 36
sJ, sG, sUNIT, sTILE, sBUD, sCNT = 38, 39, 40, 41, 42, 43
sT0, sT1, sT2, sT3 = 44, 45, 46, 47
sRET, sRET2 = 48, 50
sONES, sCEXP, sPUBO, sPUBV = 52, 53, 54, 55
sFLW = 56
sODD = 58
sOFFA, sPAR, sDST, sFLOFF, sR32, sHF, sHKO, sKH = 60, 61, 62, 63, 64, 65, 66, 67
sM0, sM1 = 68, 70
sFB, sFG = 72, 74
sTAIL, sXSEQ, sMK0, sNBO, sCSN = 89, 90, 91, 92, 93
sONE2 = 76
sPT, sPIDX = 78, 80
sSO, sSTEP, sC3, sCQ, sTA, sTB, sTC, sMID = 81, 82, 83, 84, 85, 86, 87, 88
vLANE = 0
vT0, vT1, vT2, vT3, vT4, vP, vCB, vT6, vT7 = 1, 2, 3, 4, 5, 6, 7, 8, 9
vL16, vFLO = 10, 11
vB, vW, vB32 = 12, 16, 20
vSC, vR1 = 22, 24
vSTO, vOUTO, vXA, vXP = 26, 27, 28, 29
vGA = 30
vLA = 32
vXR, vHP, vX1P = 36, 44, 52
vST = 60
vA, vWB = 64, 128
vACC, vACP = 160, 176
vE = 192
vPK, vK = 224, 232
vMS, vGB, vNMH = 240, 242, 244
vCSR = 246
vW1, vXFP, vBIT, vCF = 248, 249, 250, 252
vHS = 254
vP2 = 247
NVGPR = 256

def prof(idx):
    if not PROF: return
    e(f"s_memrealtime {sr(sPT,2)}")
    e("s_memtime s[98:99]")
    e("s_waitcnt lgkmcnt(0)")
    e(f"v_writelane_b32 v{vP}, s{sPT}, {idx}")
    e(f"v_writelane_b32 v{vP}, s98, {idx+32}")
def prof_flush(dbg=False):
    if not PROF: return
    if dbg and OPT.get("dbgwg") is not None:
        l = uid("dbg")
        e(f"s_lshl_b32 s{sT0}, s2, 3")
        e(f"s_add_u32 s{sT0}, s{sT0}, s{sWAVE}")
        e(f"s_cmp_lg_u32 s{sT0}, {OPT['dbgwg']*8}")
        e(f"s_cbranch_scc1 {l}")
        e(f"v_readlane_b32 s{sT1}, v{vP}, 63")
        for k, idx in enumerate([0, 1, 30, 2, 3, 4, 5, 6, 8, 9, 11, 12, 14, 15, 19, 21]):
            e(f"v_readlane_b32 s{sT0}, v{vP}, {idx}")
            e(f"s_sub_u32 s{sT0}, s{sT0}, s{sT1}")
            e(f"v_writelane_b32 v{vT2}, s{sT0}, {k}")
        e(f"v_lshlrev_b32 v{vT0}, 2, v{vLANE}")
        e("s_mov_b64 exec, 0xffff")
        e(f"global_store_dword v{vT0}, v{vT2}, {sr(pDBG,2)}")
        e("s_mov_b64 exec, -1")
        lab(l)
    e(f"v_lshlrev_b32 v{vT0}, 2, v{vLANE}")
    if OPT.get("dp") is not None: e(f"v_mov_b32 v{vP}, v{vP2}")
    e(f"buffer_store_dword v{vP}, v{vT0}, {sr(sWS,4)}, s{sPIDX} offen")
tails = []
def spin(loop, done):
    tails.append((loop+"_s", loop, done))
    return loop+"_s"
def emit_tails():
    for s_, l, d in tails:
        lab(s_)
        e(f"s_sub_u32 s{sBUD}, s{sBUD}, 1")
        e(f"s_cbranch_scc0 {l}")
        e(f"s_mov_b32 s{sBUD}, 0")
        e(f"s_branch {d}")
    tails.clear()
def red2x2(a, b, t, a2, b2, t2):
    e(f"v_permlane16_swap_b32 v{a}, v{b}")
    e(f"v_permlane16_swap_b32 v{a2}, v{b2}")
    e(f"v_add_f32 v{a}, v{a}, v{b}")
    e(f"v_add_f32 v{a2}, v{a2}, v{b2}")
    e(f"v_mov_b32 v{t}, v{a}")
    e(f"v_mov_b32 v{t2}, v{a2}")
    nop(1)
    e(f"v_permlane32_swap_b32 v{a}, v{t}")
    e(f"v_permlane32_swap_b32 v{a2}, v{t2}")
    e(f"v_add_f32 v{a}, v{a}, v{t}")
    e(f"v_add_f32 v{a2}, v{a2}, v{t2}")
    e(f"v_mov_b32 v{t}, v{a}")
    e(f"v_mov_b32 v{t2}, v{a2}")
    nop(1)
    e(f"v_permlane16_swap_b32 v{a}, v{t}")
    e(f"v_permlane16_swap_b32 v{a2}, v{t2}")
def red2(a, b, t):
    e(f"v_permlane16_swap_b32 v{a}, v{b}")
    e(f"v_add_f32 v{a}, v{a}, v{b}")
    e(f"v_mov_b32 v{t}, v{a}")
    nop(2)
    e(f"v_permlane32_swap_b32 v{a}, v{t}")
    e(f"v_add_f32 v{a}, v{a}, v{t}")
    e(f"v_mov_b32 v{t}, v{a}")
    nop(2)
    e(f"v_permlane16_swap_b32 v{a}, v{t}")
def mean_var(vs, vq):
    e(f"v_mul_f32 v{vs}, {f32(-1.0/512)}, v{vs}")
    e(f"v_mul_f32 v{vq}, {f32(1.0/512)}, v{vq}")
    e(f"v_fma_f32 v{vq}, -v{vs}, v{vs}, v{vq}")
    e(f"v_max_f32 v{vq}, 0, v{vq}")
def zero(base, n):
    for i in range(n): e(f"v_mov_b32 v{base+i}, 0")
class LQ:
    def __init__(self, pend=()): self.q = list(pend)
    def op(self, id_, text): e(text); self.q.append(id_)
    def need(self, ids, vm=None):
        idx = max([i for i, x in enumerate(self.q) if x in ids], default=-1)
        parts = []
        if vm is not None: parts.append(f"vmcnt({vm})")
        if idx >= 0:
            parts.append(f"lgkmcnt({min(len(self.q)-1-idx, 15)})")
            self.q = self.q[idx+1:]
        if parts: e("s_waitcnt " + " ".join(parts))
def rd_text(buf, h, p, half_panel=False, base=0):
    if half_panel: off = ((p >> 1) & 7)*2048 + 1024*h; jj = p & 1
    else: off = (p >> 2)*4096 + 2048*h; jj = p & 3
    return f"ds_read_b64_tr_b16 {vr(buf+2*h,2)}, v{vW+jj} offset:{base+off}"
def mf_text(buf, areg, c, czero=False):
    return f"v_mfma_f32_16x16x32_bf16 {vr(c,4)}, {vr(buf,4)}, {vr(areg,4)}, {'0' if czero else vr(c,4)}"
def wtog(jj): e(f"v_xor_b32 v{vW+jj}, 0x8000, v{vW+jj}")
T_W = lambda i: f"ds_write_b128 v{vXA}, {vr(vACP+4*i,4)} offset:{1024*i}"
T_R = lambda i: f"ds_read_b128 {vr(vE+4*i,4)}, v{vXP} offset:{1024*i}"
T_C = lambda i: f"ds_read_b128 {vr(vACP+4*i,4)}, v{vCSR} offset:{64*i}"
def pre(half_panel=False, base=0):
    for p in range(6):
        for h in range(2): e(rd_text(vWB+4*p, h, p, half_panel, base))
nbar = {"c": 0, "h": 0, "l": 0}
def barrier(role, n=1, emit=True):
    if role == "h" and nbar[role] and nbar[role] < 32: prof(nbar[role])
    nbar[role] += n
    if emit: e("s_barrier")

DS = [18, 20, 22, 24, 26, 28, 30, 82]
def dst_(i):
    if OPT.get("dp") is not None: e(f"s_memtime {sr(DS[i],2)}")
ncall = [0]
MID = 0
def gen_pass64():
    buf = lambda q: (vE + 4*(q-16)) if 16 <= q < 24 else (vWB + 4*(q % 8))
    areg = lambda q, t: vA + 8*(q >> 2) + 4*t
    acc = lambda q, t: (vACP if t else vACC) + 4*(q & 3)
    lq = LQ([f"f{p}" for p in range(6) for h in range(2)])
    def RD(q, h, nxt=False):
        lq.op(("n" if nxt else "f")+str(q), rd_text(vWB+4*q if nxt else buf(q), h, q))
    pend = [(q, h) for q in range(4+6, 32) for h in range(2)]
    def dual(q, czero=False):
        for t in range(2):
            e(mf_text(buf(q), areg(q, t), acc(q, t), czero))
            if q < 4: RD(q+6, t)
            else:
                RD(*pend.pop(0))
                if q >= 10 and t == 0: RD(*pend.pop(0))
    def waitq(q, vm=None): lq.need([f"f{q}", f"f{q+1}"], vm)
    align(); lab("L_pass64b")
    save = list(lq.q)
    for q in range(4):
        if q % 2 == 0: waitq(q, 14 if q == 0 else None)
        dual(q)
    e("s_branch L_pass64_c")
    lq.q = save
    align(); lab("L_pass64")
    for q in range(4):
        if q % 2 == 0: waitq(q, 14 if q == 0 else None)
        dual(q, True)
    lab("L_pass64_c")
    dst_(1)
    for q in range(4, 16):
        if q % 2 == 0: waitq(q, 14-2*(q >> 2) if q % 4 == 0 else None)
        dual(q)
    dst_(2)
    if MID:
        lq.need(["f15"])
        e(f"s_bitcmp1_b32 s{sTAIL}, 0")
        e("s_cbranch_scc1 L_nomid")
        e("s_barrier")
        lab("L_nomid")
    todo = [lambda j=j: wtog(j) for j in range(4)]
    for q in range(16, 32):
        if q % 2 == 0: waitq(q, 14-2*(q >> 2) if q % 4 == 0 else None)
        e(mf_text(buf(q), areg(q, 1), acc(q, 1)))
        k = 0
        while pend and k < 2: RD(*pend.pop(0)); k += 1
        if q == OPT.get("ph", 28):
            e("s_cbranch_vccnz L_pubhook"); lab("L_pubret"); k += 1
        while not pend and todo and k < 1: todo.pop(0)(); k += 1
    assert not pend and not todo
    O = lambda q: e(mf_text(buf(q), areg(q, 0), acc(q, 0)))
    W = lambda i: lq.op(f"W{i}", T_W(i))
    dst_(3)
    e(f"s_bitcmp1_b32 s{sTAIL}, 0")
    e("s_cbranch_scc1 L_pass64_f")
    save = list(lq.q)
    O(16); O(17); O(18); O(19); W(0); O(20); O(21); W(1); O(22); O(23); W(2); O(24); O(25); W(3); O(26); O(27)
    dst_(4)
    lq.need(["W3"])
    dst_(5)
    e("s_barrier")
    dst_(6)
    O(28)
    for i in range(2): lq.op(f"R{i}", T_R(i))
    O(29)
    for i in range(2, 4): lq.op(f"R{i}", T_R(i))
    O(30); RD(0, 0, True); RD(0, 1, True)
    O(31); RD(1, 0, True); RD(1, 1, True)
    for i in range(4): lq.op(f"C{i}", T_C(i))
    for q in range(2, 6): RD(q, 0, True); RD(q, 1, True)
    lq.need(["R3"])
    for i in range(8): e(f"v_pk_add_f32 {vr(vE+2*i,2)}, {vr(vACC+2*i,2)}, {vr(vE+2*i,2)}")
    lq.need(["C3"])
    dst_(7)
    e(f"s_setpc_b64 {sr(sRET,2)}")
    lq.q = save
    align(); lab("L_pass64_f")
    O(16); e(f"s_add_u32 s{sXSEQ}, s{sXSEQ}, 1"); O(17); e(f"v_mov_b32 v{vT7}, s{sXSEQ}"); O(18); W(0); O(19); O(20); W(1); O(21); O(22); W(2); O(23); O(24); W(3)
    O(25)
    lq.need(["W3"])
    lq.op("X", f"ds_write_b32 v{vW1}, v{vT7} offset:{C_XF}")
    lq.op("CF", f"ds_read_b64 {vr(vCF,2)}, v{vCB} offset:{C_CSF}")
    O(26); lq.op("C0", T_C(0)); lq.op("C1", T_C(1)); O(27); lq.op("C2", T_C(2)); lq.op("C3", T_C(3))
    O(28); O(29)
    lq.op("F", f"ds_read_b32 v{vT6}, v{vXFP} offset:{C_XF}"); lq.op("R0", T_R(0))
    O(30); lq.op("R1", T_R(1)); lq.op("R2", T_R(2)); O(31); lq.op("R3", T_R(3))
    nop(2)
    lab("L_xf_w")
    e("s_waitcnt lgkmcnt(0)")
    e(f"v_readfirstlane_b32 s{sT0}, v{vT6}")
    for i in range(8): e(f"v_pk_add_f32 {vr(vE+2*i,2)}, {vr(vACC+2*i,2)}, {vr(vE+2*i,2)}")
    e(f"s_cmp_ge_u32 s{sT0}, s{sXSEQ}")
    e("s_cbranch_scc0 L_xf_r")
    lab("L_xf_d")
    e(f"s_setpc_b64 {sr(sRET,2)}")
    lab("L_xf_r")
    e(f"ds_read_b32 v{vT6}, v{vXFP} offset:{C_XF}")
    for i in range(4): e(T_R(i))
    e(f"s_sub_u32 s{sBUD}, s{sBUD}, 1")
    e("s_cbranch_scc0 L_xf_w")
    e(f"s_mov_b32 s{sBUD}, 0")
    e("s_branch L_xf_d")
    lab("L_pubhook")
    e(f"v_mov_b32 v{vT6}, s{sPUBV}")
    e("s_waitcnt vmcnt(0)")
    e(f"buffer_atomic_add v{vT6}, v{vFLO}, {sr(sWS,4)}, s{sPUBO} offen sc1")
    e("s_mov_b64 vcc, 0")
    e("s_branch L_pubret")
def call_pass(name="L_pass64", bar=True):
    dst_(0)
    e(f"s_call_b64 {sr(sRET,2)}, {name}")
    if OPT.get("dp") == ncall[0]:
        e("s_waitcnt lgkmcnt(0)")
        for i in range(8): e(f"v_writelane_b32 v{vP2}, s{DS[i]}, {i}")
    ncall[0] += 1
    if bar: barrier("c", 2 if MID else 1, False)
def scalepack(dst):
    for i in range(8): e(f"v_pk_mul_f32 {vr(vE+2*i,2)}, {vr(vE+2*i,2)}, {vr(vSC,2)}")
    for i in range(8): e(f"v_cvt_pk_bf16_f32 v{dst+i}, v{vE+2*i}, v{vE+2*i+1}")

hdr = open("cdna_kernels/%s.s.ref" % NAME).read().split("\n")
for l in hdr:
    if l.startswith("; Override"): break
    out.append(l)
out.append(f"; @launch grid=(256,1,1) block=(512,1,1) lds={LDS_BYTES}")
out.append('.amdgcn_target "amdgcn-amd-amdhsa--gfx950"')
out.append(".text")
out.append(f".globl {NAME}_kernel")
out.append(".p2align 8")
out.append(f".type {NAME}_kernel,@function")
lab(f"{NAME}_kernel")
if PROF: e("s_memrealtime s[96:97]")
if PROF: e("s_memrealtime s[96:97]")
e(f"s_getpc_b64 {sr(sM0,2)}")
lab("L_pc")
e(f"s_load_dwordx2 {sr(pX,2)}, s[0:1], 0")
e(f"s_cmp_ge_u32 s2, {OPT.get('cpn', 32)}")
e("s_cbranch_scc1 L_nocp")
e("v_lshlrev_b32 v1, 7, v0")
e(f"v_min_u32 v1, L_end-L_pc, v1")
e(f"global_load_dword v255, v1, {sr(sM0,2)}")
lab("L_nocp")
e("s_cmp_ge_u32 s2, 256")
e("s_cbranch_scc1 L_end")
e(f"s_load_dwordx2 {sr(18,2)}, s[0:1], 8")
e(f"s_load_dwordx4 {sr(20,4)}, s[0:1], 16")
e(f"s_load_dwordx8 {sr(24,8)}, s[0:1], 32")
e(f"s_load_dwordx4 {sr(32,4)}, s[0:1], 64")
e(f"s_load_dwordx2 {sr(36,2)}, s[0:1], 80")
e(f"v_lshrrev_b32 v1, 6, v0")
e(f"v_and_b32 v{vLANE}, 63, v0")
e(f"v_readfirstlane_b32 s{sWAVE}, v1")
MAP42 = OPT.get("map", 42) == 42
if MAP42:
    e(f"s_and_b32 s{sHF}, s2, 1")
    e(f"s_lshr_b32 s{sR32}, s2, 3")
    e(f"s_and_b32 s{sJ}, s{sR32}, 3")
    e(f"s_lshl_b32 s{sT0}, s{sHF}, 2")
    e(f"s_add_u32 s{sJ}, s{sJ}, s{sT0}")
    e(f"s_and_b32 s{sG}, s2, 6")
    e(f"s_lshl_b32 s{sG}, s{sG}, 2")
    e(f"s_lshr_b32 s{sT1}, s{sR32}, 2")
    e(f"s_add_u32 s{sG}, s{sG}, s{sT1}")
else:
    e(f"s_lshr_b32 s{sR32}, s2, 3")
    e(f"s_and_b32 s{sJ}, s{sR32}, 7")
    e(f"s_and_b32 s{sG}, s2, 7")
    e(f"s_lshl_b32 s{sG}, s{sG}, 2")
    e(f"s_lshr_b32 s{sT1}, s{sR32}, 3")
    e(f"s_add_u32 s{sG}, s{sG}, s{sT1}")
e(f"s_mov_b32 s{sBUD}, 0x80000")
e(f"s_and_b32 s{sKH}, s{sWAVE}, 1")
e(f"s_lshl_b32 s{sPAR}, s{sKH}, 16")
e(f"v_mov_b32 v{vCB}, {CB}")
e(f"v_lshlrev_b32 v{vL16}, 4, v{vLANE}")
e(f"v_lshrrev_b32 v{vT0}, 4, v{vLANE}")
e(f"v_and_b32 v{vT1}, 15, v{vLANE}")
e(f"s_mov_b32 s{sWS+2}, {WS_SIZE}")
e(f"s_mov_b32 s{sWS+3}, 0x00020000")
e(f"s_mov_b32 s{sX+3}, 0x00020000")
e(f"s_mov_b32 s{sOUT+3}, 0x00020000")
e(f"s_mov_b32 s{sONES}, 0x3f803f80")
if PROF:
    e(f"s_lshl_b32 s{sPIDX}, s2, 3")
    e(f"s_add_u32 s{sPIDX}, s{sPIDX}, s{sWAVE}")
    e(f"s_lshl_b32 s{sPIDX}, s{sPIDX}, 8")
    e(f"s_add_u32 s{sPIDX}, s{sPIDX}, {WS_PROF}")
    e(f"v_mov_b32 v{vP}, 0")
    e("s_waitcnt lgkmcnt(0)")
    e(f"v_writelane_b32 v{vP}, s96, 63")
e(f"s_cmp_ge_u32 s{sWAVE}, 4")
e("s_cbranch_scc1 L_service")

def tr_bases():
    e(f"v_lshrrev_b32 v{vT3}, 2, v{vLANE}")
    e(f"v_bfe_u32 v{vT4}, v{vT3}, 1, 2")
    e(f"v_lshlrev_b32 v{vT4}, 5, v{vT4}")
    e(f"v_and_b32 v{vT2}, 3, v{vLANE}")
    e(f"v_lshl_add_u32 v{vT4}, v{vT2}, 3, v{vT4}")
    e(f"v_lshl_add_u32 v{vB}, v{vT3}, 7, v{vT4}")
    for jj in range(1, 4): e(f"v_xor_b32 v{vB+jj}, {jj<<5}, v{vB}")
    e(f"v_and_b32 v{vT4}, 1, v{vT0}")
    e(f"v_lshlrev_b32 v{vT4}, 5, v{vT4}")
    e(f"v_lshl_add_u32 v{vT4}, v{vT2}, 3, v{vT4}")
    e(f"v_lshl_add_u32 v{vB32}, v{vT3}, 6, v{vT4}")
    e(f"v_xor_b32 v{vB32+1}, 32, v{vB32}")
e(f"s_lshl_b32 s{sTILE}, s{sG}, 2")
e(f"s_add_u32 s{sTILE}, s{sTILE}, s{sWAVE}")
e(f"s_lshr_b32 s{sUNIT}, s{sTILE}, 1")
e(f"s_mov_b32 s{sX+2}, {2<<20}")
e(f"s_lshl_b32 s{sT2}, s{sUNIT}, 15")
e(f"s_lshl_b32 s{sT0}, s{sKH}, 8")
e(f"s_add_u32 s{sT2}, s{sT2}, s{sT0}")
e(f"s_lshr_b32 s{sT3}, s{sWAVE}, 1")
e(f"s_lshl_b32 s{sT3}, s{sT3}, 14")
e(f"s_add_u32 s{sT3}, s{sT3}, s{sPAR}")
e(f"s_add_u32 s{sT3}, s{sT3}, 32768")
e(f"s_mov_b32 m0, s{sT3}")
e(f"v_lshrrev_b32 v{vT2}, 5, v{vLANE}")
e(f"v_xor_b32 v{vT3}, v{vT1}, v{vT2}")
e(f"v_lshlrev_b32 v{vT3}, 4, v{vT3}")
e(f"v_lshl_add_u32 v{vT3}, v{vT2}, 10, v{vT3}")
e(f"v_and_b32 v{vT4}, 1, v{vT0}")
e(f"v_lshl_add_u32 v{vWB}, v{vT4}, 9, v{vT3}")
for i in range(1, 8): e(f"v_xor_b32 v{vWB+i}, {i<<5}, v{vWB}")
e("s_waitcnt lgkmcnt(0)")
e(f"s_mov_b32 s{sX}, s{pX}")
e(f"s_mov_b32 s{sX+1}, s{pX+1}")
for i in range(16):
    e(f"buffer_load_dwordx4 v{vWB+(i&7)}, {sr(sX,4)}, s{sT2} offen lds")
    if i < 15:
        e("s_add_u32 m0, m0, 1024")
        e(f"s_add_u32 s{sT2}, s{sT2}, 2048")
barrier("c")
prof(0)
e(f"s_mov_b32 s{sWS}, s{pWSP}")
e(f"s_mov_b32 s{sWS+1}, s{pWSP+1}")
e(f"s_mov_b32 s{sOUT}, s{pOUT}")
e(f"s_mov_b32 s{sOUT+1}, s{pOUT+1}")
e(f"s_mov_b32 s{sOUT+2}, {2<<20}")
e(f"s_mov_b32 s{sCEXP}, {f32(0.25*math.log2(math.e))}")
e(f"s_mov_b32 s{sODD}, 0xaaaaaaaa")
e(f"s_mov_b32 s{sODD+1}, 0xaaaaaaaa")
e(f"s_mov_b32 s{sONE2}, 1.0")
e(f"s_mov_b32 s{sONE2+1}, 1.0")
e("s_mov_b64 vcc, 0")
tr_bases()
for jj in range(4): e(f"v_add_u32 v{vW+jj}, s{sPAR}, v{vB+jj}")
e(f"v_lshlrev_b32 v{vCSR}, 4, v{vT0}")
e(f"v_add_u32 v{vCSR}, {CSA}, v{vCSR}")
e(f"s_lshl_b32 s{sT2}, s{sWAVE}, 12")
e(f"s_add_u32 s{sT2}, s{sT2}, {XB}")
e(f"v_add_u32 v{vXA}, s{sT2}, v{vL16}")
e(f"v_xor_b32 v{vXP}, 0x1000, v{vXA}")
e(f"v_cmp_eq_u32 {sr(sM0,2)}, 0, v{vLANE}")
e(f"v_cmp_gt_u32 {sr(sM1,2)}, 16, v{vLANE}")
e(f"v_mov_b32 v{vT2}, {OOB}")
e(f"s_lshl_b32 s{sFLOFF}, s{sUNIT}, 7")
e(f"s_add_u32 s{sFLOFF}, s{sFLOFF}, {WS_FL}")
e(f"v_cndmask_b32 v{vFLO}, v{vT2}, 0, {sr(sM0,2)}")
e(f"s_lshl_b32 s{sT0}, s{sTILE}, 10")
e(f"s_lshr_b32 s{sT1}, s{sJ}, 1")
e(f"s_lshl_b32 s{sT1}, s{sT1}, 8")
e(f"s_add_u32 s{sT0}, s{sT0}, s{sT1}")
e(f"s_and_b32 s{sT1}, s{sJ}, 1")
e(f"s_lshl_b32 s{sT1}, s{sT1}, 3")
e(f"s_add_u32 s{sT0}, s{sT0}, s{sT1}")
e(f"v_add_u32 v{vT3}, s{sT0}, v{vL16}")
e(f"v_cndmask_b32 v{vSTO}, v{vT2}, v{vT3}, {sr(sM1,2)}")
e(f"s_lshl_b32 s{sT0}, s{sG}, 3")
e(f"s_add_u32 s{sT0}, s{sT0}, s{sJ}")
e(f"s_lshl_b32 s{sPUBO}, s{sT0}, 7")
e(f"s_add_u32 s{sPUBO}, s{sPUBO}, {WS_FL2}")
e(f"s_lshl_b32 s{sHKO}, s{sT0}, 12")
e(f"s_add_u32 s{sHKO}, s{sHKO}, {WS_HK}")
e(f"s_lshl_b32 s{sDST}, s{sTILE}, 14")
e(f"s_lshl_b32 s{sT1}, s{sJ}, 11")
e(f"s_add_u32 s{sDST}, s{sDST}, s{sT1}")
e(f"s_lshl_b32 s{sT1}, s{sJ}, 7")
e(f"s_lshl_b32 s{sCQ}, s{sTILE}, 14")
e(f"s_add_u32 s{sCQ}, s{sCQ}, s{sT1}")
e(f"v_and_b32 v{vT3}, 1, v{vT0}")
e(f"v_lshlrev_b32 v{vT3}, 5, v{vT3}")
e(f"v_lshrrev_b32 v{vT4}, 1, v{vT0}")
e(f"v_lshl_add_u32 v{vT3}, v{vT4}, 4, v{vT3}")
e(f"v_lshl_add_u32 v{vOUTO}, v{vT1}, 10, v{vT3}")
e(f"v_add_u32 v{vOUTO}, s{sCQ}, v{vOUTO}")
GA = -2.0*math.sqrt(2.0/math.pi)*math.log2(math.e)
for i in range(2):
    e(f"v_mov_b32 v{vGA+i}, {f32(GA)}")
    e(f"v_mov_b32 v{vGB+i}, {f32(GA*0.044715)}")
def set_la(stride):
    e(f"s_mul_i32 s{sT0}, s{sKH}, {stride+4096}")
    e(f"s_mul_i32 s{sT1}, s{sKH}, {-stride+4096}")
    e(f"s_add_u32 s{sT1}, s{sT1}, {stride}")
    e(f"v_add_u32 v{vLA}, s{sT0}, v{vL16}")
    e(f"v_add_u32 v{vLA+1}, s{sT1}, v{vL16}")
    e(f"v_add_u32 v{vLA+2}, 0x2000, v{vLA}")
    e(f"v_add_u32 v{vLA+3}, 0x2000, v{vLA+1}")
set_la(16384)
XA = vE
e(f"v_lshrrev_b32 v{vT3}, 1, v{vT0}")
e(f"v_xor_b32 v{vT3}, v{vT3}, v{vT1}")
e(f"v_lshlrev_b32 v{vT3}, 4, v{vT3}")
e(f"v_lshl_add_u32 v{vT3}, v{vT1}, 9, v{vT3}")
e(f"v_and_b32 v{vT4}, 1, v{vT0}")
e(f"v_lshl_add_u32 v{vT3}, v{vT4}, 3, v{vT3}")
e(f"s_lshl_b32 s{sT0}, s{sKH}, 13")
e(f"s_add_u32 s{sT0}, s{sT0}, s{sT3}")
e(f"v_add_u32 v{XA}, s{sT0}, v{vT3}")
for c in range(1, 8): e(f"v_xor_b32 v{XA+c}, {c<<5}, v{XA}")
for c in range(8): e(f"v_xor_b32 v{XA+8+c}, 0x2000, v{XA+c}")
for i in range(4): e(f"v_mov_b32 v{vST+i}, 0")
e(f"s_lshl_b32 s{sT0}, s{sWAVE}, 11")
e(f"s_add_u32 s{sT0}, s{sT0}, {VA}")
e(f"v_lshl_add_u32 v{vT2}, v{vT1}, 4, s{sT0}")
e(f"v_xor_b32 v{vT3}, 0x800, v{vT1}") if False else None
e(f"s_lshl_b32 s{sT0}, s{sWAVE}, 2")
e(f"v_add_u32 v{vXFP}, s{sT0}, v{vCB}")
e(f"v_mov_b32 v{vT4}, {LOOB}")
e(f"v_cndmask_b32 v{vW1}, v{vT4}, v{vXFP}, {sr(sM0,2)}")
e(f"v_xor_b32 v{vXFP}, 4, v{vXFP}")
e(f"s_lshl_b32 s{sT0}, s{sJ}, 1")
e(f"s_add_u32 s{sT0}, s{sT0}, s{sKH}")
e(f"s_lshl_b32 s{sT0}, 1, s{sT0}")
e(f"v_mov_b32 v{vBIT}, s{sT0}")
e(f"s_lshl_b32 s{sT0}, s{sT0}, 16")
e(f"v_mov_b32 v{vBIT+1}, s{sT0}")
e(f"s_lshl_b32 s{sT0}, s{sKH}, 2")
e(f"s_lshl_b32 s{sMK0}, 15, s{sT0}")
e(f"s_mov_b32 s{sTAIL}, 0")
e(f"s_mov_b32 s{sXSEQ}, 0")
e(f"s_bfe_u32 s{sT0}, s{sJ}, 0x10001")
e(f"s_xor_b32 s{sT0}, s{sT0}, s{sKH}")
e(f"s_lshl_b32 s{sT0}, s{sT0}, 16")
e(f"s_and_b32 s{sT1}, s{sJ}, 1")
e(f"s_lshl_b32 s{sT1}, s{sT1}, 7")
e(f"s_or_b32 s{sT0}, s{sT0}, s{sT1}")
e(f"s_lshr_b32 s{sT1}, s{sJ}, 2")
e(f"s_lshl_b32 s{sT1}, s{sT1}, 8")
e(f"v_xor_b32 v{vK}, s{sT0}, v{XA}")
e(f"v_add_u32 v{vK}, s{sT1}, v{vK}")
for jj in range(1, 4): e(f"v_xor_b32 v{vK+jj}, {jj<<5}, v{vK}")
e(f"s_lshr_b32 s{sT0}, s{sJ}, 2")
e(f"s_add_u32 s{sT0}, s{sT0}, 1")
e(f"s_sub_u32 s{sT1}, 0, s{sT0}")
e(f"s_bitcmp1_b32 s{sJ}, 1")
e(f"s_cselect_b32 s{sT0}, s{sT1}, s{sT0}")
e(f"s_lshl_b32 s{sT1}, s{sTILE}, 4")
e(f"s_add_u32 s{sT0}, s{sT0}, s{sT1}")
e(f"s_movk_i32 s{sT1}, 0x800")
e(f"v_add_u32 v{vT3}, s{sT0}, v{vT1}")
e(f"v_cmp_gt_u32 {sr(sM1,2)}, s{sT1}, v{vT3}")
e(f"v_lshrrev_b32 v{vT4}, 4, v{vT3}")
e(f"v_lshlrev_b32 v{vT4}, 14, v{vT4}")
e(f"v_lshl_add_u32 v{vT4}, v{vT0}, 8, v{vT4}")
e(f"v_and_b32 v{vT3}, 15, v{vT3}")
e(f"v_lshl_add_u32 v{vT4}, v{vT3}, 4, v{vT4}")
e(f"v_mov_b32 v{vT3}, {OOB}")
e(f"v_cndmask_b32 v{vHS}, v{vT3}, v{vT4}, {sr(sM1,2)}")
BI, SEL = vX1P+2, vX1P+6
e(f"v_and_b32 v{vT3}, 1, v{vT1}")
e(f"v_lshl_add_u32 v{vT3}, v{vT0}, 2, v{vT3}")
e(f"v_sub_u32 v{vT3}, v{vT1}, v{vT3}")
e(f"v_mov_b32 v{vT6}, {f32(-1e30)}")
e(f"s_cmp_eq_u32 s{sTILE}, 0")
e(f"s_cselect_b32 s{sT0}, -64, 16")
e(f"v_add_u32 v{vT4}, -2, v{vT3}")
e(f"v_cmp_gt_u32 {sr(sM0,2)}, 15, v{vT3}")
e(f"v_cmp_gt_u32 {sr(sM1,2)}, 15, v{vT4}")
e(f"v_add_u32 v{vT3}, s{sT0}, v{vT3}")
e(f"v_add_u32 v{vT4}, -2, v{vT3}")
e(f"v_cndmask_b32 v{BI}, v{vT6}, 0, {sr(sM0,2)}")
e(f"v_cndmask_b32 v{BI+1}, v{vT6}, 0, {sr(sM1,2)}")
e(f"v_cmp_gt_u32 {sr(sM0,2)}, 15, v{vT3}")
e(f"v_cmp_gt_u32 {sr(sM1,2)}, 15, v{vT4}")
e(f"v_mov_b32 v{vT3}, 0x0c0c0100")
e(f"v_mov_b32 v{vT4}, 0x01000c0c")
e(f"v_cndmask_b32 v{BI+2}, v{vT6}, 0, {sr(sM0,2)}")
e(f"v_cndmask_b32 v{BI+3}, v{vT6}, 0, {sr(sM1,2)}")
e(f"v_cndmask_b32 v{SEL}, v{vT3}, v{vT4}, {sr(sODD,2)}")
e(f"v_mov_b32 v{vT3}, 0x0c0c0302")
e(f"v_mov_b32 v{vT4}, 0x03020c0c")
e(f"v_cndmask_b32 v{SEL+1}, v{vT3}, v{vT4}, {sr(sODD,2)}")
e("s_waitcnt vmcnt(0)")
for ksl in range(8):
    for t in range(2):
        for h in range(2):
            e(f"ds_read_b64 {vr(vA+8*ksl+4*t+2*h,2)}, v{XA+8*t+2*(ksl&3)+h} offset:{256*(ksl>>2)}")
for ksl in range(8):
    e(f"s_waitcnt lgkmcnt({min(15, 28-4*ksl)})")
    if ksl == 7:
        barrier("c")
        for jj in range(4): e(f"ds_read_b64 {vr(vXR+2*jj,2)}, v{vK+jj}")
    for d in range(4):
        for t in range(2):
            r = vA+8*ksl+4*t+d
            e(f"v_dot2_f32_bf16 v{vST+2*t}, v{r}, s{sONES}, v{vST+2*t}")
            e(f"v_dot2_f32_bf16 v{vST+2*t+1}, v{r}, v{r}, v{vST+2*t+1}")
nop(3)
red2x2(vST, vST+1, vST+1, vST+2, vST+3, vST+3)
e(f"ds_write_b128 v{vT2}, {vr(vST,4)}")
e(f"s_xor_b32 s{sT0}, s{sWAVE}, 1")
e(f"s_lshl_b32 s{sT0}, s{sT0}, 11")
e(f"s_add_u32 s{sT0}, s{sT0}, {VA}")
e(f"v_lshl_add_u32 v{vT3}, v{vT1}, 4, s{sT0}")
e("s_waitcnt lgkmcnt(0)")
prof(1)
barrier("c")
e(f"ds_read_b128 {vr(vE,4)}, v{vT3}")
e(f"s_mov_b32 s{sT0}, 0x3f80")
e(f"s_mov_b32 s{sT1}, 0x3f800000")
e("s_waitcnt lgkmcnt(0)")
e(f"v_add_f32 v{vT4}, v{vE+2}, v{vST}")
e(f"v_add_f32 v{vT3}, v{vE+3}, v{vST+1}")
e(f"v_add_f32 v{vT6}, v{vE}, v{vST+2}")
e(f"v_mul_f32 v{vT6}, {f32(-1.0/512)}, v{vT6}")
mean_var(vT4, vT3)
e(f"v_add_f32 v{vT3}, {f32(1e-5)}, v{vT3}")
e(f"v_rsq_f32 v{vSC}, v{vT3}")
e(f"v_rsq_f32 v{vSC+1}, v{vT3}")
for c in range(8):
    for i in range(8):
        m_ = vT6 if (i >> 2) & 1 else vT4
        e(f"v_dot2_f32_bf16 v{vE+2*i}, v{vA+8*c+i}, s{sT0}, v{m_}")
        e(f"v_dot2_f32_bf16 v{vE+2*i+1}, v{vA+8*c+i}, s{sT1}, v{m_}")
    nop(1)
    for i in range(8): e(f"v_cvt_pk_bf16_f32 v{vA+8*c+i}, v{vE+2*i}, v{vE+2*i+1}")
    if c == 6: pre()
prof(30)
call_pass()
scalepack(vK)
e(f"v_lshlrev_b32 v{vT2}, 7, v{vT1}")
e(f"v_lshl_add_u32 v{vT2}, v{vT0}, 5, v{vT2}")
e(f"s_cmp_eq_u32 s{sWAVE}, 3")
e("s_cbranch_scc0 L_k3d")
e(f"buffer_store_dwordx4 {vr(vK,4)}, v{vL16}, {sr(sWS,4)}, s{sHKO} offen sc1")
e(f"buffer_store_dwordx4 {vr(vK+4,4)}, v{vL16}, {sr(sWS,4)}, s{sHKO} offen offset:1024 sc1")
e(f"s_mov_b32 s{sPUBV}, 1")
e("s_mov_b64 vcc, -1")
lab("L_k3d")
e(f"s_cselect_b32 s{sT1}, 16, 1")
barrier("c")
e(f"s_mul_i32 s{sT0}, s{sWAVE}, {KSZ}")
e(f"s_add_u32 s{sT0}, s{sT0}, {KA+KSZ-256}")
e(f"v_cmp_lt_u32 {sr(sM0,2)}, s{sT1}, v{vT1}")
e(f"v_add_u32 v{vT2}, s{sT0}, v{vT2}")
e(f"v_mov_b32 v{vT3}, {LOOB}")
e(f"v_cndmask_b32 v{vX1P}, v{vT3}, v{vT2}, {sr(sM0,2)}")
e(f"v_bfe_u32 v{vT2}, v{vT1}, 1, 2")
e(f"v_lshlrev_b32 v{vT2}, 1, v{vT2}")
e(f"v_lshrrev_b32 v{vT3}, 1, v{vT0}")
e(f"v_xor_b32 v{vT2}, v{vT2}, v{vT3}")
e(f"v_lshlrev_b32 v{vT2}, 4, v{vT2}")
e(f"v_lshl_add_u32 v{vT2}, v{vT1}, 7, v{vT2}")
e(f"v_and_b32 v{vT3}, 1, v{vT0}")
e(f"v_lshl_add_u32 v{vHP}, v{vT3}, 3, v{vT2}")
for h in range(1, 4): e(f"v_xor_b32 v{vHP+h}, {h<<5}, v{vHP}")
e(f"s_lshl_b32 s{sT0}, s{sWAVE}, 11")
e(f"s_add_u32 s{sT0}, s{sT0}, {VA}")
for h in range(4): e(f"v_add_u32 v{vHP+4+h}, s{sT0}, v{vHP+h}")
prof(2)
call_pass()
scalepack(vPK)
for h in range(4): e(f"ds_write_b64 v{vHP+4+h}, {vr(vPK+2*h,2)}")
e(f"ds_write_b128 v{vX1P}, {vr(vK,4)}")
e(f"ds_write_b128 v{vX1P}, {vr(vK+4,4)} offset:16")
e(f"s_cmp_eq_u32 s{sWAVE}, 3")
e("s_cbranch_scc0 L_v3d")
for i in range(2): e(f"buffer_store_dwordx4 {vr(vPK+4*i,4)}, v{vL16}, {sr(sWS,4)}, s{sHKO} offen offset:{2048+1024*i} sc1")
e(f"s_mov_b32 s{sPUBV}, 0x100")
e("s_mov_b64 vcc, -1")
lab("L_v3d")
e(f"v_max_u32 v{vT2}, 2, v{vT1}")
e(f"v_lshlrev_b32 v{vT2}, 7, v{vT2}")
e(f"v_lshl_add_u32 v{vT2}, v{vT0}, 5, v{vT2}")
e(f"s_mul_i32 s{sT1}, s{sWAVE}, {KSZ}")
e(f"s_add_u32 s{sT1}, s{sT1}, {KA-256}")
e(f"v_add_u32 v{vT2}, s{sT1}, v{vT2}")
e(f"s_sub_u32 s{sT1}, s{sT0}, 2048")
e(f"s_cmp_eq_u32 s{sWAVE}, 0")
e(f"s_cselect_b32 s{sT1}, {XB}, s{sT1}")
e(f"s_cselect_b32 s{sT3}, 1, 0")
for h in range(4):
    e(f"v_add_u32 v{vHP+h}, s{sT0}, v{vB+h}")
    e(f"v_add_u32 v{vHP+4+h}, s{sT1}, v{vB+h}")
e("s_waitcnt lgkmcnt(0)")
barrier("c")
prof(3)
call_pass()
KP, VP, VO, SO, SP_ = vA, vA+8, vA+16, vA+24, vA+40
e(f"ds_write_b32 v{vW1}, v{vBIT} offset:{C_ACK}")
for h in range(4): e(f"ds_read_b64_tr_b16 {vr(VO+2*h,2)}, v{vHP+h}")
scalepack(vPK)
l = uid("kv"); d = l+"_d"
lab(l)
e(f"ds_read_b32 v{vT7}, v{vCB} offset:{C_KV}")
e(f"ds_read_b128 {vr(KP,4)}, v{vT2}")
e(f"ds_read_b128 {vr(KP+4,4)}, v{vT2} offset:16")
for h in range(4):
    e(f"v_mfma_f32_16x16x16_bf16 {vr(SO+4*h,4)}, {vr(vK+2*h,2)}, {vr(vPK+2*h,2)}, 0")
e("s_waitcnt lgkmcnt(0)")
e(f"v_readfirstlane_b32 s{sT2}, v{vT7}")
e(f"s_cmp_ge_u32 s{sT2}, s{sT3}")
e(f"s_cbranch_scc0 {spin(l, d)}")
lab(d)
for h in range(4):
    e(f"v_mfma_f32_16x16x16_bf16 {vr(SP_+4*h,4)}, {vr(KP+2*h,2)}, {vr(vPK+2*h,2)}, 0")
prof(4)
nop(4)
X = vE
for h in range(4):
    e(f"v_cndmask_b32 v{X+4*h}, v{SO+4*h}, v{SO+4*h+1}, {sr(sODD,2)}")
    e(f"v_cndmask_b32 v{X+4*h+1}, v{SO+4*h+2}, v{SO+4*h+3}, {sr(sODD,2)}")
for h in range(4):
    e(f"v_cndmask_b32 v{X+4*h+2}, v{SP_+4*h}, v{SP_+4*h+1}, {sr(sODD,2)}")
    e(f"v_cndmask_b32 v{X+4*h+3}, v{SP_+4*h+2}, v{SP_+4*h+3}, {sr(sODD,2)}")
for h in range(4):
    for i in range(4): e(f"v_fma_f32 v{X+4*h+i}, v{X+4*h+i}, s{sCEXP}, v{BI+i}")
M = vE+16; M2 = vE+20
for h in range(4): e(f"v_max3_f32 v{M+h}, v{X+4*h}, v{X+4*h+1}, v{X+4*h+2}")
for h in range(4): e(f"v_max_f32 v{M+h}, v{M+h}, v{X+4*h+3}")
def allred(op):
    for h in range(4): e(f"v_mov_b32 v{M2+h}, v{M+h}")
    nop(1)
    for h in range(4): e(f"v_permlane16_swap_b32 v{M+h}, v{M2+h}")
    for h in range(4): e(f"{op} v{M+h}, v{M+h}, v{M2+h}")
    for h in range(4): e(f"v_mov_b32 v{M2+h}, v{M+h}")
    nop(1)
    for h in range(4): e(f"v_permlane32_swap_b32 v{M+h}, v{M2+h}")
    for h in range(4): e(f"{op} v{M+h}, v{M+h}, v{M2+h}")
allred("v_max_f32")
for h in range(4):
    for i in range(4): e(f"v_sub_f32 v{X+4*h+i}, v{X+4*h+i}, v{M+h}")
for i in range(16): e(f"v_exp_f32 v{X+i}, v{X+i}")
for h in range(4): e(f"v_add_f32 v{M+h}, v{X+4*h}, v{X+4*h+1}")
for h in range(4): e(f"v_add_f32 v{M2+h}, v{X+4*h+2}, v{X+4*h+3}")
for h in range(4): e(f"v_add_f32 v{M+h}, v{M+h}, v{M2+h}")
allred("v_add_f32")
for h in range(4): e(f"v_rcp_f32 v{M+h}, v{M+h}")
lv_ = uid("vv")
e(f"s_lshl_b32 s{sT3}, s{sT3}, 1")
lab(lv_)
e(f"ds_read_b32 v{vT7}, v{vCB} offset:{C_KV}")
for h in range(4): e(f"ds_read_b64_tr_b16 {vr(VP+2*h,2)}, v{vHP+4+h}")
e("s_cbranch_vccnz "+lv_+"_w")
for h in range(4):
    for i in range(4): e(f"v_mul_f32 v{X+4*h+i}, v{X+4*h+i}, v{M+h}")
for h in range(4):
    e(f"v_cvt_pk_bf16_f32 v{M+h}, v{X+4*h}, v{X+4*h+1}")
    e(f"v_cvt_pk_bf16_f32 v{M2+h}, v{X+4*h+2}, v{X+4*h+3}")
for h in range(4):
    e(f"v_perm_b32 v{SO+2*h}, v{M+h}, v{M+h}, v{SEL}")
    e(f"v_perm_b32 v{SO+2*h+1}, v{M+h}, v{M+h}, v{SEL+1}")
    e(f"v_perm_b32 v{SP_+2*h}, v{M2+h}, v{M2+h}, v{SEL}")
    e(f"v_perm_b32 v{SP_+2*h+1}, v{M2+h}, v{M2+h}, v{SEL+1}")
nop(2)
OA = vE
for h in range(4):
    e(f"v_mfma_f32_16x16x16_bf16 {vr(OA+4*h,4)}, {vr(VO+2*h,2)}, {vr(SO+2*h,2)}, 0")
lab(lv_+"_w")
e("s_waitcnt lgkmcnt(0)")
e(f"v_readfirstlane_b32 s{sT2}, v{vT7}")
e("s_mov_b64 vcc, -1")
e(f"s_cmp_ge_u32 s{sT2}, s{sT3}")
e(f"s_cbranch_scc0 {spin(lv_, lv_+'_d')}")
lab(lv_+"_d")
e("s_mov_b64 vcc, 0")
for h in range(4):
    e(f"v_mfma_f32_16x16x16_bf16 {vr(OA+4*h,4)}, {vr(VP+2*h,2)}, {vr(SP_+2*h,2)}, {vr(OA+4*h,4)}")
nop(2)
def pack(dst):
    for i in range(8): e(f"v_cvt_pk_bf16_f32 v{dst+i}, v{vE+2*i}, v{vE+2*i+1}")
def store_act(pk, base):
    e(f"s_add_u32 s{sT0}, s{sDST}, {base}")
    e(f"buffer_store_dwordx4 {vr(pk,4)}, v{vL16}, {sr(sWS,4)}, s{sT0} offen sc1")
    e(f"buffer_store_dwordx4 {vr(pk+4,4)}, v{vL16}, {sr(sWS,4)}, s{sT0} offen offset:1024 sc1")
nop(3)
pack(vPK)
store_act(vPK, WS_O)
pubn = [0]
def publish(younger=0):
    f = pubn[0]; pubn[0] += 1
    if f in (1, 2): prof(21+f)
    e(f"s_waitcnt vmcnt({younger})")
    e(f"buffer_atomic_add v{vBIT+(f&1)}, v{vFLO}, {sr(sWS,4)}, s{sFLOFF} offen offset:{4*(f>>1)} sc1")
def loada(sgs=(0, 1)):
    for ksl in range(8):
        if ksl >> 2 not in sgs: continue
        for tsel in range(2):
            e(f"buffer_load_dwordx4 {vr(vA+8*ksl+4*tsel,4)}, v{vLA+2*(ksl>>2)+tsel}, {sr(sWS,4)}, s{sOFFA} offen offset:{1024*(ksl&3)} sc1")
def set_offa(base):
    e(f"s_lshl_b32 s{sOFFA}, s{sUNIT}, 15")
    e(f"s_add_u32 s{sOFFA}, s{sOFFA}, {base}")
def set_stats_off(base):
    e(f"s_lshl_b32 s{sT3}, s{sTILE}, 10")
    e(f"s_add_u32 s{sT3}, s{sT3}, {base}")
def load_stats(): e(f"buffer_load_dwordx4 {vr(vST,4)}, v{vL16}, {sr(sWS,4)}, s{sT3} offen sc1")
def consume_stats():
    e(f"v_add_f32 v{vT4}, v{vST}, v{vST+2}")
    e(f"v_add_f32 v{vT3}, v{vST+1}, v{vST+3}")
    nop(2)
    red2(vT4, vT3, vT3)
    mean_var(vT4, vT3)
def store_stats(pk, base):
    e(f"v_mov_b32 v{vST}, 0")
    e(f"v_mov_b32 v{vST+1}, 0")
    for i in range(8):
        e(f"v_dot2_f32_bf16 v{vST}, v{pk+i}, s{sONES}, v{vST}")
        e(f"v_dot2_f32_bf16 v{vST+1}, v{pk+i}, v{pk+i}, v{vST+1}")
    e(f"s_mov_b32 s{sT0}, {base}")
    nop(2)
    red2(vST, vST+1, vST+1)
    e(f"buffer_store_dwordx2 {vr(vST,2)}, v{vSTO}, {sr(sWS,4)}, s{sT0} offen sc1")
def unpack(dst, src, n):
    for i in range(n):
        e(f"v_lshlrev_b32 v{dst+2*i}, 16, v{src+i}")
        e(f"v_and_b32 v{dst+2*i+1}, 0xffff0000, v{src+i}")
def wait_bits(f, mask_s, shift, nb=None, first=True):
    l = uid("rdy"); d = l+"_d"; c = l+"_c"
    sh = 16*(f & 1) + shift
    if isinstance(mask_s, int): e(f"s_mov_b32 s{sT0}, {mask_s << sh}")
    else: e(f"s_lshl_b32 s{sT0}, s{mask_s}, {sh}")
    if nb is not None: e(f"s_lshl_b32 s{sT1}, s{nb}, {sh}")
    if not first: e(f"s_branch {c}")
    lab(l)
    e(f"s_mov_b32 s{sFLW}, 0")
    if nb is not None: e(f"s_mov_b32 s{sFB}, 0")
    e(f"s_atomic_add s{sFLW}, {sr(pWSP,2)}, s{sFLW+1} glc")
    if nb is not None: e(f"s_atomic_add s{sFB}, {sr(pWSP,2)}, s{sNBO} glc")
    e("s_waitcnt lgkmcnt(0)")
    lab(c)
    e(f"s_andn2_b32 s{sT2}, s{sT0}, s{sFLW}")
    if nb is not None:
        e(f"s_andn2_b32 s{sFB+1}, s{sT1}, s{sFB}")
        e(f"s_or_b32 s{sT2}, s{sT2}, s{sFB+1}")
    e(f"s_cbranch_scc1 {spin(l, d)}")
    lab(d)
def set_word(f): e(f"s_add_u32 s{sFLW+1}, s{sFLOFF}, {4*(f>>1)}")
def cs_check():
    l = uid("cs"); d = l+"_d"
    lab(l+"_c")
    e(f"v_min_u32 v{vCF}, v{vCF}, v{vCF+1}")
    nop(1)
    e(f"v_readfirstlane_b32 s{sT0}, v{vCF}")
    e(f"s_cmp_ge_u32 s{sT0}, 1")
    e(f"s_cbranch_scc0 {l}")
    lab(d)
    cs_retries.append((l, d))
cs_retries = []
zero(vACP, 16)
set_offa(WS_O)
set_word(0)
e(f"s_mov_b32 s{sTAIL}, 1")
unpack(vACC, vXR, 8)
publish()
barrier("c")
pre()
prof(5)
wait_bits(0, sMK0, 0)
prof(6)
loada((0,))
wait_bits(0, sMK0, 8, None, False)
loada((1,))
call_pass("L_pass64b", False)
prof(7)
pack(vHP)
store_act(vHP, WS_H)
store_stats(vHP, WS_HS)
set_offa(WS_H)
set_stats_off(WS_HS)
publish()
barrier("c")
pre()
prof(8)
wait_bits(1, sMK0, 0)
prof(9)
loada((0,))
wait_bits(1, sMK0, 8, None, False)
loada((1,))
wait_bits(1, 0xffff, 0, None, False)
load_stats()
e(f"s_mov_b32 s{sCNT}, 0")
call_pass("L_pass64", False)
prof(10)
consume_stats()
e(f"v_add_f32 v{vT2}, {f32(1e-5)}, v{vT3}")
e(f"v_rsq_f32 v{vR1}, v{vT2}")
e(f"v_mov_b32 v{vNMH}, v{vT4}")
e(f"v_mul_f32 v{vT3}, v{vT3}, v{vR1}")
e(f"v_fmaak_f32 v{vT3}, v{vT3}, v{vR1}, {f32(1e-5)}")
e(f"v_rsq_f32 v{vT3}, v{vT3}")
e(f"v_mov_b32 v{vNMH+1}, v{vT4}")
e(f"v_mul_f32 v{vSC}, v{vT3}, v{vR1}")
e(f"v_mul_f32 v{vSC+1}, v{vT3}, v{vR1}")
e(f"v_mov_b32 v{vR1+1}, v{vR1}")
e(f"v_mul_f32 v{vMS}, v{vT4}, v{vSC}")
e(f"v_mul_f32 v{vMS+1}, v{vT4}, v{vSC}")
cs_check()
e(f"s_call_b64 {sr(sRET2,2)}, L_gelu")
e(f"s_lshl_b32 s{sT0}, s{sJ}, 11")
e(f"s_add_u32 s{sT0}, s{sT0}, {WS_H1}")
e(f"buffer_store_dwordx4 {vr(vPK,4)}, v{vHS}, {sr(sWS,4)}, s{sT0} offen sc1")
e(f"buffer_store_dwordx4 {vr(vPK+4,4)}, v{vHS}, {sr(sWS,4)}, s{sT0} offen offset:1024 sc1")
e(f"v_mov_b32 v{vT6}, {OOB}")
e(f"s_lshl_b32 s{sT2}, s{sKH}, 1")
e(f"s_sub_u32 s{sT2}, s{sT2}, 1")
e(f"s_movk_i32 s{sT3}, 0x800")
for sg in range(2):
    for tsel in range(2):
        if tsel: e(f"s_xor_b32 s{sT0}, s{sTILE}, 1")
        e(f"s_lshl_b32 s{sT0}, s{sT0 if tsel else sTILE}, 4")
        e(f"s_add_u32 s{sT0}, s{sT0}, s{sT2}")
        if sg: e(f"s_add_u32 s{sT0}, s{sT0}, s{sT2}")
        e(f"v_add_u32 v{vT2}, s{sT0}, v{vT1}")
        e(f"v_cmp_gt_u32 {sr(sM0,2)}, s{sT3}, v{vT2}")
        nop(2)
        e(f"v_cndmask_b32 v{vLA+2*sg+tsel}, v{vT6}, v{vLA+2*sg+tsel}, {sr(sM0,2)}")
unpack(vACC, vHP, 8)
for i in range(8): e(f"v_pk_add_f32 {vr(vACC+2*i,2)}, {vr(vACC+2*i,2)}, {vr(vNMH,2)}")
for i in range(8): e(f"v_pk_mul_f32 {vr(vACC+2*i,2)}, {vr(vACC+2*i,2)}, {vr(vR1,2)}")
zero(vACP, 16)
e(f"s_lshl_b32 s{sT0}, s{sT2}, 7")
e(f"s_add_u32 s{sNBO}, s{sFLOFF}, s{sT0}")
e(f"s_add_u32 s{sT0}, s{sUNIT}, s{sT2}")
e(f"s_cmp_gt_u32 s{sT0}, 63")
e(f"s_cselect_b32 s{sNBO}, s{sFLOFF}, s{sNBO}")
e(f"s_add_u32 s{sNBO}, s{sNBO}, 4")
e(f"s_cmp_eq_u32 s{sKH}, 0")
e(f"s_cselect_b32 s{sCSN}, 0x0a, 0x50")
set_word(2)
set_offa(WS_H1)
e(f"v_add_u32 v{vCSR}, 256, v{vCSR}")
publish()
barrier("c")
pre()
prof(11)
wait_bits(2, sMK0, 0, sCSN)
prof(12)
loada((0,))
wait_bits(2, sMK0, 8, sCSN, False)
loada((1,))
call_pass("L_pass64b", False)
prof(13)
pack(vX1P)
store_act(vX1P, WS_X1)
store_stats(vX1P, WS_X1S)
e(f"s_mov_b32 s{sTAIL}, 0")
set_la(16384)
e(f"s_mul_i32 s{sDST}, s{sTILE}, {GT}")
e(f"s_lshl_b32 s{sT1}, s{sJ}, 11")
e(f"s_add_u32 s{sDST}, s{sDST}, s{sT1}")
set_offa(WS_X1)
set_stats_off(WS_X1S)
publish()
barrier("c")
pre()
prof(14)
wait_bits(3, sMK0, 0)
prof(15)
loada((0,))
wait_bits(3, sMK0, 8, None, False)
loada((1,))
wait_bits(3, 0xffff, 0, None, False)
load_stats()
for p in range(3):
    call_pass()
    if p: publish()
    else:
        consume_stats()
        e(f"v_add_f32 v{vT2}, {f32(1e-5)}, v{vT3}")
        e(f"v_rsq_f32 v{vSC}, v{vT2}")
        e(f"v_rsq_f32 v{vSC+1}, v{vT2}")
        e(f"v_mul_f32 v{vMS}, v{vT4}, v{vSC}")
        e(f"v_mul_f32 v{vMS+1}, v{vT4}, v{vSC}")
    if not OPT.get('dl'): prof(24+2*p)
    if p == 2:
        for jj in range(2): e(f"v_add_u32 v{vW+jj}, s{sPAR}, v{vB32+jj}")
        pre(True, 32768)
    e(f"v_add_u32 v{vCSR}, {256 if p != 1 else -256}, v{vCSR}")
    e(f"s_call_b64 {sr(sRET2,2)}, L_gelu")
    if not OPT.get('dl'): prof(25+2*p)
    store_act(vPK, WS_G + 16384*p)
    prof(16+p)
lq = LQ([f"f{p}" for p in range(6) for h in range(2)])
for q in range(16):
    if q % 2 == 0: lq.need([f"f{q}", f"f{q+1}"])
    for t in (1, 0):
        e(mf_text(vWB+4*(q % 8), vA + 8*(q >> 1) + 4*t, (vACP if t else vACC) + 4*(q & 1), q < 2))
        if q+6 < 16: lq.op(f"f{q+6}", rd_text(vWB+4*((q+6) % 8), 1-t, q+6, True, 32768))
for jj in range(4): e(f"v_add_u32 v{vW+jj}, s{sPAR}, v{vB+jj}")
e(f"s_mov_b32 s{sCNT}, 1")
nop(2)
for i in range(2): e(T_W(i))
publish()
set_la(GT)
e(f"s_mul_i32 s{sOFFA}, s{sUNIT}, {2*GT}")
e(f"s_add_u32 s{sOFFA}, s{sOFFA}, {WS_G}")
QUADS = ([vA+4*i for i in range(16)] + [vXR+4*i for i in range(6)] + [vE+16+4*i for i in range(4)] + [vK, vK+4] + [vE+4*i for i in range(4)])[:OPT.get("nq", 16)]
NQ = len(QUADS)
gpolls = []
def gpoll():
    e(f"s_mov_b64 {sr(sFG,2)}, 0")
    e(f"s_atomic_add_x2 {sr(sFG,2)}, {sr(pWSP,2)}, s{sFLW+1} glc")
    e("s_waitcnt lgkmcnt(0)")
def gcheck(p):
    l = uid("g"); d = l+"_d"
    lab(d+"c")
    e(f"s_lshr_b32 s{sT0}, s{sFG+(p>>1)}, {16*(p&1)}")
    e(f"s_andn2_b32 s{sT0}, 0xffff, s{sT0}")
    e(f"s_cbranch_scc1 {l}")
    lab(d)
    gpolls.append((l, d))
def gload(m):
    ks, t = m >> 1, m & 1
    if ks % 8 == 0 and t == 0:
        p = ks // 8
        gcheck(p)
        if p: e(f"s_add_u32 s{sOFFA}, s{sOFFA}, 16384")
    e(f"buffer_load_dwordx4 {vr(QUADS[m % NQ],4)}, v{vLA+2*((ks>>2)&1)+t}, {sr(sWS,4)}, s{sOFFA} offen offset:{1024*(ks&3)} sc1")
set_word(4)
gpoll()
for m in range(min(16, NQ)): gload(m)
barrier("c")
for i in range(2): e(T_R(i))
for i in range(2): e(T_C(i))
w4slot = lambda it: ((19 + it) & 3) * 16384
pre(False, w4slot(0))
e("s_waitcnt lgkmcnt(12)")
for i in range(4): e(f"v_pk_add_f32 {vr(vE+2*i,2)}, {vr(vACC+2*i,2)}, {vr(vE+2*i,2)}")
e(f"s_call_b64 {sr(sRET2,2)}, L_gelu")
e(f"s_lshl_b32 s{sT1}, s{sJ}, 10")
e(f"s_sub_u32 s{sT0}, s{sDST}, s{sT1}")
e(f"s_add_u32 s{sT0}, s{sT0}, {WS_G + 48*1024}")
e(f"buffer_store_dwordx4 {vr(vPK,4)}, v{vL16}, {sr(sWS,4)}, s{sT0} offen sc1")
unpack(vE, vHP, 8)
unpack(vE+16, vX1P, 8)
for i in range(8): e(f"v_pk_add_f32 {vr(vACC+2*i,2)}, {vr(vE+2*i,2)}, {vr(vE+16+2*i,2)}")
zero(vACP, 16)
prof(19)
for m in range(16, NQ): gload(m)
lq = LQ([f"f{p}" for p in range(6) for h in range(2)])
nissued = NQ
NP = 112
g3pub = [None]
for q in range(NP):
    ks = q >> 2
    vm = None
    extra = (1 if 2*ks+1 < min(16, NQ) else 0) + (1 if g3pub[0] is not None and 2*ks+1 < g3pub[0] else 0)
    if q % 4 == 0: vm = nissued - (2*ks+2) + extra
    if q == 32:
        cmt("the last G store is older than everything waited for from here on")
        lq.need([f"f{q}", f"f{q+1}"], vm); vm = None
        publish(nissued - min(16, NQ))
        g3pub[0] = nissued
    if q % 2 == 0: lq.need([f"f{q}", f"f{q+1}"], vm)
    if (q+6) % 16 == 0 and q+6 < NP:
        barrier("c")
    for t in range(2):
        e(mf_text(vWB+4*(q % 8), QUADS[(2*ks+t) % NQ], (vACP if t else vACC)+4*(q & 3)))
        if q+6 < NP: lq.op(f"f{q+6}", rd_text(vWB+4*((q+6) % 8), t, (q+6) & 15, False, w4slot((q+6) >> 4)))
        if (q & 3) in (1, 3) and t == 0 and ks >= 1 and nissued < 56:
            gload(nissued); nissued += 1
nop(8)
for i in range(4): e(T_W(i))
e("s_waitcnt lgkmcnt(0)")
barrier("c")
for i in range(4): e(T_R(i))
e("s_waitcnt lgkmcnt(0)")
for i in range(8): e(f"v_pk_add_f32 {vr(vE+2*i,2)}, {vr(vACC+2*i,2)}, {vr(vE+2*i,2)}")
prof(20)
pack(vPK)
nop(2)
for s in range(2):
    e(f"v_permlane16_swap_b32 v{vPK+4*s}, v{vPK+4*s+2}")
    e(f"v_permlane16_swap_b32 v{vPK+4*s+1}, v{vPK+4*s+3}")
e(f"buffer_store_dwordx4 {vr(vPK,4)}, v{vOUTO}, {sr(sOUT,4)}, 0 offen")
e(f"buffer_store_dwordx4 {vr(vPK+4,4)}, v{vOUTO}, {sr(sOUT,4)}, 0 offen offset:64")
prof(21)
prof_flush(True)
e("s_endpgm")
for l, d in gpolls:
    lab(l)
    gpoll()
    e(f"s_sub_u32 s{sBUD}, s{sBUD}, 1")
    e(f"s_cbranch_scc0 {d}c")
    e(f"s_mov_b32 s{sBUD}, 0")
    e(f"s_branch {d}")
for l, d in cs_retries:
    lab(l)
    e(f"ds_read_b64 {vr(vCF,2)}, v{vCB} offset:{C_CSF}")
    for i in range(4): e(T_C(i))
    e("s_waitcnt lgkmcnt(0)")
    e(f"s_sub_u32 s{sBUD}, s{sBUD}, 1")
    e(f"s_cbranch_scc0 {l}_c")
    e(f"s_mov_b32 s{sBUD}, 0")
    e(f"s_branch {d}")

gen_pass64()
align(); lab("L_gelu")
for half in range(2):
    Xr = vE + 8*half; c0 = vACP + 8*half; U = vE+16
    for i in range(4): e(f"v_pk_mul_f32 {vr(Xr+2*i,2)}, {vr(Xr+2*i,2)}, {vr(vSC,2)}")
    for i in range(4): e(f"v_pk_fma_f32 {vr(Xr+2*i,2)}, {vr(c0+2*i,2)}, {vr(vMS,2)}, {vr(Xr+2*i,2)}")
    for i in range(4): e(f"v_pk_mul_f32 {vr(U+2*i,2)}, {vr(Xr+2*i,2)}, {vr(Xr+2*i,2)}")
    for i in range(4): e(f"v_pk_fma_f32 {vr(U+2*i,2)}, {vr(U+2*i,2)}, {vr(vGB,2)}, {vr(vGA,2)}")
    for i in range(4): e(f"v_pk_mul_f32 {vr(U+2*i,2)}, {vr(U+2*i,2)}, {vr(Xr+2*i,2)}")
    for i in range(8): e(f"v_exp_f32 v{U+i}, v{U+i}")
    for i in range(4): e(f"v_pk_add_f32 {vr(U+2*i,2)}, {vr(U+2*i,2)}, {sr(sONE2,2)}")
    for i in range(8): e(f"v_rcp_f32 v{U+i}, v{U+i}")
    for i in range(4): e(f"v_pk_mul_f32 {vr(Xr+2*i,2)}, {vr(Xr+2*i,2)}, {vr(U+2*i,2)}")
    for i in range(4): e(f"v_cvt_pk_bf16_f32 v{vPK+4*half+i}, v{Xr+2*i}, v{Xr+2*i+1}")
    if half == 0:
        e(f"s_cmp_eq_u32 s{sCNT}, 1")
        e("s_cbranch_scc1 L_gelu_h")
lab("L_gelu_h")
e(f"s_setpc_b64 {sr(sRET2,2)}")

vCSW, vTL, vT3P, vTQ, vON, vIN = vXR, vXR+1, vXR+2, vXR+3, vXR+4, vHP
lab("L_service")
if MAP42:
    e(f"v_lshrrev_b32 v{vT2}, 2, v{vLANE}")
    e(f"v_and_b32 v{vT3}, 3, v{vLANE}")
    e(f"v_lshlrev_b32 v{vT4}, 7, v{vT3}")
    e(f"v_lshl_add_u32 v{vTL}, v{vT2}, 10, v{vT4}")
    e(f"v_mul_u32_u24 v{vTQ}, 3072, v{vT2}")
    e(f"v_add_u32 v{vTQ}, v{vTQ}, v{vT4}")
    e(f"v_min_u32 v{vT2}, 13, v{vT1}")
    e(f"v_lshlrev_b32 v{vT2}, 7, v{vT2}")
    e(f"v_mul_u32_u24 v{vT3P}, 3584, v{vT0}")
    e(f"v_add_u32 v{vT3P}, v{vT3P}, v{vT2}")
    e(f"s_lshl_b32 s{sT0}, s{sHF}, 9")
    e(f"s_lshl_b32 s{sTA}, s{sR32}, 14")
    e(f"s_add_u32 s{sTA}, s{sTA}, s{sT0}")
    e(f"s_mul_i32 s{sTC}, s{sR32}, {16*3072}")
    e(f"s_add_u32 s{sTC}, s{sTC}, s{sT0}")
    e(f"s_mul_i32 s{sTB}, s{sR32}, {4*3584}")
    e(f"s_mul_i32 s{sT0}, s{sHF}, 1792")
    e(f"s_add_u32 s{sTB}, s{sTB}, s{sT0}")
else:
    e(f"v_lshlrev_b32 v{vTL}, 7, v{vLANE}")
    e(f"v_lshrrev_b32 v{vT2}, 3, v{vLANE}")
    e(f"v_and_b32 v{vT3}, 7, v{vLANE}")
    e(f"v_mul_u32_u24 v{vTQ}, 3072, v{vT2}")
    e(f"v_lshl_add_u32 v{vTQ}, v{vT3}, 7, v{vTQ}")
    e(f"s_lshl_b32 s{sTA}, s{sR32}, 13")
    e(f"s_mul_i32 s{sTC}, s{sR32}, {8*3072}")
e(f"s_cmp_ge_u32 s{sWAVE}, 6")
e("s_cbranch_scc1 L_loader")
lab("L_helper")
tr_bases()
e(f"s_lshl_b32 s{sT0}, s{sKH}, 6")
e(f"v_xor_b32 v{vB}, s{sT0}, v{vB}")
e(f"v_xor_b32 v{vB+1}, s{sT0}, v{vB+1}")
e(f"s_lshl_b32 s{sT1}, s{sKH}, 5")
e(f"v_xor_b32 v{vB32}, s{sT1}, v{vB32}")
e(f"v_lshlrev_b32 v{vT2}, 4, v{vT0}")
e(f"v_add_u32 v{vCSW}, {CSA}, v{vT2}")
e(f"s_mov_b32 s{sM1}, 0x00010001")
e(f"s_mov_b32 s{sM1+1}, 0x00010001")
for i in range(4): e(f"v_mov_b32 v{vON+i}, s{sONES}")
e("s_waitcnt lgkmcnt(0)")
e(f"s_mov_b32 s{sWS}, s{pWSP}")
e(f"s_mov_b32 s{sWS+1}, s{pWSP+1}")
tv = [vA+64]
def touch1(t):
    ptr, size, pat, soff_s, c = t
    e(f"s_mov_b32 s{sX}, s{ptr}")
    e(f"s_mov_b32 s{sX+1}, s{ptr+1}")
    e(f"s_mov_b32 s{sX+2}, {size}")
    e(f"s_add_u32 s{sT0}, s{soff_s}, {c}")
    e(f"buffer_load_dword v{tv[0]}, v{pat}, {sr(sX,4)}, s{sT0} offen")
    tv[0] += 1
def touches(lst, role, sleep):
    if role == "h" or not lst: return 0
    lst = list(lst)
    if len(lst) % 2: lst.append((lst[0][0], 0, lst[0][2], lst[0][3], 0))
    if sleep: e(f"s_sleep {sleep}")
    a_ = uid("ta"); b_ = uid("tb")
    e(f"s_cmp_lg_u32 s{sKH}, 0")
    e(f"s_cbranch_scc1 {a_}")
    for t in lst[0::2]: touch1(t)
    e(f"s_branch {b_}")
    lab(a_)
    for t in lst[1::2]: touch1(t)
    lab(b_)
    return len(lst)//2
TQ = lambda c: [(pWQKV, 512*3072, vTQ, sTC, c + i*32*8*3072) for i in range(2)]
T1 = lambda p: [(p, 512*1024, vTL, sTA, i*32*8192) for i in range(2)]
T3 = lambda a, b: [(pW3, 512*3584, vTL, sTA, i*32*8192) for i in range(a, b)]
T4 = lambda a, b: [(pW4, 1792*1024, vTL, sTA, i*32*8192) for i in range(a, b)]
if MAP42:
    TQ = lambda c: [(pWQKV, 512*3072, vTQ, sTC, c)]
    T1 = lambda p: [(p, 512*1024, vTL, sTA, 0)]
    T3 = lambda a, b: [(pW3, 512*3584, vT3P, sTB, i*32*4*3584) for i in range(a, b)]
    T4 = lambda a, b: [(pW4, 1792*1024, vTL, sTA, i*32*16384) for i in range(a, b)]
barrier("h")
e(f"s_lshl_b32 s{sT0}, s{sJ}, 3")
e(f"s_add_u32 s{sT0}, s{sT0}, s{sWAVE}")
e(f"s_cmp_lg_u32 s{sT0}, 4")
e(f"s_cbranch_scc1 L_nozero")
for i in range(4): e(f"v_mov_b32 v{vA+i}, 0")
e(f"s_lshl_b32 s{sT0}, s{sG}, 8")
e(f"s_lshl_b32 s{sT1}, s{sG}, 10")
e(f"s_add_u32 s{sT1}, s{sT1}, {WS_FL2-WS_FL-256}")
e(f"v_mov_b32 v{vT3}, s{sT0}")
e(f"v_mov_b32 v{vT4}, s{sT1}")
e(f"v_cmp_gt_u32 {sr(sM0,2)}, 2, v{vLANE}")
e(f"s_mov_b32 s{sT0}, {WS_FL}")
nop(1)
e(f"v_cndmask_b32 v{vT3}, v{vT4}, v{vT3}, {sr(sM0,2)}")
e(f"v_lshl_add_u32 v{vT3}, v{vLANE}, 7, v{vT3}")
e("s_mov_b64 exec, 0x3ff")
e(f"buffer_store_dwordx4 {vr(vA,4)}, v{vT3}, {sr(sWS,4)}, s{sT0} offen sc1")
e(f"s_lshl_b32 s{sT0}, s{sG}, 2")
e(f"v_mov_b32 v{vT2}, s{sT0}")
e(f"v_mov_b32 v{vT6}, 1")
e("s_mov_b64 exec, 1")
e("s_waitcnt vmcnt(0)")
e(f"global_store_dword v{vT2}, v{vT6}, {sr(pDBG,2)} offset:128 sc1")
e("s_mov_b64 exec, -1")
lab("L_nozero")
V_, Q_, WO_, W1_, W2_ = TQ(2048), TQ(0), T1(pWO), T1(pW1), T1(pW2)
K_ = TQ(1024)
SCH = {0: dict(s=K_, x=V_+Q_, b0=WO_, b1=W1_, b3=W2_, r1=T3(0,4), r2=T3(4,7), r3=T4(0,4), b9=T4(4,7)),
       1: dict(s=K_, x=V_+Q_, b0=WO_+W1_, b1=W2_+T3(0,2), r1=T3(2,5), r2=T3(5,7)+T4(0,2), r3=T4(2,5), b9=T4(5,7)),
       2: dict(s=K_+V_, x=Q_+WO_, b1=W1_+W2_, r1=T3(0,4), r2=T3(4,7), r3=T4(0,4), b9=T4(4,7)),
       3: dict(x=V_+Q_, b0=WO_, b1=W1_+W2_, r1=T3(0,4), r2=T3(4,7), r3=T4(0,4), b9=T4(4,7)),
       }[OPT.get("sch", 0) if not MAP42 else 0]
if MAP42:
    REST = dict(r1=T3(0,2), r2=T3(2,4), r3=T4(0,4))
    SCH = {0: dict(s=K_+V_, x=Q_, b0=WO_+W1_, b1=W2_, **REST),
           1: dict(s=K_, x=V_+Q_, b0=WO_+W1_, b1=W2_, **REST),
           2: dict(x=V_+Q_, b0=WO_+W1_, b1=W2_, **REST),
           3: dict(s=K_+V_, x=Q_+WO_+W1_+W2_, **REST),
           4: dict(s=K_, x=V_+Q_, b0=WO_+W1_, b1=W2_+T3(0,1), r1=T3(1,3), r2=T3(3,4)+T4(0,1), r3=T4(1,3), b9=T4(3,4)),
           }[OPT.get("sch", 4)]
for k_ in ("s", "x", "b0", "b1", "b3", "r1", "r2", "r3", "b9"): SCH.setdefault(k_, [])
TS0, TSL, TSL2 = OPT.get("t0sl", 6), OPT.get("tsl", 8), OPT.get("tsl2", 14)
touches(SCH["x"], "h", TS0)
def cs(base, slot, half=False):
    e(f"s_mov_b32 s{sT0}, {base}")
    e(f"s_call_b64 {sr(sRET,2)}, {'L_csh' if half else 'L_cs'}")
    e(f"s_lshl_b32 s{sT0}, s{sKH}, {6 if half else 7}")
    e(f"v_add_u32 v{vT2}, s{sT0}, v{vCSW}")
    e(f"s_mov_b64 exec, {sr(sM1,2)}")
    for i in range(1 if half else 2): e(f"ds_write_b128 v{vT2}, {vr(vACC+4*i,4)} offset:{256*slot+64*i}")
    e("s_mov_b64 exec, -1")
    e("s_waitcnt lgkmcnt(0)")
def halo_fetch(which, between=None):
    sk = uid("hf"); l = sk+"_l"; d = sk+"_d"
    e(f"s_cmp_lg_u32 s{sWAVE}, 5")
    e(f"s_cbranch_scc1 {sk}a")
    e(f"s_lshl_b32 s{sT0}, s{sG}, 3")
    e(f"s_add_u32 s{sT0}, s{sT0}, s{sJ}")
    e(f"s_sub_u32 s{sT0}, s{sT0}, 8")
    e(f"s_lshl_b32 s{sHKO}, s{sT0}, 12")
    e(f"s_add_u32 s{sHKO}, s{sHKO}, {WS_HK + 2048*which}")
    e(f"s_lshl_b32 s{sT0}, s{sT0}, 7")
    e(f"s_add_u32 s{sT0}, s{sT0}, {WS_FL2}")
    e(f"s_cmp_eq_u32 s{sG}, 0")
    e(f"s_cselect_b32 s{sHKO}, {OOB}, s{sHKO}")
    e(f"s_cbranch_scc1 {d}")
    lab(l)
    e(f"s_mov_b32 s{sM0}, 0")
    e(f"s_atomic_add s{sM0}, {sr(pWSP,2)}, s{sT0} glc")
    e("s_waitcnt lgkmcnt(0)")
    e(f"s_bitcmp1_b32 s{sM0}, {8*which}")
    e(f"s_cbranch_scc0 {spin(l, d)}")
    lab(d)
    e(f"buffer_load_dwordx4 {vr(vA,4)}, v{vL16}, {sr(sWS,4)}, s{sHKO} offen sc1")
    e(f"buffer_load_dwordx4 {vr(vA+4,4)}, v{vL16}, {sr(sWS,4)}, s{sHKO} offen offset:1024 sc1")
    lab(sk+"a")
    if between: between()
    e(f"s_cmp_lg_u32 s{sWAVE}, 5")
    e(f"s_cbranch_scc1 {sk}")
    if which:
        e(f"v_bfe_u32 v{vT2}, v{vT1}, 1, 2")
        e(f"v_lshlrev_b32 v{vT2}, 1, v{vT2}")
        e(f"v_lshrrev_b32 v{vT3}, 1, v{vT0}")
        e(f"v_xor_b32 v{vT2}, v{vT2}, v{vT3}")
        e(f"v_lshlrev_b32 v{vT2}, 4, v{vT2}")
        e(f"v_lshl_add_u32 v{vT2}, v{vT1}, 7, v{vT2}")
        e(f"v_and_b32 v{vT3}, 1, v{vT0}")
        e(f"v_lshl_add_u32 v{vT2}, v{vT3}, 3, v{vT2}")
        e(f"v_add_u32 v{vA+8}, {XB}, v{vT2}")
        for h in range(1, 4): e(f"v_xor_b32 v{vA+8+h}, {h<<5}, v{vA+8}")
    else:
        e(f"v_lshlrev_b32 v{vT2}, 7, v{vT1}")
        e(f"v_lshl_add_u32 v{vT2}, v{vT0}, 5, v{vT2}")
        e(f"v_cmp_lt_u32 {sr(sM0,2)}, 1, v{vT1}")
        e(f"v_add_u32 v{vT2}, {KA-256}, v{vT2}")
        e(f"v_mov_b32 v{vT4}, {LOOB}")
        e(f"v_cndmask_b32 v{vT2}, v{vT4}, v{vT2}, {sr(sM0,2)}")
    if which:
        cmt("wave 1 has finished reading wave 0's exchange buffer")
        l2 = uid("ak")
        lab(l2)
        e(f"ds_read_b32 v{vT7}, v{vCB} offset:{C_ACK+4}")
        e("s_waitcnt lgkmcnt(0)")
        e(f"v_readfirstlane_b32 s{sT0}, v{vT7}")
        e(f"s_cmp_lg_u32 s{sT0}, 0")
        e(f"s_cbranch_scc0 {spin(l2, l2+'_d')}")
        lab(l2+"_d")
    e(f"v_mov_b32 v{vT6}, {1+which}")
    e("s_waitcnt vmcnt(0)")
    if which:
        for h in range(4): e(f"ds_write_b64 v{vA+8+h}, {vr(vA+2*h,2)}")
    else:
        e(f"ds_write_b128 v{vT2}, {vr(vA,4)}")
        e(f"ds_write_b128 v{vT2}, {vr(vA+4,4)} offset:16")
    e("s_waitcnt lgkmcnt(0)")
    e(f"ds_write_b32 v{vCB}, v{vT6} offset:{C_KV}")
    lab(sk)
e(f"v_mov_b32 v{vT6}, 0")
e(f"v_min_u32 v{vT2}, 15, v{vLANE}")
e(f"v_lshl_add_u32 v{vT2}, v{vT2}, 2, v{vCB}")
e(f"ds_write_b32 v{vT2}, v{vT6}")
e("s_waitcnt lgkmcnt(0)")
barrier("h")
e(f"v_min_u32 v{vT2}, 2, v{vLANE}")
e(f"s_sub_u32 s{sT0}, s{sG}, 1")
e(f"v_add_u32 v{vT2}, s{sT0}, v{vT2}")
e(f"v_max_i32 v{vT2}, 0, v{vT2}")
e(f"v_min_u32 v{vT2}, 31, v{vT2}")
e(f"v_lshlrev_b32 v{vIN}, 2, v{vT2}")
barrier("h")
e(f"s_cmp_eq_u32 s{sWAVE}, 4")
e("s_cbranch_scc1 L_in_n")
e(f"s_sleep {OPT.get('insl', 1)}")
e(f"global_load_dword v{vIN+1}, v{vIN}, {sr(pDBG,2)} offset:128")
lab("L_in_n")
def mid():
    if MID: barrier("h")
mid()
barrier("h")
e(f"s_cmp_eq_u32 s{sWAVE}, 4")
e("s_cbranch_scc1 L_in_d")
e("s_branch L_in_chk")
lab("L_in_loop")
e("s_sleep 8")
e(f"global_load_dword v{vIN+1}, v{vIN}, {sr(pDBG,2)} offset:128 sc1")
lab("L_in_chk")
e("s_waitcnt vmcnt(0)")
e(f"v_cmp_eq_u32 {sr(sM0,2)}, 1, v{vIN+1}")
e(f"s_cmp_eq_u64 {sr(sM0,2)}, -1")
e(f"s_cbranch_scc0 {spin('L_in_loop', 'L_in_d')}")
lab("L_in_d")
barrier("h")
mid()
barrier("h")
barrier("h")
halo_fetch(0, lambda: barrier("h"))
halo_fetch(1)
barrier("h")
barrier("h")
cs(0, 0)
e(f"s_lshl_b32 s{sT0}, s{sKH}, 2")
e(f"v_add_u32 v{vT2}, s{sT0}, v{vCB}")
e(f"v_mov_b32 v{vT6}, 1")
e(f"ds_write_b32 v{vT2}, v{vT6} offset:{C_CSF}")
barrier("h")
barrier("h")
cs(0, 1)
mid()
barrier("h")
cs(32768, 2)
mid()
barrier("h")
cs(0, 1)
mid()
barrier("h")
cs(32768, 2, True)
prof_flush()
e("s_endpgm")
for half in (False, True):
    lab("L_csh" if half else "L_cs")
    blocks = [(par, it) for par in range(2) for it in range(1 if half else 2)]
    for bi, (par, it) in enumerate(blocks):
        if it == 0:
            e(f"v_add_u32 v{vW}, s{sT0}, v{vB32 if half else vB}")
            if not half: e(f"v_add_u32 v{vW+1}, s{sT0}, v{vB+1}")
            e(f"s_add_u32 s{sT0}, s{sT0}, 65536")
        for i in range(8):
            for h in range(2):
                off = (i*2048 + 1024*h) if half else (it*16384 + (i >> 1)*4096 + 2048*h)
                e(f"ds_read_b64_tr_b16 {vr(vA+4*i+2*h,2)}, v{vW if half else vW+(i&1)} offset:{off}")
        for i in range(8):
            e(f"s_waitcnt lgkmcnt({14-2*i})")
            e(mf_text(vA+4*i, vON, vACC if (half or i % 2 == 0) else vACC+4, bi == 0 and i < (1 if half else 2)))
    nop(4)
    e(f"s_setpc_b64 {sr(sRET,2)}")

vPat, vP3072, vP1024, vP3584, vPH = 12, 13, 14, 15, 16
lab("L_loader")
e(f"s_setprio {OPT.get('lp', 2)}")
e(f"v_lshrrev_b32 v{vT2}, 3, v{vLANE}")
e(f"v_bfe_u32 v{vT3}, v{vT2}, 1, 2")
e(f"v_lshlrev_b32 v{vT3}, 1, v{vT3}")
e(f"v_and_b32 v{vT4}, 7, v{vLANE}")
e(f"v_xor_b32 v{vT3}, v{vT3}, v{vT4}")
e(f"v_lshlrev_b32 v{vT3}, 4, v{vT3}")
e(f"v_mul_u32_u24 v{vP3072}, 3072, v{vT2}")
e(f"v_add_u32 v{vP3072}, v{vP3072}, v{vT3}")
e(f"v_lshl_add_u32 v{vP1024}, v{vT2}, 10, v{vT3}")
e(f"v_mul_u32_u24 v{vP3584}, 3584, v{vT2}")
e(f"v_add_u32 v{vP3584}, v{vP3584}, v{vT3}")
e(f"v_lshrrev_b32 v{vT2}, 2, v{vLANE}")
e(f"v_bfe_u32 v{vT3}, v{vT2}, 2, 1")
e(f"v_lshlrev_b32 v{vT3}, 1, v{vT3}")
e(f"v_and_b32 v{vT4}, 3, v{vLANE}")
e(f"v_xor_b32 v{vT3}, v{vT3}, v{vT4}")
e(f"v_mul_u32_u24 v{vPH}, 3584, v{vT2}")
e(f"v_lshl_add_u32 v{vPH}, v{vT3}, 4, v{vPH}")
e(f"s_lshl_b32 s{sT2}, s{sJ}, 7")
e(f"s_mul_i32 s{sC3}, s{sJ}, 448")
e(f"s_and_b32 s{sT0}, s{sJ}, 1")
e(f"s_lshl_b32 s{sT1}, s{sT0}, 6")
e(f"s_xor_b32 s{sT0}, s{sT0}, 1")
e(f"s_mul_i32 s{sT0}, s{sT0}, 384")
e(f"s_add_u32 s{sCQ}, s{sC3}, s{sT0}")
e(f"s_add_u32 s{sC3}, s{sC3}, s{sT1}")
e("s_waitcnt lgkmcnt(0)")
e(f"s_mov_b32 s{sWS}, s{pWSP}")
e(f"s_mov_b32 s{sWS+1}, s{pWSP+1}")
cur = {}
issued = []
def setif(key, val, emit):
    if cur.get(key) != val:
        emit(); cur[key] = val
def issue(li):
    P, s_ = li // 2, li % 2
    if li < 18:
        if P <= 2: ptr, size, pat, rs, col, cc = pWQKV, 512*3072, vP3072, 3072, sT2, (1024, 2048, 0)[P]
        elif P <= 5: ptr, size, pat, rs, col, cc = (pWO, pW1, pW2)[P-3], 512*1024, vP1024, 1024, sT2, 0
        else: ptr, size, pat, rs, col, cc = pW3, 512*3584, vP3584, 3584, sC3, 128*(P-6)
        step, mid, kstr, c0 = 8*rs, 0, 128*rs, cc + 256*rs*s_
    elif li == 18:
        ptr, size, pat, col = pW3, 512*3584, vPH, sCQ
        step, mid, kstr, c0 = 16*3584, 128*3584, 128*3584, 0
    else:
        c = li - 19
        ptr, size, pat, col = pW4, 1792*1024, vP1024, sT2
        if c < 6: step, mid, kstr, c0 = 8192, 192*1024, 448*1024, (64*(c//2) + 896*(c%2))*1024
        else: step, mid, kstr, c0 = 8192, 384*1024, 896*1024, 192*1024
    def esrc():
        e(f"s_mov_b32 s{sW}, s{ptr}"); e(f"s_mov_b32 s{sW+1}, s{ptr+1}"); e(f"s_mov_b32 s{sW+2}, {size}")
    setif("ptr", ptr, esrc)
    setif("pat", pat, lambda: e(f"v_mov_b32 v{vPat}, v{pat}"))
    setif("step", step, lambda: e(f"s_mov_b32 s{sSTEP}, {step}"))
    setif("mid", mid, lambda: e(f"s_mov_b32 s{sMID}, {mid}"))
    setif("kstr", kstr, lambda: e(f"s_mul_i32 s{sT1}, s{sKH}, {kstr}"))
    e(f"s_add_u32 m0, s{sPAR}, {(li & 3)*16384}")
    e(f"s_add_u32 s{sSO}, s{col}, s{sT1}")
    if c0: e(f"s_add_u32 s{sSO}, s{sSO}, {c0}")
    e(f"s_call_b64 {sr(sRET,2)}, L_iss")
    issued.append(li)
def land(li):
    idx = issued.index(li)
    e(f"s_waitcnt vmcnt({sum(1 if x == 't' else 16 for x in issued[idx+1:])})")
def ltouch(key, sleep):
    issued.extend(["t"]*touches(SCH[key], "l", sleep))
ltouch("s", 0)
barrier("l")
issue(0); issue(1)
ltouch("x", OPT.get("tsd", 6))
if MID:
  sched = [(None, [], None), (1, [2, 3], "b0"),
         (None, [4], None), (3, [], None), (None, [5], "b1"),
         (None, [], None), (5, [], None), (None, [6, 7], "b3"),
         (None, [], None), (None, [], None), (7, [8, 9], "r1"),
         (9, [10, 11], "r2"), (11, [12, 13], "r3"), (13, [14, 15], None),
         (None, [16], None), (15, [17], "b9"),
         (None, [18], None), (17, [19], None),
         (None, [20], None), (18, [21], None),
         (19, [22], None),
         (20, [], None), (21, [23], None), (22, [24], None), (23, [25], None), (24, [], None), (25, [], None)]
else:
  sched = [(None, [], None), (1, [2, 3], "b0"),
         (3, [], None), (None, [4, 5], "b1"),
         (5, [], None), (None, [[6, 7], [6], []][OPT.get("wo", 2)], "b3"),
         (None, [[], [-6, 7], [-6, 6, 7]][OPT.get("wo", 2)], None), (7, [8, 9], "r1"),
         (9, [10, 11], "r2"), (11, [12, 13], "r3"), (13, [14, 15], None),
         (15, [16, 17], "b9"), (17, [18, 19], None), (18, [20, 21], None),
         (19, [22], None),
         (20, [], None), (21, [23], None), (22, [24], None), (23, [25], None), (24, [], None), (25, [], None)]
for k, (nd, aft, tk) in enumerate(sched):
    if nd is not None: land(nd)
    prof(k+1)
    barrier("l")
    for li in aft:
        if li < 0: e(f"s_sleep {-li}")
        else: issue(li)
    if tk: ltouch(tk, OPT.get("tsr", 30) if tk[0] == "r" else OPT.get("tsd", 6))
prof_flush()
e("s_endpgm")
lab("L_iss")
for i in range(16):
    e(f"buffer_load_dwordx4 v{vPat}, {sr(sW,4)}, s{sSO} offen lds")
    if i < 15:
        e("s_add_u32 m0, m0, 1024")
        e(f"s_add_u32 s{sSO}, s{sSO}, s{sSTEP}")
    if i == 7: e(f"s_add_u32 s{sSO}, s{sSO}, s{sMID}")
e(f"s_setpc_b64 {sr(sRET,2)}")
emit_tails()
lab("L_end")
e("s_endpgm")
assert nbar["c"] == nbar["l"] + 1, nbar

out.append('.section .rodata,"a"')
out.append(".p2align 6")
out.append(f".amdhsa_kernel {NAME}_kernel")
out.append(f"  .amdhsa_next_free_vgpr {NVGPR}")
out.append("  .amdhsa_next_free_sgpr 100")
out.append(f"  .amdhsa_accum_offset {NVGPR}")
out.append("  .amdhsa_group_segment_fixed_size 0")
out.append("  .amdhsa_kernarg_size 88")
out.append("  .amdhsa_user_sgpr_count 2")
out.append("  .amdhsa_user_sgpr_kernarg_segment_ptr 1")
out.append("  .amdhsa_system_sgpr_workgroup_id_x 1")
out.append(".end_amdhsa_kernel")
dst = [a for a in sys.argv[1:] if not a.startswith("--")]
open(dst[0] if dst else "cdna_kernels/%s.s" % NAME, "w").write("\n".join(o for o in out if o is not None) + "\n")
```

```python
import sys, math, struct

NAME = "sequential_preLN__sliding_local_dilated__mixer_s_mlp__prompt"
PROF = "--prof" in sys.argv
OPT = {}
for a in sys.argv:
    if a.startswith("--") and "=" in a:
        k, v = a[2:].split("="); OPT[k] = int(v)

out = []
def e(s): out.append("    " + s)
def lab(s): out.append(s + ":")
def cmt(s): out.append("    ; " + s)
def align(): out.append(".p2align 3")
def nop(n):
    while n > 0:
        k = min(n, 16); e(f"s_nop {k-1}"); n -= k
def f32(x): return "0x%08x" % struct.unpack("<I", struct.pack("<f", x))[0]
def vr(a, n): return f"v[{a}:{a+n-1}]"
def sr(a, n): return f"s[{a}:{a+n-1}]"
_uid = [0]
def uid(p):
    _uid[0] += 1
    return f"L_{p}_{_uid[0]}"

WS_O, WS_H, WS_H1, WS_X1, WS_G = 0, 2<<20, 4<<20, 6<<20, 8<<20
WS_HS = 15<<20
WS_X1S = WS_HS + (128<<10)
WS_FL = WS_HS + (256<<10)
WS_FL2 = WS_FL + (8<<10)
WS_HK = 16<<20
WS_PROF = 17<<20
WS_SIZE = 18<<20
GT = 56*1024
OOB = 0x40000000
LOOB = 0x30000
XB = 131072
KA = XB + 16384
KSZ = 1792
VA = KA + 4*KSZ
CSA = VA + 4*2048
CB = CSA + 768
C_KV, C_CSF, C_XF, C_ACK = 0, 8, 16, 32
LDS_BYTES = 163840
assert CB + 64 <= LDS_BYTES and VA % 256 == 0

sWAVE = 3
sX, sWS, sOUT = 4, 8, 12
sW = 12
pX, pWQKV, pWO, pBX, pW1, pW2, pW3, pW4, pOUT, pDBG, pWSP = 16, 18, 20, 22, 24, 26, 28, 30, 32, 34, 36
sJ, sG, sUNIT, sTILE, sBUD, sCNT = 38, 39, 40, 41, 42, 43
sT0, sT1, sT2, sT3 = 44, 45, 46, 47
sRET, sRET2 = 48, 50
sONES, sCEXP, sPUBO, sPUBV = 52, 53, 54, 55
sFLW = 56
sODD = 58
sOFFA, sPAR, sDST, sFLOFF, sR32, sHF, sHKO, sKH = 60, 61, 62, 63, 64, 65, 66, 67
sM0, sM1 = 68, 70
sFB, sFG = 72, 74
sTAIL, sXSEQ, sMK0, sNBO, sCSN = 89, 90, 91, 92, 93
sONE2 = 76
sPT, sPIDX = 78, 80
sSO, sSTEP, sC3, sCQ, sTA, sTB, sTC, sMID = 81, 82, 83, 84, 85, 86, 87, 88
vLANE = 0
vT0, vT1, vT2, vT3, vT4, vP, vCB, vT6, vT7 = 1, 2, 3, 4, 5, 6, 7, 8, 9
vL16, vFLO = 10, 11
vB, vW, vB32 = 12, 16, 20
vSC, vR1 = 22, 24
vSTO, vOUTO, vXA, vXP = 26, 27, 28, 29
vGA = 30
vLA = 32
vXR, vHP, vX1P = 36, 44, 52
vST = 60
vA, vWB = 64, 128
vACC, vACP = 160, 176
vE = 192
vPK, vK = 224, 232
vMS, vGB, vNMH = 240, 242, 244
vCSR = 246
vW1, vXFP, vBIT, vCF = 248, 249, 250, 252
vHS = 254
vP2 = 247
NVGPR = 256

def prof(idx):
    if not PROF: return
    e(f"s_memrealtime {sr(sPT,2)}")
    e("s_memtime s[98:99]")
    e("s_waitcnt lgkmcnt(0)")
    e(f"v_writelane_b32 v{vP}, s{sPT}, {idx}")
    e(f"v_writelane_b32 v{vP}, s98, {idx+32}")
def prof_flush(dbg=False):
    if not PROF: return
    if dbg and OPT.get("dbgwg") is not None:
        l = uid("dbg")
        e(f"s_lshl_b32 s{sT0}, s2, 3")
        e(f"s_add_u32 s{sT0}, s{sT0}, s{sWAVE}")
        e(f"s_cmp_lg_u32 s{sT0}, {OPT['dbgwg']*8}")
        e(f"s_cbranch_scc1 {l}")
        e(f"v_readlane_b32 s{sT1}, v{vP}, 63")
        for k, idx in enumerate([0, 1, 30, 2, 3, 4, 5, 6, 8, 9, 11, 12, 14, 15, 19, 21]):
            e(f"v_readlane_b32 s{sT0}, v{vP}, {idx}")
            e(f"s_sub_u32 s{sT0}, s{sT0}, s{sT1}")
            e(f"v_writelane_b32 v{vT2}, s{sT0}, {k}")
        e(f"v_lshlrev_b32 v{vT0}, 2, v{vLANE}")
        e("s_mov_b64 exec, 0xffff")
        e(f"global_store_dword v{vT0}, v{vT2}, {sr(pDBG,2)}")
        e("s_mov_b64 exec, -1")
        lab(l)
    e(f"v_lshlrev_b32 v{vT0}, 2, v{vLANE}")
    if OPT.get("dp") is not None: e(f"v_mov_b32 v{vP}, v{vP2}")
    e(f"buffer_store_dword v{vP}, v{vT0}, {sr(sWS,4)}, s{sPIDX} offen")
tails = []
def spin(loop, done):
    tails.append((loop+"_s", loop, done))
    return loop+"_s"
def emit_tails():
    for s_, l, d in tails:
        lab(s_)
        e(f"s_sub_u32 s{sBUD}, s{sBUD}, 1")
        e(f"s_cbranch_scc0 {l}")
        e(f"s_mov_b32 s{sBUD}, 0")
        e(f"s_branch {d}")
    tails.clear()
def red2x2(a, b, t, a2, b2, t2):
    e(f"v_permlane16_swap_b32 v{a}, v{b}")
    e(f"v_permlane16_swap_b32 v{a2}, v{b2}")
    e(f"v_add_f32 v{a}, v{a}, v{b}")
    e(f"v_add_f32 v{a2}, v{a2}, v{b2}")
    e(f"v_mov_b32 v{t}, v{a}")
    e(f"v_mov_b32 v{t2}, v{a2}")
    nop(1)
    e(f"v_permlane32_swap_b32 v{a}, v{t}")
    e(f"v_permlane32_swap_b32 v{a2}, v{t2}")
    e(f"v_add_f32 v{a}, v{a}, v{t}")
    e(f"v_add_f32 v{a2}, v{a2}, v{t2}")
    e(f"v_mov_b32 v{t}, v{a}")
    e(f"v_mov_b32 v{t2}, v{a2}")
    nop(1)
    e(f"v_permlane16_swap_b32 v{a}, v{t}")
    e(f"v_permlane16_swap_b32 v{a2}, v{t2}")
def red2(a, b, t):
    e(f"v_permlane16_swap_b32 v{a}, v{b}")
    e(f"v_add_f32 v{a}, v{a}, v{b}")
    e(f"v_mov_b32 v{t}, v{a}")
    nop(2)
    e(f"v_permlane32_swap_b32 v{a}, v{t}")
    e(f"v_add_f32 v{a}, v{a}, v{t}")
    e(f"v_mov_b32 v{t}, v{a}")
    nop(2)
    e(f"v_permlane16_swap_b32 v{a}, v{t}")
def mean_var(vs, vq):
    e(f"v_mul_f32 v{vs}, {f32(-1.0/512)}, v{vs}")
    e(f"v_mul_f32 v{vq}, {f32(1.0/512)}, v{vq}")
    e(f"v_fma_f32 v{vq}, -v{vs}, v{vs}, v{vq}")
    e(f"v_max_f32 v{vq}, 0, v{vq}")
def zero(base, n):
    for i in range(n): e(f"v_mov_b32 v{base+i}, 0")
class LQ:
    def __init__(self, pend=()): self.q = list(pend)
    def op(self, id_, text): e(text); self.q.append(id_)
    def need(self, ids, vm=None):
        idx = max([i for i, x in enumerate(self.q) if x in ids], default=-1)
        parts = []
        if vm is not None: parts.append(f"vmcnt({vm})")
        if idx >= 0:
            parts.append(f"lgkmcnt({min(len(self.q)-1-idx, 15)})")
            self.q = self.q[idx+1:]
        if parts: e("s_waitcnt " + " ".join(parts))
def rd_text(buf, h, p, half_panel=False, base=0):
    if half_panel: off = ((p >> 1) & 7)*2048 + 1024*h; jj = p & 1
    else: off = (p >> 2)*4096 + 2048*h; jj = p & 3
    return f"ds_read_b64_tr_b16 {vr(buf+2*h,2)}, v{vW+jj} offset:{base+off}"
def mf_text(buf, areg, c, czero=False):
    return f"v_mfma_f32_16x16x32_bf16 {vr(c,4)}, {vr(buf,4)}, {vr(areg,4)}, {'0' if czero else vr(c,4)}"
def wtog(jj): e(f"v_xor_b32 v{vW+jj}, 0x8000, v{vW+jj}")
T_W = lambda i: f"ds_write_b128 v{vXA}, {vr(vACP+4*i,4)} offset:{1024*i}"
T_R = lambda i: f"ds_read_b128 {vr(vE+4*i,4)}, v{vXP} offset:{1024*i}"
T_C = lambda i: f"ds_read_b128 {vr(vACP+4*i,4)}, v{vCSR} offset:{64*i}"
def pre(half_panel=False, base=0):
    for p in range(6):
        for h in range(2): e(rd_text(vWB+4*p, h, p, half_panel, base))
nbar = {"c": 0, "h": 0, "l": 0}
def barrier(role, n=1, emit=True):
    if role == "h" and nbar[role] and nbar[role] < 32: prof(nbar[role])
    nbar[role] += n
    if emit: e("s_barrier")

DS = [18, 20, 22, 24, 26, 28, 30, 82]
def dst_(i):
    if OPT.get("dp") is not None: e(f"s_memtime {sr(DS[i],2)}")
ncall = [0]
MID = 0
def gen_pass64():
    buf = lambda q: (vE + 4*(q-16)) if 16 <= q < 24 else (vWB + 4*(q % 8))
    areg = lambda q, t: vA + 8*(q >> 2) + 4*t
    acc = lambda q, t: (vACP if t else vACC) + 4*(q & 3)
    lq = LQ([f"f{p}" for p in range(6) for h in range(2)])
    def RD(q, h, nxt=False):
        lq.op(("n" if nxt else "f")+str(q), rd_text(vWB+4*q if nxt else buf(q), h, q))
    pend = [(q, h) for q in range(4+6, 32) for h in range(2)]
    def dual(q, czero=False):
        for t in range(2):
            e(mf_text(buf(q), areg(q, t), acc(q, t), czero))
            if q < 4: RD(q+6, t)
            else:
                RD(*pend.pop(0))
                if q >= 10 and t == 0: RD(*pend.pop(0))
    def waitq(q, vm=None): lq.need([f"f{q}", f"f{q+1}"], vm)
    align(); lab("L_pass64b")
    save = list(lq.q)
    for q in range(4):
        if q % 2 == 0: waitq(q, 14 if q == 0 else None)
        dual(q)
    e("s_branch L_pass64_c")
    lq.q = save
    align(); lab("L_pass64")
    for q in range(4):
        if q % 2 == 0: waitq(q, 14 if q == 0 else None)
        dual(q, True)
    lab("L_pass64_c")
    dst_(1)
    for q in range(4, 16):
        if q % 2 == 0: waitq(q, 14-2*(q >> 2) if q % 4 == 0 else None)
        dual(q)
    dst_(2)
    if MID:
        lq.need(["f15"])
        e(f"s_bitcmp1_b32 s{sTAIL}, 0")
        e("s_cbranch_scc1 L_nomid")
        e("s_barrier")
        lab("L_nomid")
    todo = [lambda j=j: wtog(j) for j in range(4)]
    for q in range(16, 32):
        if q % 2 == 0: waitq(q, 14-2*(q >> 2) if q % 4 == 0 else None)
        e(mf_text(buf(q), areg(q, 1), acc(q, 1)))
        k = 0
        while pend and k < 2: RD(*pend.pop(0)); k += 1
        if q == OPT.get("ph", 28):
            e("s_cbranch_vccnz L_pubhook"); lab("L_pubret"); k += 1
        while not pend and todo and k < 1: todo.pop(0)(); k += 1
    assert not pend and not todo
    O = lambda q: e(mf_text(buf(q), areg(q, 0), acc(q, 0)))
    W = lambda i: lq.op(f"W{i}", T_W(i))
    dst_(3)
    e(f"s_bitcmp1_b32 s{sTAIL}, 0")
    e("s_cbranch_scc1 L_pass64_f")
    save = list(lq.q)
    O(16); O(17); O(18); O(19); W(0); O(20); O(21); W(1); O(22); O(23); W(2); O(24); O(25); W(3); O(26); O(27)
    dst_(4)
    lq.need(["W3"])
    dst_(5)
    e("s_barrier")
    dst_(6)
    O(28)
    for i in range(2): lq.op(f"R{i}", T_R(i))
    O(29)
    for i in range(2, 4): lq.op(f"R{i}", T_R(i))
    O(30); RD(0, 0, True); RD(0, 1, True)
    O(31); RD(1, 0, True); RD(1, 1, True)
    for i in range(4): lq.op(f"C{i}", T_C(i))
    for q in range(2, 6): RD(q, 0, True); RD(q, 1, True)
    lq.need(["R3"])
    for i in range(8): e(f"v_pk_add_f32 {vr(vE+2*i,2)}, {vr(vACC+2*i,2)}, {vr(vE+2*i,2)}")
    lq.need(["C3"])
    dst_(7)
    e(f"s_setpc_b64 {sr(sRET,2)}")
    lq.q = save
    align(); lab("L_pass64_f")
    O(16); e(f"s_add_u32 s{sXSEQ}, s{sXSEQ}, 1"); O(17); e(f"v_mov_b32 v{vT7}, s{sXSEQ}"); O(18); W(0); O(19); O(20); W(1); O(21); O(22); W(2); O(23); O(24); W(3)
    O(25)
    lq.need(["W3"])
    lq.op("X", f"ds_write_b32 v{vW1}, v{vT7} offset:{C_XF}")
    lq.op("CF", f"ds_read_b64 {vr(vCF,2)}, v{vCB} offset:{C_CSF}")
    O(26); lq.op("C0", T_C(0)); lq.op("C1", T_C(1)); O(27); lq.op("C2", T_C(2)); lq.op("C3", T_C(3))
    O(28); O(29)
    lq.op("F", f"ds_read_b32 v{vT6}, v{vXFP} offset:{C_XF}"); lq.op("R0", T_R(0))
    O(30); lq.op("R1", T_R(1)); lq.op("R2", T_R(2)); O(31); lq.op("R3", T_R(3))
    nop(2)
    lab("L_xf_w")
    e("s_waitcnt lgkmcnt(0)")
    e(f"v_readfirstlane_b32 s{sT0}, v{vT6}")
    for i in range(8): e(f"v_pk_add_f32 {vr(vE+2*i,2)}, {vr(vACC+2*i,2)}, {vr(vE+2*i,2)}")
    e(f"s_cmp_ge_u32 s{sT0}, s{sXSEQ}")
    e("s_cbranch_scc0 L_xf_r")
    lab("L_xf_d")
    e(f"s_setpc_b64 {sr(sRET,2)}")
    lab("L_xf_r")
    e(f"ds_read_b32 v{vT6}, v{vXFP} offset:{C_XF}")
    for i in range(4): e(T_R(i))
    e(f"s_sub_u32 s{sBUD}, s{sBUD}, 1")
    e("s_cbranch_scc0 L_xf_w")
    e(f"s_mov_b32 s{sBUD}, 0")
    e("s_branch L_xf_d")
    lab("L_pubhook")
    e(f"v_mov_b32 v{vT6}, s{sPUBV}")
    e("s_waitcnt vmcnt(0)")
    e(f"buffer_atomic_add v{vT6}, v{vFLO}, {sr(sWS,4)}, s{sPUBO} offen sc1")
    e("s_mov_b64 vcc, 0")
    e("s_branch L_pubret")
def call_pass(name="L_pass64", bar=True):
    dst_(0)
    e(f"s_call_b64 {sr(sRET,2)}, {name}")
    if OPT.get("dp") == ncall[0]:
        e("s_waitcnt lgkmcnt(0)")
        for i in range(8): e(f"v_writelane_b32 v{vP2}, s{DS[i]}, {i}")
    ncall[0] += 1
    if bar: barrier("c", 2 if MID else 1, False)
def scalepack(dst):
    for i in range(8): e(f"v_pk_mul_f32 {vr(vE+2*i,2)}, {vr(vE+2*i,2)}, {vr(vSC,2)}")
    for i in range(8): e(f"v_cvt_pk_bf16_f32 v{dst+i}, v{vE+2*i}, v{vE+2*i+1}")

hdr = open("cdna_kernels/%s.s.ref" % NAME).read().split("\n")
for l in hdr:
    if l.startswith("; Override"): break
    out.append(l)
out.append(f"; @launch grid=(256,1,1) block=(512,1,1) lds={LDS_BYTES}")
out.append('.amdgcn_target "amdgcn-amd-amdhsa--gfx950"')
out.append(".text")
out.append(f".globl {NAME}_kernel")
out.append(".p2align 8")
out.append(f".type {NAME}_kernel,@function")
lab(f"{NAME}_kernel")
if PROF: e("s_memrealtime s[96:97]")
if PROF: e("s_memrealtime s[96:97]")
e(f"s_getpc_b64 {sr(sM0,2)}")
lab("L_pc")
e(f"s_load_dwordx2 {sr(pX,2)}, s[0:1], 0")
e(f"s_cmp_ge_u32 s2, {OPT.get('cpn', 32)}")
e("s_cbranch_scc1 L_nocp")
e("v_lshlrev_b32 v1, 7, v0")
e(f"v_min_u32 v1, L_end-L_pc, v1")
e(f"global_load_dword v255, v1, {sr(sM0,2)}")
lab("L_nocp")
e("s_cmp_ge_u32 s2, 256")
e("s_cbranch_scc1 L_end")
e(f"s_load_dwordx2 {sr(18,2)}, s[0:1], 8")
e(f"s_load_dwordx4 {sr(20,4)}, s[0:1], 16")
e(f"s_load_dwordx8 {sr(24,8)}, s[0:1], 32")
e(f"s_load_dwordx4 {sr(32,4)}, s[0:1], 64")
e(f"s_load_dwordx2 {sr(36,2)}, s[0:1], 80")
e(f"v_lshrrev_b32 v1, 6, v0")
e(f"v_and_b32 v{vLANE}, 63, v0")
e(f"v_readfirstlane_b32 s{sWAVE}, v1")
MAP42 = OPT.get("map", 42) == 42
if MAP42:
    e(f"s_and_b32 s{sHF}, s2, 1")
    e(f"s_lshr_b32 s{sR32}, s2, 3")
    e(f"s_and_b32 s{sJ}, s{sR32}, 3")
    e(f"s_lshl_b32 s{sT0}, s{sHF}, 2")
    e(f"s_add_u32 s{sJ}, s{sJ}, s{sT0}")
    e(f"s_and_b32 s{sG}, s2, 6")
    e(f"s_lshl_b32 s{sG}, s{sG}, 2")
    e(f"s_lshr_b32 s{sT1}, s{sR32}, 2")
    e(f"s_add_u32 s{sG}, s{sG}, s{sT1}")
else:
    e(f"s_lshr_b32 s{sR32}, s2, 3")
    e(f"s_and_b32 s{sJ}, s{sR32}, 7")
    e(f"s_and_b32 s{sG}, s2, 7")
    e(f"s_lshl_b32 s{sG}, s{sG}, 2")
    e(f"s_lshr_b32 s{sT1}, s{sR32}, 3")
    e(f"s_add_u32 s{sG}, s{sG}, s{sT1}")
e(f"s_mov_b32 s{sBUD}, 0x80000")
e(f"s_and_b32 s{sKH}, s{sWAVE}, 1")
e(f"s_lshl_b32 s{sPAR}, s{sKH}, 16")
e(f"v_mov_b32 v{vCB}, {CB}")
e(f"v_lshlrev_b32 v{vL16}, 4, v{vLANE}")
e(f"v_lshrrev_b32 v{vT0}, 4, v{vLANE}")
e(f"v_and_b32 v{vT1}, 15, v{vLANE}")
e(f"s_mov_b32 s{sWS+2}, {WS_SIZE}")
e(f"s_mov_b32 s{sWS+3}, 0x00020000")
e(f"s_mov_b32 s{sX+3}, 0x00020000")
e(f"s_mov_b32 s{sOUT+3}, 0x00020000")
e(f"s_mov_b32 s{sONES}, 0x3f803f80")
if PROF:
    e(f"s_lshl_b32 s{sPIDX}, s2, 3")
    e(f"s_add_u32 s{sPIDX}, s{sPIDX}, s{sWAVE}")
    e(f"s_lshl_b32 s{sPIDX}, s{sPIDX}, 8")
    e(f"s_add_u32 s{sPIDX}, s{sPIDX}, {WS_PROF}")
    e(f"v_mov_b32 v{vP}, 0")
    e("s_waitcnt lgkmcnt(0)")
    e(f"v_writelane_b32 v{vP}, s96, 63")
e(f"s_cmp_ge_u32 s{sWAVE}, 4")
e("s_cbranch_scc1 L_service")

def tr_bases():
    e(f"v_lshrrev_b32 v{vT3}, 2, v{vLANE}")
    e(f"v_bfe_u32 v{vT4}, v{vT3}, 1, 2")
    e(f"v_lshlrev_b32 v{vT4}, 5, v{vT4}")
    e(f"v_and_b32 v{vT2}, 3, v{vLANE}")
    e(f"v_lshl_add_u32 v{vT4}, v{vT2}, 3, v{vT4}")
    e(f"v_lshl_add_u32 v{vB}, v{vT3}, 7, v{vT4}")
    for jj in range(1, 4): e(f"v_xor_b32 v{vB+jj}, {jj<<5}, v{vB}")
    e(f"v_and_b32 v{vT4}, 1, v{vT0}")
    e(f"v_lshlrev_b32 v{vT4}, 5, v{vT4}")
    e(f"v_lshl_add_u32 v{vT4}, v{vT2}, 3, v{vT4}")
    e(f"v_lshl_add_u32 v{vB32}, v{vT3}, 6, v{vT4}")
    e(f"v_xor_b32 v{vB32+1}, 32, v{vB32}")
e(f"s_lshl_b32 s{sTILE}, s{sG}, 2")
e(f"s_add_u32 s{sTILE}, s{sTILE}, s{sWAVE}")
e(f"s_lshr_b32 s{sUNIT}, s{sTILE}, 1")
e(f"s_mov_b32 s{sX+2}, {2<<20}")
e(f"s_lshl_b32 s{sT2}, s{sUNIT}, 15")
e(f"s_lshl_b32 s{sT0}, s{sKH}, 8")
e(f"s_add_u32 s{sT2}, s{sT2}, s{sT0}")
e(f"s_lshr_b32 s{sT3}, s{sWAVE}, 1")
e(f"s_lshl_b32 s{sT3}, s{sT3}, 14")
e(f"s_add_u32 s{sT3}, s{sT3}, s{sPAR}")
e(f"s_add_u32 s{sT3}, s{sT3}, 32768")
e(f"s_mov_b32 m0, s{sT3}")
e(f"v_lshrrev_b32 v{vT2}, 5, v{vLANE}")
e(f"v_xor_b32 v{vT3}, v{vT1}, v{vT2}")
e(f"v_lshlrev_b32 v{vT3}, 4, v{vT3}")
e(f"v_lshl_add_u32 v{vT3}, v{vT2}, 10, v{vT3}")
e(f"v_and_b32 v{vT4}, 1, v{vT0}")
e(f"v_lshl_add_u32 v{vWB}, v{vT4}, 9, v{vT3}")
for i in range(1, 8): e(f"v_xor_b32 v{vWB+i}, {i<<5}, v{vWB}")
e("s_waitcnt lgkmcnt(0)")
e(f"s_mov_b32 s{sX}, s{pX}")
e(f"s_mov_b32 s{sX+1}, s{pX+1}")
for i in range(16):
    e(f"buffer_load_dwordx4 v{vWB+(i&7)}, {sr(sX,4)}, s{sT2} offen lds")
    if i < 15:
        e("s_add_u32 m0, m0, 1024")
        e(f"s_add_u32 s{sT2}, s{sT2}, 2048")
barrier("c")
prof(0)
e(f"s_mov_b32 s{sWS}, s{pWSP}")
e(f"s_mov_b32 s{sWS+1}, s{pWSP+1}")
e(f"s_mov_b32 s{sOUT}, s{pOUT}")
e(f"s_mov_b32 s{sOUT+1}, s{pOUT+1}")
e(f"s_mov_b32 s{sOUT+2}, {2<<20}")
e(f"s_mov_b32 s{sCEXP}, {f32(0.25*math.log2(math.e))}")
e(f"s_mov_b32 s{sODD}, 0xaaaaaaaa")
e(f"s_mov_b32 s{sODD+1}, 0xaaaaaaaa")
e(f"s_mov_b32 s{sONE2}, 1.0")
e(f"s_mov_b32 s{sONE2+1}, 1.0")
e("s_mov_b64 vcc, 0")
tr_bases()
for jj in range(4): e(f"v_add_u32 v{vW+jj}, s{sPAR}, v{vB+jj}")
e(f"v_lshlrev_b32 v{vCSR}, 4, v{vT0}")
e(f"v_add_u32 v{vCSR}, {CSA}, v{vCSR}")
e(f"s_lshl_b32 s{sT2}, s{sWAVE}, 12")
e(f"s_add_u32 s{sT2}, s{sT2}, {XB}")
e(f"v_add_u32 v{vXA}, s{sT2}, v{vL16}")
e(f"v_xor_b32 v{vXP}, 0x1000, v{vXA}")
e(f"v_cmp_eq_u32 {sr(sM0,2)}, 0, v{vLANE}")
e(f"v_cmp_gt_u32 {sr(sM1,2)}, 16, v{vLANE}")
e(f"v_mov_b32 v{vT2}, {OOB}")
e(f"s_lshl_b32 s{sFLOFF}, s{sUNIT}, 7")
e(f"s_add_u32 s{sFLOFF}, s{sFLOFF}, {WS_FL}")
e(f"v_cndmask_b32 v{vFLO}, v{vT2}, 0, {sr(sM0,2)}")
e(f"s_lshl_b32 s{sT0}, s{sTILE}, 10")
e(f"s_lshr_b32 s{sT1}, s{sJ}, 1")
e(f"s_lshl_b32 s{sT1}, s{sT1}, 8")
e(f"s_add_u32 s{sT0}, s{sT0}, s{sT1}")
e(f"s_and_b32 s{sT1}, s{sJ}, 1")
e(f"s_lshl_b32 s{sT1}, s{sT1}, 3")
e(f"s_add_u32 s{sT0}, s{sT0}, s{sT1}")
e(f"v_add_u32 v{vT3}, s{sT0}, v{vL16}")
e(f"v_cndmask_b32 v{vSTO}, v{vT2}, v{vT3}, {sr(sM1,2)}")
e(f"s_lshl_b32 s{sT0}, s{sG}, 3")
e(f"s_add_u32 s{sT0}, s{sT0}, s{sJ}")
e(f"s_lshl_b32 s{sPUBO}, s{sT0}, 7")
e(f"s_add_u32 s{sPUBO}, s{sPUBO}, {WS_FL2}")
e(f"s_lshl_b32 s{sHKO}, s{sT0}, 12")
e(f"s_add_u32 s{sHKO}, s{sHKO}, {WS_HK}")
e(f"s_lshl_b32 s{sDST}, s{sTILE}, 14")
e(f"s_lshl_b32 s{sT1}, s{sJ}, 11")
e(f"s_add_u32 s{sDST}, s{sDST}, s{sT1}")
e(f"s_lshl_b32 s{sT1}, s{sJ}, 7")
e(f"s_lshl_b32 s{sCQ}, s{sTILE}, 14")
e(f"s_add_u32 s{sCQ}, s{sCQ}, s{sT1}")
e(f"v_and_b32 v{vT3}, 1, v{vT0}")
e(f"v_lshlrev_b32 v{vT3}, 5, v{vT3}")
e(f"v_lshrrev_b32 v{vT4}, 1, v{vT0}")
e(f"v_lshl_add_u32 v{vT3}, v{vT4}, 4, v{vT3}")
e(f"v_lshl_add_u32 v{vOUTO}, v{vT1}, 10, v{vT3}")
e(f"v_add_u32 v{vOUTO}, s{sCQ}, v{vOUTO}")
GA = -2.0*math.sqrt(2.0/math.pi)*math.log2(math.e)
for i in range(2):
    e(f"v_mov_b32 v{vGA+i}, {f32(GA)}")
    e(f"v_mov_b32 v{vGB+i}, {f32(GA*0.044715)}")
def set_la(stride):
    e(f"s_mul_i32 s{sT0}, s{sKH}, {stride+4096}")
    e(f"s_mul_i32 s{sT1}, s{sKH}, {-stride+4096}")
    e(f"s_add_u32 s{sT1}, s{sT1}, {stride}")
    e(f"v_add_u32 v{vLA}, s{sT0}, v{vL16}")
    e(f"v_add_u32 v{vLA+1}, s{sT1}, v{vL16}")
    e(f"v_add_u32 v{vLA+2}, 0x2000, v{vLA}")
    e(f"v_add_u32 v{vLA+3}, 0x2000, v{vLA+1}")
set_la(16384)
XA = vE
e(f"v_lshrrev_b32 v{vT3}, 1, v{vT0}")
e(f"v_xor_b32 v{vT3}, v{vT3}, v{vT1}")
e(f"v_lshlrev_b32 v{vT3}, 4, v{vT3}")
e(f"v_lshl_add_u32 v{vT3}, v{vT1}, 9, v{vT3}")
e(f"v_and_b32 v{vT4}, 1, v{vT0}")
e(f"v_lshl_add_u32 v{vT3}, v{vT4}, 3, v{vT3}")
e(f"s_lshl_b32 s{sT0}, s{sKH}, 13")
e(f"s_add_u32 s{sT0}, s{sT0}, s{sT3}")
e(f"v_add_u32 v{XA}, s{sT0}, v{vT3}")
for c in range(1, 8): e(f"v_xor_b32 v{XA+c}, {c<<5}, v{XA}")
for c in range(8): e(f"v_xor_b32 v{XA+8+c}, 0x2000, v{XA+c}")
for i in range(4): e(f"v_mov_b32 v{vST+i}, 0")
e(f"s_lshl_b32 s{sT0}, s{sWAVE}, 11")
e(f"s_add_u32 s{sT0}, s{sT0}, {VA}")
e(f"v_lshl_add_u32 v{vT2}, v{vT1}, 4, s{sT0}")
e(f"v_xor_b32 v{vT3}, 0x800, v{vT1}") if False else None
e(f"s_lshl_b32 s{sT0}, s{sWAVE}, 2")
e(f"v_add_u32 v{vXFP}, s{sT0}, v{vCB}")
e(f"v_mov_b32 v{vT4}, {LOOB}")
e(f"v_cndmask_b32 v{vW1}, v{vT4}, v{vXFP}, {sr(sM0,2)}")
e(f"v_xor_b32 v{vXFP}, 4, v{vXFP}")
e(f"s_lshl_b32 s{sT0}, s{sJ}, 1")
e(f"s_add_u32 s{sT0}, s{sT0}, s{sKH}")
e(f"s_lshl_b32 s{sT0}, 1, s{sT0}")
e(f"v_mov_b32 v{vBIT}, s{sT0}")
e(f"s_lshl_b32 s{sT0}, s{sT0}, 16")
e(f"v_mov_b32 v{vBIT+1}, s{sT0}")
e(f"s_lshl_b32 s{sT0}, s{sKH}, 2")
e(f"s_lshl_b32 s{sMK0}, 15, s{sT0}")
e(f"s_mov_b32 s{sTAIL}, 0")
e(f"s_mov_b32 s{sXSEQ}, 0")
e(f"s_bfe_u32 s{sT0}, s{sJ}, 0x10001")
e(f"s_xor_b32 s{sT0}, s{sT0}, s{sKH}")
e(f"s_lshl_b32 s{sT0}, s{sT0}, 16")
e(f"s_and_b32 s{sT1}, s{sJ}, 1")
e(f"s_lshl_b32 s{sT1}, s{sT1}, 7")
e(f"s_or_b32 s{sT0}, s{sT0}, s{sT1}")
e(f"s_lshr_b32 s{sT1}, s{sJ}, 2")
e(f"s_lshl_b32 s{sT1}, s{sT1}, 8")
e(f"v_xor_b32 v{vK}, s{sT0}, v{XA}")
e(f"v_add_u32 v{vK}, s{sT1}, v{vK}")
for jj in range(1, 4): e(f"v_xor_b32 v{vK+jj}, {jj<<5}, v{vK}")
e(f"s_lshr_b32 s{sT0}, s{sJ}, 2")
e(f"s_add_u32 s{sT0}, s{sT0}, 1")
e(f"s_sub_u32 s{sT1}, 0, s{sT0}")
e(f"s_bitcmp1_b32 s{sJ}, 1")
e(f"s_cselect_b32 s{sT0}, s{sT1}, s{sT0}")
e(f"s_lshl_b32 s{sT1}, s{sTILE}, 4")
e(f"s_add_u32 s{sT0}, s{sT0}, s{sT1}")
e(f"s_movk_i32 s{sT1}, 0x800")
e(f"v_add_u32 v{vT3}, s{sT0}, v{vT1}")
e(f"v_cmp_gt_u32 {sr(sM1,2)}, s{sT1}, v{vT3}")
e(f"v_lshrrev_b32 v{vT4}, 4, v{vT3}")
e(f"v_lshlrev_b32 v{vT4}, 14, v{vT4}")
e(f"v_lshl_add_u32 v{vT4}, v{vT0}, 8, v{vT4}")
e(f"v_and_b32 v{vT3}, 15, v{vT3}")
e(f"v_lshl_add_u32 v{vT4}, v{vT3}, 4, v{vT4}")
e(f"v_mov_b32 v{vT3}, {OOB}")
e(f"v_cndmask_b32 v{vHS}, v{vT3}, v{vT4}, {sr(sM1,2)}")
BI, SEL = vX1P+2, vX1P+6
e(f"v_and_b32 v{vT3}, 1, v{vT1}")
e(f"v_lshl_add_u32 v{vT3}, v{vT0}, 2, v{vT3}")
e(f"v_sub_u32 v{vT3}, v{vT1}, v{vT3}")
e(f"v_mov_b32 v{vT6}, {f32(-1e30)}")
e(f"s_cmp_eq_u32 s{sTILE}, 0")
e(f"s_cselect_b32 s{sT0}, -64, 16")
e(f"v_add_u32 v{vT4}, -2, v{vT3}")
e(f"v_cmp_gt_u32 {sr(sM0,2)}, 15, v{vT3}")
e(f"v_cmp_gt_u32 {sr(sM1,2)}, 15, v{vT4}")
e(f"v_add_u32 v{vT3}, s{sT0}, v{vT3}")
e(f"v_add_u32 v{vT4}, -2, v{vT3}")
e(f"v_cndmask_b32 v{BI}, v{vT6}, 0, {sr(sM0,2)}")
e(f"v_cndmask_b32 v{BI+1}, v{vT6}, 0, {sr(sM1,2)}")
e(f"v_cmp_gt_u32 {sr(sM0,2)}, 15, v{vT3}")
e(f"v_cmp_gt_u32 {sr(sM1,2)}, 15, v{vT4}")
e(f"v_mov_b32 v{vT3}, 0x0c0c0100")
e(f"v_mov_b32 v{vT4}, 0x01000c0c")
e(f"v_cndmask_b32 v{BI+2}, v{vT6}, 0, {sr(sM0,2)}")
e(f"v_cndmask_b32 v{BI+3}, v{vT6}, 0, {sr(sM1,2)}")
e(f"v_cndmask_b32 v{SEL}, v{vT3}, v{vT4}, {sr(sODD,2)}")
e(f"v_mov_b32 v{vT3}, 0x0c0c0302")
e(f"v_mov_b32 v{vT4}, 0x03020c0c")
e(f"v_cndmask_b32 v{SEL+1}, v{vT3}, v{vT4}, {sr(sODD,2)}")
e("s_waitcnt vmcnt(0)")
for ksl in range(8):
    for t in range(2):
        for h in range(2):
            e(f"ds_read_b64 {vr(vA+8*ksl+4*t+2*h,2)}, v{XA+8*t+2*(ksl&3)+h} offset:{256*(ksl>>2)}")
for ksl in range(8):
    e(f"s_waitcnt lgkmcnt({min(15, 28-4*ksl)})")
    if ksl == 7:
        barrier("c")
        for jj in range(4): e(f"ds_read_b64 {vr(vXR+2*jj,2)}, v{vK+jj}")
    for d in range(4):
        for t in range(2):
            r = vA+8*ksl+4*t+d
            e(f"v_dot2_f32_bf16 v{vST+2*t}, v{r}, s{sONES}, v{vST+2*t}")
            e(f"v_dot2_f32_bf16 v{vST+2*t+1}, v{r}, v{r}, v{vST+2*t+1}")
nop(3)
red2x2(vST, vST+1, vST+1, vST+2, vST+3, vST+3)
e(f"ds_write_b128 v{vT2}, {vr(vST,4)}")
e(f"s_xor_b32 s{sT0}, s{sWAVE}, 1")
e(f"s_lshl_b32 s{sT0}, s{sT0}, 11")
e(f"s_add_u32 s{sT0}, s{sT0}, {VA}")
e(f"v_lshl_add_u32 v{vT3}, v{vT1}, 4, s{sT0}")
e("s_waitcnt lgkmcnt(0)")
prof(1)
barrier("c")
e(f"ds_read_b128 {vr(vE,4)}, v{vT3}")
e(f"s_mov_b32 s{sT0}, 0x3f80")
e(f"s_mov_b32 s{sT1}, 0x3f800000")
e("s_waitcnt lgkmcnt(0)")
e(f"v_add_f32 v{vT4}, v{vE+2}, v{vST}")
e(f"v_add_f32 v{vT3}, v{vE+3}, v{vST+1}")
e(f"v_add_f32 v{vT6}, v{vE}, v{vST+2}")
e(f"v_mul_f32 v{vT6}, {f32(-1.0/512)}, v{vT6}")
mean_var(vT4, vT3)
e(f"v_add_f32 v{vT3}, {f32(1e-5)}, v{vT3}")
e(f"v_rsq_f32 v{vSC}, v{vT3}")
e(f"v_rsq_f32 v{vSC+1}, v{vT3}")
for c in range(8):
    for i in range(8):
        m_ = vT6 if (i >> 2) & 1 else vT4
        e(f"v_dot2_f32_bf16 v{vE+2*i}, v{vA+8*c+i}, s{sT0}, v{m_}")
        e(f"v_dot2_f32_bf16 v{vE+2*i+1}, v{vA+8*c+i}, s{sT1}, v{m_}")
    for i in range(8): e(f"v_cvt_pk_bf16_f32 v{vA+8*c+i}, v{vE+2*i}, v{vE+2*i+1}")
    if c == 6: pre()
prof(30)
call_pass()
scalepack(vK)
e(f"v_lshlrev_b32 v{vT2}, 7, v{vT1}")
e(f"v_lshl_add_u32 v{vT2}, v{vT0}, 5, v{vT2}")
e(f"s_cmp_eq_u32 s{sWAVE}, 3")
e("s_cbranch_scc0 L_k3d")
e(f"buffer_store_dwordx4 {vr(vK,4)}, v{vL16}, {sr(sWS,4)}, s{sHKO} offen sc1")
e(f"buffer_store_dwordx4 {vr(vK+4,4)}, v{vL16}, {sr(sWS,4)}, s{sHKO} offen offset:1024 sc1")
e(f"s_mov_b32 s{sPUBV}, 1")
e("s_mov_b64 vcc, -1")
lab("L_k3d")
e(f"s_cselect_b32 s{sT1}, 16, 1")
barrier("c")
e(f"s_mul_i32 s{sT0}, s{sWAVE}, {KSZ}")
e(f"s_add_u32 s{sT0}, s{sT0}, {KA+KSZ-256}")
e(f"v_cmp_lt_u32 {sr(sM0,2)}, s{sT1}, v{vT1}")
e(f"v_add_u32 v{vT2}, s{sT0}, v{vT2}")
e(f"v_mov_b32 v{vT3}, {LOOB}")
e(f"v_cndmask_b32 v{vX1P}, v{vT3}, v{vT2}, {sr(sM0,2)}")
e(f"v_bfe_u32 v{vT2}, v{vT1}, 1, 2")
e(f"v_lshlrev_b32 v{vT2}, 1, v{vT2}")
e(f"v_lshrrev_b32 v{vT3}, 1, v{vT0}")
e(f"v_xor_b32 v{vT2}, v{vT2}, v{vT3}")
e(f"v_lshlrev_b32 v{vT2}, 4, v{vT2}")
e(f"v_lshl_add_u32 v{vT2}, v{vT1}, 7, v{vT2}")
e(f"v_and_b32 v{vT3}, 1, v{vT0}")
e(f"v_lshl_add_u32 v{vHP}, v{vT3}, 3, v{vT2}")
for h in range(1, 4): e(f"v_xor_b32 v{vHP+h}, {h<<5}, v{vHP}")
e(f"s_lshl_b32 s{sT0}, s{sWAVE}, 11")
e(f"s_add_u32 s{sT0}, s{sT0}, {VA}")
for h in range(4): e(f"v_add_u32 v{vHP+4+h}, s{sT0}, v{vHP+h}")
prof(2)
call_pass()
scalepack(vPK)
for h in range(4): e(f"ds_write_b64 v{vHP+4+h}, {vr(vPK+2*h,2)}")
e(f"ds_write_b128 v{vX1P}, {vr(vK,4)}")
e(f"ds_write_b128 v{vX1P}, {vr(vK+4,4)} offset:16")
e(f"s_cmp_eq_u32 s{sWAVE}, 3")
e("s_cbranch_scc0 L_v3d")
for i in range(2): e(f"buffer_store_dwordx4 {vr(vPK+4*i,4)}, v{vL16}, {sr(sWS,4)}, s{sHKO} offen offset:{2048+1024*i} sc1")
e(f"s_mov_b32 s{sPUBV}, 0x100")
e("s_mov_b64 vcc, -1")
lab("L_v3d")
e(f"v_max_u32 v{vT2}, 2, v{vT1}")
e(f"v_lshlrev_b32 v{vT2}, 7, v{vT2}")
e(f"v_lshl_add_u32 v{vT2}, v{vT0}, 5, v{vT2}")
e(f"s_mul_i32 s{sT1}, s{sWAVE}, {KSZ}")
e(f"s_add_u32 s{sT1}, s{sT1}, {KA-256}")
e(f"v_add_u32 v{vT2}, s{sT1}, v{vT2}")
e(f"s_sub_u32 s{sT1}, s{sT0}, 2048")
e(f"s_cmp_eq_u32 s{sWAVE}, 0")
e(f"s_cselect_b32 s{sT1}, {XB}, s{sT1}")
e(f"s_cselect_b32 s{sT3}, 1, 0")
for h in range(4):
    e(f"v_add_u32 v{vHP+h}, s{sT0}, v{vB+h}")
    e(f"v_add_u32 v{vHP+4+h}, s{sT1}, v{vB+h}")
e("s_waitcnt lgkmcnt(0)")
barrier("c")
prof(3)
call_pass()
KP, VP, VO, SO, SP_ = vA, vA+8, vA+16, vA+24, vA+40
e(f"ds_write_b32 v{vW1}, v{vBIT} offset:{C_ACK}")
for h in range(4): e(f"ds_read_b64_tr_b16 {vr(VO+2*h,2)}, v{vHP+h}")
scalepack(vPK)
l = uid("kv"); d = l+"_d"
lab(l)
e(f"ds_read_b32 v{vT7}, v{vCB} offset:{C_KV}")
e(f"ds_read_b128 {vr(KP,4)}, v{vT2}")
e(f"ds_read_b128 {vr(KP+4,4)}, v{vT2} offset:16")
for h in range(4):
    e(f"v_mfma_f32_16x16x16_bf16 {vr(SO+4*h,4)}, {vr(vK+2*h,2)}, {vr(vPK+2*h,2)}, 0")
e("s_waitcnt lgkmcnt(0)")
e(f"v_readfirstlane_b32 s{sT2}, v{vT7}")
e(f"s_cmp_ge_u32 s{sT2}, s{sT3}")
e(f"s_cbranch_scc0 {spin(l, d)}")
lab(d)
for h in range(4):
    e(f"v_mfma_f32_16x16x16_bf16 {vr(SP_+4*h,4)}, {vr(KP+2*h,2)}, {vr(vPK+2*h,2)}, 0")
prof(4)
nop(4)
X = vE
for h in range(4):
    e(f"v_cndmask_b32 v{X+4*h}, v{SO+4*h}, v{SO+4*h+1}, {sr(sODD,2)}")
    e(f"v_cndmask_b32 v{X+4*h+1}, v{SO+4*h+2}, v{SO+4*h+3}, {sr(sODD,2)}")
for h in range(4):
    e(f"v_cndmask_b32 v{X+4*h+2}, v{SP_+4*h}, v{SP_+4*h+1}, {sr(sODD,2)}")
    e(f"v_cndmask_b32 v{X+4*h+3}, v{SP_+4*h+2}, v{SP_+4*h+3}, {sr(sODD,2)}")
for h in range(4):
    for i in range(4): e(f"v_fma_f32 v{X+4*h+i}, v{X+4*h+i}, s{sCEXP}, v{BI+i}")
M = vE+16; M2 = vE+20
for h in range(4): e(f"v_max3_f32 v{M+h}, v{X+4*h}, v{X+4*h+1}, v{X+4*h+2}")
for h in range(4): e(f"v_max_f32 v{M+h}, v{M+h}, v{X+4*h+3}")
def allred(op):
    for h in range(4): e(f"v_mov_b32 v{M2+h}, v{M+h}")
    nop(1)
    for h in range(4): e(f"v_permlane16_swap_b32 v{M+h}, v{M2+h}")
    for h in range(4): e(f"{op} v{M+h}, v{M+h}, v{M2+h}")
    for h in range(4): e(f"v_mov_b32 v{M2+h}, v{M+h}")
    nop(1)
    for h in range(4): e(f"v_permlane32_swap_b32 v{M+h}, v{M2+h}")
    for h in range(4): e(f"{op} v{M+h}, v{M+h}, v{M2+h}")
allred("v_max_f32")
for h in range(4):
    for i in range(4): e(f"v_sub_f32 v{X+4*h+i}, v{X+4*h+i}, v{M+h}")
for i in range(16): e(f"v_exp_f32 v{X+i}, v{X+i}")
for h in range(4): e(f"v_add_f32 v{M+h}, v{X+4*h}, v{X+4*h+1}")
for h in range(4): e(f"v_add_f32 v{M2+h}, v{X+4*h+2}, v{X+4*h+3}")
for h in range(4): e(f"v_add_f32 v{M+h}, v{M+h}, v{M2+h}")
allred("v_add_f32")
for h in range(4): e(f"v_rcp_f32 v{M+h}, v{M+h}")
lv_ = uid("vv")
e(f"s_lshl_b32 s{sT3}, s{sT3}, 1")
lab(lv_)
e(f"ds_read_b32 v{vT7}, v{vCB} offset:{C_KV}")
for h in range(4): e(f"ds_read_b64_tr_b16 {vr(VP+2*h,2)}, v{vHP+4+h}")
e("s_cbranch_vccnz "+lv_+"_w")
for h in range(4):
    for i in range(4): e(f"v_mul_f32 v{X+4*h+i}, v{X+4*h+i}, v{M+h}")
for h in range(4):
    e(f"v_cvt_pk_bf16_f32 v{M+h}, v{X+4*h}, v{X+4*h+1}")
    e(f"v_cvt_pk_bf16_f32 v{M2+h}, v{X+4*h+2}, v{X+4*h+3}")
for h in range(4):
    e(f"v_perm_b32 v{SO+2*h}, v{M+h}, v{M+h}, v{SEL}")
    e(f"v_perm_b32 v{SO+2*h+1}, v{M+h}, v{M+h}, v{SEL+1}")
    e(f"v_perm_b32 v{SP_+2*h}, v{M2+h}, v{M2+h}, v{SEL}")
    e(f"v_perm_b32 v{SP_+2*h+1}, v{M2+h}, v{M2+h}, v{SEL+1}")
nop(2)
OA = vE
for h in range(4):
    e(f"v_mfma_f32_16x16x16_bf16 {vr(OA+4*h,4)}, {vr(VO+2*h,2)}, {vr(SO+2*h,2)}, 0")
lab(lv_+"_w")
e("s_waitcnt lgkmcnt(0)")
e(f"v_readfirstlane_b32 s{sT2}, v{vT7}")
e("s_mov_b64 vcc, -1")
e(f"s_cmp_ge_u32 s{sT2}, s{sT3}")
e(f"s_cbranch_scc0 {spin(lv_, lv_+'_d')}")
lab(lv_+"_d")
e("s_mov_b64 vcc, 0")
for h in range(4):
    e(f"v_mfma_f32_16x16x16_bf16 {vr(OA+4*h,4)}, {vr(VP+2*h,2)}, {vr(SP_+2*h,2)}, {vr(OA+4*h,4)}")
nop(2)
def pack(dst):
    for i in range(8): e(f"v_cvt_pk_bf16_f32 v{dst+i}, v{vE+2*i}, v{vE+2*i+1}")
def store_act(pk, base):
    e(f"s_add_u32 s{sT0}, s{sDST}, {base}")
    e(f"buffer_store_dwordx4 {vr(pk,4)}, v{vL16}, {sr(sWS,4)}, s{sT0} offen sc1")
    e(f"buffer_store_dwordx4 {vr(pk+4,4)}, v{vL16}, {sr(sWS,4)}, s{sT0} offen offset:1024 sc1")
nop(3)
pack(vPK)
store_act(vPK, WS_O)
pubn = [0]
def publish(younger=0):
    f = pubn[0]; pubn[0] += 1
    if f in (1, 2): prof(21+f)
    e(f"s_waitcnt vmcnt({younger})")
    e(f"buffer_atomic_add v{vBIT+(f&1)}, v{vFLO}, {sr(sWS,4)}, s{sFLOFF} offen offset:{4*(f>>1)} sc1")
def loada(sgs=(0, 1)):
    for ksl in range(8):
        if ksl >> 2 not in sgs: continue
        for tsel in range(2):
            e(f"buffer_load_dwordx4 {vr(vA+8*ksl+4*tsel,4)}, v{vLA+2*(ksl>>2)+tsel}, {sr(sWS,4)}, s{sOFFA} offen offset:{1024*(ksl&3)} sc1")
def set_offa(base):
    e(f"s_lshl_b32 s{sOFFA}, s{sUNIT}, 15")
    e(f"s_add_u32 s{sOFFA}, s{sOFFA}, {base}")
def set_stats_off(base):
    e(f"s_lshl_b32 s{sT3}, s{sTILE}, 10")
    e(f"s_add_u32 s{sT3}, s{sT3}, {base}")
def load_stats(): e(f"buffer_load_dwordx4 {vr(vST,4)}, v{vL16}, {sr(sWS,4)}, s{sT3} offen sc1")
def consume_stats():
    e(f"v_add_f32 v{vT4}, v{vST}, v{vST+2}")
    e(f"v_add_f32 v{vT3}, v{vST+1}, v{vST+3}")
    nop(2)
    red2(vT4, vT3, vT3)
    mean_var(vT4, vT3)
def store_stats(pk, base):
    e(f"v_mov_b32 v{vST}, 0")
    e(f"v_mov_b32 v{vST+1}, 0")
    for i in range(8):
        e(f"v_dot2_f32_bf16 v{vST}, v{pk+i}, s{sONES}, v{vST}")
        e(f"v_dot2_f32_bf16 v{vST+1}, v{pk+i}, v{pk+i}, v{vST+1}")
    e(f"s_mov_b32 s{sT0}, {base}")
    nop(2)
    red2(vST, vST+1, vST+1)
    e(f"buffer_store_dwordx2 {vr(vST,2)}, v{vSTO}, {sr(sWS,4)}, s{sT0} offen sc1")
def unpack(dst, src, n):
    for i in range(n):
        e(f"v_lshlrev_b32 v{dst+2*i}, 16, v{src+i}")
        e(f"v_and_b32 v{dst+2*i+1}, 0xffff0000, v{src+i}")
def wait_bits(f, mask_s, shift, nb=None, first=True):
    l = uid("rdy"); d = l+"_d"; c = l+"_c"
    sh = 16*(f & 1) + shift
    if isinstance(mask_s, int): e(f"s_mov_b32 s{sT0}, {mask_s << sh}")
    else: e(f"s_lshl_b32 s{sT0}, s{mask_s}, {sh}")
    if nb is not None: e(f"s_lshl_b32 s{sT1}, s{nb}, {sh}")
    if not first: e(f"s_branch {c}")
    lab(l)
    e(f"s_mov_b32 s{sFLW}, 0")
    if nb is not None: e(f"s_mov_b32 s{sFB}, 0")
    e(f"s_atomic_add s{sFLW}, {sr(pWSP,2)}, s{sFLW+1} glc")
    if nb is not None: e(f"s_atomic_add s{sFB}, {sr(pWSP,2)}, s{sNBO} glc")
    e("s_waitcnt lgkmcnt(0)")
    lab(c)
    e(f"s_andn2_b32 s{sT2}, s{sT0}, s{sFLW}")
    if nb is not None:
        e(f"s_andn2_b32 s{sFB+1}, s{sT1}, s{sFB}")
        e(f"s_or_b32 s{sT2}, s{sT2}, s{sFB+1}")
    e(f"s_cbranch_scc1 {spin(l, d)}")
    lab(d)
def set_word(f): e(f"s_add_u32 s{sFLW+1}, s{sFLOFF}, {4*(f>>1)}")
def cs_check():
    l = uid("cs"); d = l+"_d"
    lab(l+"_c")
    e(f"v_min_u32 v{vCF}, v{vCF}, v{vCF+1}")
    nop(1)
    e(f"v_readfirstlane_b32 s{sT0}, v{vCF}")
    e(f"s_cmp_ge_u32 s{sT0}, 1")
    e(f"s_cbranch_scc0 {l}")
    lab(d)
    cs_retries.append((l, d))
cs_retries = []
zero(vACP, 16)
set_offa(WS_O)
set_word(0)
e(f"s_mov_b32 s{sTAIL}, 1")
unpack(vACC, vXR, 8)
publish()
barrier("c")
pre()
prof(5)
wait_bits(0, sMK0, 0)
prof(6)
loada((0,))
wait_bits(0, sMK0, 8, None, False)
loada((1,))
call_pass("L_pass64b", False)
prof(7)
pack(vHP)
store_act(vHP, WS_H)
store_stats(vHP, WS_HS)
set_offa(WS_H)
set_stats_off(WS_HS)
publish()
barrier("c")
pre()
prof(8)
wait_bits(1, sMK0, 0)
prof(9)
loada((0,))
wait_bits(1, sMK0, 8, None, False)
loada((1,))
wait_bits(1, 0xffff, 0, None, False)
load_stats()
e(f"s_mov_b32 s{sCNT}, 0")
call_pass("L_pass64", False)
prof(10)
consume_stats()
e(f"v_add_f32 v{vT2}, {f32(1e-5)}, v{vT3}")
e(f"v_rsq_f32 v{vR1}, v{vT2}")
e(f"v_mov_b32 v{vNMH}, v{vT4}")
e(f"v_mul_f32 v{vT3}, v{vT3}, v{vR1}")
e(f"v_fmaak_f32 v{vT3}, v{vT3}, v{vR1}, {f32(1e-5)}")
e(f"v_rsq_f32 v{vT3}, v{vT3}")
e(f"v_mov_b32 v{vNMH+1}, v{vT4}")
e(f"v_mul_f32 v{vSC}, v{vT3}, v{vR1}")
e(f"v_mul_f32 v{vSC+1}, v{vT3}, v{vR1}")
e(f"v_mov_b32 v{vR1+1}, v{vR1}")
e(f"v_mul_f32 v{vMS}, v{vT4}, v{vSC}")
e(f"v_mul_f32 v{vMS+1}, v{vT4}, v{vSC}")
cs_check()
e(f"s_call_b64 {sr(sRET2,2)}, L_gelu")
e(f"s_lshl_b32 s{sT0}, s{sJ}, 11")
e(f"s_add_u32 s{sT0}, s{sT0}, {WS_H1}")
e(f"buffer_store_dwordx4 {vr(vPK,4)}, v{vHS}, {sr(sWS,4)}, s{sT0} offen sc1")
e(f"buffer_store_dwordx4 {vr(vPK+4,4)}, v{vHS}, {sr(sWS,4)}, s{sT0} offen offset:1024 sc1")
e(f"v_mov_b32 v{vT6}, {OOB}")
e(f"s_lshl_b32 s{sT2}, s{sKH}, 1")
e(f"s_sub_u32 s{sT2}, s{sT2}, 1")
e(f"s_movk_i32 s{sT3}, 0x800")
for sg in range(2):
    for tsel in range(2):
        if tsel: e(f"s_xor_b32 s{sT0}, s{sTILE}, 1")
        e(f"s_lshl_b32 s{sT0}, s{sT0 if tsel else sTILE}, 4")
        e(f"s_add_u32 s{sT0}, s{sT0}, s{sT2}")
        if sg: e(f"s_add_u32 s{sT0}, s{sT0}, s{sT2}")
        e(f"v_add_u32 v{vT2}, s{sT0}, v{vT1}")
        e(f"v_cmp_gt_u32 {sr(sM0,2)}, s{sT3}, v{vT2}")
        nop(2)
        e(f"v_cndmask_b32 v{vLA+2*sg+tsel}, v{vT6}, v{vLA+2*sg+tsel}, {sr(sM0,2)}")
unpack(vACC, vHP, 8)
for i in range(8): e(f"v_pk_add_f32 {vr(vACC+2*i,2)}, {vr(vACC+2*i,2)}, {vr(vNMH,2)}")
for i in range(8): e(f"v_pk_mul_f32 {vr(vACC+2*i,2)}, {vr(vACC+2*i,2)}, {vr(vR1,2)}")
zero(vACP, 16)
e(f"s_lshl_b32 s{sT0}, s{sT2}, 7")
e(f"s_add_u32 s{sNBO}, s{sFLOFF}, s{sT0}")
e(f"s_add_u32 s{sT0}, s{sUNIT}, s{sT2}")
e(f"s_cmp_gt_u32 s{sT0}, 63")
e(f"s_cselect_b32 s{sNBO}, s{sFLOFF}, s{sNBO}")
e(f"s_add_u32 s{sNBO}, s{sNBO}, 4")
e(f"s_cmp_eq_u32 s{sKH}, 0")
e(f"s_cselect_b32 s{sCSN}, 0x0a, 0x50")
set_word(2)
set_offa(WS_H1)
e(f"v_add_u32 v{vCSR}, 256, v{vCSR}")
publish()
barrier("c")
pre()
prof(11)
wait_bits(2, sMK0, 0, sCSN)
prof(12)
loada((0,))
wait_bits(2, sMK0, 8, sCSN, False)
loada((1,))
call_pass("L_pass64b", False)
prof(13)
pack(vX1P)
store_act(vX1P, WS_X1)
store_stats(vX1P, WS_X1S)
e(f"s_mov_b32 s{sTAIL}, 0")
set_la(16384)
e(f"s_mul_i32 s{sDST}, s{sTILE}, {GT}")
e(f"s_lshl_b32 s{sT1}, s{sJ}, 11")
e(f"s_add_u32 s{sDST}, s{sDST}, s{sT1}")
set_offa(WS_X1)
set_stats_off(WS_X1S)
publish()
barrier("c")
pre()
prof(14)
wait_bits(3, sMK0, 0)
prof(15)
loada((0,))
wait_bits(3, sMK0, 8, None, False)
loada((1,))
wait_bits(3, 0xffff, 0, None, False)
load_stats()
for p in range(3):
    call_pass()
    if p: publish()
    else:
        consume_stats()
        e(f"v_add_f32 v{vT2}, {f32(1e-5)}, v{vT3}")
        e(f"v_rsq_f32 v{vSC}, v{vT2}")
        e(f"v_rsq_f32 v{vSC+1}, v{vT2}")
        e(f"v_mul_f32 v{vMS}, v{vT4}, v{vSC}")
        e(f"v_mul_f32 v{vMS+1}, v{vT4}, v{vSC}")
    if not OPT.get('dl'): prof(24+2*p)
    if p == 2:
        for jj in range(2): e(f"v_add_u32 v{vW+jj}, s{sPAR}, v{vB32+jj}")
        pre(True, 32768)
    e(f"v_add_u32 v{vCSR}, {256 if p != 1 else -256}, v{vCSR}")
    e(f"s_call_b64 {sr(sRET2,2)}, L_gelu")
    if not OPT.get('dl'): prof(25+2*p)
    store_act(vPK, WS_G + 16384*p)
    prof(16+p)
lq = LQ([f"f{p}" for p in range(6) for h in range(2)])
for q in range(16):
    if q % 2 == 0: lq.need([f"f{q}", f"f{q+1}"])
    for t in (1, 0):
        e(mf_text(vWB+4*(q % 8), vA + 8*(q >> 1) + 4*t, (vACP if t else vACC) + 4*(q & 1), q < 2))
        if q+6 < 16: lq.op(f"f{q+6}", rd_text(vWB+4*((q+6) % 8), 1-t, q+6, True, 32768))
for jj in range(4): e(f"v_add_u32 v{vW+jj}, s{sPAR}, v{vB+jj}")
e(f"s_mov_b32 s{sCNT}, 1")
nop(2)
for i in range(2): e(T_W(i))
publish()
set_la(GT)
e(f"s_mul_i32 s{sOFFA}, s{sUNIT}, {2*GT}")
e(f"s_add_u32 s{sOFFA}, s{sOFFA}, {WS_G}")
QUADS = ([vA+4*i for i in range(16)] + [vXR+4*i for i in range(6)] + [vE+16+4*i for i in range(4)] + [vK, vK+4] + [vE+4*i for i in range(4)])[:OPT.get("nq", 16)]
NQ = len(QUADS)
gpolls = []
def gpoll():
    e(f"s_mov_b64 {sr(sFG,2)}, 0")
    e(f"s_atomic_add_x2 {sr(sFG,2)}, {sr(pWSP,2)}, s{sFLW+1} glc")
    e("s_waitcnt lgkmcnt(0)")
def gcheck(p):
    l = uid("g"); d = l+"_d"
    lab(d+"c")
    e(f"s_lshr_b32 s{sT0}, s{sFG+(p>>1)}, {16*(p&1)}")
    e(f"s_andn2_b32 s{sT0}, 0xffff, s{sT0}")
    e(f"s_cbranch_scc1 {l}")
    lab(d)
    gpolls.append((l, d))
def gload(m):
    ks, t = m >> 1, m & 1
    if ks % 8 == 0 and t == 0:
        p = ks // 8
        gcheck(p)
        if p: e(f"s_add_u32 s{sOFFA}, s{sOFFA}, 16384")
    e(f"buffer_load_dwordx4 {vr(QUADS[m % NQ],4)}, v{vLA+2*((ks>>2)&1)+t}, {sr(sWS,4)}, s{sOFFA} offen offset:{1024*(ks&3)} sc1")
set_word(4)
gpoll()
for m in range(min(16, NQ)): gload(m)
barrier("c")
for i in range(2): e(T_R(i))
for i in range(2): e(T_C(i))
w4slot = lambda it: ((19 + it) & 3) * 16384
pre(False, w4slot(0))
e("s_waitcnt lgkmcnt(12)")
for i in range(4): e(f"v_pk_add_f32 {vr(vE+2*i,2)}, {vr(vACC+2*i,2)}, {vr(vE+2*i,2)}")
e(f"s_call_b64 {sr(sRET2,2)}, L_gelu")
e(f"s_lshl_b32 s{sT1}, s{sJ}, 10")
e(f"s_sub_u32 s{sT0}, s{sDST}, s{sT1}")
e(f"s_add_u32 s{sT0}, s{sT0}, {WS_G + 48*1024}")
e(f"buffer_store_dwordx4 {vr(vPK,4)}, v{vL16}, {sr(sWS,4)}, s{sT0} offen sc1")
unpack(vE, vHP, 8)
unpack(vE+16, vX1P, 8)
for i in range(8): e(f"v_pk_add_f32 {vr(vACC+2*i,2)}, {vr(vE+2*i,2)}, {vr(vE+16+2*i,2)}")
zero(vACP, 16)
prof(19)
for m in range(16, NQ): gload(m)
lq = LQ([f"f{p}" for p in range(6) for h in range(2)])
nissued = NQ
NP = 112
g3pub = [None]
for q in range(NP):
    ks = q >> 2
    vm = None
    extra = (1 if 2*ks+1 < min(16, NQ) else 0) + (1 if g3pub[0] is not None and 2*ks+1 < g3pub[0] else 0)
    if q % 4 == 0: vm = nissued - (2*ks+2) + extra
    if q == 32:
        cmt("the last G store is older than everything waited for from here on")
        lq.need([f"f{q}", f"f{q+1}"], vm); vm = None
        publish(nissued - min(16, NQ))
        g3pub[0] = nissued
    if q % 2 == 0: lq.need([f"f{q}", f"f{q+1}"], vm)
    if (q+6) % 16 == 0 and q+6 < NP:
        barrier("c")
    for t in range(2):
        e(mf_text(vWB+4*(q % 8), QUADS[(2*ks+t) % NQ], (vACP if t else vACC)+4*(q & 3)))
        if q+6 < NP: lq.op(f"f{q+6}", rd_text(vWB+4*((q+6) % 8), t, (q+6) & 15, False, w4slot((q+6) >> 4)))
        if (q & 3) in (1, 3) and t == 0 and ks >= 1 and nissued < 56:
            gload(nissued); nissued += 1
nop(8)
for i in range(4): e(T_W(i))
e("s_waitcnt lgkmcnt(0)")
barrier("c")
for i in range(4): e(T_R(i))
e("s_waitcnt lgkmcnt(0)")
for i in range(8): e(f"v_pk_add_f32 {vr(vE+2*i,2)}, {vr(vACC+2*i,2)}, {vr(vE+2*i,2)}")
prof(20)
pack(vPK)
nop(2)
for s in range(2):
    e(f"v_permlane16_swap_b32 v{vPK+4*s}, v{vPK+4*s+2}")
    e(f"v_permlane16_swap_b32 v{vPK+4*s+1}, v{vPK+4*s+3}")
e(f"buffer_store_dwordx4 {vr(vPK,4)}, v{vOUTO}, {sr(sOUT,4)}, 0 offen")
e(f"buffer_store_dwordx4 {vr(vPK+4,4)}, v{vOUTO}, {sr(sOUT,4)}, 0 offen offset:64")
prof(21)
prof_flush(True)
e("s_endpgm")
for l, d in gpolls:
    lab(l)
    gpoll()
    e(f"s_sub_u32 s{sBUD}, s{sBUD}, 1")
    e(f"s_cbranch_scc0 {d}c")
    e(f"s_mov_b32 s{sBUD}, 0")
    e(f"s_branch {d}")
for l, d in cs_retries:
    lab(l)
    e(f"ds_read_b64 {vr(vCF,2)}, v{vCB} offset:{C_CSF}")
    for i in range(4): e(T_C(i))
    e("s_waitcnt lgkmcnt(0)")
    e(f"s_sub_u32 s{sBUD}, s{sBUD}, 1")
    e(f"s_cbranch_scc0 {l}_c")
    e(f"s_mov_b32 s{sBUD}, 0")
    e(f"s_branch {d}")

gen_pass64()
align(); lab("L_gelu")
for half in range(2):
    Xr = vE + 8*half; c0 = vACP + 8*half; U = vE+16
    for i in range(4): e(f"v_pk_mul_f32 {vr(Xr+2*i,2)}, {vr(Xr+2*i,2)}, {vr(vSC,2)}")
    for i in range(4): e(f"v_pk_fma_f32 {vr(Xr+2*i,2)}, {vr(c0+2*i,2)}, {vr(vMS,2)}, {vr(Xr+2*i,2)}")
    for i in range(4): e(f"v_pk_mul_f32 {vr(U+2*i,2)}, {vr(Xr+2*i,2)}, {vr(Xr+2*i,2)}")
    for i in range(4): e(f"v_pk_fma_f32 {vr(U+2*i,2)}, {vr(U+2*i,2)}, {vr(vGB,2)}, {vr(vGA,2)}")
    for i in range(4): e(f"v_pk_mul_f32 {vr(U+2*i,2)}, {vr(U+2*i,2)}, {vr(Xr+2*i,2)}")
    for i in range(8): e(f"v_exp_f32 v{U+i}, v{U+i}")
    for i in range(4): e(f"v_pk_add_f32 {vr(U+2*i,2)}, {vr(U+2*i,2)}, {sr(sONE2,2)}")
    for i in range(8): e(f"v_rcp_f32 v{U+i}, v{U+i}")
    for i in range(4): e(f"v_pk_mul_f32 {vr(Xr+2*i,2)}, {vr(Xr+2*i,2)}, {vr(U+2*i,2)}")
    for i in range(4): e(f"v_cvt_pk_bf16_f32 v{vPK+4*half+i}, v{Xr+2*i}, v{Xr+2*i+1}")
    if half == 0:
        e(f"s_cmp_eq_u32 s{sCNT}, 1")
        e("s_cbranch_scc1 L_gelu_h")
lab("L_gelu_h")
e(f"s_setpc_b64 {sr(sRET2,2)}")

vCSW, vTL, vT3P, vTQ, vON, vIN = vXR, vXR+1, vXR+2, vXR+3, vXR+4, vHP
lab("L_service")
if MAP42:
    e(f"v_lshrrev_b32 v{vT2}, 2, v{vLANE}")
    e(f"v_and_b32 v{vT3}, 3, v{vLANE}")
    e(f"v_lshlrev_b32 v{vT4}, 7, v{vT3}")
    e(f"v_lshl_add_u32 v{vTL}, v{vT2}, 10, v{vT4}")
    e(f"v_mul_u32_u24 v{vTQ}, 3072, v{vT2}")
    e(f"v_add_u32 v{vTQ}, v{vTQ}, v{vT4}")
    e(f"v_min_u32 v{vT2}, 13, v{vT1}")
    e(f"v_lshlrev_b32 v{vT2}, 7, v{vT2}")
    e(f"v_mul_u32_u24 v{vT3P}, 3584, v{vT0}")
    e(f"v_add_u32 v{vT3P}, v{vT3P}, v{vT2}")
    e(f"s_lshl_b32 s{sT0}, s{sHF}, 9")
    e(f"s_lshl_b32 s{sTA}, s{sR32}, 14")
    e(f"s_add_u32 s{sTA}, s{sTA}, s{sT0}")
    e(f"s_mul_i32 s{sTC}, s{sR32}, {16*3072}")
    e(f"s_add_u32 s{sTC}, s{sTC}, s{sT0}")
    e(f"s_mul_i32 s{sTB}, s{sR32}, {4*3584}")
    e(f"s_mul_i32 s{sT0}, s{sHF}, 1792")
    e(f"s_add_u32 s{sTB}, s{sTB}, s{sT0}")
else:
    e(f"v_lshlrev_b32 v{vTL}, 7, v{vLANE}")
    e(f"v_lshrrev_b32 v{vT2}, 3, v{vLANE}")
    e(f"v_and_b32 v{vT3}, 7, v{vLANE}")
    e(f"v_mul_u32_u24 v{vTQ}, 3072, v{vT2}")
    e(f"v_lshl_add_u32 v{vTQ}, v{vT3}, 7, v{vTQ}")
    e(f"s_lshl_b32 s{sTA}, s{sR32}, 13")
    e(f"s_mul_i32 s{sTC}, s{sR32}, {8*3072}")
e(f"s_cmp_ge_u32 s{sWAVE}, 6")
e("s_cbranch_scc1 L_loader")
lab("L_helper")
tr_bases()
e(f"s_lshl_b32 s{sT0}, s{sKH}, 6")
e(f"v_xor_b32 v{vB}, s{sT0}, v{vB}")
e(f"v_xor_b32 v{vB+1}, s{sT0}, v{vB+1}")
e(f"s_lshl_b32 s{sT1}, s{sKH}, 5")
e(f"v_xor_b32 v{vB32}, s{sT1}, v{vB32}")
e(f"v_lshlrev_b32 v{vT2}, 4, v{vT0}")
e(f"v_add_u32 v{vCSW}, {CSA}, v{vT2}")
e(f"s_mov_b32 s{sM1}, 0x00010001")
e(f"s_mov_b32 s{sM1+1}, 0x00010001")
for i in range(4): e(f"v_mov_b32 v{vON+i}, s{sONES}")
e("s_waitcnt lgkmcnt(0)")
e(f"s_mov_b32 s{sWS}, s{pWSP}")
e(f"s_mov_b32 s{sWS+1}, s{pWSP+1}")
tv = [vA+64]
def touch1(t):
    ptr, size, pat, soff_s, c = t
    e(f"s_mov_b32 s{sX}, s{ptr}")
    e(f"s_mov_b32 s{sX+1}, s{ptr+1}")
    e(f"s_mov_b32 s{sX+2}, {size}")
    e(f"s_add_u32 s{sT0}, s{soff_s}, {c}")
    e(f"buffer_load_dword v{tv[0]}, v{pat}, {sr(sX,4)}, s{sT0} offen")
    tv[0] += 1
def touches(lst, role, sleep):
    if role == "h" or not lst: return 0
    lst = list(lst)
    if len(lst) % 2: lst.append((lst[0][0], 0, lst[0][2], lst[0][3], 0))
    if sleep: e(f"s_sleep {sleep}")
    a_ = uid("ta"); b_ = uid("tb")
    e(f"s_cmp_lg_u32 s{sKH}, 0")
    e(f"s_cbranch_scc1 {a_}")
    for t in lst[0::2]: touch1(t)
    e(f"s_branch {b_}")
    lab(a_)
    for t in lst[1::2]: touch1(t)
    lab(b_)
    return len(lst)//2
TQ = lambda c: [(pWQKV, 512*3072, vTQ, sTC, c + i*32*8*3072) for i in range(2)]
T1 = lambda p: [(p, 512*1024, vTL, sTA, i*32*8192) for i in range(2)]
T3 = lambda a, b: [(pW3, 512*3584, vTL, sTA, i*32*8192) for i in range(a, b)]
T4 = lambda a, b: [(pW4, 1792*1024, vTL, sTA, i*32*8192) for i in range(a, b)]
if MAP42:
    TQ = lambda c: [(pWQKV, 512*3072, vTQ, sTC, c)]
    T1 = lambda p: [(p, 512*1024, vTL, sTA, 0)]
    T3 = lambda a, b: [(pW3, 512*3584, vT3P, sTB, i*32*4*3584) for i in range(a, b)]
    T4 = lambda a, b: [(pW4, 1792*1024, vTL, sTA, i*32*16384) for i in range(a, b)]
barrier("h")
e(f"s_lshl_b32 s{sT0}, s{sJ}, 3")
e(f"s_add_u32 s{sT0}, s{sT0}, s{sWAVE}")
e(f"s_cmp_lg_u32 s{sT0}, 4")
e(f"s_cbranch_scc1 L_nozero")
for i in range(4): e(f"v_mov_b32 v{vA+i}, 0")
e(f"s_lshl_b32 s{sT0}, s{sG}, 8")
e(f"s_lshl_b32 s{sT1}, s{sG}, 10")
e(f"s_add_u32 s{sT1}, s{sT1}, {WS_FL2-WS_FL-256}")
e(f"v_mov_b32 v{vT3}, s{sT0}")
e(f"v_mov_b32 v{vT4}, s{sT1}")
e(f"v_cmp_gt_u32 {sr(sM0,2)}, 2, v{vLANE}")
e(f"s_mov_b32 s{sT0}, {WS_FL}")
nop(1)
e(f"v_cndmask_b32 v{vT3}, v{vT4}, v{vT3}, {sr(sM0,2)}")
e(f"v_lshl_add_u32 v{vT3}, v{vLANE}, 7, v{vT3}")
e("s_mov_b64 exec, 0x3ff")
e(f"buffer_store_dwordx4 {vr(vA,4)}, v{vT3}, {sr(sWS,4)}, s{sT0} offen sc1")
e(f"s_lshl_b32 s{sT0}, s{sG}, 2")
e(f"v_mov_b32 v{vT2}, s{sT0}")
e(f"v_mov_b32 v{vT6}, 1")
e("s_mov_b64 exec, 1")
e("s_waitcnt vmcnt(0)")
e(f"global_store_dword v{vT2}, v{vT6}, {sr(pDBG,2)} offset:128 sc1")
e("s_mov_b64 exec, -1")
lab("L_nozero")
V_, Q_, WO_, W1_, W2_ = TQ(2048), TQ(0), T1(pWO), T1(pW1), T1(pW2)
K_ = TQ(1024)
SCH = {0: dict(s=K_, x=V_+Q_, b0=WO_, b1=W1_, b3=W2_, r1=T3(0,4), r2=T3(4,7), r3=T4(0,4), b9=T4(4,7)),
       1: dict(s=K_, x=V_+Q_, b0=WO_+W1_, b1=W2_+T3(0,2), r1=T3(2,5), r2=T3(5,7)+T4(0,2), r3=T4(2,5), b9=T4(5,7)),
       2: dict(s=K_+V_, x=Q_+WO_, b1=W1_+W2_, r1=T3(0,4), r2=T3(4,7), r3=T4(0,4), b9=T4(4,7)),
       3: dict(x=V_+Q_, b0=WO_, b1=W1_+W2_, r1=T3(0,4), r2=T3(4,7), r3=T4(0,4), b9=T4(4,7)),
       }[OPT.get("sch", 0) if not MAP42 else 0]
if MAP42:
    REST = dict(r1=T3(0,2), r2=T3(2,4), r3=T4(0,4))
    SCH = {0: dict(s=K_+V_, x=Q_, b0=WO_+W1_, b1=W2_, **REST),
           1: dict(s=K_, x=V_+Q_, b0=WO_+W1_, b1=W2_, **REST),
           2: dict(x=V_+Q_, b0=WO_+W1_, b1=W2_, **REST),
           3: dict(s=K_+V_, x=Q_+WO_+W1_+W2_, **REST),
           4: dict(s=K_, x=V_+Q_, b0=WO_+W1_, b1=W2_+T3(0,1), r1=T3(1,3), r2=T3(3,4)+T4(0,1), r3=T4(1,3), b9=T4(3,4)),
           }[OPT.get("sch", 4)]
for k_ in ("s", "x", "b0", "b1", "b3", "r1", "r2", "r3", "b9"): SCH.setdefault(k_, [])
TS0, TSL, TSL2 = OPT.get("t0sl", 6), OPT.get("tsl", 8), OPT.get("tsl2", 14)
touches(SCH["x"], "h", TS0)
def cs(base, slot, half=False):
    e(f"s_mov_b32 s{sT0}, {base}")
    e(f"s_call_b64 {sr(sRET,2)}, {'L_csh' if half else 'L_cs'}")
    e(f"s_lshl_b32 s{sT0}, s{sKH}, {6 if half else 7}")
    e(f"v_add_u32 v{vT2}, s{sT0}, v{vCSW}")
    e(f"s_mov_b64 exec, {sr(sM1,2)}")
    for i in range(1 if half else 2): e(f"ds_write_b128 v{vT2}, {vr(vACC+4*i,4)} offset:{256*slot+64*i}")
    e("s_mov_b64 exec, -1")
    e("s_waitcnt lgkmcnt(0)")
def halo_fetch(which, between=None):
    sk = uid("hf"); l = sk+"_l"; d = sk+"_d"
    e(f"s_cmp_lg_u32 s{sWAVE}, 5")
    e(f"s_cbranch_scc1 {sk}a")
    e(f"s_lshl_b32 s{sT0}, s{sG}, 3")
    e(f"s_add_u32 s{sT0}, s{sT0}, s{sJ}")
    e(f"s_sub_u32 s{sT0}, s{sT0}, 8")
    e(f"s_lshl_b32 s{sHKO}, s{sT0}, 12")
    e(f"s_add_u32 s{sHKO}, s{sHKO}, {WS_HK + 2048*which}")
    e(f"s_lshl_b32 s{sT0}, s{sT0}, 7")
    e(f"s_add_u32 s{sT0}, s{sT0}, {WS_FL2}")
    e(f"s_cmp_eq_u32 s{sG}, 0")
    e(f"s_cselect_b32 s{sHKO}, {OOB}, s{sHKO}")
    e(f"s_cbranch_scc1 {d}")
    lab(l)
    e(f"s_mov_b32 s{sM0}, 0")
    e(f"s_atomic_add s{sM0}, {sr(pWSP,2)}, s{sT0} glc")
    e("s_waitcnt lgkmcnt(0)")
    e(f"s_bitcmp1_b32 s{sM0}, {8*which}")
    e(f"s_cbranch_scc0 {spin(l, d)}")
    lab(d)
    e(f"buffer_load_dwordx4 {vr(vA,4)}, v{vL16}, {sr(sWS,4)}, s{sHKO} offen sc1")
    e(f"buffer_load_dwordx4 {vr(vA+4,4)}, v{vL16}, {sr(sWS,4)}, s{sHKO} offen offset:1024 sc1")
    lab(sk+"a")
    if between: between()
    e(f"s_cmp_lg_u32 s{sWAVE}, 5")
    e(f"s_cbranch_scc1 {sk}")
    if which:
        e(f"v_bfe_u32 v{vT2}, v{vT1}, 1, 2")
        e(f"v_lshlrev_b32 v{vT2}, 1, v{vT2}")
        e(f"v_lshrrev_b32 v{vT3}, 1, v{vT0}")
        e(f"v_xor_b32 v{vT2}, v{vT2}, v{vT3}")
        e(f"v_lshlrev_b32 v{vT2}, 4, v{vT2}")
        e(f"v_lshl_add_u32 v{vT2}, v{vT1}, 7, v{vT2}")
        e(f"v_and_b32 v{vT3}, 1, v{vT0}")
        e(f"v_lshl_add_u32 v{vT2}, v{vT3}, 3, v{vT2}")
        e(f"v_add_u32 v{vA+8}, {XB}, v{vT2}")
        for h in range(1, 4): e(f"v_xor_b32 v{vA+8+h}, {h<<5}, v{vA+8}")
    else:
        e(f"v_lshlrev_b32 v{vT2}, 7, v{vT1}")
        e(f"v_lshl_add_u32 v{vT2}, v{vT0}, 5, v{vT2}")
        e(f"v_cmp_lt_u32 {sr(sM0,2)}, 1, v{vT1}")
        e(f"v_add_u32 v{vT2}, {KA-256}, v{vT2}")
        e(f"v_mov_b32 v{vT4}, {LOOB}")
        e(f"v_cndmask_b32 v{vT2}, v{vT4}, v{vT2}, {sr(sM0,2)}")
    if which:
        cmt("wave 1 has finished reading wave 0's exchange buffer")
        l2 = uid("ak")
        lab(l2)
        e(f"ds_read_b32 v{vT7}, v{vCB} offset:{C_ACK+4}")
        e("s_waitcnt lgkmcnt(0)")
        e(f"v_readfirstlane_b32 s{sT0}, v{vT7}")
        e(f"s_cmp_lg_u32 s{sT0}, 0")
        e(f"s_cbranch_scc0 {spin(l2, l2+'_d')}")
        lab(l2+"_d")
    e(f"v_mov_b32 v{vT6}, {1+which}")
    e("s_waitcnt vmcnt(0)")
    if which:
        for h in range(4): e(f"ds_write_b64 v{vA+8+h}, {vr(vA+2*h,2)}")
    else:
        e(f"ds_write_b128 v{vT2}, {vr(vA,4)}")
        e(f"ds_write_b128 v{vT2}, {vr(vA+4,4)} offset:16")
    e("s_waitcnt lgkmcnt(0)")
    e(f"ds_write_b32 v{vCB}, v{vT6} offset:{C_KV}")
    lab(sk)
e(f"v_mov_b32 v{vT6}, 0")
e(f"v_min_u32 v{vT2}, 15, v{vLANE}")
e(f"v_lshl_add_u32 v{vT2}, v{vT2}, 2, v{vCB}")
e(f"ds_write_b32 v{vT2}, v{vT6}")
e("s_waitcnt lgkmcnt(0)")
barrier("h")
e(f"v_min_u32 v{vT2}, 2, v{vLANE}")
e(f"s_sub_u32 s{sT0}, s{sG}, 1")
e(f"v_add_u32 v{vT2}, s{sT0}, v{vT2}")
e(f"v_max_i32 v{vT2}, 0, v{vT2}")
e(f"v_min_u32 v{vT2}, 31, v{vT2}")
e(f"v_lshlrev_b32 v{vIN}, 2, v{vT2}")
barrier("h")
e(f"s_cmp_eq_u32 s{sWAVE}, 4")
e("s_cbranch_scc1 L_in_n")
e(f"s_sleep {OPT.get('insl', 1)}")
e(f"global_load_dword v{vIN+1}, v{vIN}, {sr(pDBG,2)} offset:128")
lab("L_in_n")
def mid():
    if MID: barrier("h")
mid()
barrier("h")
e(f"s_cmp_eq_u32 s{sWAVE}, 4")
e("s_cbranch_scc1 L_in_d")
e("s_branch L_in_chk")
lab("L_in_loop")
e("s_sleep 8")
e(f"global_load_dword v{vIN+1}, v{vIN}, {sr(pDBG,2)} offset:128 sc1")
lab("L_in_chk")
e("s_waitcnt vmcnt(0)")
e(f"v_cmp_eq_u32 {sr(sM0,2)}, 1, v{vIN+1}")
e(f"s_cmp_eq_u64 {sr(sM0,2)}, -1")
e(f"s_cbranch_scc0 {spin('L_in_loop', 'L_in_d')}")
lab("L_in_d")
barrier("h")
mid()
barrier("h")
barrier("h")
halo_fetch(0, lambda: barrier("h"))
halo_fetch(1)
barrier("h")
barrier("h")
cs(0, 0)
e(f"s_lshl_b32 s{sT0}, s{sKH}, 2")
e(f"v_add_u32 v{vT2}, s{sT0}, v{vCB}")
e(f"v_mov_b32 v{vT6}, 1")
e(f"ds_write_b32 v{vT2}, v{vT6} offset:{C_CSF}")
barrier("h")
barrier("h")
cs(0, 1)
mid()
barrier("h")
cs(32768, 2)
mid()
barrier("h")
cs(0, 1)
mid()
barrier("h")
cs(32768, 2, True)
prof_flush()
e("s_endpgm")
for half in (False, True):
    lab("L_csh" if half else "L_cs")
    blocks = [(par, it) for par in range(2) for it in range(1 if half else 2)]
    for bi, (par, it) in enumerate(blocks):
        if it == 0:
            e(f"v_add_u32 v{vW}, s{sT0}, v{vB32 if half else vB}")
            if not half: e(f"v_add_u32 v{vW+1}, s{sT0}, v{vB+1}")
            e(f"s_add_u32 s{sT0}, s{sT0}, 65536")
        for i in range(8):
            for h in range(2):
                off = (i*2048 + 1024*h) if half else (it*16384 + (i >> 1)*4096 + 2048*h)
                e(f"ds_read_b64_tr_b16 {vr(vA+4*i+2*h,2)}, v{vW if half else vW+(i&1)} offset:{off}")
        for i in range(8):
            e(f"s_waitcnt lgkmcnt({14-2*i})")
            e(mf_text(vA+4*i, vON, vACC if (half or i % 2 == 0) else vACC+4, bi == 0 and i < (1 if half else 2)))
    nop(4)
    e(f"s_setpc_b64 {sr(sRET,2)}")

vPat, vP3072, vP1024, vP3584, vPH = 12, 13, 14, 15, 16
lab("L_loader")
e(f"s_setprio {OPT.get('lp', 2)}")
e(f"v_lshrrev_b32 v{vT2}, 3, v{vLANE}")
e(f"v_bfe_u32 v{vT3}, v{vT2}, 1, 2")
e(f"v_lshlrev_b32 v{vT3}, 1, v{vT3}")
e(f"v_and_b32 v{vT4}, 7, v{vLANE}")
e(f"v_xor_b32 v{vT3}, v{vT3}, v{vT4}")
e(f"v_lshlrev_b32 v{vT3}, 4, v{vT3}")
e(f"v_mul_u32_u24 v{vP3072}, 3072, v{vT2}")
e(f"v_add_u32 v{vP3072}, v{vP3072}, v{vT3}")
e(f"v_lshl_add_u32 v{vP1024}, v{vT2}, 10, v{vT3}")
e(f"v_mul_u32_u24 v{vP3584}, 3584, v{vT2}")
e(f"v_add_u32 v{vP3584}, v{vP3584}, v{vT3}")
e(f"v_lshrrev_b32 v{vT2}, 2, v{vLANE}")
e(f"v_bfe_u32 v{vT3}, v{vT2}, 2, 1")
e(f"v_lshlrev_b32 v{vT3}, 1, v{vT3}")
e(f"v_and_b32 v{vT4}, 3, v{vLANE}")
e(f"v_xor_b32 v{vT3}, v{vT3}, v{vT4}")
e(f"v_mul_u32_u24 v{vPH}, 3584, v{vT2}")
e(f"v_lshl_add_u32 v{vPH}, v{vT3}, 4, v{vPH}")
e(f"s_lshl_b32 s{sT2}, s{sJ}, 7")
e(f"s_mul_i32 s{sC3}, s{sJ}, 448")
e(f"s_and_b32 s{sT0}, s{sJ}, 1")
e(f"s_lshl_b32 s{sT1}, s{sT0}, 6")
e(f"s_xor_b32 s{sT0}, s{sT0}, 1")
e(f"s_mul_i32 s{sT0}, s{sT0}, 384")
e(f"s_add_u32 s{sCQ}, s{sC3}, s{sT0}")
e(f"s_add_u32 s{sC3}, s{sC3}, s{sT1}")
e("s_waitcnt lgkmcnt(0)")
e(f"s_mov_b32 s{sWS}, s{pWSP}")
e(f"s_mov_b32 s{sWS+1}, s{pWSP+1}")
cur = {}
issued = []
def setif(key, val, emit):
    if cur.get(key) != val:
        emit(); cur[key] = val
def issue(li):
    P, s_ = li // 2, li % 2
    if li < 18:
        if P <= 2: ptr, size, pat, rs, col, cc = pWQKV, 512*3072, vP3072, 3072, sT2, (1024, 2048, 0)[P]
        elif P <= 5: ptr, size, pat, rs, col, cc = (pWO, pW1, pW2)[P-3], 512*1024, vP1024, 1024, sT2, 0
        else: ptr, size, pat, rs, col, cc = pW3, 512*3584, vP3584, 3584, sC3, 128*(P-6)
        step, mid, kstr, c0 = 8*rs, 0, 128*rs, cc + 256*rs*s_
    elif li == 18:
        ptr, size, pat, col = pW3, 512*3584, vPH, sCQ
        step, mid, kstr, c0 = 16*3584, 128*3584, 128*3584, 0
    else:
        c = li - 19
        ptr, size, pat, col = pW4, 1792*1024, vP1024, sT2
        if c < 6: step, mid, kstr, c0 = 8192, 192*1024, 448*1024, (64*(c//2) + 896*(c%2))*1024
        else: step, mid, kstr, c0 = 8192, 384*1024, 896*1024, 192*1024
    def esrc():
        e(f"s_mov_b32 s{sW}, s{ptr}"); e(f"s_mov_b32 s{sW+1}, s{ptr+1}"); e(f"s_mov_b32 s{sW+2}, {size}")
    setif("ptr", ptr, esrc)
    setif("pat", pat, lambda: e(f"v_mov_b32 v{vPat}, v{pat}"))
    setif("step", step, lambda: e(f"s_mov_b32 s{sSTEP}, {step}"))
    setif("mid", mid, lambda: e(f"s_mov_b32 s{sMID}, {mid}"))
    setif("kstr", kstr, lambda: e(f"s_mul_i32 s{sT1}, s{sKH}, {kstr}"))
    e(f"s_add_u32 m0, s{sPAR}, {(li & 3)*16384}")
    e(f"s_add_u32 s{sSO}, s{col}, s{sT1}")
    if c0: e(f"s_add_u32 s{sSO}, s{sSO}, {c0}")
    e(f"s_call_b64 {sr(sRET,2)}, L_iss")
    issued.append(li)
def land(li):
    idx = issued.index(li)
    e(f"s_waitcnt vmcnt({sum(1 if x == 't' else 16 for x in issued[idx+1:])})")
def ltouch(key, sleep):
    issued.extend(["t"]*touches(SCH[key], "l", sleep))
ltouch("s", 0)
barrier("l")
issue(0); issue(1)
ltouch("x", OPT.get("tsd", 6))
if MID:
  sched = [(None, [], None), (1, [2, 3], "b0"),
         (None, [4], None), (3, [], None), (None, [5], "b1"),
         (None, [], None), (5, [], None), (None, [6, 7], "b3"),
         (None, [], None), (None, [], None), (7, [8, 9], "r1"),
         (9, [10, 11], "r2"), (11, [12, 13], "r3"), (13, [14, 15], None),
         (None, [16], None), (15, [17], "b9"),
         (None, [18], None), (17, [19], None),
         (None, [20], None), (18, [21], None),
         (19, [22], None),
         (20, [], None), (21, [23], None), (22, [24], None), (23, [25], None), (24, [], None), (25, [], None)]
else:
  sched = [(None, [], None), (1, [2, 3], "b0"),
         (3, [], None), (None, [4, 5], "b1"),
         (5, [], None), (None, [[6, 7], [6], []][OPT.get("wo", 2)], "b3"),
         (None, [[], [-6, 7], [-6, 6, 7]][OPT.get("wo", 2)], None), (7, [8, 9], "r1"),
         (9, [10, 11], "r2"), (11, [12, 13], "r3"), (13, [14, 15], None),
         (15, [16, 17], "b9"), (17, [18, 19], None), (18, [20, 21], None),
         (19, [22], None),
         (20, [], None), (21, [23], None), (22, [24], None), (23, [25], None), (24, [], None), (25, [], None)]
for k, (nd, aft, tk) in enumerate(sched):
    if nd is not None: land(nd)
    prof(k+1)
    barrier("l")
    for li in aft:
        if li < 0: e(f"s_sleep {-li}")
        else: issue(li)
    if tk: ltouch(tk, OPT.get("tsr", 30) if tk[0] == "r" else OPT.get("tsd", 6))
prof_flush()
e("s_endpgm")
lab("L_iss")
for i in range(16):
    e(f"buffer_load_dwordx4 v{vPat}, {sr(sW,4)}, s{sSO} offen lds")
    if i < 15:
        e("s_add_u32 m0, m0, 1024")
        e(f"s_add_u32 s{sSO}, s{sSO}, s{sSTEP}")
    if i == 7: e(f"s_add_u32 s{sSO}, s{sSO}, s{sMID}")
e(f"s_setpc_b64 {sr(sRET,2)}")
emit_tails()
lab("L_end")
e("s_endpgm")
assert nbar["c"] == nbar["l"] + 1, nbar

out.append('.section .rodata,"a"')
out.append(".p2align 6")
out.append(f".amdhsa_kernel {NAME}_kernel")
out.append(f"  .amdhsa_next_free_vgpr {NVGPR}")
out.append("  .amdhsa_next_free_sgpr 100")
out.append(f"  .amdhsa_accum_offset {NVGPR}")
out.append("  .amdhsa_group_segment_fixed_size 0")
out.append("  .amdhsa_kernarg_size 88")
out.append("  .amdhsa_user_sgpr_count 2")
out.append("  .amdhsa_user_sgpr_kernarg_segment_ptr 1")
out.append("  .amdhsa_system_sgpr_workgroup_id_x 1")
out.append(".end_amdhsa_kernel")
dst = [a for a in sys.argv[1:] if not a.startswith("--")]
open(dst[0] if dst else "cdna_kernels/%s.s" % NAME, "w").write("\n".join(o for o in out if o is not None) + "\n")
```
